```python
import torch

def _softmax(x, axis=-1):
    return torch.softmax(x, dim=axis)
def _gelu(x):
    return torch.nn.functional.gelu(x, approximate="tanh")
def _silu(x):
    return torch.nn.functional.silu(x)
def _sigmoid(x):
    return torch.sigmoid(x)
def _layernorm(x, axis=-1, eps=1e-5):
    m = x.mean(dim=axis, keepdim=True)
    v = x.var(dim=axis, keepdim=True, unbiased=False)
    return (x - m) / torch.sqrt(v + eps)
def _scatter_add(tgt, idx, src, axis=0):
    return tgt.clone().index_add_(axis, idx, src)
def _segment_sum(src, seg, n):
    out = torch.zeros((n,) + src.shape[1:], dtype=src.dtype)
    return out.index_add_(0, seg, src)
def _pad(x, pw):
    flat = tuple(v for pair in reversed(pw) for v in pair)
    return torch.nn.functional.pad(x, flat)

kernel_name = 'gated_mix__mha_block__grouped_kv_mqa__prompt'

def setup_inputs():

    _w = (lambda a: (lambda t: t.to(torch.bfloat16) if t.is_floating_point() else t)(torch.as_tensor(a)))
    def _A_setup():
        B, S, D, H = 1, 2048, 512, 32
        return {
            "x": _w((lambda *s: torch.randn(*s, dtype=torch.bfloat16) * 0.05)(B, S, D)),
            "wqkv": _w((lambda *s: torch.randn(*s, dtype=torch.bfloat16) * 3.2)(D, 3 * D)),
            "wo": _w((lambda *s: torch.randn(*s, dtype=torch.bfloat16) * 1.6)(D, D)),
        }
    _A_in = _A_setup()

    def _B_setup():
        B, S, D, H = 1, 2048, 512, 32
        Dh = D // H
        return {
            "x": _w((lambda *s: torch.randn(*s, dtype=torch.bfloat16) * 0.05)(B, S, D)),
            "wq": _w((lambda *s: torch.randn(*s, dtype=torch.bfloat16) * 3.2)(D, H * Dh)),
            "wk": _w((lambda *s: torch.randn(*s, dtype=torch.bfloat16) * 3.2)(D, Dh)),
            "wv": _w((lambda *s: torch.randn(*s, dtype=torch.bfloat16) * 1.6)(D, Dh)),
            "wo": _w((lambda *s: torch.randn(*s, dtype=torch.bfloat16) * 1.6)(H * Dh, D)),
        }
    _B_in = _B_setup()

    return {
        "A_x": _A_in["x"],
        "A_wqkv": _A_in["wqkv"],
        "A_wo": _A_in["wo"],
        "B_x": _B_in["x"],
        "B_wq": _B_in["wq"],
        "B_wk": _B_in["wk"],
        "B_wv": _B_in["wv"],
        "B_wo": _B_in["wo"],
        "gate_w": _w((lambda *s: torch.randn(*s, dtype=torch.bfloat16) * 0.05)(512) * 16.0),
    }

def reference(A_x, A_wqkv, A_wo, B_x, B_wq, B_wk, B_wv, B_wo, gate_w):
    def _A_ref(x, wqkv, wo):
        B, S, D = x.shape
        H = 32
        Dh = D // H
        qkv = (lambda x, *d: x.permute(*d))((x @ wqkv).reshape(B, S, 3, H, Dh), 2, 0, 3, 1, 4)
        q, k, v = qkv[0], qkv[1], qkv[2]
        scores = torch.einsum("bhqd,bhkd->bhqk", q, k) * (Dh ** -0.5)
        p = _softmax(scores, axis=-1)
        o = torch.einsum("bhqk,bhkd->bhqd", p, v)
        return (lambda x, *d: x.permute(*d))(o, 0, 2, 1, 3).reshape(B, S, D) @ wo

    def _B_ref(x, wq, wk, wv, wo):
        B, S, D = x.shape
        H = 32
        Dh = D // H
        q = (lambda x, *d: x.permute(*d))((x @ wq).reshape(B, S, H, Dh), 0, 2, 1, 3)
        k = x @ wk
        v = x @ wv
        scores = torch.einsum("bhqd,bkd->bhqk", q, k) * (Dh ** -0.5)
        p = _softmax(scores, axis=-1)
        o = torch.einsum("bhqk,bkd->bhqd", p, v)
        return (lambda x, *d: x.permute(*d))(o, 0, 2, 1, 3).reshape(B, S, H * Dh) @ wo

    x = A_x
    g = _sigmoid((x * gate_w).sum(-1, keepdims=True))
    a = _A_ref(x, A_wqkv, A_wo)
    b = _B_ref(x, B_wq, B_wk, B_wv, B_wo)
    return g * a + (1 - g) * b
```

```python
import sys, struct, copy
NAME = "gated_mix__mha_block__grouped_kv_mqa__prompt_kernel"

def f2h(x): return "0x%08x" % struct.unpack('<I', struct.pack('<f', x))[0]

WS_KVA  = 0x000000
WS_KVB  = 0x400000
WS_GATE = 0x420000
WS_F1   = 0x424000
WS_F2   = WS_F1 + 2048
WS_F3   = WS_F1 + 4096
WS_F4   = WS_F1 + 6144
WS_O    = 0x500000
WS_DBG  = 0x900000
WS_SIZE = 0x1000000

SLOT = 16384
LDS_WST = 65536
LDS_EW  = 8 * SLOT
LDS_ER  = 9 * SLOT
LDS_EG  = 9 * SLOT + 8192
LDS_WOB = 2 * SLOT
LDS_WOA = 6 * SLOT

sW, sHP, sTB, sROT, sB = 3, 4, 5, 6, 7
rX, rWS_, rWKV, rGATE, rWS, rDBG, rOUT, rWOA, rWOB = 8, 12, 16, 20, 24, 28, 32, 36, 40
sMASK = 44
sI, sNONCE, sSPIN, sT0, sT1, sT2 = 46, 47, 48, 49, 50, 51
pX, pWQKV, pWOA, pBX, pWQ, pWK, pWV, pWOB, pGATE, pOUT, pDBG, pWS = 52, 54, 56, 58, 60, 62, 64, 66, 68, 70, 72, 74
sXO, sWO, sWSTEP, sW16, sMX, sMW, sKX, sKW = 76, 77, 78, 79, 80, 81, 82, 83
sPC = 84
sFBBASE, sFBRET, sFBT, sDMA, sOST, sT3 = 86, 87, 88, 89, 90, 91
sPOLL = 92
sST = 93
vIDX, vAK, vAV, vG, vL16, vVOFF = 2, 3, 4, 5, 6, 7
vT = 8
S0, S1, O, C, QA, QB, KF, V0, V1 = 16, 32, 48, 64, 80, 84, 88, 92, 96
OF = 100
ACC = 132
WF = 164
vAX = 228
vAW1, vAWQ, vDX0, vDX1, vDW, vKVST, vDWO = 232, 233, 234, 235, 236, 237, 238
vAT = 239
vRW, vOUTA, vFL, vNON = 241, 242, 243, 244
vRR = 245
vPOLL = 248
vDUMMY = 255
QSCALE = 0.25 * 1.4426950408889634
MOFF = 90.0
SPIN = 1 << 20

class G:
    def __init__(s, **opt):
        s.L = []; s.lg = []; s.vm = []; s.opt = opt; s.nlab = 0; s.nst = 0
    def __call__(s, txt):
        for line in txt.split("\n"):
            line = line.strip()
            if not line: continue
            s.L.append(line if (line.endswith(":") or line.startswith(".")) else "    " + line)
    def lab(s, p="L"):
        s.nlab += 1; return f"{p}_{s.nlab}"
    def ds(s, txt, tag=None):
        s(txt); s.lg.append(tag); assert len(s.lg) <= 15, "lgkm overflow"
    def wlg(s, tag=None):
        if tag is None:
            s("s_waitcnt lgkmcnt(0)"); s.lg = []; return
        if tag not in s.lg: return
        i = len(s.lg) - 1 - s.lg[::-1].index(tag)
        n = len(s.lg) - 1 - i
        s(f"s_waitcnt lgkmcnt({n})"); s.lg = s.lg[i + 1:]
    def vmop(s, txt, tag=None):
        s(txt); s.vm.append(tag); assert len(s.vm) <= 63
    def wvm(s, tag=None):
        if tag is None:
            s("s_waitcnt vmcnt(0)"); s.vm = []; return
        if tag not in s.vm: return
        i = len(s.vm) - 1 - s.vm[::-1].index(tag)
        n = len(s.vm) - 1 - i
        s(f"s_waitcnt vmcnt({n})"); s.vm = s.vm[i + 1:]
    def srd(s, d, base, nbytes):
        s(f"s_mov_b32 s{d}, s{base}\ns_and_b32 s{d+1}, s{base+1}, 0xffff\ns_mov_b32 s{d+2}, {nbytes}\ns_mov_b32 s{d+3}, 0x00020000")
    def stamp(s):
        if not s.opt.get('stamps'): return
        s(f"s_memrealtime s[{sT2-1+0}:{sT2}]" if False else "")
        s(f"s_memrealtime s[{sPC}:{sPC+1}]\ns_waitcnt lgkmcnt(0)\ns_mov_b32 s{sST + s.nst}, s{sPC}")
        s.lg = []; s.nst += 1; assert s.nst <= 9
    def text(s): return "\n".join(s.L) + "\n"

def r(a, n): return f"v[{a}:{a+n-1}]"
def sr(a, n=4): return f"s[{a}:{a+n-1}]"

def spin_check(g):
    g(f"s_sub_u32 s{sSPIN}, s{sSPIN}, 1\ns_cbranch_scc1 L_abort")

def setup(g):
    g(f"""
    s_cmp_ge_u32 s2, 256
    s_cbranch_scc1 L_end
    s_load_dwordx16 s[52:67], s[0:1], 0
    s_load_dwordx8 s[68:75], s[0:1], 64
    s_getpc_b64 s[{sPC}:{sPC+1}]
    L_pc:
    v_lshlrev_b32 v{vT}, 7, v0
    v_min_u32 v{vT}, L_codeend-L_pc-4, v{vT}
    """)
    g.vmop(f"global_load_dword v{vDUMMY}, v{vT}, s[{sPC}:{sPC+1}]", 'pf')
    g(f"""
    v_lshrrev_b32 v{vT+1}, 6, v0
    v_and_b32 v1, 63, v0
    s_bfe_u32 s{sTB}, s2, 0x20001
    v_readfirstlane_b32 s{sW}, v{vT+1}
    s_lshl_b32 s{sTB}, s{sTB}, 2
    s_bfe_u32 s{sT0}, s2, 0x20003
    s_add_u32 s{sTB}, s{sTB}, s{sT0}
    s_and_b32 s{sHP}, s2, 1
    s_lshl_b32 s{sHP}, s{sHP}, 3
    s_lshr_b32 s{sT0}, s2, 5
    s_add_u32 s{sHP}, s{sHP}, s{sT0}
    s_lshl_b32 s{sROT}, s{sTB}, 1
    s_add_u32 s{sROT}, s{sROT}, s{sHP}
    s_and_b32 s{sROT}, s{sROT}, 7
    s_lshr_b32 s{sB}, s{sW}, 2
    s_and_b32 s{sI}, s{sW}, 3
    v_lshlrev_b32 v{vL16}, 4, v1
    """)
    g(f"""
    v_and_b32 v{vT+2}, 15, v1
    v_lshrrev_b32 v{vT+3}, 4, v1
    v_lshlrev_b32 v{vT+1}, 4, v{vT+3}
    v_lshl_add_u32 v{vT}, v{vT+2}, 10, v{vT+1}
    """)
    g(f"""
    v_lshrrev_b32 v{vT+4}, 3, v1
    v_and_b32 v{vT+5}, 7, v1
    v_lshrrev_b32 v{vT+6}, 4, v1
    v_xor_b32 v{vT+5}, v{vT+5}, v{vT+6}
    v_lshlrev_b32 v{vT+4}, 10, v{vT+4}
    v_lshl_add_u32 v{vDX0}, v{vT+5}, 4, v{vT+4}
    v_xor_b32 v{vDX1}, 64, v{vDX0}
    v_add_u32 v{vDX1}, 0x2000, v{vDX1}
    """)
    g(f"""
    s_lshr_b32 s{sT0}, s{sW}, 1
    s_cmp_eq_u32 s{sT0}, 3
    s_movk_i32 s{sT2}, 3072
    s_cselect_b32 s{sT1}, 1024, s{sT2}
    s_cselect_b32 s{sT2}, 2, 0
    v_lshrrev_b32 v{vT+4}, 2, v1
    v_and_b32 v{vT+5}, 3, v1
    v_xor_b32 v{vT+5}, s{sT2}, v{vT+5}
    v_mul_u32_u24 v{vT+4}, s{sT1}, v{vT+4}
    v_lshl_add_u32 v{vDW}, v{vT+5}, 4, v{vT+4}
    s_lshl_b32 s{sW16}, s{sT1}, 4
    s_lshl_b32 s{sWSTEP}, s{sT1}, 6
    s_add_u32 s{sT2}, s{sT0}, 1
    s_lshl_b32 s{sT2}, s{sT2}, 10
    s_cmp_ge_u32 s{sT0}, 2
    s_cselect_b32 s{sT2}, 0, s{sT2}
    s_lshl_b32 s{sWO}, s{sHP}, 6
    s_add_u32 s{sWO}, s{sWO}, s{sT2}
    s_and_b32 s{sT2}, s{sW}, 1
    s_mul_i32 s{sT3}, s{sT2}, s{sW16}
    s_lshl_b32 s{sT3}, s{sT3}, 1
    s_add_u32 s{sWO}, s{sWO}, s{sT3}
    s_lshl_b32 s{sMW}, s{sT0}, 12
    s_lshl_b32 s{sT2}, s{sT2}, 11
    s_add_u32 s{sMW}, s{sMW}, s{sT2}
    s_add_u32 s{sMW}, s{sMW}, {LDS_WST}
    s_lshl_b32 s{sMX}, s{sW}, 11
    s_lshl_b32 s{sXO}, s{sTB}, 17
    s_lshl_b32 s{sT2}, s{sW}, 14
    s_add_u32 s{sXO}, s{sXO}, s{sT2}
    s_lshl_b32 s{sKX}, s{sROT}, 7
    s_mul_i32 s{sKW}, s{sROT}, s{sWSTEP}
    """)
    g(f"""
    s_lshr_b32 s{sT2}, s{sHP}, 1
    s_lshl_b32 s{sT2}, s{sT2}, 14
    s_lshl_b32 s{sDMA}, s{sTB}, 17
    s_add_u32 s{sDMA}, s{sDMA}, s{sT2}
    s_lshl_b32 s{sT2}, s{sW}, 7
    s_add_u32 s{sDMA}, s{sDMA}, s{sT2}
    s_mov_b32 s{sOST}, s{sT2}
    """)
    for k in range(8): g(f"v_mov_b32 v{40+k}, 0")
    g(f"v_mov_b32 v{vFL}, 0")
    g("s_waitcnt lgkmcnt(0)")
    g.srd(rX, pX, 2097152)
    g(f"s_bitcmp1_b32 s{sHP}, 0\ns_cselect_b64 s[{rWKV}:{rWKV+1}], s[{pWV}:{pWV+1}], s[{pWK}:{pWK+1}]")
    g(f"s_and_b32 s{rWKV+1}, s{rWKV+1}, 0xffff\ns_mov_b32 s{rWKV+2}, 16384\ns_mov_b32 s{rWKV+3}, 0x00020000")
    g.vmop(f"buffer_load_dwordx4 v[16:19], v{vT}, {sr(rX)}, s{sDMA} offen", 'e')
    g.vmop(f"buffer_load_dwordx4 v[20:23], v{vT}, {sr(rX)}, s{sDMA} offen offset:64", 'e')
    g(f"s_add_u32 m0, s{sMX}, {LDS_EW}")
    g.srd(rGATE, pGATE, 1024)
    g.vmop(f"buffer_load_dwordx4 v{vL16}, {sr(rWKV)}, s{sMX} offen lds", 'e')
    g.vmop(f"buffer_load_dwordx4 v{vL16}, {sr(rWKV)}, s{sMX} offen offset:1024 lds", 'e')
    g(f"s_mov_b32 exec_lo, 0x00010001\ns_mov_b32 exec_hi, 0x00010001")
    g.vmop(f"buffer_load_dwordx4 v[40:43], v{vT+1}, {sr(rGATE)}, s{sOST} offen", 'e')
    g.vmop(f"buffer_load_dwordx4 v[44:47], v{vT+1}, {sr(rGATE)}, s{sOST} offen offset:64", 'e')
    g("s_mov_b64 exec, -1")
    g(f"s_cmp_eq_u32 s{sT0}, 3\ns_cselect_b64 s[{rWS_}:{rWS_+1}], s[{pWQ}:{pWQ+1}], s[{pWQKV}:{pWQKV+1}]")
    g(f"s_mov_b32 s{rWS_+2}, 1572864\ns_cselect_b32 s{rWS_+2}, 524288, s{rWS_+2}\ns_and_b32 s{rWS_+1}, s{rWS_+1}, 0xffff\ns_mov_b32 s{rWS_+3}, 0x00020000")
    nonce_scan(g)
    for j in range(4): p1_dma(g, j)
    g.srd(rWS, pWS, WS_SIZE)
    g.srd(rDBG, pDBG, 256)
    g.srd(rOUT, pOUT, 2097152)
    g.srd(rWOA, pWOA, 524288)
    g.srd(rWOB, pWOB, 524288)
    g(f"s_mov_b32 s{sMASK}, 0x0000ffff\ns_mov_b32 s{sMASK+1}, 0x0000ffff\ns_mov_b32 s{sSPIN}, {SPIN}\ns_mov_b32 s{sNONCE}, 0")

def p1_dma(g, j):
    p = j & 3
    g(f"s_add_u32 m0, s{sMX}, {p*SLOT}\ns_add_u32 s{sT1}, s{sXO}, s{sKX}")
    g.vmop(f"buffer_load_dwordx4 v{vDX0}, {sr(rX)}, s{sT1} offen lds", f'c{j}')
    g(f"s_add_u32 m0, s{sMX}, {p*SLOT+1024}\ns_add_u32 s{sT2}, s{sWO}, s{sKW}")
    g.vmop(f"buffer_load_dwordx4 v{vDX1}, {sr(rX)}, s{sT1} offen lds", f'c{j}')
    g(f"s_add_u32 m0, s{sMW}, {p*SLOT}\ns_add_u32 s{sT1}, s{sT2}, s{sW16}")
    g.vmop(f"buffer_load_dwordx4 v{vDW}, {sr(rWS_)}, s{sT2} offen lds", f'c{j}')
    g(f"s_add_u32 m0, s{sMW}, {p*SLOT+1024}\ns_add_u32 s{sKW}, s{sKW}, s{sWSTEP}")
    g.vmop(f"buffer_load_dwordx4 v{vDW}, {sr(rWS_)}, s{sT1} offen lds", f'c{j}')
    if j < 7:
        g(f"s_add_u32 s{sKX}, s{sKX}, 128\ns_and_b32 s{sKX}, s{sKX}, 1023\ns_cselect_b32 s{sKW}, s{sKW}, 0")

def nonce_scan(g):
    skip = g.lab("L_ns")
    g(f"s_cmp_lg_u32 s2, 0\ns_cbranch_scc1 {skip}\ns_cmp_lg_u32 s{sW}, 7\ns_cbranch_scc1 {skip}")
    g.srd(rWS, pWS, WS_SIZE)
    g(f"v_lshrrev_b32 v{vT+4}, 2, v1\nv_and_b32 v{vT+5}, 3, v1\nv_lshlrev_b32 v{vT+4}, 7, v{vT+4}\nv_lshl_add_u32 v{vT+4}, v{vT+5}, 4, v{vT+4}")
    g(f"v_lshlrev_b32 v{vT+5}, 7, v1\ns_mov_b32 s{sT1}, {WS_F1}\ns_mov_b32 s{sT2}, {WS_F4}")
    g(f"buffer_load_dwordx4 v[48:51], v{vT+4}, {sr(rWS)}, s{sT1} offen sc1")
    g(f"buffer_load_dwordx4 v[52:55], v{vT+4}, {sr(rWS)}, s{sT1} offen offset:2048 sc1")
    g(f"s_mov_b32 s{sT1}, {WS_F3}")
    g(f"buffer_load_dwordx4 v[56:59], v{vT+4}, {sr(rWS)}, s{sT1} offen sc1")
    g(f"buffer_load_dwordx4 v[60:63], v{vT+5}, {sr(rWS)}, s{sT2} offen sc1")
    g(f"{skip}:")

def nonce_producer(g):
    skip = g.lab("L_nn")
    g(f"s_cmp_lg_u32 s2, 0\ns_cbranch_scc1 {skip}\ns_cmp_lg_u32 s{sW}, 7\ns_cbranch_scc1 {skip}")
    g("s_waitcnt vmcnt(16)")
    g(f"v_readfirstlane_b32 s{sT1}, v48")
    lp = g.lab("L_nl")
    g(f"{lp}:\ns_add_u32 s{sT1}, s{sT1}, 1\ns_cbranch_scc1 {lp}")
    g(f"s_mov_b64 s[{sPC}:{sPC+1}], 0")
    for k in range(16):
        g(f"v_cmp_eq_u32 vcc, s{sT1}, v{48+k}\ns_or_b64 s[{sPC}:{sPC+1}], s[{sPC}:{sPC+1}], vcc")
    g(f"s_cbranch_scc1 {lp}")
    g(f"v_mov_b32 v{vT+4}, s{sT1}\nv_mov_b32 v{vT+5}, 0\ns_mov_b64 exec, 1")
    g(f"buffer_store_dword v{vT+4}, v{vT+5}, {sr(rDBG)}, 0 offen sc1\ns_mov_b64 exec, -1")
    g(f"{skip}:")

def p1_addr(g):
    g(f"""
    v_and_b32 v{vT+2}, 31, v1
    v_lshrrev_b32 v{vT+3}, 5, v1
    v_bfe_u32 v{vT+4}, v1, 1, 3
    v_xor_b32 v{vT+4}, v{vT+4}, v{vT+3}
    v_lshlrev_b32 v{vT+4}, 4, v{vT+4}
    v_lshl_add_u32 v{vT+4}, v{vT+2}, 7, v{vT+4}
    s_lshl_b32 s{sT1}, s{sI}, 12
    v_add_u32 v{vAX}, s{sT1}, v{vT+4}
    v_xor_b32 v{vAX+1}, 32, v{vAX}
    v_xor_b32 v{vAX+2}, 64, v{vAX}
    v_xor_b32 v{vAX+3}, 0x60, v{vAX}
    v_bfe_u32 v{vT+4}, v1, 2, 2
    v_and_b32 v{vT+5}, 3, v1
    v_lshlrev_b32 v{vT+5}, 3, v{vT+5}
    v_lshl_add_u32 v{vT+5}, v{vT+4}, 6, v{vT+5}
    v_lshl_add_u32 v{vT+5}, v{vT+3}, 9, v{vT+5}
    v_bfe_u32 v{vT+6}, v1, 4, 1
    v_lshl_add_u32 v{vAW1}, v{vT+6}, 5, v{vT+5}
    s_lshl_b32 s{sT1}, s{sB}, 12
    s_add_u32 s{sT1}, s{sT1}, {LDS_WST}
    v_add_u32 v{vAW1}, s{sT1}, v{vAW1}
    v_xor_b32 v{vT+4}, s{sB}, v{vT+6}
    v_lshl_add_u32 v{vT+5}, v{vT+4}, 5, v{vT+5}
    v_lshl_add_u32 v{vT+5}, v{vT+6}, 12, v{vT+5}
    v_add_u32 v{vAWQ}, {LDS_WST + 8192}, v{vT+5}
    """)
    g(f"""
    v_lshrrev_b32 v{vT+4}, 4, v1
    v_bfe_u32 v{vT+5}, v1, 2, 2
    v_lshl_add_u32 v{vT+4}, v{vT+4}, 3, v{vT+5}
    v_and_b32 v{vT+5}, 3, v1
    v_lshlrev_b32 v{vT+5}, 3, v{vT+5}
    v_lshl_add_u32 v{vT+4}, v{vT+4}, 5, v{vT+5}
    s_add_u32 s{sT1}, s{sMX}, {LDS_EW}
    v_add_u32 v{vT+6}, s{sT1}, v{vT+4}
    s_lshl_b32 s{sT1}, s{sW}, 10
    s_add_u32 s{sT1}, s{sT1}, {LDS_ER}
    v_add_u32 v{vT+7}, s{sT1}, v{vL16}
    s_lshl_b32 s{sT1}, s{sW}, 8
    s_add_u32 s{sT1}, s{sT1}, {LDS_EG}
    v_lshlrev_b32 v{vT+5}, 2, v1
    v_add_u32 v{vT+5}, s{sT1}, v{vT+5}
    """)

def early_compute(g):
    g.wvm('e')
    for s_ in range(2):
        for e in range(2):
            g.ds(f"ds_read_b64_tr_b16 v[{24+4*s_+2*e}:{25+4*s_+2*e}], v{vT+6} offset:{s_*1024+e*128}", 'ew')
    g.wlg('ew')
    lv, le = g.lab("L_ev"), g.lab("L_ee")
    g(f"s_bitcmp1_b32 s{sHP}, 0\ns_cbranch_scc1 {lv}")
    g("v_mfma_f32_16x16x32_bf16 v[32:35], v[24:27], v[16:19], 0")
    g("v_mfma_f32_16x16x32_bf16 v[36:39], v[40:43], v[16:19], 0")
    g("v_mfma_f32_16x16x32_bf16 v[32:35], v[28:31], v[20:23], v[32:35]")
    g("v_mfma_f32_16x16x32_bf16 v[36:39], v[44:47], v[20:23], v[36:39]")
    g(f"s_branch {le}\n{lv}:")
    g("v_mfma_f32_16x16x32_bf16 v[32:35], v[16:19], v[24:27], 0")
    g("v_mov_b32 v36, 0")
    g("v_mfma_f32_16x16x32_bf16 v[32:35], v[20:23], v[28:31], v[32:35]")
    g(f"{le}:\ns_nop 7")
    g.ds(f"ds_write_b128 v{vT+7}, v[32:35]", 'ep')
    g.ds(f"ds_write_b32 v{vT+5}, v36", 'ep')
    g.wlg()

def early_reduce(g):
    skip = g.lab("L_er")
    g(f"s_cmp_lg_u32 s{sW}, 0\ns_cbranch_scc1 {skip}")
    g(f"v_add_u32 v{vT+4}, {LDS_ER}, v{vL16}\nv_lshlrev_b32 v{vT+5}, 2, v1\nv_add_u32 v{vT+5}, {LDS_EG}, v{vT+5}")
    for k in range(8): g(f"ds_read_b128 v[{16+4*k}:{19+4*k}], v{vT+4} offset:{k*1024}")
    g("s_waitcnt lgkmcnt(0)")
    for k in range(8): g(f"ds_read_b32 v{48+k}, v{vT+5} offset:{k*256}")
    g(f"""
    s_lshr_b32 s{sT0}, s{sHP}, 1
    s_lshl_b32 s{sT1}, s{sTB}, 2
    s_lshr_b32 s{sT2}, s{sT0}, 1
    s_add_u32 s{sT1}, s{sT1}, s{sT2}
    s_lshr_b32 s{sT2}, s{sT1}, 3
    s_lshl_b32 s{sT2}, s{sT2}, 14
    s_and_b32 s{sT1}, s{sT1}, 7
    s_lshl_b32 s{sT1}, s{sT1}, 10
    s_add_u32 s{sT1}, s{sT1}, s{sT2}
    s_add_u32 s{sT1}, s{sT1}, {WS_KVB}
    s_and_b32 s{sT0}, s{sT0}, 1
    v_and_b32 v{vT}, 15, v1
    v_bfe_u32 v{vT+1}, v1, 4, 1
    v_lshrrev_b32 v{vT+2}, 5, v1
    v_lshlrev_b32 v{vT+2}, 3, v{vT+2}
    """)
    for k in range(1, 8):
        for q in range(4): g(f"v_add_f32 v{16+q}, v{16+q}, v{16+4*k+q}")
    g("v_cvt_pk_bf16_f32 v16, v16, v17\nv_cvt_pk_bf16_f32 v17, v18, v19")
    lv, le = g.lab("L_rv"), g.lab("L_re")
    g(f"s_bitcmp1_b32 s{sHP}, 0\ns_cbranch_scc1 {lv}")
    g(f"""
    v_and_b32 v{vT+3}, 3, v{vT}
    v_bfe_u32 v{vT+6}, v{vT}, 2, 1
    v_lshl_add_u32 v{vT+3}, v{vT+6}, 3, v{vT+3}
    v_bfe_u32 v{vT+6}, v{vT}, 3, 1
    v_lshl_add_u32 v{vT+3}, v{vT+6}, 2, v{vT+3}
    v_lshl_add_u32 v{vT+3}, v{vT+1}, 5, v{vT+3}
    v_lshl_add_u32 v{vT+3}, v{vT+3}, 4, v{vT+2}
    s_lshl_b32 s{sT0}, s{sT0}, 8
    s_add_u32 s{sT1}, s{sT1}, s{sT0}
    buffer_store_dwordx2 v[16:17], v{vT+3}, {sr(rWS)}, s{sT1} offen sc1
    s_waitcnt lgkmcnt(0)
    """)
    for k in range(1, 8): g(f"v_add_f32 v48, v48, v{48+k}")
    g(f"""
    v_mul_f32 v48, {f2h(-1.4426950408889634)}, v48
    v_exp_f32 v48, v48
    s_lshr_b32 s{sT0}, s{sHP}, 1
    s_lshl_b32 s{sT0}, s{sT0}, 6
    v_add_f32 v48, 1.0, v48
    v_rcp_f32 v48, v48
    s_lshl_b32 s{sT1}, s{sTB}, 9
    s_add_u32 s{sT1}, s{sT1}, s{sT0}
    s_add_u32 s{sT1}, s{sT1}, {WS_GATE}
    v_lshlrev_b32 v{vT+3}, 2, v1
    s_mov_b64 exec, 0xffff
    buffer_store_dword v48, v{vT+3}, {sr(rWS)}, s{sT1} offen sc1
    s_mov_b64 exec, -1
    s_branch {le}
    {lv}:
    v_lshl_add_u32 v{vT+3}, v{vT+1}, 4, v{vT}
    v_lshl_add_u32 v{vT+3}, v{vT+3}, 4, v{vT+2}
    s_lshl_b32 s{sT0}, s{sT0}, 9
    s_add_u32 s{sT1}, s{sT1}, s{sT0}
    s_add_u32 s{sT1}, s{sT1}, 8192
    buffer_store_dwordx2 v[16:17], v{vT+3}, {sr(rWS)}, s{sT1} offen sc1
    s_waitcnt lgkmcnt(0)
    {le}:
    v_mov_b32 v{vT+3}, 0
    buffer_load_dword v{vNON}, v{vT+3}, {sr(rDBG)}, 0 offen sc1
    {skip}:
    """)

def get_nonce(g):
    lp, ok = g.lab("L_gn"), g.lab("L_gk")
    g(f"{lp}:\nv_readfirstlane_b32 s{sNONCE}, v{vNON}\ns_nop 3\ns_cmp_lg_u32 s{sNONCE}, 0\ns_cbranch_scc1 {ok}")
    spin_check(g)
    g(f"v_mov_b32 v{vT+3}, 0\nbuffer_load_dword v{vNON}, v{vT+3}, {sr(rDBG)}, 0 offen sc1\ns_waitcnt vmcnt(0)\ns_branch {lp}\n{ok}:")

def flag_store(g, off_expr_setup):
    g(off_expr_setup)
    g(f"v_mov_b32 v{vT}, s{sNONCE}\nv_mov_b32 v{vT+1}, 0\ns_mov_b64 exec, 1")
    g(f"buffer_store_dword v{vT}, v{vT+1}, {sr(rWS)}, s{sT1} offen sc1\ns_mov_b64 exec, -1")

def poll_issue(g, kind):
    if kind == 1:
        g(f"v_lshrrev_b32 v{vT}, 2, v1\nv_and_b32 v{vT+1}, 3, v1\nv_lshlrev_b32 v{vT}, 7, v{vT}\nv_lshl_add_u32 v{vFL}, v{vT+1}, 4, v{vT}\ns_mov_b32 s{sPOLL}, {WS_F1}")
    elif kind in (2, 3):
        src = sHP if kind == 2 else sTB
        g(f"v_and_b32 v{vT}, 3, v1\nv_lshlrev_b32 v{vFL}, 4, v{vT}\ns_lshl_b32 s{sPOLL}, s{src}, 7\ns_add_u32 s{sPOLL}, s{sPOLL}, {WS_F2 if kind == 2 else WS_F3}")
    else:
        g(f"v_mov_b32 v{vFL}, 0\ns_lshl_b32 s{sPOLL}, s{sTB}, 2\ns_add_u32 s{sPOLL}, s{sPOLL}, s{sI}\ns_lshl_b32 s{sPOLL}, s{sPOLL}, 7\ns_add_u32 s{sPOLL}, s{sPOLL}, {WS_F4}")
    g(f"buffer_load_dwordx4 {r(vPOLL,4)}, v{vFL}, {sr(rWS)}, s{sPOLL} offen sc1")

def poll_check(g):
    lp, ok = g.lab("L_pl"), g.lab("L_pk")
    g(f"{lp}:")
    for k in range(4): g(f"v_xor_b32 v{vPOLL+k}, s{sNONCE}, v{vPOLL+k}")
    g(f"v_or_b32 v{vPOLL}, v{vPOLL}, v{vPOLL+1}\nv_or3_b32 v{vPOLL}, v{vPOLL}, v{vPOLL+2}, v{vPOLL+3}\nv_cmp_ne_u32 vcc, 0, v{vPOLL}\ns_nop 4\ns_cbranch_vccz {ok}")
    spin_check(g)
    g(f"buffer_load_dwordx4 {r(vPOLL,4)}, v{vFL}, {sr(rWS)}, s{sPOLL} offen sc1\ns_waitcnt vmcnt(0)\ns_branch {lp}\n{ok}:")

def w0(g):
    skip = g.lab("L_w0")
    g(f"s_cmp_lg_u32 s{sW}, 0\ns_cbranch_scc1 {skip}")
    return skip

def kv_dma(g, src_expr, slot, tag):
    g(f"s_lshl_b32 s{sT2}, s{sW}, 12\ns_add_u32 m0, s{sT2}, {slot*SLOT}")
    g(src_expr)
    for e in range(4):
        g.vmop(f"buffer_load_dwordx4 v{vL16}, {sr(rWS)}, s{sT1} offen offset:{e*1024} sc1 lds", tag)
def dma_B(g, c, slot, tag):
    kv_dma(g, f"s_lshl_b32 s{sT1}, s{sW}, 12\ns_add_u32 s{sT1}, s{sT1}, {WS_KVB + c*SLOT}", slot, tag)
def dma_A(g, c, slot, tag):
    kv_dma(g, f"s_add_u32 s{sT1}, s{sDMA}, {WS_KVA + c*SLOT}", slot, tag)
def dma_Wo(g, rs, grp, ldsbase, tag):
    g(f"s_lshl_b32 s{sT3}, s{sW}, 15\ns_and_b32 s{sT1}, s{sHP}, 7\ns_lshl_b32 s{sT1}, s{sT1}, 7\ns_add_u32 s{sT3}, s{sT3}, s{sT1}\ns_lshl_b32 s{sT2}, s{sW}, 12")
    for e in range(4):
        g(f"s_add_u32 m0, s{sT2}, {ldsbase + grp*32768 + e*1024}\ns_add_u32 s{sT1}, s{sT3}, {grp*262144 + e*8192}")
        g.vmop(f"buffer_load_dwordx4 v{vDWO}, {sr(rs)}, s{sT1} offen lds", tag)

def phase1(g, b):
    T1, TQ = ACC, ACC + 16
    def XF(s_): return WF + 12 * s_
    def W1(s_): return WF + 12 * s_ + 4
    def WQ(s_): return WF + 12 * s_ + 8
    def reads(p, s_):
        g.ds(f"ds_read_b128 {r(XF(s_),4)}, v{vAX+s_} offset:{p*SLOT}", f'f{s_}')
        for e in range(2): g.ds(f"ds_read_b64_tr_b16 {r(W1(s_)+2*e,2)}, v{vAW1} offset:{p*SLOT+s_*1024+e*256}", f'f{s_}')
        for e in range(2): g.ds(f"ds_read_b64_tr_b16 {r(WQ(s_)+2*e,2)}, v{vAWQ} offset:{p*SLOT+s_*1024+e*256}", f'f{s_}')
    def mf(j, s_):
        g.wlg(f'f{s_}')
        c1 = "0" if (j == 0 and s_ == 0) else r(T1, 16)
        cq = "0" if (j == 0 and s_ == 0) else r(TQ, 16)
        if b == 0: g(f"v_mfma_f32_32x32x16_bf16 {r(T1,16)}, {r(W1(s_),4)}, {r(XF(s_),4)}, {c1}")
        else:      g(f"v_mfma_f32_32x32x16_bf16 {r(T1,16)}, {r(XF(s_),4)}, {r(W1(s_),4)}, {c1}")
        g(f"v_mfma_f32_32x32x16_bf16 {r(TQ,16)}, {r(WQ(s_),4)}, {r(XF(s_),4)}, {cq}")
    for j in range(8):
        p = j & 3
        g.wvm(f'c{j}')
        if b == 0 and j == 3:
            sk = w0(g)
            g("s_waitcnt vmcnt(8)")
            get_nonce(g)
            flag_store(g, f"s_lshl_b32 s{sT1}, s{sTB}, 7\ns_lshl_b32 s{sT2}, s{sHP}, 2\ns_add_u32 s{sT1}, s{sT1}, s{sT2}\ns_add_u32 s{sT1}, s{sT1}, {WS_F1}")
            g(f"{sk}:")
        if b == 0 and j == 7:
            sk = w0(g); g("s_waitcnt vmcnt(0)"); poll_check(g); g(f"{sk}:")
        g("s_barrier")
        if j == 0 and b == 0: early_reduce(g)
        reads(p, 0); reads(p, 1)
        if 1 <= j <= 4: p1_dma(g, j + 3)
        if b == 0 and j == 6:
            sk = w0(g); poll_issue(g, 1); g(f"{sk}:")
        if j == 7: dma_B(g, 0, 8, 'B01')
        reads(p, 2)
        mf(j, 0)
        reads(p, 3)
        mf(j, 1); mf(j, 2); mf(j, 3)
    g(f"""
    s_lshl_b32 s{sT1}, s{sHP}, 18
    s_lshr_b32 s{sT2}, s{sTB}, 1
    s_lshl_b32 s{sT2}, s{sT2}, 14
    s_add_u32 s{sT1}, s{sT1}, s{sT2}
    s_and_b32 s{sT2}, s{sTB}, 1
    s_lshl_b32 s{sT2}, s{sT2}, 2
    s_add_u32 s{sT2}, s{sT2}, s{sI}
    s_lshl_b32 s{sT2}, s{sT2}, 10
    s_add_u32 s{sT1}, s{sT1}, s{sT2}
    """)
    if b == 0:
        g(f"""
        v_and_b32 v{vT}, 0x23, v1
        v_and_b32 v{vT+1}, 0x10, v1
        v_or_b32 v{vT}, v{vT}, v{vT+1}
        v_bfe_u32 v{vT+1}, v1, 2, 1
        v_lshl_or_b32 v{vT}, v{vT+1}, 3, v{vT}
        v_bfe_u32 v{vT+1}, v1, 3, 1
        v_lshl_or_b32 v{vT}, v{vT+1}, 2, v{vT}
        v_lshlrev_b32 v{vKVST}, 4, v{vT}
        s_add_u32 s{sT2}, s{sT1}, 131072
        """)
    else:
        g(f"""
        v_bfe_u32 v{vT}, v1, 4, 1
        v_lshlrev_b32 v{vT}, 17, v{vT}
        v_lshrrev_b32 v{vT+1}, 5, v1
        v_and_b32 v{vT+2}, 15, v1
        v_lshl_add_u32 v{vT+1}, v{vT+1}, 4, v{vT+2}
        v_lshl_add_u32 v{vKVST}, v{vT+1}, 4, v{vT}
        s_add_u32 s{sT1}, s{sT1}, 8192
        s_nop 0
        s_nop 0
        """)
    g("s_nop 3")
    for k in range(8): g(f"v_cvt_pk_bf16_f32 v{S0+k}, v{T1+2*k}, v{T1+2*k+1}")
    if b == 0:
        g.vmop(f"buffer_store_dwordx4 {r(S0,4)}, v{vKVST}, {sr(rWS)}, s{sT1} offen sc1", 'kvst')
        g.vmop(f"buffer_store_dwordx4 {r(S0+4,4)}, v{vKVST}, {sr(rWS)}, s{sT2} offen sc1", 'kvst')
    else:
        g.vmop(f"buffer_store_dwordx4 {r(S0,4)}, v{vKVST}, {sr(rWS)}, s{sT1} offen sc1", 'kvst')
        g.vmop(f"buffer_store_dwordx4 {r(S0+4,4)}, v{vKVST}, {sr(rWS)}, s{sT1} offen offset:512 sc1", 'kvst')
    g(f"s_mov_b32 s{sT3}, {f2h(QSCALE)}")
    for k in range(16): g(f"v_mul_f32 v{TQ+k}, s{sT3}, v{TQ+k}")
    for k in range(8): g(f"v_cvt_pk_bf16_f32 v{QA+k}, v{TQ+2*k}, v{TQ+2*k+1}")

def attn_consts(g):
    g(f"""
    v_mov_b32 v{vIDX}, 0xdddddddd
    v_lshrrev_b32 v{vT}, 5, v1
    v_and_b32 v{vT+1}, 15, v1
    v_lshl_add_u32 v{vT}, v{vT}, 4, v{vT+1}
    v_lshlrev_b32 v{vVOFF}, 4, v{vT}
    v_and_b32 v{vT}, 31, v1
    v_cmp_eq_u32 vcc, 16, v{vT}
    v_mov_b32 v{vT+1}, 0x3f803f80
    v_add_u32 v{vAK}, {8*SLOT}, v{vL16}
    v_cndmask_b32 v{vT+1}, 0, v{vT+1}, vcc
    v_add_u32 v{vAV}, {8*SLOT + 8192}, v{vVOFF}
    """)
    for k in range(8): g(f"v_mov_b32 v{V0+k}, v{vT+1}")
    for k in range(9, 16): g(f"v_mov_b32 v{O+k}, 0")
    g(f"""
    s_lshl_b32 s{sT1}, s{sHP}, 1
    s_add_u32 s{sT1}, s{sT1}, s{sB}
    s_lshl_b32 s{sDMA}, s{sT1}, 17
    s_lshl_b32 s{sT2}, s{sI}, 12
    s_add_u32 s{sDMA}, s{sDMA}, s{sT2}
    s_lshl_b32 s{sT2}, s{sTB}, 2
    s_add_u32 s{sT2}, s{sT2}, s{sI}
    s_lshl_b32 s{sT2}, s{sT2}, 5
    s_add_u32 s{sT2}, s{sT2}, s{sT1}
    s_lshl_b32 s{sOST}, s{sT2}, 10
    """)

def vread(g, reg, off, tag):
    g(f"s_mov_b64 exec, s[{sMASK}:{sMASK+1}]")
    g.ds(f"ds_read_b128 {r(reg,4)}, v{vAV} offset:{off}", tag)
    g("s_mov_b64 exec, -1")

def task_prologue(g, Q):
    g.ds(f"ds_read_b128 {r(KF,4)}, v{vAK}", 'K')
    vread(g, V0, 0, 'V0')
    g.wlg('K')
    g(f"v_mfma_f32_32x32x16_bf16 {r(S1,16)}, {r(KF,4)}, {r(Q,4)}, 0")
    for k in range(9): g(f"v_mov_b32 v{O+k}, 0")
    g("s_nop 3")
    g(f"v_max3_f32 v{vT}, v{S1}, v{S1+1}, v{S1+2}")
    g(f"v_max3_f32 v{vT+1}, v{S1+3}, v{S1+4}, v{S1+5}")
    for k in range(6, 16, 4):
        g(f"v_max3_f32 v{vT}, v{vT}, v{S1+k}, v{S1+k+1}")
        if k + 3 < 16: g(f"v_max3_f32 v{vT+1}, v{vT+1}, v{S1+k+2}, v{S1+k+3}")
    g(f"v_max_f32 v{vT}, v{vT}, v{vT+1}")
    set_c_from_max(g, MOFF)
    g(f"v_mfma_f32_32x32x16_bf16 {r(S0,16)}, {r(KF,4)}, {r(Q,4)}, {r(C,16)}")
    g.ds(f"ds_read_b128 {r(KF,4)}, v{vAK} offset:1024", 'K')
    g("s_nop 10")

def set_c_from_max(g, off):
    g(f"v_mov_b32 v{vT+1}, v{vT}\ns_nop 1\nv_permlane32_swap_b32 v{vT}, v{vT+1}\ns_nop 1")
    g(f"v_max_f32 v{vT}, v{vT}, v{vT+1}")
    g(f"v_sub_f32 v{C}, {f2h(-off)}, v{vT}")
    for k in range(1, 16): g(f"v_mov_b32 v{C+k}, v{C}")
    g("s_nop 1")

PPAT = (1, 0, 3, 3, 3, 2, 2, 1)
def tile(g, T, Q, delta_next, pos=(2, 4, 10)):
    t = T & 7
    cur, nxt = (S0, S1) if T % 2 == 0 else (S1, S0)
    p1, pq, p0 = pos
    for i in range(16):
        if i == p1:
            if T > 0:
                g.wlg('V1')
                g(f"v_smfmac_f32_32x32x32_bf16 {r(O,16)}, {r(V1,4)}, {r(nxt+8,8)}, v{vIDX}")
            vread(g, V1, t * 1024 + 512, 'V1')
        if i == pq:
            if T < 63:
                g.wlg('K')
                g(f"v_mfma_f32_32x32x16_bf16 {r(nxt,16)}, {r(KF,4)}, {r(Q,4)}, {r(C,16)}")
            if PPAT[t] != PPAT[t - 1]: g(f"s_setprio {PPAT[t]}")
            if T < 62:
                if t == 6: g(f"v_add_u32 v{vAK}, {delta_next & 0xffffffff}, v{vAK}")
                g.ds(f"ds_read_b128 {r(KF,4)}, v{vAK} offset:{((t + 2) & 7) * 1024}", 'K')
        if i == p0:
            g.wlg('V0')
            g(f"v_smfmac_f32_32x32x32_bf16 {r(O,16)}, {r(V0,4)}, {r(cur,8)}, v{vIDX}")
            if T < 63:
                if t == 7: g(f"v_add_u32 v{vAV}, {delta_next & 0xffffffff}, v{vAV}")
                vread(g, V0, ((t + 1) & 7) * 1024, 'V0')
        g(f"v_exp_f32 v{cur+i}, v{cur+i}")
    if T == 63:
        g.wlg('V1')
        g("s_nop 0")
        g(f"v_smfmac_f32_32x32x32_bf16 {r(O,16)}, {r(V1,4)}, {r(cur+8,8)}, v{vIDX}")

def task_epilogue(g, task):
    ret = f"L_fbret{task}"
    g(f"s_mov_b32 s{sFBRET}, {task}")
    if task == 0: g(f"s_mov_b32 s{sFBBASE}, {WS_KVB}")
    else: g(f"s_lshl_b32 s{sT1}, s{sI}, 12\ns_sub_u32 s{sFBBASE}, s{sDMA}, s{sT1}")
    g(f"v_mov_b32 v{vT+5}, {f2h(2.0**-97)}\nv_mov_b32 v{vT+6}, {f2h(2.0**120)}\nv_mov_b32 v{vT+7}, 0x207")
    g("s_nop 7")
    g(f"""
    v_mov_b32 v{vT}, v{O+8}
    v_mov_b32 v{vT+1}, v{O+8}
    v_max3_f32 v{vT+2}, |v{O}|, |v{O+1}|, |v{O+2}|
    v_max3_f32 v{vT+3}, |v{O+3}|, |v{O+4}|, |v{O+5}|
    v_permlane32_swap_b32 v{vT}, v{vT+1}
    v_max3_f32 v{vT+2}, v{vT+2}, |v{O+6}|, |v{O+7}|
    v_max_f32 v{vT+2}, v{vT+2}, v{vT+3}
    v_add_f32 v{vT+4}, v{O}, v{O+1}
    v_mov_b32 v{vT+3}, v{vT+2}
    """)
    for k in range(2, 8): g(f"v_add_f32 v{vT+4}, v{vT+4}, v{O+k}")
    g(f"""
    v_permlane32_swap_b32 v{vT+2}, v{vT+3}
    v_cmp_class_f32 vcc, v{vT+4}, v{vT+7}
    s_mov_b64 s[{sPC}:{sPC+1}], vcc
    v_max_f32 v{vT+2}, v{vT+2}, v{vT+3}
    v_cmp_nlt_f32 vcc, v{vT}, v{vT+6}
    s_or_b64 s[{sPC}:{sPC+1}], s[{sPC}:{sPC+1}], vcc
    v_cmp_nge_f32 vcc, v{vT+2}, v{vT+5}
    s_or_b64 s[{sPC}:{sPC+1}], s[{sPC}:{sPC+1}], vcc
    v_cmp_nge_f32 vcc, v{vT}, v{vT+5}
    s_or_b64 s[{sPC}:{sPC+1}], s[{sPC}:{sPC+1}], vcc
    """)
    if g.opt.get('force_fb'): g(f"s_mov_b64 s[{sPC}:{sPC+1}], -1")
    g(f"s_cmp_lg_u64 s[{sPC}:{sPC+1}], 0\ns_cbranch_scc1 L_fallback\n{ret}:")
    g(f"v_rcp_f32 v{vT}, v{vT}")
    if task == 0: g(f"v_sub_f32 v{vT+1}, 1.0, v{vG}")
    else: g(f"v_mov_b32 v{vT+1}, v{vG}")
    g(f"v_mul_f32 v{vT}, v{vT}, v{vT+1}")
    for k in range(8): g(f"v_mul_f32 v{O+k}, v{vT}, v{O+k}")
    for k in range(4): g(f"v_cvt_pk_bf16_f32 v{vT+4+k}, v{O+2*k}, v{O+2*k+1}")
    g(f"s_add_u32 s{sT1}, s{sOST}, {WS_O + (0 if task == 0 else 0x200000)}")
    g.vmop(f"buffer_store_dwordx4 {r(vT+4,4)}, v{vL16}, {sr(rWS)}, s{sT1} offen sc1", 'ost')

def fallback(g):
    Q = QA
    g("L_fallback:")
    g(f"s_cmp_eq_u32 s{sFBRET}, 0")
    g(f"s_cselect_b64 vcc, -1, 0")
    g("s_nop 1")
    for k in range(4): g(f"v_cndmask_b32 v{vPOLL+k}, v{QA+k}, v{QB+k}, vcc")
    Q = vPOLL
    g(f"v_mov_b32 v{vT}, 0xff800000\ns_mov_b32 s{sFBT}, 0")
    def addr():
        g(f"s_lshr_b32 s{sT1}, s{sFBT}, 3\ns_lshl_b32 s{sT1}, s{sT1}, 14\ns_and_b32 s{sT2}, s{sFBT}, 7\ns_lshl_b32 s{sT2}, s{sT2}, 10\ns_add_u32 s{sT1}, s{sT1}, s{sT2}\ns_add_u32 s{sT1}, s{sT1}, s{sFBBASE}")
    g("L_fb1:"); addr()
    g(f"buffer_load_dwordx4 {r(KF,4)}, v{vL16}, {sr(rWS)}, s{sT1} offen sc1\ns_waitcnt vmcnt(0)")
    g(f"v_mfma_f32_32x32x16_bf16 {r(S0,16)}, {r(KF,4)}, {r(Q,4)}, 0\ns_nop 15")
    for k in range(0, 16, 2): g(f"v_max3_f32 v{vT}, v{vT}, v{S0+k}, v{S0+k+1}")
    g(f"s_add_u32 s{sFBT}, s{sFBT}, 1\ns_cmp_lt_u32 s{sFBT}, 64\ns_cbranch_scc1 L_fb1")
    set_c_from_max(g, 0.0)
    for k in range(16): g(f"v_mov_b32 v{O+k}, 0")
    g(f"s_mov_b32 s{sFBT}, 0")
    g("L_fb2:"); addr()
    g(f"buffer_load_dwordx4 {r(KF,4)}, v{vL16}, {sr(rWS)}, s{sT1} offen sc1\ns_add_u32 s{sT1}, s{sT1}, 8192")
    g(f"s_mov_b64 exec, s[{sMASK}:{sMASK+1}]")
    g(f"buffer_load_dwordx4 {r(V0,4)}, v{vVOFF}, {sr(rWS)}, s{sT1} offen sc1\nbuffer_load_dwordx4 {r(V1,4)}, v{vVOFF}, {sr(rWS)}, s{sT1} offen offset:512 sc1")
    g("s_mov_b64 exec, -1\ns_waitcnt vmcnt(0)")
    g(f"v_mfma_f32_32x32x16_bf16 {r(S0,16)}, {r(KF,4)}, {r(Q,4)}, {r(C,16)}\ns_nop 15")
    for k in range(16): g(f"v_exp_f32 v{S0+k}, v{S0+k}")
    g("s_nop 2")
    g(f"v_smfmac_f32_32x32x32_bf16 {r(O,16)}, {r(V0,4)}, {r(S0,8)}, v{vIDX}")
    g(f"v_smfmac_f32_32x32x32_bf16 {r(O,16)}, {r(V1,4)}, {r(S0+8,8)}, v{vIDX}")
    g(f"s_nop 15\ns_add_u32 s{sFBT}, s{sFBT}, 1\ns_cmp_lt_u32 s{sFBT}, 64\ns_cbranch_scc1 L_fb2")
    g(f"v_mov_b32 v{vT}, v{O+8}\nv_mov_b32 v{vT+1}, v{O+8}\ns_nop 1\nv_permlane32_swap_b32 v{vT}, v{vT+1}\ns_nop 1")
    g(f"s_cmp_eq_u32 s{sFBRET}, 0\ns_cbranch_scc1 L_fbret0\ns_branch L_fbret1")

def tail_addr(g):
    g(f"""
    v_lshrrev_b32 v{vT}, 3, v1
    v_bfe_u32 v{vT+1}, v1, 2, 1
    v_bfe_u32 v{vT+2}, v1, 4, 1
    v_xor_b32 v{vT+1}, v{vT+1}, v{vT+2}
    v_lshlrev_b32 v{vT+1}, 6, v{vT+1}
    v_lshl_add_u32 v{vT+1}, v{vT}, 10, v{vT+1}
    v_and_b32 v{vT+3}, 3, v1
    v_lshl_add_u32 v{vDWO}, v{vT+3}, 4, v{vT+1}
    v_lshrrev_b32 v{vT}, 5, v1
    v_bfe_u32 v{vT+1}, v1, 2, 2
    v_lshl_add_u32 v{vT}, v{vT}, 2, v{vT+1}
    v_lshlrev_b32 v{vT}, 7, v{vT}
    v_bfe_u32 v{vT+1}, v1, 3, 1
    v_lshl_add_u32 v{vT}, v{vT+1}, 6, v{vT}
    v_lshl_add_u32 v{vT}, v{vT+2}, 5, v{vT}
    v_lshl_add_u32 v{vT}, v{vT+3}, 3, v{vT}
    s_lshl_b32 s{sT1}, s{sI}, 14
    s_add_u32 s{sT1}, s{sT1}, {LDS_WOB}
    v_add_u32 v{vAT}, s{sT1}, v{vT}
    v_xor_b32 v{vAT+1}, 64, v{vAT}
    v_and_b32 v{vT}, 31, v1
    v_lshrrev_b32 v{vT+1}, 5, v1
    v_and_b32 v{vT+2}, 15, v1
    v_xor_b32 v{vT+1}, v{vT+1}, v{vT+2}
    v_lshlrev_b32 v{vT+1}, 4, v{vT+1}
    v_lshl_add_u32 v{vT}, v{vT}, 8, v{vT+1}
    s_lshl_b32 s{sT1}, s{sW}, 13
    v_add_u32 v{vRW}, s{sT1}, v{vT}
    v_lshrrev_b32 v{vT}, 3, v1
    s_lshl_b32 s{sT1}, s{sI}, 3
    v_add_u32 v{vT}, s{sT1}, v{vT}
    v_and_b32 v{vT+1}, 7, v1
    v_lshlrev_b32 v{vT+2}, 1, v{vT+1}
    v_and_b32 v{vT+3}, 15, v{vT}
    v_xor_b32 v{vT+2}, v{vT+2}, v{vT+3}
    v_lshlrev_b32 v{vT+2}, 4, v{vT+2}
    v_lshl_add_u32 v{vT+2}, v{vT}, 8, v{vT+2}
    s_lshl_b32 s{sT1}, s{sB}, 15
    v_add_u32 v{vRR}, s{sT1}, v{vT+2}
    v_xor_b32 v{vRR+1}, 16, v{vRR}
    s_lshl_b32 s{sT1}, s{sTB}, 7
    s_lshr_b32 s{sT2}, s{sHP}, 3
    s_lshl_b32 s{sT2}, s{sT2}, 6
    s_add_u32 s{sT1}, s{sT1}, s{sT2}
    s_lshl_b32 s{sT2}, s{sB}, 5
    s_add_u32 s{sT1}, s{sT1}, s{sT2}
    v_add_u32 v{vT}, s{sT1}, v{vT}
    v_lshlrev_b32 v{vT}, 10, v{vT}
    v_lshl_add_u32 v{vT}, v{vT+1}, 4, v{vT}
    s_and_b32 s{sT2}, s{sHP}, 7
    s_lshl_b32 s{sT2}, s{sT2}, 7
    v_add_u32 v{vOUTA}, s{sT2}, v{vT}
    """)

def of_loads(g, branch, tag):
    g(f"""
    s_lshl_b32 s{sT1}, s{sTB}, 2
    s_lshr_b32 s{sT2}, s{sHP}, 3
    s_lshl_b32 s{sT2}, s{sT2}, 1
    s_add_u32 s{sT1}, s{sT1}, s{sT2}
    s_add_u32 s{sT1}, s{sT1}, s{sB}
    s_lshl_b32 s{sT1}, s{sT1}, 15
    s_lshl_b32 s{sT2}, s{sI}, 13
    s_add_u32 s{sT1}, s{sT1}, s{sT2}
    s_add_u32 s{sT1}, s{sT1}, {WS_O + branch*0x200000}
    s_add_u32 s{sT2}, s{sT1}, 4096
    """)
    for n in range(8):
        g.vmop(f"buffer_load_dwordx4 {r(OF+4*n,4)}, v{vL16}, {sr(rWS)}, s{sT1 if n < 4 else sT2} offen offset:{(n&3)*1024} sc1", f'{tag}{n}')

def wfrag_reads(g, n):
    for tc in range(2):
        for e in range(2):
            g.ds(f"ds_read_b64_tr_b16 {r(WF+8*n+4*tc+2*e,2)}, v{vAT+tc} offset:{n*2048+e*1024}", f'w{n}')

def tail(g):
    for n in range(3): wfrag_reads(g, n)
    g.wvm('OB7')
    for n in range(8):
        g.wlg(f'w{n}')
        for tc in range(2):
            c = "0" if n == 0 else r(ACC+16*tc, 16)
            g(f"v_mfma_f32_32x32x16_bf16 {r(ACC+16*tc,16)}, {r(WF+8*n+4*tc,4)}, {r(OF+4*n,4)}, {c}")
        if n + 3 < 8: wfrag_reads(g, n + 3)
    g.stamp()
    g.wvm()
    g("s_barrier")
    sk = w0(g)
    flag_store(g, f"s_lshl_b32 s{sT1}, s{sTB}, 2\ns_lshr_b32 s{sT2}, s{sHP}, 2\ns_add_u32 s{sT1}, s{sT1}, s{sT2}\ns_lshl_b32 s{sT1}, s{sT1}, 7\ns_and_b32 s{sT2}, s{sHP}, 3\ns_lshl_b32 s{sT2}, s{sT2}, 2\ns_add_u32 s{sT1}, s{sT1}, s{sT2}\ns_add_u32 s{sT1}, s{sT1}, {WS_F4}")
    g(f"{sk}:")
    poll_issue(g, 4)
    g(f"v_add_u32 v{vAT}, {LDS_WOA - LDS_WOB}, v{vAT}\nv_add_u32 v{vAT+1}, {LDS_WOA - LDS_WOB}, v{vAT+1}")
    for n in range(8):
        if n >= 3: g.wlg(f'w{n-3}')
        wfrag_reads(g, n)
    g("s_waitcnt vmcnt(0)")
    poll_check(g)
    g.stamp()
    of_loads(g, 1, 'OA')
    for n in range(8):
        g.wlg(f'w{n}')
        g.wvm(f'OA{n}')
        for tc in range(2):
            g(f"v_mfma_f32_32x32x16_bf16 {r(ACC+16*tc,16)}, {r(WF+8*n+4*tc,4)}, {r(OF+4*n,4)}, {r(ACC+16*tc,16)}")
    g.stamp()
    for k in range(1, 8): g(f"v_xor_b32 v{vT+k}, {k*32}, v{vRW}")
    g("s_nop 3")
    for tc in range(2):
        if tc == 1: g("s_nop 0")
        for q in range(4):
            k = 4 * tc + q
            a_ = vRW if k == 0 else vT + k
            g.ds(f"ds_write_b128 v{a_}, {r(ACC+16*tc+4*q,4)}", 'rw')
    g.wlg()
    g("s_barrier")
    for kq in range(4):
        for e in range(2):
            g.ds(f"ds_read_b128 {r(16+8*kq+4*e,4)}, v{vRR+e} offset:{kq*8192}", f'rr{kq}')
    g.wlg('rr1')
    for k in range(8): g(f"v_add_f32 v{16+k}, v{16+k}, v{24+k}")
    g.wlg('rr3')
    for k in range(8): g(f"v_add_f32 v{32+k}, v{32+k}, v{40+k}")
    for k in range(8): g(f"v_add_f32 v{16+k}, v{16+k}, v{32+k}")
    for k in range(4): g(f"v_cvt_pk_bf16_f32 v{16+k}, v{16+2*k}, v{17+2*k}")
    g.vmop(f"buffer_store_dwordx4 v[16:19], v{vOUTA}, {sr(rOUT)}, 0 offen", 'out')

def boundary(g, gi):
    need = {1: 'G2w', 3: None}
    if gi == 1: g.wvm('G1')
    elif gi == 3: g.wvm()
    elif gi == 7: g.wvm('A0')
    elif 8 <= gi <= 14 and gi != 10: g.wvm(f'A{gi-7}')
    elif gi == 10: g.wvm('ost')
    elif gi == 15: g.wvm('WoB1')
    if gi == 3:
        sk = w0(g); poll_check(g); g(f"{sk}:")
    if gi == 14:
        g.wvm('non')
        get_nonce(g)
        sk = w0(g); poll_check(g); g(f"{sk}:")
    g("s_barrier")
    if gi == 0: dma_B(g, 4, 2, 'G2')
    elif gi == 1:
        dma_B(g, 6, 4, 'G3')
        sk = w0(g)
        flag_store(g, f"s_lshl_b32 s{sT1}, s{sHP}, 7\ns_lshl_b32 s{sT2}, s{sTB}, 2\ns_add_u32 s{sT1}, s{sT1}, s{sT2}\ns_add_u32 s{sT1}, s{sT1}, {WS_F2}")
        g(f"{sk}:")
    elif gi == 2:
        sk = w0(g); poll_issue(g, 2); g(f"{sk}:")
        tail_addr(g)
    elif gi == 3: dma_A(g, 0, 6, 'A0')
    elif gi == 4: dma_A(g, 1, 8, 'A1')
    elif gi == 5: dma_A(g, 2, 0, 'A2')
    elif gi == 6: dma_A(g, 3, 2, 'A3')
    elif gi == 8: dma_A(g, 4, 4, 'A4')
    elif gi == 9: dma_A(g, 5, 6, 'A5')
    elif gi == 10:
        dma_A(g, 6, 8, 'A6')
        sk = w0(g)
        flag_store(g, f"s_lshl_b32 s{sT1}, s{sTB}, 7\ns_lshl_b32 s{sT2}, s{sHP}, 2\ns_add_u32 s{sT1}, s{sT1}, s{sT2}\ns_add_u32 s{sT1}, s{sT1}, {WS_F3}")
        g(f"{sk}:")
    elif gi == 11: dma_A(g, 7, 0, 'A7')
    elif gi == 12: dma_Wo(g, rWOB, 0, LDS_WOB, 'WoB0')
    elif gi == 13:
        g(f"v_mov_b32 v{vT+3}, 0")
        g.vmop(f"buffer_load_dword v{vNON}, v{vT+3}, {sr(rDBG)}, 0 offen sc1", 'non')
        sk = w0(g); poll_issue(g, 3); g(f"{sk}:")
        dma_Wo(g, rWOB, 1, LDS_WOB, 'WoB1')
    elif gi == 14:
        dma_Wo(g, rWOA, 0, LDS_WOA, 'WoA0')
        of_loads(g, 0, 'OB')
    elif gi == 15: dma_Wo(g, rWOA, 1, LDS_WOA, 'WoA1')

def slotB(c): return (8 + c) % 10
def slotA(c): return 2 * ((3 + c) % 5)

def build(**opt):
    g = G(**opt)
    setup(g)
    g.stamp()
    nonce_producer(g)
    p1_addr(g)
    early_compute(g)
    fork = (list(g.lg), list(g.vm))
    g(f"s_cmp_lg_u32 s{sB}, 0\ns_cbranch_scc1 L_p1b")
    phase1(g, 0)
    end0 = (list(g.lg), list(g.vm))
    g("s_branch L_p1done\nL_p1b:")
    g.lg, g.vm = list(fork[0]), list(fork[1])
    phase1(g, 1)
    assert end0 == (g.lg, g.vm), (end0, g.lg, g.vm)
    g("L_p1done:")
    g.stamp()
    attn_consts(g)
    if opt.get('dump_q'):
        g(f"s_lshl_b32 s{sT1}, s2, 3\ns_add_u32 s{sT1}, s{sT1}, s{sW}\ns_lshl_b32 s{sT1}, s{sT1}, 11\ns_add_u32 s{sT1}, s{sT1}, {WS_DBG + 0x10000}")
        g.vmop(f"buffer_store_dwordx4 {r(QA,4)}, v{vL16}, {sr(rWS)}, s{sT1} offen", 'dbg')
        g.vmop(f"buffer_store_dwordx4 {r(QB,4)}, v{vL16}, {sr(rWS)}, s{sT1} offen offset:1024", 'dbg')
    g.wvm('B01')
    g("s_barrier")
    dma_B(g, 2, 0, 'G1')
    g(f"v_and_b32 v{vT}, 31, v1\nv_lshlrev_b32 v{vT}, 2, v{vT}\ns_lshl_b32 s{sT1}, s{sTB}, 2\ns_add_u32 s{sT1}, s{sT1}, s{sI}\ns_lshl_b32 s{sT1}, s{sT1}, 7\ns_add_u32 s{sT1}, s{sT1}, {WS_GATE}")
    g.vmop(f"buffer_load_dword v{vG}, v{vT}, {sr(rWS)}, s{sT1} offen sc1", 'gate')
    g.stamp()
    for task in range(2):
        Q = QB if task == 0 else QA
        slot = slotB if task == 0 else slotA
        if task == 1:
            d = (slotA(0) - slotB(7)) * SLOT
            g(f"s_lshl_b32 s{sT1}, s{sB}, 14\ns_add_u32 s{sT1}, s{sT1}, {d & 0xffffffff}\nv_add_u32 v{vAK}, s{sT1}, v{vAK}\nv_add_u32 v{vAV}, s{sT1}, v{vAV}")
        task_prologue(g, Q)
        for T in range(64):
            c = T >> 3
            if (T & 7) == 2: boundary(g, 8 * task + c)
            dn = (slot(c + 1) - slot(c)) * SLOT if c < 7 else 0
            tile(g, T, Q, dn)
        task_epilogue(g, task)
        g.stamp()
    tail(g)
    if opt.get('stamps'):
        g.stamp()
        g(f"s_lshl_b32 s{sT1}, s2, 3\ns_add_u32 s{sT1}, s{sT1}, s{sW}\ns_lshl_b32 s{sT1}, s{sT1}, 6\ns_add_u32 s{sT1}, s{sT1}, {WS_DBG}")
        for k in range(9): g(f"v_mov_b32 v{16+k}, s{sST+k}")
        g(f"v_mov_b32 v30, 0\ns_mov_b64 exec, 1")
        g(f"buffer_store_dwordx4 v[16:19], v30, {sr(rWS)}, s{sT1} offen\nbuffer_store_dwordx4 v[20:23], v30, {sr(rWS)}, s{sT1} offen offset:16\nbuffer_store_dwordx2 v[24:25], v30, {sr(rWS)}, s{sT1} offen offset:32")
    g("L_abort:\ns_endpgm")
    fallback(g)
    g("L_end:\ns_endpgm\nL_codeend:")
    hdr = open('gated_mix__mha_block__grouped_kv_mqa__prompt.s.ref').read().split("; Override launch")[0]
    out = hdr + "; One fused launch: projections, MQA and MHA attention, gated output projection.\n"
    out += "; @launch grid=(256,1,1) block=(512,1,1) lds=163840\n"
    out += f""".amdgcn_target "amdgcn-amd-amdhsa--gfx950"
.text
.globl {NAME}
.p2align 8
.type {NAME},@function
{NAME}:
{g.text()}.section .rodata,"a"
.p2align 6
.amdhsa_kernel {NAME}
  .amdhsa_next_free_vgpr 256
  .amdhsa_next_free_sgpr 102
  .amdhsa_accum_offset 256
  .amdhsa_group_segment_fixed_size 0
  .amdhsa_kernarg_size 96
  .amdhsa_user_sgpr_count 2
  .amdhsa_user_sgpr_kernarg_segment_ptr 1
  .amdhsa_system_sgpr_workgroup_id_x 1
.end_amdhsa_kernel
"""
    return out

if __name__ == "__main__":
    path = sys.argv[1] if len(sys.argv) > 1 else 'gated_mix__mha_block__grouped_kv_mqa__prompt.s'
    opt = {}
    for a in sys.argv[2:]:
        k, _, v = a.partition('=')
        opt[k] = eval(v) if v else True
    open(path, 'w').write(build(**opt))
```

```python
import sys, struct, copy
NAME = "gated_mix__mha_block__grouped_kv_mqa__prompt_kernel"

def f2h(x): return "0x%08x" % struct.unpack('<I', struct.pack('<f', x))[0]

WS_KVA  = 0x000000
WS_KVB  = 0x400000
WS_GATE = 0x420000
WS_F1   = 0x424000
WS_F2   = WS_F1 + 2048
WS_F3   = WS_F1 + 4096
WS_F4   = WS_F1 + 6144
WS_O    = 0x500000
WS_DBG  = 0x900000
WS_SIZE = 0x1000000

SLOT = 16384
LDS_WST = 65536
LDS_EW  = 8 * SLOT
LDS_ER  = 9 * SLOT
LDS_EG  = 9 * SLOT + 8192
LDS_EX  = 3 * SLOT
LDS_WOB = 2 * SLOT
LDS_WOA = 6 * SLOT

sW, sHP, sTB, sROT, sB = 3, 4, 5, 6, 7
rX, rWS_, rWKV, rGATE, rWS, rDBG, rOUT, rWOA, rWOB = 8, 12, 16, 20, 24, 28, 32, 36, 40
sMASK = 44
sI, sNONCE, sSPIN, sT0, sT1, sT2 = 46, 47, 48, 49, 50, 51
pX, pWQKV, pWOA, pBX, pWQ, pWK, pWV, pWOB, pGATE, pOUT, pDBG, pWS = 52, 54, 56, 58, 60, 62, 64, 66, 68, 70, 72, 74
sXO, sWO, sWSTEP, sW16, sMX, sMW, sKX, sKW = 76, 77, 78, 79, 80, 81, 82, 83
sOF = 76
sPC = 84
sFBBASE, sFBRET, sFBT, sDMA, sOST, sT3 = 86, 87, 88, 89, 90, 91
sPOLL, sDS = 92, 93
sST = 94
vIDX, vAK, vAV, vG, vL16, vVOFF = 2, 3, 4, 5, 6, 7
vT = 8
S0, S1, O, C, QA, QB = 16, 32, 48, 64, 80, 84
KF, V0, V1 = (88, 92), (96, 100), (104, 108)
OF = 112
ACC = 144
PF = 176
WF = 16
vAX = 240
vAW1, vAWQ, vDX0, vDX1, vDW, vKVST = 244, 245, 246, 247, 248, 249
vDWO, vRW, vOUTA = 224, 225, 226
vAT = 228
vRR = 230
vFL, vNON, vDUMMY = 250, 251, 251
vPOLL = 252
QSCALE = 0.25 * 1.4426950408889634
MOFF = 90.0
SPIN = 1 << 20

STAMP_SLOTS = [94, 96, 52, 54, 56, 58, 60, 62, 64, 66, 68, 70]
class G:
    def __init__(s, **opt):
        s.L = []; s.lg = []; s.vm = []; s.opt = opt; s.nlab = 0; s.nst = 0
    def __call__(s, txt):
        for line in txt.split("\n"):
            line = line.strip()
            if not line: continue
            s.L.append(line if (line.endswith(":") or line.startswith(".")) else "    " + line)
    def lab(s, p="L"):
        s.nlab += 1; return f"{p}_{s.nlab}"
    def ds(s, txt, tag=None):
        s(txt); s.lg.append(tag); assert len(s.lg) <= 15, "lgkm overflow"
    def wlg(s, tag=None):
        if tag is None:
            s("s_waitcnt lgkmcnt(0)"); s.lg = []; return
        if tag not in s.lg: return
        i = len(s.lg) - 1 - s.lg[::-1].index(tag)
        n = len(s.lg) - 1 - i
        s(f"s_waitcnt lgkmcnt({n})"); s.lg = s.lg[i + 1:]
    def vmop(s, txt, tag=None):
        s(txt); s.vm.append(tag); assert len(s.vm) <= 63
    def wvm(s, tag=None):
        if tag is None:
            s("s_waitcnt vmcnt(0)"); s.vm = []; return
        if tag not in s.vm: return
        i = len(s.vm) - 1 - s.vm[::-1].index(tag)
        n = len(s.vm) - 1 - i
        s(f"s_waitcnt vmcnt({n})"); s.vm = s.vm[i + 1:]
    def srd(s, d, base, nbytes):
        s(f"s_mov_b32 s{d}, s{base}\ns_and_b32 s{d+1}, s{base+1}, 0xffff\ns_mov_b32 s{d+2}, {nbytes}\ns_mov_b32 s{d+3}, 0x00020000")
    def stamp(s, name):
        if not s.opt.get('stamps'): return
        if name not in s.opt.get('at', ('setup', 'p1', 'bstart', 'B', 'A', 'poll', 'mm', 'end')): return
        ins = "s_memtime" if s.opt.get('stamps') == 2 else "s_memrealtime"
        slot = STAMP_SLOTS[s.nst]
        assert slot >= 94 or name not in ('entry', 'karg')
        s(f"{ins} s[{slot}:{slot+1}]")
        s.nst += 1
    def text(s): return "\n".join(s.L) + "\n"

def r(a, n): return f"v[{a}:{a+n-1}]"
def sr(a, n=4): return f"s[{a}:{a+n-1}]"

def spin_check(g):
    g(f"s_sub_u32 s{sSPIN}, s{sSPIN}, 1\ns_cbranch_scc1 L_abort")

def setup(g):
    g(f"""
    s_cmp_ge_u32 s2, 256
    s_cbranch_scc1 L_end
    """)
    g.stamp('entry')
    g(f"""
    s_load_dwordx16 s[52:67], s[0:1], 0
    s_load_dwordx8 s[68:75], s[0:1], 64
    v_lshrrev_b32 v{vT+1}, 6, v0
    v_and_b32 v1, 63, v0
    s_getpc_b64 s[{sPC}:{sPC+1}]
    L_pc:
    v_readfirstlane_b32 s{sW}, v{vT+1}
    s_and_b32 s{sT0}, s2, 0xf8
    s_add_u32 s{sT0}, s{sT0}, s{sW}
    s_lshl_b32 s{sT0}, s{sT0}, 7
    s_min_u32 s{sT0}, s{sT0}, L_codeend-L_pc-4
    s_load_dword s{sFBT}, s[{sPC}:{sPC+1}], s{sT0}
    s_bfe_u32 s{sTB}, s2, 0x20001
    s_lshl_b32 s{sTB}, s{sTB}, 2
    s_bfe_u32 s{sT0}, s2, 0x20003
    s_add_u32 s{sTB}, s{sTB}, s{sT0}
    s_and_b32 s{sHP}, s2, 1
    s_lshl_b32 s{sHP}, s{sHP}, 3
    s_lshr_b32 s{sT0}, s2, 5
    s_add_u32 s{sHP}, s{sHP}, s{sT0}
    s_lshl_b32 s{sROT}, s{sTB}, 1
    s_add_u32 s{sROT}, s{sROT}, s{sHP}
    s_and_b32 s{sROT}, s{sROT}, 7
    s_lshr_b32 s{sB}, s{sW}, 2
    s_and_b32 s{sI}, s{sW}, 3
    v_lshlrev_b32 v{vL16}, 4, v1
    """)
    g(f"""
    v_and_b32 v{vT+2}, 15, v1
    v_lshrrev_b32 v{vT+3}, 4, v1
    v_lshlrev_b32 v{vT+1}, 4, v{vT+3}
    v_lshl_add_u32 v{vT}, v{vT+2}, 10, v{vT+1}
    """)
    g(f"""
    v_lshrrev_b32 v{vT+4}, 3, v1
    v_and_b32 v{vT+5}, 7, v1
    v_lshrrev_b32 v{vT+6}, 4, v1
    v_xor_b32 v{vT+5}, v{vT+5}, v{vT+6}
    v_lshlrev_b32 v{vT+4}, 10, v{vT+4}
    v_lshl_add_u32 v{vDX0}, v{vT+5}, 4, v{vT+4}
    v_xor_b32 v{vDX1}, 64, v{vDX0}
    v_add_u32 v{vDX1}, 0x2000, v{vDX1}
    """)
    g(f"""
    s_lshr_b32 s{sT0}, s{sW}, 1
    s_cmp_eq_u32 s{sT0}, 3
    s_movk_i32 s{sT2}, 3072
    s_cselect_b32 s{sT1}, 1024, s{sT2}
    s_cselect_b32 s{sT2}, 2, 0
    s_lshl_b32 s{sWSTEP}, s{sT1}, 6
    s_lshl_b32 s{sMX}, s{sW}, 11
    s_add_u32 s{sMW}, s{sMX}, {LDS_WST}
    s_cmp_lg_u32 s{sB}, 0
    s_cbranch_scc1 L_su_q
    v_bfe_u32 v{vT+4}, v1, 2, 1
    v_bfe_u32 v{vT+5}, v1, 4, 1
    v_xor_b32 v{vT+4}, v{vT+4}, v{vT+5}
    v_and_b32 v{vT+5}, 3, v1
    v_lshl_add_u32 v{vT+5}, v{vT+4}, 2, v{vT+5}
    v_lshrrev_b32 v{vT+4}, 3, v1
    s_movk_i32 s{sW16}, 24576
    s_and_b32 s{sT2}, s{sHP}, 1
    s_add_u32 s{sT2}, s{sT2}, 1
    s_lshl_b32 s{sT2}, s{sT2}, 10
    s_lshr_b32 s{sWO}, s{sHP}, 1
    s_lshl_b32 s{sWO}, s{sWO}, 7
    s_add_u32 s{sWO}, s{sWO}, s{sT2}
    s_mul_i32 s{sT3}, s{sW}, 49152
    s_branch L_su_j
    L_su_q:
    v_lshrrev_b32 v{vT+4}, 2, v1
    v_and_b32 v{vT+5}, 3, v1
    v_xor_b32 v{vT+5}, s{sT2}, v{vT+5}
    s_lshl_b32 s{sW16}, s{sT1}, 4
    s_lshl_b32 s{sWO}, s{sHP}, 6
    s_and_b32 s{sT2}, s{sW}, 1
    s_mul_i32 s{sT3}, s{sT2}, s{sW16}
    s_lshl_b32 s{sT3}, s{sT3}, 1
    L_su_j:
    s_add_u32 s{sWO}, s{sWO}, s{sT3}
    v_mul_u32_u24 v{vT+4}, s{sT1}, v{vT+4}
    v_lshl_add_u32 v{vDW}, v{vT+5}, 4, v{vT+4}
    s_lshl_b32 s{sXO}, s{sTB}, 17
    s_lshl_b32 s{sT2}, s{sW}, 14
    s_add_u32 s{sXO}, s{sXO}, s{sT2}
    s_lshl_b32 s{sKX}, s{sROT}, 7
    s_mul_i32 s{sKW}, s{sROT}, s{sWSTEP}
    """)
    g(f"""
    s_lshr_b32 s{sT2}, s{sHP}, 1
    s_lshl_b32 s{sT2}, s{sT2}, 14
    s_lshl_b32 s{sDMA}, s{sTB}, 17
    s_add_u32 s{sDMA}, s{sDMA}, s{sT2}
    s_lshl_b32 s{sT2}, s{sW}, 7
    s_add_u32 s{sDMA}, s{sDMA}, s{sT2}
    s_mov_b32 s{sOST}, s{sT2}
    """)
    for k in range(8): g(f"v_mov_b32 v{40+k}, 0")
    g(f"v_mov_b32 v{vFL}, 0")
    g("s_waitcnt lgkmcnt(0)")
    g.stamp('karg')
    g.srd(rX, pX, 2097152)
    g(f"s_cmp_eq_u32 s{sT0}, 3\ns_cselect_b64 s[{rWS_}:{rWS_+1}], s[{pWQ}:{pWQ+1}], s[{pWQKV}:{pWQKV+1}]")
    g(f"s_mov_b32 s{rWS_+2}, 1572864\ns_cselect_b32 s{rWS_+2}, 524288, s{rWS_+2}\ns_and_b32 s{rWS_+1}, s{rWS_+1}, 0xffff\ns_mov_b32 s{rWS_+3}, 0x00020000")
    def early_loads():
        g(f"s_bitcmp1_b32 s{sHP}, 0\ns_cselect_b64 s[{rWKV}:{rWKV+1}], s[{pWV}:{pWV+1}], s[{pWK}:{pWK+1}]")
        g(f"s_and_b32 s{rWKV+1}, s{rWKV+1}, 0xffff\ns_mov_b32 s{rWKV+2}, 16384\ns_mov_b32 s{rWKV+3}, 0x00020000")
        g(f"s_add_u32 m0, s{sMX}, {LDS_EW}")
        g.srd(rGATE, pGATE, 1024)
        g.vmop(f"buffer_load_dwordx4 v{vL16}, {sr(rWKV)}, s{sMX} offen lds", 'e')
        g.vmop(f"buffer_load_dwordx4 v{vL16}, {sr(rWKV)}, s{sMX} offen offset:1024 lds", 'e')
        g(f"s_mov_b32 exec_lo, 0x00010001\ns_mov_b32 exec_hi, 0x00010001")
        g.vmop(f"buffer_load_dwordx4 v[40:43], v{vT+1}, {sr(rGATE)}, s{sOST} offen", 'e')
        g.vmop(f"buffer_load_dwordx4 v[44:47], v{vT+1}, {sr(rGATE)}, s{sOST} offen offset:64", 'e')
        g("s_mov_b64 exec, -1")
        g(f"s_add_u32 m0, s{sMX}, {LDS_EX}\ns_nop 0")
        g.vmop(f"buffer_load_dwordx4 v{vDX0}, {sr(rX)}, s{sDMA} offen lds", 'e')
        g(f"s_add_u32 m0, s{sMX}, {LDS_EX + 1024}\ns_nop 0")
        g.vmop(f"buffer_load_dwordx4 v{vDX1}, {sr(rX)}, s{sDMA} offen lds", 'e')
    nonce_scan(g)
    early_loads()
    g("s_barrier")
    early_addr(g)
    runall(p1_dma(g, 0))
    g.srd(rWS, pWS, WS_SIZE)
    g.srd(rDBG, pDBG, 256)
    nonce_producer(g)
    g.stamp('setup')
    early_compute(g)
    g("s_barrier")
    g.stamp('early')
    runall(p1_dma(g, 1))
    early_reduce(g)
    g.srd(rOUT, pOUT, 2097152)
    g.srd(rWOA, pWOA, 524288)
    g.srd(rWOB, pWOB, 524288)
    g(f"s_mov_b32 s{sMASK}, 0x0000ffff\ns_mov_b32 s{sMASK+1}, 0x0000ffff\ns_mov_b32 s{sSPIN}, {SPIN}\ns_mov_b32 s{sNONCE}, 0")

def p1_dma(g, j):
    p = j & 3
    def f0():
        g(f"s_add_u32 m0, s{sMX}, {p*SLOT}\ns_add_u32 s{sDS}, s{sXO}, s{sKX}")
        g.vmop(f"buffer_load_dwordx4 v{vDX0}, {sr(rX)}, s{sDS} offen lds", f'c{j}')
    def f1():
        g(f"s_add_u32 m0, s{sMX}, {p*SLOT+1024}\ns_add_u32 s{sPOLL+0 if False else sT3}, s{sWO}, s{sKW}")
        g.vmop(f"buffer_load_dwordx4 v{vDX1}, {sr(rX)}, s{sDS} offen lds", f'c{j}')
    def f2():
        g(f"s_add_u32 m0, s{sMW}, {p*SLOT}\ns_add_u32 s{sDS}, s{sT3}, s{sW16}")
        g.vmop(f"buffer_load_dwordx4 v{vDW}, {sr(rWS_)}, s{sT3} offen lds", f'c{j}')
    def f3():
        g(f"s_add_u32 m0, s{sMW}, {p*SLOT+1024}\ns_add_u32 s{sKW}, s{sKW}, s{sWSTEP}")
        g.vmop(f"buffer_load_dwordx4 v{vDW}, {sr(rWS_)}, s{sDS} offen lds", f'c{j}')
        if j < 7:
            g(f"s_add_u32 s{sKX}, s{sKX}, 128\ns_and_b32 s{sKX}, s{sKX}, 1023\ns_cselect_b32 s{sKW}, s{sKW}, 0")
    return [f0, f1, f2, f3]

def nonce_scan(g):
    skip = g.lab("L_ns")
    g(f"s_cmp_lg_u32 s2, 0\ns_cbranch_scc1 {skip}\ns_cmp_lg_u32 s{sW}, 0\ns_cbranch_scc1 {skip}")
    g.srd(rWS, pWS, WS_SIZE)
    g(f"v_lshrrev_b32 v{vT+4}, 2, v1\nv_and_b32 v{vT+5}, 3, v1\nv_lshlrev_b32 v{vT+4}, 7, v{vT+4}\nv_lshl_add_u32 v{vT+4}, v{vT+5}, 4, v{vT+4}")
    g(f"s_mov_b32 s{sT1}, {WS_F1}")
    g(f"buffer_load_dwordx4 v[176:179], v{vT+4}, {sr(rWS)}, s{sT1} offen sc1")
    g(f"buffer_load_dwordx4 v[180:183], v{vT+4}, {sr(rWS)}, s{sT1} offen offset:2048 sc1")
    g(f"s_mov_b32 s{sT1}, {WS_F3}")
    g(f"buffer_load_dwordx4 v[184:187], v{vT+4}, {sr(rWS)}, s{sT1} offen sc1")
    g(f"{skip}:")

def nonce_producer(g):
    skip = g.lab("L_nn")
    g(f"s_cmp_lg_u32 s2, 0\ns_cbranch_scc1 {skip}\ns_cmp_lg_u32 s{sW}, 0\ns_cbranch_scc1 {skip}")
    g("s_waitcnt vmcnt(10)")
    g(f"v_readfirstlane_b32 s{sT1}, v176")
    lp = g.lab("L_nl")
    g(f"{lp}:\ns_add_u32 s{sT1}, s{sT1}, 1\ns_cbranch_scc1 {lp}")
    g(f"s_mov_b64 s[{sPC}:{sPC+1}], 0")
    for k in range(12):
        g(f"v_cmp_eq_u32 vcc, s{sT1}, v{176+k}\ns_or_b64 s[{sPC}:{sPC+1}], s[{sPC}:{sPC+1}], vcc")
    g(f"s_cbranch_scc1 {lp}")
    g(f"v_mov_b32 v192, s{sT1}\nv_mov_b32 v193, 0\ns_mov_b64 exec, 1")
    g(f"buffer_store_dword v192, v193, {sr(rDBG)}, 0 offen sc1\ns_mov_b64 exec, -1")
    g(f"{skip}:")

def p1_addr(g):
    g(f"""
    v_and_b32 v{vT+2}, 31, v1
    v_lshrrev_b32 v{vT+3}, 5, v1
    v_bfe_u32 v{vT+4}, v1, 1, 3
    v_xor_b32 v{vT+4}, v{vT+4}, v{vT+3}
    v_lshlrev_b32 v{vT+4}, 4, v{vT+4}
    v_lshl_add_u32 v{vT+4}, v{vT+2}, 7, v{vT+4}
    s_lshl_b32 s{sT1}, s{sI}, 12
    v_add_u32 v{vAX}, s{sT1}, v{vT+4}
    v_xor_b32 v{vAX+1}, 32, v{vAX}
    v_xor_b32 v{vAX+2}, 64, v{vAX}
    v_xor_b32 v{vAX+3}, 0x60, v{vAX}
    v_bfe_u32 v{vT+4}, v1, 2, 2
    v_and_b32 v{vT+5}, 3, v1
    v_lshlrev_b32 v{vT+5}, 3, v{vT+5}
    v_lshl_add_u32 v{vT+5}, v{vT+4}, 6, v{vT+5}
    v_lshl_add_u32 v{vT+5}, v{vT+3}, 9, v{vT+5}
    v_bfe_u32 v{vT+6}, v1, 4, 1
    v_bfe_u32 v{vT+7}, v1, 3, 1
    v_xor_b32 v{vT+7}, s{sB}, v{vT+7}
    v_lshlrev_b32 v{vT+7}, 6, v{vT+7}
    v_lshl_add_u32 v{vT+7}, v{vT+4}, 7, v{vT+7}
    v_lshl_add_u32 v{vT+7}, v{vT+3}, 10, v{vT+7}
    v_lshl_add_u32 v{vT+7}, v{vT+6}, 5, v{vT+7}
    v_and_b32 v{vT+2}, 3, v1
    v_lshl_add_u32 v{vT+7}, v{vT+2}, 3, v{vT+7}
    v_add_u32 v{vAW1}, {LDS_WST}, v{vT+7}
    v_xor_b32 v{vT+4}, s{sB}, v{vT+6}
    v_lshl_add_u32 v{vT+5}, v{vT+4}, 5, v{vT+5}
    v_lshl_add_u32 v{vT+5}, v{vT+6}, 12, v{vT+5}
    v_add_u32 v{vAWQ}, {LDS_WST + 8192}, v{vT+5}
    """)

def early_addr(g):
    g(f"""
    v_lshrrev_b32 v{vT+4}, 4, v1
    v_bfe_u32 v{vT+5}, v1, 2, 2
    v_lshl_add_u32 v{vT+4}, v{vT+4}, 3, v{vT+5}
    v_and_b32 v{vT+5}, 3, v1
    v_lshlrev_b32 v{vT+5}, 3, v{vT+5}
    v_lshl_add_u32 v{vT+4}, v{vT+4}, 5, v{vT+5}
    s_add_u32 s{sT1}, s{sMX}, {LDS_EW}
    v_add_u32 v{vT+6}, s{sT1}, v{vT+4}
    s_lshl_b32 s{sT1}, s{sW}, 10
    s_add_u32 s{sT1}, s{sT1}, {LDS_ER}
    v_add_u32 v{vT+7}, s{sT1}, v{vL16}
    s_lshl_b32 s{sT1}, s{sW}, 8
    s_add_u32 s{sT1}, s{sT1}, {LDS_EG}
    v_lshlrev_b32 v{vT+5}, 2, v1
    v_add_u32 v{vT+5}, s{sT1}, v{vT+5}
    """)
    g(f"""
    v_and_b32 v{vT}, 15, v1
    v_lshrrev_b32 v{vT+1}, 4, v1
    v_bfe_u32 v{vT+2}, v1, 1, 3
    v_xor_b32 v{vT+1}, v{vT+1}, v{vT+2}
    v_lshlrev_b32 v{vT+1}, 4, v{vT+1}
    v_lshl_add_u32 v{vT}, v{vT}, 7, v{vT+1}
    s_add_u32 s{sT1}, s{sMX}, {LDS_EX}
    v_add_u32 v{vT}, s{sT1}, v{vT}
    v_xor_b32 v{vT+1}, 64, v{vT}
    """)

def early_compute(g):
    g.wvm('e')
    g.ds(f"ds_read_b128 v[16:19], v{vT}", 'ew')
    g.ds(f"ds_read_b128 v[20:23], v{vT+1}", 'ew')
    for s_ in range(2):
        for e in range(2):
            g.ds(f"ds_read_b64_tr_b16 v[{24+4*s_+2*e}:{25+4*s_+2*e}], v{vT+6} offset:{s_*1024+e*128}", 'ew')
    g.wlg('ew')
    lv, le = g.lab("L_ev"), g.lab("L_ee")
    g(f"s_bitcmp1_b32 s{sHP}, 0\ns_cbranch_scc1 {lv}")
    g("v_mfma_f32_16x16x32_bf16 v[32:35], v[24:27], v[16:19], 0")
    g("v_mfma_f32_16x16x32_bf16 v[36:39], v[40:43], v[16:19], 0")
    g("v_mfma_f32_16x16x32_bf16 v[32:35], v[28:31], v[20:23], v[32:35]")
    g("v_mfma_f32_16x16x32_bf16 v[36:39], v[44:47], v[20:23], v[36:39]")
    g(f"s_branch {le}\n{lv}:")
    g("v_mfma_f32_16x16x32_bf16 v[32:35], v[16:19], v[24:27], 0")
    g("v_mov_b32 v36, 0")
    g("v_mfma_f32_16x16x32_bf16 v[32:35], v[20:23], v[28:31], v[32:35]")
    g(f"{le}:\ns_nop 7")
    g.ds(f"ds_write_b128 v{vT+7}, v[32:35]", 'ep')
    g.ds(f"ds_write_b32 v{vT+5}, v36", 'ep')
    g.wlg()

def early_reduce(g):
    skip = g.lab("L_er")
    g(f"s_cmp_lg_u32 s{sW}, 0\ns_cbranch_scc1 {skip}")
    g(f"v_add_u32 v{vT+4}, {LDS_ER}, v{vL16}\nv_lshlrev_b32 v{vT+5}, 2, v1\nv_add_u32 v{vT+5}, {LDS_EG}, v{vT+5}")
    for k in range(8): g(f"ds_read_b128 v[{16+4*k}:{19+4*k}], v{vT+4} offset:{k*1024}")
    g("s_waitcnt lgkmcnt(0)")
    for k in range(8): g(f"ds_read_b32 v{48+k}, v{vT+5} offset:{k*256}")
    g(f"""
    s_lshr_b32 s{sT0}, s{sHP}, 1
    s_lshl_b32 s{sT1}, s{sTB}, 2
    s_lshr_b32 s{sT2}, s{sT0}, 1
    s_add_u32 s{sT1}, s{sT1}, s{sT2}
    s_lshr_b32 s{sT2}, s{sT1}, 3
    s_lshl_b32 s{sT2}, s{sT2}, 14
    s_and_b32 s{sT1}, s{sT1}, 7
    s_lshl_b32 s{sT1}, s{sT1}, 10
    s_add_u32 s{sT1}, s{sT1}, s{sT2}
    s_add_u32 s{sT1}, s{sT1}, {WS_KVB}
    s_and_b32 s{sT0}, s{sT0}, 1
    v_and_b32 v{vT}, 15, v1
    v_bfe_u32 v{vT+1}, v1, 4, 1
    v_lshrrev_b32 v{vT+2}, 5, v1
    v_lshlrev_b32 v{vT+2}, 3, v{vT+2}
    """)
    for k in range(1, 8):
        for q in range(4): g(f"v_add_f32 v{16+q}, v{16+q}, v{16+4*k+q}")
    g("v_cvt_pk_bf16_f32 v16, v16, v17\nv_cvt_pk_bf16_f32 v17, v18, v19")
    lv, le = g.lab("L_rv"), g.lab("L_re")
    g(f"s_bitcmp1_b32 s{sHP}, 0\ns_cbranch_scc1 {lv}")
    if True:
        g(f"""
        v_and_b32 v{vT+3}, 3, v{vT}
        v_bfe_u32 v{vT+6}, v{vT}, 2, 1
        v_lshl_add_u32 v{vT+3}, v{vT+6}, 3, v{vT+3}
        v_bfe_u32 v{vT+6}, v{vT}, 3, 1
        v_lshl_add_u32 v{vT+3}, v{vT+6}, 2, v{vT+3}
        v_lshl_add_u32 v{vT+3}, v{vT+1}, 5, v{vT+3}
        v_lshl_add_u32 v{vT+3}, v{vT+3}, 4, v{vT+2}
        s_lshl_b32 s{sT0}, s{sT0}, 8
        s_add_u32 s{sT1}, s{sT1}, s{sT0}
        buffer_store_dwordx2 v[16:17], v{vT+3}, {sr(rWS)}, s{sT1} offen sc1
        s_waitcnt lgkmcnt(0)
        """)
        for k in range(1, 8): g(f"v_add_f32 v48, v48, v{48+k}")
        g(f"""
        v_mul_f32 v48, {f2h(-1.4426950408889634)}, v48
        v_exp_f32 v48, v48
        s_lshr_b32 s{sT0}, s{sHP}, 1
        s_lshl_b32 s{sT0}, s{sT0}, 6
        v_add_f32 v48, 1.0, v48
        v_rcp_f32 v48, v48
        s_lshl_b32 s{sT1}, s{sTB}, 9
        s_add_u32 s{sT1}, s{sT1}, s{sT0}
        s_add_u32 s{sT1}, s{sT1}, {WS_GATE}
        v_lshlrev_b32 v{vT+3}, 2, v1
        s_mov_b64 exec, 0xffff
        buffer_store_dword v48, v{vT+3}, {sr(rWS)}, s{sT1} offen sc1
        s_mov_b64 exec, -1
        s_branch {le}
        {lv}:
        """)
        g(f"""
    v_lshl_add_u32 v{vT+3}, v{vT+1}, 4, v{vT}
    v_lshl_add_u32 v{vT+3}, v{vT+3}, 4, v{vT+2}
    s_lshl_b32 s{sT0}, s{sT0}, 9
    s_add_u32 s{sT1}, s{sT1}, s{sT0}
    s_add_u32 s{sT1}, s{sT1}, 8192
    buffer_store_dwordx2 v[16:17], v{vT+3}, {sr(rWS)}, s{sT1} offen sc1
    s_waitcnt lgkmcnt(0)
        """)
    g(f"{le}:\n{skip}:")

def get_nonce(g):
    lp, ok = g.lab("L_gn"), g.lab("L_gk")
    g(f"{lp}:\nv_readfirstlane_b32 s{sNONCE}, v{vNON}\ns_nop 3\ns_cmp_lg_u32 s{sNONCE}, 0\ns_cbranch_scc1 {ok}")
    spin_check(g)
    g(f"v_mov_b32 v{vT+3}, 0\nbuffer_load_dword v{vNON}, v{vT+3}, {sr(rDBG)}, 0 offen sc1\ns_waitcnt vmcnt(0)\ns_branch {lp}\n{ok}:")

def flag_store(g, off_expr_setup):
    g(off_expr_setup)
    g(f"v_mov_b32 v{vT}, s{sNONCE}\nv_mov_b32 v{vT+1}, 0\ns_mov_b64 exec, 1")
    g(f"buffer_store_dword v{vT}, v{vT+1}, {sr(rWS)}, s{sT1} offen sc1\ns_mov_b64 exec, -1")

def poll_issue(g, kind):
    if kind == 1:
        g(f"v_lshrrev_b32 v{vT}, 2, v1\nv_and_b32 v{vT+1}, 3, v1\nv_lshlrev_b32 v{vT}, 7, v{vT}\nv_lshl_add_u32 v{vFL}, v{vT+1}, 4, v{vT}\ns_mov_b32 s{sPOLL}, {WS_F1}")
    elif kind == 2:
        g(f"v_and_b32 v{vT}, 3, v1\nv_bfe_u32 v{vT+1}, v1, 2, 1\nv_lshlrev_b32 v{vT}, 4, v{vT}\nv_lshl_add_u32 v{vFL}, v{vT+1}, 7, v{vT}\ns_and_b32 s{sPOLL}, s{sHP}, 14\ns_lshl_b32 s{sPOLL}, s{sPOLL}, 7\ns_add_u32 s{sPOLL}, s{sPOLL}, {WS_F2}")
    elif kind == 3:
        g(f"v_and_b32 v{vT}, 3, v1\nv_lshlrev_b32 v{vFL}, 4, v{vT}\ns_lshl_b32 s{sPOLL}, s{sTB}, 7\ns_add_u32 s{sPOLL}, s{sPOLL}, {WS_F3}")
    else:
        g(f"v_mov_b32 v{vFL}, 0\ns_lshl_b32 s{sPOLL}, s{sTB}, 2\ns_add_u32 s{sPOLL}, s{sPOLL}, s{sI}\ns_lshl_b32 s{sPOLL}, s{sPOLL}, 7\ns_add_u32 s{sPOLL}, s{sPOLL}, {WS_F4}")
    g(f"buffer_load_dwordx4 {r(vPOLL,4)}, v{vFL}, {sr(rWS)}, s{sPOLL} offen sc1")

def poll_check(g):
    lp, ok = g.lab("L_pl"), g.lab("L_pk")
    g(f"{lp}:")
    for k in range(4): g(f"v_xor_b32 v{vPOLL+k}, s{sNONCE}, v{vPOLL+k}")
    g(f"v_or_b32 v{vPOLL}, v{vPOLL}, v{vPOLL+1}\nv_or3_b32 v{vPOLL}, v{vPOLL}, v{vPOLL+2}, v{vPOLL+3}\nv_cmp_ne_u32 vcc, 0, v{vPOLL}\ns_nop 4\ns_cbranch_vccz {ok}")
    spin_check(g)
    g(f"buffer_load_dwordx4 {r(vPOLL,4)}, v{vFL}, {sr(rWS)}, s{sPOLL} offen sc1\ns_waitcnt vmcnt(0)\ns_branch {lp}\n{ok}:")

def w0(g):
    skip = g.lab("L_w0")
    g(f"s_cmp_lg_u32 s{sW}, 0\ns_cbranch_scc1 {skip}")
    return skip

def kv_dma(g, src_expr, slot, tag):
    def setup(): g(f"s_lshl_b32 s{sT2}, s{sW}, 12\ns_add_u32 m0, s{sT2}, {slot*SLOT}"); g(src_expr)
    def op(e): return lambda: g.vmop(f"buffer_load_dwordx4 v{vL16}, {sr(rWS)}, s{sDS} offen offset:{e*1024} sc1 lds", tag)
    return [setup] + [op(e) for e in range(4)]
def dma_B(g, c, slot, tag):
    return kv_dma(g, f"s_add_u32 s{sDS}, s{sT2}, {WS_KVB + c*SLOT}", slot, tag)
def dma_A(g, c, slot, tag):
    return kv_dma(g, f"s_add_u32 s{sDS}, s{sDMA}, {WS_KVA + c*SLOT}", slot, tag)
def dma_Wo(g, rs, grp, ldsbase, tag):
    def setup(): g(f"s_lshl_b32 s{sDS}, s{sW}, 15\ns_and_b32 s{sT1}, s{sHP}, 7\ns_lshl_b32 s{sT1}, s{sT1}, 7\ns_add_u32 s{sDS}, s{sDS}, s{sT1}")
    def op(e):
        def f():
            g(f"s_lshl_b32 s{sT2}, s{sW}, 12\ns_add_u32 m0, s{sT2}, {ldsbase + grp*32768 + e*1024}\ns_add_u32 s{sT1}, s{sDS}, {grp*262144 + e*8192}")
            g.vmop(f"buffer_load_dwordx4 v{vDWO}, {sr(rs)}, s{sT1} offen lds", tag)
        return f
    return [setup] + [op(e) for e in range(4)]
def runall(fs):
    for f in fs: f()

def phase1(g, b):
    T1, TQ = ACC, ACC + 16
    def XF(s_): return PF + 12 * s_
    def W1(s_): return PF + 12 * s_ + 4
    def WQ(s_): return PF + 12 * s_ + 8
    def reads(p, s_):
        if g.opt.get('noread'): return
        g.ds(f"ds_read_b128 {r(XF(s_),4)}, v{vAX+s_} offset:{p*SLOT}", f'f{s_}')
        for e in range(2): g.ds(f"ds_read_b64_tr_b16 {r(W1(s_)+2*e,2)}, v{vAW1} offset:{p*SLOT+s_*2048+e*512}", f'f{s_}')
        for e in range(2): g.ds(f"ds_read_b64_tr_b16 {r(WQ(s_)+2*e,2)}, v{vAWQ} offset:{p*SLOT+s_*1024+e*256}", f'f{s_}')
    def mf(j, s_):
        g.wlg(f'f{s_}')
        if g.opt.get('nomf'): return
        if g.opt.get('mf16'):
            for (D, A, B) in ((T1, W1(s_), XF(s_)), (TQ, WQ(s_), XF(s_)), (T1+4, WQ(s_), XF(s_)), (TQ+4, W1(s_), XF(s_))):
                D2 = D + 8 * (s_ & 1)
                g(f"v_mfma_f32_16x16x32_bf16 {r(D2,4)}, {r(A,4)}, {r(B,4)}, {'0' if j == 0 and s_ < 2 else r(D2,4)}")
            return
        c1 = "0" if (j == 0 and s_ == 0) else r(T1, 16)
        cq = "0" if (j == 0 and s_ == 0) else r(TQ, 16)
        if b == 0: g(f"v_mfma_f32_32x32x16_bf16 {r(T1,16)}, {r(W1(s_),4)}, {r(XF(s_),4)}, {c1}")
        else:      g(f"v_mfma_f32_32x32x16_bf16 {r(T1,16)}, {r(XF(s_),4)}, {r(W1(s_),4)}, {c1}")
        g(f"v_mfma_f32_32x32x16_bf16 {r(TQ,16)}, {r(WQ(s_),4)}, {r(XF(s_),4)}, {cq}")
    f1chk = g.opt.get('f1chk', 6)
    def wait_c(j, extra0):
        if extra0 and f'c{j}' in g.vm:
            n = len(g.vm) - 1 - (len(g.vm) - 1 - g.vm[::-1].index(f'c{j}'))
            sk, dn = g.lab("L_wa"), g.lab("L_wb")
            g(f"s_cmp_eq_u32 s{sW}, 0\ns_cbranch_scc1 {sk}")
            g.wvm(f'c{j}')
            g(f"{sk}:\ns_waitcnt vmcnt({n + extra0})")
        else: g.wvm(f'c{j}')
    jf = g.opt.get('jflag', 2)
    for j in range(8):
        p = j & 3
        wait_c(j, {0: 1, 1: 2}.get(j, 0))
        if j == jf:
            sk = w0(g)
            get_nonce(g)
            flag_store(g, f"s_lshl_b32 s{sT1}, s{sTB}, 7\ns_lshl_b32 s{sT2}, s{sHP}, 2\ns_add_u32 s{sT1}, s{sT1}, s{sT2}\ns_add_u32 s{sT1}, s{sT1}, {WS_F1}")
            g(f"{sk}:")
        if j == f1chk:
            sk = w0(g); poll_check(g); g(f"{sk}:")
        g.wlg()
        g("s_barrier")
        g.stamp(f'b{j}')
        dm = p1_dma(g, j + 2) if j <= 5 else (dma_B(g, 0, 8, 'B01') if j == f1chk else [])
        if len(dm) == 5: dm = [lambda a=dm[0], c=dm[1]: (a(), c())] + dm[2:]
        if j == f1chk - 1:
            sk = w0(g); poll_issue(g, 1); g(f"{sk}:")
        if j == 0:
            sk = w0(g)
            g(f"v_mov_b32 v{vT+3}, 0\nbuffer_load_dword v{vNON}, v{vT+3}, {sr(rDBG)}, 0 offen sc1\n{sk}:")
        reads(p, 0); reads(p, 1)
        if j > 0: mf(j - 1, 3)
        if dm: dm[0]()
        reads(p, 2)
        mf(j, 0)
        if dm: dm[1]()
        reads(p, 3)
        mf(j, 1)
        if dm: dm[2]()
        mf(j, 2)
        if dm: dm[3]()
    mf(7, 3)
    g(f"""
    s_and_b32 s{sT1}, s{sHP}, 14
    s_add_u32 s{sT1}, s{sT1}, s{sB}
    s_lshl_b32 s{sT1}, s{sT1}, 18
    s_lshr_b32 s{sT2}, s{sTB}, 1
    s_lshl_b32 s{sT2}, s{sT2}, 14
    s_add_u32 s{sT1}, s{sT1}, s{sT2}
    s_and_b32 s{sT2}, s{sTB}, 1
    s_lshl_b32 s{sT2}, s{sT2}, 2
    s_add_u32 s{sT2}, s{sT2}, s{sI}
    s_lshl_b32 s{sT2}, s{sT2}, 10
    s_add_u32 s{sT1}, s{sT1}, s{sT2}
    """)
    if b == 0:
        g(f"""
        v_and_b32 v{vT}, 0x23, v1
        v_and_b32 v{vT+1}, 0x10, v1
        v_or_b32 v{vT}, v{vT}, v{vT+1}
        v_bfe_u32 v{vT+1}, v1, 2, 1
        v_lshl_or_b32 v{vT}, v{vT+1}, 3, v{vT}
        v_bfe_u32 v{vT+1}, v1, 3, 1
        v_lshl_or_b32 v{vT}, v{vT+1}, 2, v{vT}
        v_lshlrev_b32 v{vKVST}, 4, v{vT}
        s_add_u32 s{sT2}, s{sT1}, 131072
        """)
    else:
        g(f"""
        v_bfe_u32 v{vT}, v1, 4, 1
        v_lshlrev_b32 v{vT}, 17, v{vT}
        v_lshrrev_b32 v{vT+1}, 5, v1
        v_and_b32 v{vT+2}, 15, v1
        v_lshl_add_u32 v{vT+1}, v{vT+1}, 4, v{vT+2}
        v_lshl_add_u32 v{vKVST}, v{vT+1}, 4, v{vT}
        s_add_u32 s{sT1}, s{sT1}, 8192
        s_nop 0
        s_nop 0
        """)
    g("s_nop 3")
    for k in range(8): g(f"v_cvt_pk_bf16_f32 v{S0+k}, v{T1+2*k}, v{T1+2*k+1}")
    if b == 0:
        g.vmop(f"buffer_store_dwordx4 {r(S0,4)}, v{vKVST}, {sr(rWS)}, s{sT1} offen sc1", 'kvst')
        g.vmop(f"buffer_store_dwordx4 {r(S0+4,4)}, v{vKVST}, {sr(rWS)}, s{sT2} offen sc1", 'kvst')
    else:
        g.vmop(f"buffer_store_dwordx4 {r(S0,4)}, v{vKVST}, {sr(rWS)}, s{sT1} offen sc1", 'kvst')
        g.vmop(f"buffer_store_dwordx4 {r(S0+4,4)}, v{vKVST}, {sr(rWS)}, s{sT1} offen offset:512 sc1", 'kvst')
    g(f"s_mov_b32 s{sT3}, {f2h(QSCALE)}")
    for k in range(16): g(f"v_mul_f32 v{TQ+k}, s{sT3}, v{TQ+k}")
    for k in range(8): g(f"v_cvt_pk_bf16_f32 v{QA+k}, v{TQ+2*k}, v{TQ+2*k+1}")

def attn_consts(g):
    g(f"""
    v_mov_b32 v{vIDX}, 0xdddddddd
    v_lshrrev_b32 v{vT}, 5, v1
    v_and_b32 v{vT+1}, 15, v1
    v_lshl_add_u32 v{vT}, v{vT}, 4, v{vT+1}
    v_lshlrev_b32 v{vVOFF}, 4, v{vT}
    v_and_b32 v{vT}, 31, v1
    v_cmp_eq_u32 vcc, 16, v{vT}
    v_mov_b32 v{vT+1}, 0x3f803f80
    v_add_u32 v{vAK}, {8*SLOT}, v{vL16}
    v_cndmask_b32 v{vT+1}, 0, v{vT+1}, vcc
    v_add_u32 v{vAV}, {8*SLOT + 8192}, v{vVOFF}
    """)
    for k in range(16): g(f"v_mov_b32 v{V0[0]+k}, v{vT+1}")
    for k in range(9, 16): g(f"v_mov_b32 v{O+k}, 0")
    g(f"""
    s_lshl_b32 s{sT1}, s{sHP}, 1
    s_add_u32 s{sT1}, s{sT1}, s{sB}
    s_lshl_b32 s{sDMA}, s{sT1}, 17
    s_lshl_b32 s{sT2}, s{sI}, 12
    s_add_u32 s{sDMA}, s{sDMA}, s{sT2}
    s_lshl_b32 s{sT2}, s{sTB}, 2
    s_add_u32 s{sT2}, s{sT2}, s{sI}
    s_lshl_b32 s{sT2}, s{sT2}, 5
    s_add_u32 s{sT2}, s{sT2}, s{sT1}
    s_lshl_b32 s{sOST}, s{sT2}, 10
    """)

def task_prologue(g, Q):
    g.ds(f"ds_read_b128 {r(KF[0],4)}, v{vAK}", 'K0')
    g.ds(f"ds_read_b128 {r(KF[1],4)}, v{vAK} offset:1024", 'kv')
    g(f"s_mov_b64 exec, s[{sMASK}:{sMASK+1}]")
    g.ds(f"ds_read_b128 {r(V0[0],4)}, v{vAV}", 'kv')
    g.ds(f"ds_read_b128 {r(V1[0],4)}, v{vAV} offset:512", 'kv')
    g("s_mov_b64 exec, -1")
    g.wlg('K0')
    g(f"v_mfma_f32_32x32x16_bf16 {r(S1,16)}, {r(KF[0],4)}, {r(Q,4)}, 0")
    for k in range(9): g(f"v_mov_b32 v{O+k}, 0")
    g("s_nop 3")
    g(f"v_max3_f32 v{vT}, v{S1}, v{S1+1}, v{S1+2}")
    g(f"v_max3_f32 v{vT+1}, v{S1+3}, v{S1+4}, v{S1+5}")
    for k in range(6, 16, 4):
        g(f"v_max3_f32 v{vT}, v{vT}, v{S1+k}, v{S1+k+1}")
        if k + 3 < 16: g(f"v_max3_f32 v{vT+1}, v{vT+1}, v{S1+k+2}, v{S1+k+3}")
    g(f"v_max_f32 v{vT}, v{vT}, v{vT+1}")
    set_c_from_max(g, MOFF)
    g(f"v_mfma_f32_32x32x16_bf16 {r(S0,16)}, {r(KF[0],4)}, {r(Q,4)}, {r(C,16)}")
    g("s_nop 11")

def set_c_from_max(g, off):
    g(f"v_mov_b32 v{vT+1}, v{vT}\ns_nop 1\nv_permlane32_swap_b32 v{vT}, v{vT+1}\ns_nop 1")
    g(f"v_max_f32 v{vT}, v{vT}, v{vT+1}")
    g(f"v_sub_f32 v{C}, {f2h(-off)}, v{vT}")
    for k in range(1, 16): g(f"v_mov_b32 v{C+k}, v{C}")
    g("s_nop 1")

def tile(g, T, Q, ev, pos):
    t = T & 7
    p = T & 1
    cur, nxt = (S0, S1) if p == 0 else (S1, S0)
    p1, pq, p0 = pos
    def run(key):
        for f in ev.get((T, key), []): f()
    for i in range(16):
        if i == p1:
            if T > 0: g(f"v_smfmac_f32_32x32x32_bf16 {r(O,16)}, {r(V1[1-p],4)}, {r(nxt+8,8)}, v{vIDX}")
            run('m1')
            g.wlg()
            if T < 63:
                g(f"s_mov_b64 exec, s[{sMASK}:{sMASK+1}]")
                g.ds(f"ds_read_b128 {r(V0[1-p],4)}, v{vAV} offset:{((t + 1) & 7) * 1024}", 'kv')
                g.ds(f"ds_read_b128 {r(V1[1-p],4)}, v{vAV} offset:{((t + 1) & 7) * 1024 + 512}", 'kv')
                g("s_mov_b64 exec, -1")
            if T < 62: g.ds(f"ds_read_b128 {r(KF[p],4)}, v{vAK} offset:{((t + 2) & 7) * 1024}", 'kv')
            run('gap')
        if i == pq:
            if T < 63: g(f"v_mfma_f32_32x32x16_bf16 {r(nxt,16)}, {r(KF[1-p],4)}, {r(Q,4)}, {r(C,16)}")
            run('mq')
        if i == p0:
            g(f"v_smfmac_f32_32x32x32_bf16 {r(O,16)}, {r(V0[p],4)}, {r(cur,8)}, v{vIDX}")
            run('m0')
        run(i)
        g(f"v_exp_f32 v{cur+i}, v{cur+i}")
    if T == 63:
        g("s_nop 1")
        g(f"v_smfmac_f32_32x32x32_bf16 {r(O,16)}, {r(V1[p],4)}, {r(cur+8,8)}, v{vIDX}")

def task_epilogue(g, task):
    ret = f"L_fbret{task}"
    g(f"s_mov_b32 s{sFBRET}, {task}")
    if task == 0: g(f"s_mov_b32 s{sFBBASE}, {WS_KVB}")
    else: g(f"s_lshl_b32 s{sT1}, s{sI}, 12\ns_sub_u32 s{sFBBASE}, s{sDMA}, s{sT1}")
    g(f"v_mov_b32 v{vT+5}, {f2h(2.0**-97)}\nv_mov_b32 v{vT+6}, {f2h(2.0**120)}\nv_mov_b32 v{vT+7}, 0x207")
    g("s_nop 7")
    g(f"""
    v_mov_b32 v{vT}, v{O+8}
    v_mov_b32 v{vT+1}, v{O+8}
    v_max3_f32 v{vT+2}, |v{O}|, |v{O+1}|, |v{O+2}|
    v_max3_f32 v{vT+3}, |v{O+3}|, |v{O+4}|, |v{O+5}|
    v_permlane32_swap_b32 v{vT}, v{vT+1}
    v_max3_f32 v{vT+2}, v{vT+2}, |v{O+6}|, |v{O+7}|
    v_max_f32 v{vT+2}, v{vT+2}, v{vT+3}
    v_add_f32 v{vT+4}, v{O}, v{O+1}
    v_mov_b32 v{vT+3}, v{vT+2}
    """)
    for k in range(2, 8): g(f"v_add_f32 v{vT+4}, v{vT+4}, v{O+k}")
    g(f"""
    v_permlane32_swap_b32 v{vT+2}, v{vT+3}
    v_cmp_class_f32 vcc, v{vT+4}, v{vT+7}
    s_mov_b64 s[{sPC}:{sPC+1}], vcc
    v_max_f32 v{vT+2}, v{vT+2}, v{vT+3}
    v_cmp_nlt_f32 vcc, v{vT}, v{vT+6}
    s_or_b64 s[{sPC}:{sPC+1}], s[{sPC}:{sPC+1}], vcc
    v_cmp_nge_f32 vcc, v{vT+2}, v{vT+5}
    s_or_b64 s[{sPC}:{sPC+1}], s[{sPC}:{sPC+1}], vcc
    v_cmp_nge_f32 vcc, v{vT}, v{vT+5}
    s_or_b64 s[{sPC}:{sPC+1}], s[{sPC}:{sPC+1}], vcc
    """)
    if g.opt.get('force_fb'): g(f"s_mov_b64 s[{sPC}:{sPC+1}], -1")
    g(f"s_cmp_lg_u64 s[{sPC}:{sPC+1}], 0\ns_cbranch_scc1 L_fallback\n{ret}:")
    g(f"v_rcp_f32 v{vT}, v{vT}")
    if task == 0: g(f"v_sub_f32 v{vT+1}, 1.0, v{vG}")
    else: g(f"v_mov_b32 v{vT+1}, v{vG}")
    g(f"v_mul_f32 v{vT}, v{vT}, v{vT+1}")
    for k in range(8): g(f"v_mul_f32 v{O+k}, v{vT}, v{O+k}")
    for k in range(4): g(f"v_cvt_pk_bf16_f32 v{vT+4+k}, v{O+2*k}, v{O+2*k+1}")
    if task == 1:
        for k in range(4): g(f"v_min_u32 v{vT+4+k}, -2, v{vT+4+k}")
    g(f"s_add_u32 s{sT1}, s{sOST}, {WS_O + (0 if task == 0 else 0x200000)}")
    g.vmop(f"buffer_store_dwordx4 {r(vT+4,4)}, v{vL16}, {sr(rWS)}, s{sT1} offen sc1", 'ost')

def fallback(g):
    Q = QA
    g("L_fallback:")
    g(f"s_cmp_eq_u32 s{sFBRET}, 0")
    g(f"s_cselect_b64 vcc, -1, 0")
    g("s_nop 1")
    for k in range(4): g(f"v_cndmask_b32 v{vPOLL+k}, v{QA+k}, v{QB+k}, vcc")
    Q = vPOLL
    g(f"v_mov_b32 v{vT}, 0xff800000\ns_mov_b32 s{sFBT}, 0")
    def addr():
        g(f"s_lshr_b32 s{sT1}, s{sFBT}, 3\ns_lshl_b32 s{sT1}, s{sT1}, 14\ns_and_b32 s{sT2}, s{sFBT}, 7\ns_lshl_b32 s{sT2}, s{sT2}, 10\ns_add_u32 s{sT1}, s{sT1}, s{sT2}\ns_add_u32 s{sT1}, s{sT1}, s{sFBBASE}")
    g("L_fb1:"); addr()
    g(f"buffer_load_dwordx4 {r(KF[0],4)}, v{vL16}, {sr(rWS)}, s{sT1} offen sc1\ns_waitcnt vmcnt(0)")
    g(f"v_mfma_f32_32x32x16_bf16 {r(S0,16)}, {r(KF[0],4)}, {r(Q,4)}, 0\ns_nop 15")
    for k in range(0, 16, 2): g(f"v_max3_f32 v{vT}, v{vT}, v{S0+k}, v{S0+k+1}")
    g(f"s_add_u32 s{sFBT}, s{sFBT}, 1\ns_cmp_lt_u32 s{sFBT}, 64\ns_cbranch_scc1 L_fb1")
    set_c_from_max(g, 0.0)
    for k in range(16): g(f"v_mov_b32 v{O+k}, 0")
    g(f"s_mov_b32 s{sFBT}, 0")
    g("L_fb2:"); addr()
    g(f"buffer_load_dwordx4 {r(KF[0],4)}, v{vL16}, {sr(rWS)}, s{sT1} offen sc1\ns_add_u32 s{sT1}, s{sT1}, 8192")
    g(f"s_mov_b64 exec, s[{sMASK}:{sMASK+1}]")
    g(f"buffer_load_dwordx4 {r(V0[0],4)}, v{vVOFF}, {sr(rWS)}, s{sT1} offen sc1\nbuffer_load_dwordx4 {r(V1[0],4)}, v{vVOFF}, {sr(rWS)}, s{sT1} offen offset:512 sc1")
    g("s_mov_b64 exec, -1\ns_waitcnt vmcnt(0)")
    g(f"v_mfma_f32_32x32x16_bf16 {r(S0,16)}, {r(KF[0],4)}, {r(Q,4)}, {r(C,16)}\ns_nop 15")
    for k in range(16): g(f"v_exp_f32 v{S0+k}, v{S0+k}")
    g("s_nop 2")
    g(f"v_smfmac_f32_32x32x32_bf16 {r(O,16)}, {r(V0[0],4)}, {r(S0,8)}, v{vIDX}")
    g(f"v_smfmac_f32_32x32x32_bf16 {r(O,16)}, {r(V1[0],4)}, {r(S0+8,8)}, v{vIDX}")
    g(f"s_nop 15\ns_add_u32 s{sFBT}, s{sFBT}, 1\ns_cmp_lt_u32 s{sFBT}, 64\ns_cbranch_scc1 L_fb2")
    g(f"v_mov_b32 v{vT}, v{O+8}\nv_mov_b32 v{vT+1}, v{O+8}\ns_nop 1\nv_permlane32_swap_b32 v{vT}, v{vT+1}\ns_nop 1")
    g(f"s_cmp_eq_u32 s{sFBRET}, 0\ns_cbranch_scc1 L_fbret0\ns_branch L_fbret1")

def tail_addr(g):
    g(f"""
    v_lshrrev_b32 v{vT}, 3, v1
    v_bfe_u32 v{vT+1}, v1, 2, 1
    v_bfe_u32 v{vT+2}, v1, 4, 1
    v_xor_b32 v{vT+1}, v{vT+1}, v{vT+2}
    v_lshlrev_b32 v{vT+1}, 6, v{vT+1}
    v_lshl_add_u32 v{vT+1}, v{vT}, 10, v{vT+1}
    v_and_b32 v{vT+3}, 3, v1
    v_lshl_add_u32 v{vDWO}, v{vT+3}, 4, v{vT+1}
    v_lshrrev_b32 v{vT}, 5, v1
    v_bfe_u32 v{vT+1}, v1, 2, 2
    v_lshl_add_u32 v{vT}, v{vT}, 2, v{vT+1}
    v_lshlrev_b32 v{vT}, 7, v{vT}
    v_bfe_u32 v{vT+1}, v1, 3, 1
    v_lshl_add_u32 v{vT}, v{vT+1}, 6, v{vT}
    v_lshl_add_u32 v{vT}, v{vT+2}, 5, v{vT}
    v_lshl_add_u32 v{vT}, v{vT+3}, 3, v{vT}
    s_lshl_b32 s{sT1}, s{sI}, 13
    s_add_u32 s{sT1}, s{sT1}, {LDS_WOB}
    v_add_u32 v{vAT}, s{sT1}, v{vT}
    v_xor_b32 v{vAT+1}, 64, v{vAT}
    v_and_b32 v{vT}, 31, v1
    v_lshrrev_b32 v{vT+1}, 5, v1
    v_and_b32 v{vT+2}, 15, v1
    v_xor_b32 v{vT+1}, v{vT+1}, v{vT+2}
    v_lshlrev_b32 v{vT+1}, 4, v{vT+1}
    v_lshl_add_u32 v{vT}, v{vT}, 8, v{vT+1}
    s_lshl_b32 s{sT1}, s{sW}, 13
    v_add_u32 v{vRW}, s{sT1}, v{vT}
    v_lshrrev_b32 v{vT}, 3, v1
    s_lshl_b32 s{sT1}, s{sI}, 3
    v_add_u32 v{vT}, s{sT1}, v{vT}
    v_and_b32 v{vT+1}, 7, v1
    v_lshlrev_b32 v{vT+2}, 1, v{vT+1}
    v_and_b32 v{vT+3}, 15, v{vT}
    v_xor_b32 v{vT+2}, v{vT+2}, v{vT+3}
    v_lshlrev_b32 v{vT+2}, 4, v{vT+2}
    v_lshl_add_u32 v{vT+2}, v{vT}, 8, v{vT+2}
    s_lshl_b32 s{sT1}, s{sB}, 15
    v_add_u32 v{vRR}, s{sT1}, v{vT+2}
    v_xor_b32 v{vRR+1}, 16, v{vRR}
    s_lshl_b32 s{sT1}, s{sTB}, 7
    s_lshr_b32 s{sT2}, s{sHP}, 3
    s_lshl_b32 s{sT2}, s{sT2}, 6
    s_add_u32 s{sT1}, s{sT1}, s{sT2}
    s_lshl_b32 s{sT2}, s{sB}, 5
    s_add_u32 s{sT1}, s{sT1}, s{sT2}
    v_add_u32 v{vT}, s{sT1}, v{vT}
    v_lshlrev_b32 v{vT}, 10, v{vT}
    v_lshl_add_u32 v{vT}, v{vT+1}, 4, v{vT}
    s_and_b32 s{sT2}, s{sHP}, 7
    s_lshl_b32 s{sT2}, s{sT2}, 7
    v_add_u32 v{vOUTA}, s{sT2}, v{vT}
    """)

def of_loads(g, branch, tag, dst=None):
    dst = OF if dst is None else dst
    def setup():
        g(f"""
        s_lshl_b32 s{sT1}, s{sTB}, 2
        s_lshr_b32 s{sT2}, s{sHP}, 3
        s_lshl_b32 s{sT2}, s{sT2}, 1
        s_add_u32 s{sT1}, s{sT1}, s{sT2}
        s_add_u32 s{sT1}, s{sT1}, s{sB}
        s_lshl_b32 s{sT1}, s{sT1}, 15
        s_lshl_b32 s{sT2}, s{sI}, 12
        s_add_u32 s{sT1}, s{sT1}, s{sT2}
        s_add_u32 s{sOF}, s{sT1}, {WS_O + branch*0x200000}
        s_add_u32 s{sOF+1}, s{sOF}, 16384
        """)
    def op(n): return lambda: g.vmop(f"buffer_load_dwordx4 {r(dst+4*n,4)}, v{vL16}, {sr(rWS)}, s{sOF + (n >> 2)} offen offset:{(n&3)*1024} sc1", f'{tag}{n}')
    return [setup] + [op(n) for n in range(8)]

def wfrag_reads(g, n):
    for tc in range(2):
        for e in range(2):
            g.ds(f"ds_read_b64_tr_b16 {r(WF+8*n+4*tc+2*e,2)}, v{vAT+tc} offset:{(n>>2)*32768+(n&3)*2048+e*1024}", f'w{n}')

def tail(g):
    OA = PF
    fa = of_loads(g, 1, 'OA', OA)
    oat = g.opt.get('oat', 1)
    fa[0]()
    if oat == 0: runall(fa[1:])
    g.wvm('OB7')
    for n in range(3): wfrag_reads(g, n)
    for n in range(8):
        g.wlg(f'w{n}')
        for tc in range(2):
            c = "0" if n == 0 else r(ACC+16*tc, 16)
            g(f"v_mfma_f32_32x32x16_bf16 {r(ACC+16*tc,16)}, {r(WF+8*n+4*tc,4)}, {r(OF+4*n,4)}, {c}")
        if n + 3 < 8: wfrag_reads(g, n + 3)
        if oat == 2 and n == 4: runall(fa[1:])
    g.wvm('WoA1')
    if oat == 1: runall(fa[1:])
    g("s_barrier")
    g(f"v_add_u32 v{vAT}, {LDS_WOA - LDS_WOB}, v{vAT}\nv_add_u32 v{vAT+1}, {LDS_WOA - LDS_WOB}, v{vAT+1}")
    for n in range(8):
        if n >= 3: g.wlg(f'w{n-3}')
        wfrag_reads(g, n)
    g.wlg()
    g.stamp('poll')
    g(f"s_movk_i32 s{sDS}, 0xff\nL_oa_loop:")
    g.wvm()
    for n in range(8):
        sk, bad = g.lab("L_oa"), g.lab("L_ob")
        R = OA + 4 * n
        g(f"""
        s_bitcmp1_b32 s{sDS}, {n}
        s_cbranch_scc0 {sk}
        v_max3_u32 v{vT}, v{R}, v{R+1}, v{R+2}
        v_max_u32 v{vT}, v{vT}, v{R+3}
        v_cmp_eq_u32 vcc, -1, v{vT}
        s_nop 0
        s_cbranch_vccnz {bad}
        """)
        for tc in range(2):
            g(f"v_mfma_f32_32x32x16_bf16 {r(ACC+16*tc,16)}, {r(WF+8*n+4*tc,4)}, {r(R,4)}, {r(ACC+16*tc,16)}")
        g(f"s_bitset0_b32 s{sDS}, {n}\ns_branch {sk}\n{bad}:")
        fa[1 + n](); g.vm = []
        g(f"{sk}:")
    g(f"s_cmp_eq_u32 s{sDS}, 0\ns_cbranch_scc1 L_oa_done")
    spin_check(g)
    g("s_branch L_oa_loop\nL_oa_done:")
    g.stamp('mm')
    for k in range(1, 8): g(f"v_xor_b32 v{vT+k}, {k*32}, v{vRW}")
    g("s_nop 3")
    for tc in range(2):
        if tc == 1: g("s_nop 0")
        for q in range(4):
            k = 4 * tc + q
            a_ = vRW if k == 0 else vT + k
            g.ds(f"ds_write_b128 v{a_}, {r(ACC+16*tc+4*q,4)}", 'rw')
    g.wlg()
    g("s_barrier")
    for kq in range(4):
        for e in range(2):
            g.ds(f"ds_read_b128 {r(16+8*kq+4*e,4)}, v{vRR+e} offset:{kq*8192}", f'rr{kq}')
    g.wlg('rr1')
    for k in range(8): g(f"v_add_f32 v{16+k}, v{16+k}, v{24+k}")
    g.wlg('rr3')
    for k in range(8): g(f"v_add_f32 v{32+k}, v{32+k}, v{40+k}")
    for k in range(8): g(f"v_add_f32 v{16+k}, v{16+k}, v{32+k}")
    for k in range(4): g(f"v_cvt_pk_bf16_f32 v{16+k}, v{16+2*k}, v{17+2*k}")
    g.vmop(f"buffer_store_dwordx4 v[16:19], v{vOUTA}, {sr(rOUT)}, 0 offen {g.opt.get('outsc', '')}", 'out')

def schedule(g, task):
    o = g.opt
    ev = {}
    def at(T, key, *fs): ev.setdefault((T, key), []).extend(fs)
    slot = slotB if task == 0 else slotA
    dpos = o.get('dpos', ((2, 6), (2, 13), (3, 6), (3, 13)))
    pp = o.get('pp', {(2, 'm1'): 3, (5, 'm0'): 2, (0, 'm0'): 1, (1, 'mq'): 0})
    def wave0(*fs):
        def f():
            sk = w0(g)
            for x in fs: x()
            g(f"{sk}:")
        return f
    def flag(base, hi, lo):
        return lambda: flag_store(g, f"s_lshl_b32 s{sT1}, s{hi}, 7\ns_lshl_b32 s{sT2}, s{lo}, 2\ns_add_u32 s{sT1}, s{sT1}, s{sT2}\ns_add_u32 s{sT1}, s{sT1}, {base}")
    for c in range(8):
        gi = 8 * task + c
        T0 = 8 * c
        ppc = dict(pp)
        if c == 7:
            ppc = {k: v for k, v in pp.items() if k[0] < 2}
            ppc.update(o.get('pplast', {(2, 'm1'): 3, (4, 'm0'): 2, (6, 'm0'): 1, (7, 'm0'): 0}))
        for (t, key), pr in ppc.items(): at(T0 + t, key, lambda pr=pr: g(f"s_setprio {pr}"))
        if c < 7:
            d = ((slot(c + 1) - slot(c)) * SLOT) & 0xffffffff
            at(T0 + 6, 0, lambda d=d: g(f"v_add_u32 v{vAK}, {d}, v{vAK}"))
            at(T0 + 7, 0, lambda d=d: g(f"v_add_u32 v{vAV}, {d}, v{vAV}"))
        wait = {1: 'G1', 3: None, 7: 'A0', 8: 'A1', 9: 'A2', 10: 'ost', 11: 'A4', 12: 'A5', 13: 'A6', 14: 'WoB0', 15: 'WoB1'}
        if gi == 3: at(T0 + 1, 1, lambda: g.wvm(), wave0(lambda: poll_check(g)))
        if gi == 14: at(T0 + 1, 1, lambda: g.wvm('WoB0'), wave0(lambda: poll_check(g)))
        if gi in wait: at(T0 + 1, 'm0', lambda w=wait[gi]: g.wvm(w))
        at(T0 + 1, 'm0', lambda: g("s_barrier"))
        grp = {0: lambda: dma_B(g, 4, 2, 'G2'), 1: lambda: dma_B(g, 6, 4, 'G3'),
               3: lambda: dma_A(g, 0, 6, 'A0'), 4: lambda: dma_A(g, 1, 8, 'A1'), 5: lambda: dma_A(g, 2, 0, 'A2'), 6: lambda: dma_A(g, 3, 2, 'A3'),
               8: lambda: dma_A(g, 4, 4, 'A4'), 9: lambda: dma_A(g, 5, 6, 'A5'), 10: lambda: dma_A(g, 6, 8, 'A6'), 11: lambda: dma_A(g, 7, 0, 'A7'),
               12: lambda: dma_Wo(g, rWOB, 0, LDS_WOB, 'WoB0'), 13: lambda: dma_Wo(g, rWOB, 1, LDS_WOB, 'WoB1'),
               14: lambda: dma_Wo(g, rWOA, 0, LDS_WOA, 'WoA0'), 15: lambda: dma_Wo(g, rWOA, 1, LDS_WOA, 'WoA1')}
        if gi == 13: at(T0 + 2, 0, wave0(lambda: poll_issue(g, 3)))
        if gi in grp:
            fs = grp[gi]()
            at(T0 + dpos[0][0], dpos[0][1], fs[0])
            for (t, i), f in zip(dpos, fs[1:]): at(T0 + t, i, f)
        if gi == 1: at(T0 + 4, 6, wave0(flag(WS_F2, sHP, sTB)))
        if gi == 1:
            def sentinel():
                for k in range(4): g(f"v_mov_b32 v{vT+4+k}, -1")
                g(f"s_add_u32 s{sT1}, s{sOST}, {WS_O + 0x200000}")
                g.vmop(f"buffer_store_dwordx4 {r(vT+4,4)}, v{vL16}, {sr(rWS)}, s{sT1} offen sc1", 'sent')
            at(T0 + 5, 6, sentinel)
        if gi == 2:
            at(T0 + 2, 6, wave0(lambda: poll_issue(g, 2)))
        if gi == 10: at(T0 + 4, 6, wave0(flag(WS_F3, sTB, sHP)))
        if gi == 13 and o.get('wopf', 1):
            def wopf():
                g(f"s_and_b32 s{sT1}, s{sTB}, 3\ns_lshl_b32 s{sT1}, s{sT1}, 13\ns_add_u32 s{sT1}, s{sT1}, s{sDS}\ns_add_u32 s{sT1}, s{sT1}, 262144")
                g.vmop(f"buffer_load_dwordx4 {r(PF,4)}, v{vDWO}, {sr(rWOA)}, s{sT1} offen", 'pf')
            at(T0 + 5, 6, wopf)
        if gi == 14:
            fs = of_loads(g, 0, 'OB')
            at(T0 + 4, 6, fs[0])
            for n, f in enumerate(fs[1:]): at(T0 + 4 + n // 2, 6 if n % 2 == 0 else 13, f)
    return ev

def slotB(c): return (8 + c) % 10
def slotA(c): return 2 * ((3 + c) % 5)

def build(**opt):
    g = G(**opt)
    setup(g)
    p1_addr(g)
    tail_addr(g)
    attn_consts(g)
    fork = (list(g.lg), list(g.vm)); nst0 = g.nst
    g(f"s_bitcmp1_b32 s{sHP}, 0\ns_cbranch_scc1 L_p1b")
    phase1(g, 0)
    end0 = (list(g.lg), list(g.vm))
    g("s_branch L_p1done\nL_p1b:")
    g.lg, g.vm = list(fork[0]), list(fork[1]); g.nst = nst0
    phase1(g, 1)
    assert end0 == (g.lg, g.vm), (end0, g.lg, g.vm)
    g("L_p1done:")
    g.stamp('p1')
    if opt.get('dump_q'):
        g(f"s_lshl_b32 s{sT1}, s2, 3\ns_add_u32 s{sT1}, s{sT1}, s{sW}\ns_lshl_b32 s{sT1}, s{sT1}, 11\ns_add_u32 s{sT1}, s{sT1}, {WS_DBG + 0x10000}")
        g.vmop(f"buffer_store_dwordx4 {r(QA,4)}, v{vL16}, {sr(rWS)}, s{sT1} offen", 'dbg')
        g.vmop(f"buffer_store_dwordx4 {r(QB,4)}, v{vL16}, {sr(rWS)}, s{sT1} offen offset:1024", 'dbg')
    g.wvm('B01')
    g("s_barrier")
    runall(dma_B(g, 2, 0, 'G1'))
    g(f"v_and_b32 v{vT}, 31, v1\nv_lshlrev_b32 v{vT}, 2, v{vT}\ns_lshl_b32 s{sT1}, s{sTB}, 2\ns_add_u32 s{sT1}, s{sT1}, s{sI}\ns_lshl_b32 s{sT1}, s{sT1}, 7\ns_add_u32 s{sT1}, s{sT1}, {WS_GATE}")
    g.vmop(f"buffer_load_dword v{vG}, v{vT}, {sr(rWS)}, s{sT1} offen sc1", 'gate')
    g.stamp('bstart')
    for task in range(2):
        Q = QB if task == 0 else QA
        slot = slotB if task == 0 else slotA
        if task == 1:
            d = (slotA(0) - slotB(7)) * SLOT
            g(f"s_lshl_b32 s{sT1}, s{sB}, 14\ns_add_u32 s{sT1}, s{sT1}, {d & 0xffffffff}\nv_add_u32 v{vAK}, s{sT1}, v{vAK}\nv_add_u32 v{vAV}, s{sT1}, v{vAV}")
        task_prologue(g, Q)
        ev = schedule(g, task)
        for T in range(64): tile(g, T, Q, ev, opt.get('pos', (2, 4, 10)))
        task_epilogue(g, task)
        g.stamp('BA'[task])
    tail(g)
    if opt.get('stamps'):
        g.stamp('end')
        g(f"s_lshl_b32 s{sT1}, s2, 3\ns_add_u32 s{sT1}, s{sT1}, s{sW}\ns_lshl_b32 s{sT1}, s{sT1}, 6\ns_add_u32 s{sT1}, s{sT1}, {WS_DBG}")
        g("s_waitcnt lgkmcnt(0)")
        for k in range(12): g(f"v_mov_b32 v{16+k}, s{STAMP_SLOTS[min(k, g.nst-1)]}")
        g(f"v_mov_b32 v30, 0\ns_mov_b64 exec, 1")
        for k in range(3): g(f"buffer_store_dwordx4 v[{16+4*k}:{19+4*k}], v30, {sr(rWS)}, s{sT1} offen offset:{16*k}")
    g("L_abort:\ns_endpgm")
    fallback(g)
    g("L_end:\ns_endpgm\nL_codeend:")
    hdr = open('gated_mix__mha_block__grouped_kv_mqa__prompt.s.ref').read().split("; Override launch")[0]
    out = hdr + "; One fused launch: projections, MQA and MHA attention, gated output projection.\n"
    out += "; @launch grid=(256,1,1) block=(512,1,1) lds=163840\n"
    out += f""".amdgcn_target "amdgcn-amd-amdhsa--gfx950"
.text
.globl {NAME}
.p2align 8
.type {NAME},@function
{NAME}:
{g.text()}.section .rodata,"a"
.p2align 6
.amdhsa_kernel {NAME}
  .amdhsa_next_free_vgpr 256
  .amdhsa_next_free_sgpr 102
  .amdhsa_accum_offset 256
  .amdhsa_group_segment_fixed_size 0
  .amdhsa_kernarg_size 96
  .amdhsa_user_sgpr_count 2
  .amdhsa_user_sgpr_kernarg_segment_ptr 1
  .amdhsa_system_sgpr_workgroup_id_x 1
.end_amdhsa_kernel
"""
    return out

if __name__ == "__main__":
    path = sys.argv[1] if len(sys.argv) > 1 else 'gated_mix__mha_block__grouped_kv_mqa__prompt.s'
    opt = {}
    for a in sys.argv[2:]:
        k, _, v = a.partition('=')
        opt[k] = eval(v) if v else True
    open(path, 'w').write(build(**opt))
```

```python
import sys, struct, copy
NAME = "gated_mix__mha_block__grouped_kv_mqa__prompt_kernel"

def f2h(x): return "0x%08x" % struct.unpack('<I', struct.pack('<f', x))[0]

WS_KVA  = 0x000000
WS_KVB  = 0x400000
WS_GATE = 0x420000
WS_F1   = 0x424000
WS_F2   = WS_F1 + 2048
WS_F3   = WS_F1 + 4096
WS_F4   = WS_F1 + 6144
WS_O    = 0x500000
WS_DBG  = 0x900000
WS_SIZE = 0x1000000

SLOT = 16384
LDS_WST = 65536
LDS_EW  = 8 * SLOT
LDS_ER  = 9 * SLOT
LDS_EG  = 9 * SLOT + 8192
LDS_EX  = 3 * SLOT
LDS_WOB = 2 * SLOT
LDS_WOA = 6 * SLOT

sW, sHP, sTB, sROT, sB = 3, 4, 5, 6, 7
rX, rWS_, rWKV, rGATE, rWS, rDBG, rOUT, rWOA, rWOB = 8, 12, 16, 20, 24, 28, 32, 36, 40
sMASK = 44
sI, sNONCE, sSPIN, sT0, sT1, sT2 = 46, 47, 48, 49, 50, 51
pX, pWQKV, pWOA, pBX, pWQ, pWK, pWV, pWOB, pGATE, pOUT, pDBG, pWS = 52, 54, 56, 58, 60, 62, 64, 66, 68, 70, 72, 74
sXO, sWO, sWSTEP, sW16, sMX, sMW, sKX, sKW = 76, 77, 78, 79, 80, 81, 82, 83
sOF = 76
sPC = 84
sFBBASE, sFBRET, sFBT, sDMA, sOST, sT3 = 86, 87, 88, 89, 90, 91
sPOLL, sDS = 92, 93
sST = 94
vIDX, vAK, vAV, vG, vL16, vVOFF = 2, 3, 4, 5, 6, 7
vT = 8
S0, S1, O, C, QA, QB = 16, 32, 48, 64, 80, 84
KF, V0, V1 = (88, 92), (96, 100), (104, 108)
OF = 112
ACC = 144
PF = 176
WF = 16
vAX = 240
vAW1, vAWQ, vDX0, vDX1, vDW, vKVST = 244, 245, 246, 247, 248, 249
vDWO, vRW, vOUTA = 224, 225, 226
vAT = 228
vRR = 230
vFL, vNON, vDUMMY = 250, 251, 251
vPOLL = 252
QSCALE = 0.25 * 1.4426950408889634
MOFF = 90.0
SPIN = 1 << 20

STAMP_SLOTS = [94, 96, 52, 54, 56, 58, 60, 62, 64, 66, 68, 70]
class G:
    def __init__(s, **opt):
        s.L = []; s.lg = []; s.vm = []; s.opt = opt; s.nlab = 0; s.nst = 0
    def __call__(s, txt):
        for line in txt.split("\n"):
            line = line.strip()
            if not line: continue
            s.L.append(line if (line.endswith(":") or line.startswith(".")) else "    " + line)
    def lab(s, p="L"):
        s.nlab += 1; return f"{p}_{s.nlab}"
    def ds(s, txt, tag=None):
        s(txt); s.lg.append(tag); assert len(s.lg) <= 15, "lgkm overflow"
    def wlg(s, tag=None):
        if tag is None:
            s("s_waitcnt lgkmcnt(0)"); s.lg = []; return
        if tag not in s.lg: return
        i = len(s.lg) - 1 - s.lg[::-1].index(tag)
        n = len(s.lg) - 1 - i
        s(f"s_waitcnt lgkmcnt({n})"); s.lg = s.lg[i + 1:]
    def vmop(s, txt, tag=None):
        s(txt); s.vm.append(tag); assert len(s.vm) <= 63
    def wvm(s, tag=None):
        if tag is None:
            s("s_waitcnt vmcnt(0)"); s.vm = []; return
        if tag not in s.vm: return
        i = len(s.vm) - 1 - s.vm[::-1].index(tag)
        n = len(s.vm) - 1 - i
        s(f"s_waitcnt vmcnt({n})"); s.vm = s.vm[i + 1:]
    def srd(s, d, base, nbytes):
        s(f"s_mov_b32 s{d}, s{base}\ns_and_b32 s{d+1}, s{base+1}, 0xffff\ns_mov_b32 s{d+2}, {nbytes}\ns_mov_b32 s{d+3}, 0x00020000")
    def stamp(s, name):
        if not s.opt.get('stamps'): return
        if name not in s.opt.get('at', ('setup', 'p1', 'bstart', 'B', 'A', 'poll', 'mm', 'end')): return
        ins = "s_memtime" if s.opt.get('stamps') == 2 else "s_memrealtime"
        slot = STAMP_SLOTS[s.nst]
        assert slot >= 94 or name not in ('entry', 'karg')
        s(f"{ins} s[{slot}:{slot+1}]")
        s.nst += 1
    def text(s): return "\n".join(s.L) + "\n"

def r(a, n): return f"v[{a}:{a+n-1}]"
def sr(a, n=4): return f"s[{a}:{a+n-1}]"

def spin_check(g):
    g(f"s_sub_u32 s{sSPIN}, s{sSPIN}, 1\ns_cbranch_scc1 L_abort")

def setup(g):
    g(f"""
    s_cmp_ge_u32 s2, 256
    s_cbranch_scc1 L_end
    """)
    g.stamp('entry')
    g(f"""
    s_load_dwordx16 s[52:67], s[0:1], 0
    s_load_dwordx8 s[68:75], s[0:1], 64
    v_lshrrev_b32 v{vT+1}, 6, v0
    v_and_b32 v1, 63, v0
    s_getpc_b64 s[{sPC}:{sPC+1}]
    L_pc:
    v_readfirstlane_b32 s{sW}, v{vT+1}
    s_and_b32 s{sT0}, s2, 0xf8
    s_add_u32 s{sT0}, s{sT0}, s{sW}
    s_lshl_b32 s{sT0}, s{sT0}, 7
    s_min_u32 s{sT0}, s{sT0}, L_codeend-L_pc-4
    s_load_dword s{sFBT}, s[{sPC}:{sPC+1}], s{sT0}
    s_bfe_u32 s{sTB}, s2, 0x20001
    s_lshl_b32 s{sTB}, s{sTB}, 2
    s_bfe_u32 s{sT0}, s2, 0x20003
    s_add_u32 s{sTB}, s{sTB}, s{sT0}
    s_and_b32 s{sHP}, s2, 1
    s_lshl_b32 s{sHP}, s{sHP}, 3
    s_lshr_b32 s{sT0}, s2, 5
    s_add_u32 s{sHP}, s{sHP}, s{sT0}
    s_lshl_b32 s{sROT}, s{sTB}, 1
    s_add_u32 s{sROT}, s{sROT}, s{sHP}
    s_and_b32 s{sROT}, s{sROT}, 7
    s_lshr_b32 s{sB}, s{sW}, 2
    s_and_b32 s{sI}, s{sW}, 3
    v_lshlrev_b32 v{vL16}, 4, v1
    """)
    g(f"""
    v_and_b32 v{vT+2}, 15, v1
    v_lshrrev_b32 v{vT+3}, 4, v1
    v_lshlrev_b32 v{vT+1}, 4, v{vT+3}
    v_lshl_add_u32 v{vT}, v{vT+2}, 10, v{vT+1}
    """)
    g(f"""
    v_lshrrev_b32 v{vT+4}, 3, v1
    v_and_b32 v{vT+5}, 7, v1
    v_lshrrev_b32 v{vT+6}, 4, v1
    v_xor_b32 v{vT+5}, v{vT+5}, v{vT+6}
    v_lshlrev_b32 v{vT+4}, 10, v{vT+4}
    v_lshl_add_u32 v{vDX0}, v{vT+5}, 4, v{vT+4}
    v_xor_b32 v{vDX1}, 64, v{vDX0}
    v_add_u32 v{vDX1}, 0x2000, v{vDX1}
    """)
    g(f"""
    s_lshr_b32 s{sT0}, s{sW}, 1
    s_cmp_eq_u32 s{sT0}, 3
    s_movk_i32 s{sT2}, 3072
    s_cselect_b32 s{sT1}, 1024, s{sT2}
    s_cselect_b32 s{sT2}, 2, 0
    s_lshl_b32 s{sWSTEP}, s{sT1}, 6
    s_lshl_b32 s{sMX}, s{sW}, 11
    s_add_u32 s{sMW}, s{sMX}, {LDS_WST}
    s_cmp_lg_u32 s{sB}, 0
    s_cbranch_scc1 L_su_q
    v_bfe_u32 v{vT+4}, v1, 2, 1
    v_bfe_u32 v{vT+5}, v1, 4, 1
    v_xor_b32 v{vT+4}, v{vT+4}, v{vT+5}
    v_and_b32 v{vT+5}, 3, v1
    v_lshl_add_u32 v{vT+5}, v{vT+4}, 2, v{vT+5}
    v_lshrrev_b32 v{vT+4}, 3, v1
    s_movk_i32 s{sW16}, 24576
    s_and_b32 s{sT2}, s{sHP}, 1
    s_add_u32 s{sT2}, s{sT2}, 1
    s_lshl_b32 s{sT2}, s{sT2}, 10
    s_lshr_b32 s{sWO}, s{sHP}, 1
    s_lshl_b32 s{sWO}, s{sWO}, 7
    s_add_u32 s{sWO}, s{sWO}, s{sT2}
    s_mul_i32 s{sT3}, s{sW}, 49152
    s_branch L_su_j
    L_su_q:
    v_lshrrev_b32 v{vT+4}, 2, v1
    v_and_b32 v{vT+5}, 3, v1
    v_xor_b32 v{vT+5}, s{sT2}, v{vT+5}
    s_lshl_b32 s{sW16}, s{sT1}, 4
    s_lshl_b32 s{sWO}, s{sHP}, 6
    s_and_b32 s{sT2}, s{sW}, 1
    s_mul_i32 s{sT3}, s{sT2}, s{sW16}
    s_lshl_b32 s{sT3}, s{sT3}, 1
    L_su_j:
    s_add_u32 s{sWO}, s{sWO}, s{sT3}
    v_mul_u32_u24 v{vT+4}, s{sT1}, v{vT+4}
    v_lshl_add_u32 v{vDW}, v{vT+5}, 4, v{vT+4}
    s_lshl_b32 s{sXO}, s{sTB}, 17
    s_lshl_b32 s{sT2}, s{sW}, 14
    s_add_u32 s{sXO}, s{sXO}, s{sT2}
    s_lshl_b32 s{sKX}, s{sROT}, 7
    s_mul_i32 s{sKW}, s{sROT}, s{sWSTEP}
    """)
    g(f"""
    s_lshr_b32 s{sT2}, s{sHP}, 1
    s_lshl_b32 s{sT2}, s{sT2}, 14
    s_lshl_b32 s{sDMA}, s{sTB}, 17
    s_add_u32 s{sDMA}, s{sDMA}, s{sT2}
    s_lshl_b32 s{sT2}, s{sW}, 7
    s_add_u32 s{sDMA}, s{sDMA}, s{sT2}
    s_mov_b32 s{sOST}, s{sT2}
    """)
    for k in range(8): g(f"v_mov_b32 v{40+k}, 0")
    g(f"v_mov_b32 v{vFL}, 0")
    g("s_waitcnt lgkmcnt(0)")
    g.stamp('karg')
    g.srd(rX, pX, 2097152)
    g(f"s_cmp_eq_u32 s{sT0}, 3\ns_cselect_b64 s[{rWS_}:{rWS_+1}], s[{pWQ}:{pWQ+1}], s[{pWQKV}:{pWQKV+1}]")
    g(f"s_mov_b32 s{rWS_+2}, 1572864\ns_cselect_b32 s{rWS_+2}, 524288, s{rWS_+2}\ns_and_b32 s{rWS_+1}, s{rWS_+1}, 0xffff\ns_mov_b32 s{rWS_+3}, 0x00020000")
    def early_loads():
        g(f"s_bitcmp1_b32 s{sHP}, 0\ns_cselect_b64 s[{rWKV}:{rWKV+1}], s[{pWV}:{pWV+1}], s[{pWK}:{pWK+1}]")
        g(f"s_and_b32 s{rWKV+1}, s{rWKV+1}, 0xffff\ns_mov_b32 s{rWKV+2}, 16384\ns_mov_b32 s{rWKV+3}, 0x00020000")
        g(f"s_add_u32 m0, s{sMX}, {LDS_EW}")
        g.srd(rGATE, pGATE, 1024)
        g.vmop(f"buffer_load_dwordx4 v{vL16}, {sr(rWKV)}, s{sMX} offen lds", 'e')
        g.vmop(f"buffer_load_dwordx4 v{vL16}, {sr(rWKV)}, s{sMX} offen offset:1024 lds", 'e')
        g(f"s_mov_b32 exec_lo, 0x00010001\ns_mov_b32 exec_hi, 0x00010001")
        g.vmop(f"buffer_load_dwordx4 v[40:43], v{vT+1}, {sr(rGATE)}, s{sOST} offen", 'e')
        g.vmop(f"buffer_load_dwordx4 v[44:47], v{vT+1}, {sr(rGATE)}, s{sOST} offen offset:64", 'e')
        g("s_mov_b64 exec, -1")
        g(f"s_add_u32 m0, s{sMX}, {LDS_EX}\ns_nop 0")
        g.vmop(f"buffer_load_dwordx4 v{vDX0}, {sr(rX)}, s{sDMA} offen lds", 'e')
        g(f"s_add_u32 m0, s{sMX}, {LDS_EX + 1024}\ns_nop 0")
        g.vmop(f"buffer_load_dwordx4 v{vDX1}, {sr(rX)}, s{sDMA} offen lds", 'e')
    nonce_scan(g)
    early_loads()
    g("s_barrier")
    early_addr(g)
    runall(p1_dma(g, 0))
    g.srd(rWS, pWS, WS_SIZE)
    g.srd(rDBG, pDBG, 256)
    nonce_producer(g)
    g.stamp('setup')
    early_compute(g)
    g("s_barrier")
    g.stamp('early')
    runall(p1_dma(g, 1))
    early_reduce(g)
    g.srd(rOUT, pOUT, 2097152)
    g.srd(rWOA, pWOA, 524288)
    g.srd(rWOB, pWOB, 524288)
    g(f"s_mov_b32 s{sMASK}, 0x0000ffff\ns_mov_b32 s{sMASK+1}, 0x0000ffff\ns_mov_b32 s{sSPIN}, {SPIN}\ns_mov_b32 s{sNONCE}, 0")

def p1_dma(g, j):
    p = j & 3
    def f0():
        g(f"s_add_u32 m0, s{sMX}, {p*SLOT}\ns_add_u32 s{sDS}, s{sXO}, s{sKX}")
        g.vmop(f"buffer_load_dwordx4 v{vDX0}, {sr(rX)}, s{sDS} offen lds", f'c{j}')
    def f1():
        g(f"s_add_u32 m0, s{sMX}, {p*SLOT+1024}\ns_add_u32 s{sPOLL+0 if False else sT3}, s{sWO}, s{sKW}")
        g.vmop(f"buffer_load_dwordx4 v{vDX1}, {sr(rX)}, s{sDS} offen lds", f'c{j}')
    def f2():
        g(f"s_add_u32 m0, s{sMW}, {p*SLOT}\ns_add_u32 s{sDS}, s{sT3}, s{sW16}")
        g.vmop(f"buffer_load_dwordx4 v{vDW}, {sr(rWS_)}, s{sT3} offen lds", f'c{j}')
    def f3():
        g(f"s_add_u32 m0, s{sMW}, {p*SLOT+1024}\ns_add_u32 s{sKW}, s{sKW}, s{sWSTEP}")
        g.vmop(f"buffer_load_dwordx4 v{vDW}, {sr(rWS_)}, s{sDS} offen lds", f'c{j}')
        if j < 7:
            g(f"s_add_u32 s{sKX}, s{sKX}, 128\ns_and_b32 s{sKX}, s{sKX}, 1023\ns_cselect_b32 s{sKW}, s{sKW}, 0")
    return [f0, f1, f2, f3]

def nonce_scan(g):
    skip = g.lab("L_ns")
    g(f"s_cmp_lg_u32 s2, 0\ns_cbranch_scc1 {skip}\ns_cmp_lg_u32 s{sW}, 0\ns_cbranch_scc1 {skip}")
    g.srd(rWS, pWS, WS_SIZE)
    g(f"v_lshrrev_b32 v{vT+4}, 2, v1\nv_and_b32 v{vT+5}, 3, v1\nv_lshlrev_b32 v{vT+4}, 7, v{vT+4}\nv_lshl_add_u32 v{vT+4}, v{vT+5}, 4, v{vT+4}")
    g(f"s_mov_b32 s{sT1}, {WS_F1}")
    g(f"buffer_load_dwordx4 v[176:179], v{vT+4}, {sr(rWS)}, s{sT1} offen sc1")
    g(f"buffer_load_dwordx4 v[180:183], v{vT+4}, {sr(rWS)}, s{sT1} offen offset:2048 sc1")
    g(f"s_mov_b32 s{sT1}, {WS_F3}")
    g(f"buffer_load_dwordx4 v[184:187], v{vT+4}, {sr(rWS)}, s{sT1} offen sc1")
    g(f"{skip}:")

def nonce_producer(g):
    skip = g.lab("L_nn")
    g(f"s_cmp_lg_u32 s2, 0\ns_cbranch_scc1 {skip}\ns_cmp_lg_u32 s{sW}, 0\ns_cbranch_scc1 {skip}")
    g("s_waitcnt vmcnt(10)")
    g(f"v_readfirstlane_b32 s{sT1}, v176")
    lp = g.lab("L_nl")
    g(f"{lp}:\ns_add_u32 s{sT1}, s{sT1}, 1\ns_cbranch_scc1 {lp}")
    g(f"s_mov_b64 s[{sPC}:{sPC+1}], 0")
    for k in range(12):
        g(f"v_cmp_eq_u32 vcc, s{sT1}, v{176+k}\ns_or_b64 s[{sPC}:{sPC+1}], s[{sPC}:{sPC+1}], vcc")
    g(f"s_cbranch_scc1 {lp}")
    g(f"v_mov_b32 v192, s{sT1}\nv_mov_b32 v193, 0\ns_mov_b64 exec, 1")
    g(f"buffer_store_dword v192, v193, {sr(rDBG)}, 0 offen sc1\ns_mov_b64 exec, -1")
    g(f"{skip}:")

def p1_addr(g):
    g(f"""
    v_and_b32 v{vT+2}, 31, v1
    v_lshrrev_b32 v{vT+3}, 5, v1
    v_bfe_u32 v{vT+4}, v1, 1, 3
    v_xor_b32 v{vT+4}, v{vT+4}, v{vT+3}
    v_lshlrev_b32 v{vT+4}, 4, v{vT+4}
    v_lshl_add_u32 v{vT+4}, v{vT+2}, 7, v{vT+4}
    s_lshl_b32 s{sT1}, s{sI}, 12
    v_add_u32 v{vAX}, s{sT1}, v{vT+4}
    v_xor_b32 v{vAX+1}, 32, v{vAX}
    v_xor_b32 v{vAX+2}, 64, v{vAX}
    v_xor_b32 v{vAX+3}, 0x60, v{vAX}
    v_bfe_u32 v{vT+4}, v1, 2, 2
    v_and_b32 v{vT+5}, 3, v1
    v_lshlrev_b32 v{vT+5}, 3, v{vT+5}
    v_lshl_add_u32 v{vT+5}, v{vT+4}, 6, v{vT+5}
    v_lshl_add_u32 v{vT+5}, v{vT+3}, 9, v{vT+5}
    v_bfe_u32 v{vT+6}, v1, 4, 1
    v_bfe_u32 v{vT+7}, v1, 3, 1
    v_xor_b32 v{vT+7}, s{sB}, v{vT+7}
    v_lshlrev_b32 v{vT+7}, 6, v{vT+7}
    v_lshl_add_u32 v{vT+7}, v{vT+4}, 7, v{vT+7}
    v_lshl_add_u32 v{vT+7}, v{vT+3}, 10, v{vT+7}
    v_lshl_add_u32 v{vT+7}, v{vT+6}, 5, v{vT+7}
    v_and_b32 v{vT+2}, 3, v1
    v_lshl_add_u32 v{vT+7}, v{vT+2}, 3, v{vT+7}
    v_add_u32 v{vAW1}, {LDS_WST}, v{vT+7}
    v_xor_b32 v{vT+4}, s{sB}, v{vT+6}
    v_lshl_add_u32 v{vT+5}, v{vT+4}, 5, v{vT+5}
    v_lshl_add_u32 v{vT+5}, v{vT+6}, 12, v{vT+5}
    v_add_u32 v{vAWQ}, {LDS_WST + 8192}, v{vT+5}
    """)

def early_addr(g):
    g(f"""
    v_lshrrev_b32 v{vT+4}, 4, v1
    v_bfe_u32 v{vT+5}, v1, 2, 2
    v_lshl_add_u32 v{vT+4}, v{vT+4}, 3, v{vT+5}
    v_and_b32 v{vT+5}, 3, v1
    v_lshlrev_b32 v{vT+5}, 3, v{vT+5}
    v_lshl_add_u32 v{vT+4}, v{vT+4}, 5, v{vT+5}
    s_add_u32 s{sT1}, s{sMX}, {LDS_EW}
    v_add_u32 v{vT+6}, s{sT1}, v{vT+4}
    s_lshl_b32 s{sT1}, s{sW}, 10
    s_add_u32 s{sT1}, s{sT1}, {LDS_ER}
    v_add_u32 v{vT+7}, s{sT1}, v{vL16}
    s_lshl_b32 s{sT1}, s{sW}, 8
    s_add_u32 s{sT1}, s{sT1}, {LDS_EG}
    v_lshlrev_b32 v{vT+5}, 2, v1
    v_add_u32 v{vT+5}, s{sT1}, v{vT+5}
    """)
    g(f"""
    v_and_b32 v{vT}, 15, v1
    v_lshrrev_b32 v{vT+1}, 4, v1
    v_bfe_u32 v{vT+2}, v1, 1, 3
    v_xor_b32 v{vT+1}, v{vT+1}, v{vT+2}
    v_lshlrev_b32 v{vT+1}, 4, v{vT+1}
    v_lshl_add_u32 v{vT}, v{vT}, 7, v{vT+1}
    s_add_u32 s{sT1}, s{sMX}, {LDS_EX}
    v_add_u32 v{vT}, s{sT1}, v{vT}
    v_xor_b32 v{vT+1}, 64, v{vT}
    """)

def early_compute(g):
    g.wvm('e')
    g.ds(f"ds_read_b128 v[16:19], v{vT}", 'ew')
    g.ds(f"ds_read_b128 v[20:23], v{vT+1}", 'ew')
    for s_ in range(2):
        for e in range(2):
            g.ds(f"ds_read_b64_tr_b16 v[{24+4*s_+2*e}:{25+4*s_+2*e}], v{vT+6} offset:{s_*1024+e*128}", 'ew')
    g.wlg('ew')
    lv, le = g.lab("L_ev"), g.lab("L_ee")
    g(f"s_bitcmp1_b32 s{sHP}, 0\ns_cbranch_scc1 {lv}")
    g("v_mfma_f32_16x16x32_bf16 v[32:35], v[24:27], v[16:19], 0")
    g("v_mfma_f32_16x16x32_bf16 v[36:39], v[40:43], v[16:19], 0")
    g("v_mfma_f32_16x16x32_bf16 v[32:35], v[28:31], v[20:23], v[32:35]")
    g("v_mfma_f32_16x16x32_bf16 v[36:39], v[44:47], v[20:23], v[36:39]")
    g(f"s_branch {le}\n{lv}:")
    g("v_mfma_f32_16x16x32_bf16 v[32:35], v[16:19], v[24:27], 0")
    g("v_mov_b32 v36, 0")
    g("v_mfma_f32_16x16x32_bf16 v[32:35], v[20:23], v[28:31], v[32:35]")
    g(f"{le}:\ns_nop 7")
    g.ds(f"ds_write_b128 v{vT+7}, v[32:35]", 'ep')
    g.ds(f"ds_write_b32 v{vT+5}, v36", 'ep')
    g.wlg()

def early_reduce(g):
    skip = g.lab("L_er")
    g(f"s_cmp_lg_u32 s{sW}, 0\ns_cbranch_scc1 {skip}")
    g(f"v_add_u32 v{vT+4}, {LDS_ER}, v{vL16}\nv_lshlrev_b32 v{vT+5}, 2, v1\nv_add_u32 v{vT+5}, {LDS_EG}, v{vT+5}")
    for k in range(8): g(f"ds_read_b128 v[{16+4*k}:{19+4*k}], v{vT+4} offset:{k*1024}")
    g("s_waitcnt lgkmcnt(0)")
    for k in range(8): g(f"ds_read_b32 v{48+k}, v{vT+5} offset:{k*256}")
    g(f"""
    s_lshr_b32 s{sT0}, s{sHP}, 1
    s_lshl_b32 s{sT1}, s{sTB}, 2
    s_lshr_b32 s{sT2}, s{sT0}, 1
    s_add_u32 s{sT1}, s{sT1}, s{sT2}
    s_lshr_b32 s{sT2}, s{sT1}, 3
    s_lshl_b32 s{sT2}, s{sT2}, 14
    s_and_b32 s{sT1}, s{sT1}, 7
    s_lshl_b32 s{sT1}, s{sT1}, 10
    s_add_u32 s{sT1}, s{sT1}, s{sT2}
    s_add_u32 s{sT1}, s{sT1}, {WS_KVB}
    s_and_b32 s{sT0}, s{sT0}, 1
    v_and_b32 v{vT}, 15, v1
    v_bfe_u32 v{vT+1}, v1, 4, 1
    v_lshrrev_b32 v{vT+2}, 5, v1
    v_lshlrev_b32 v{vT+2}, 3, v{vT+2}
    """)
    for k in range(1, 8):
        for q in range(4): g(f"v_add_f32 v{16+q}, v{16+q}, v{16+4*k+q}")
    g("v_cvt_pk_bf16_f32 v16, v16, v17\nv_cvt_pk_bf16_f32 v17, v18, v19")
    lv, le = g.lab("L_rv"), g.lab("L_re")
    g(f"s_bitcmp1_b32 s{sHP}, 0\ns_cbranch_scc1 {lv}")
    if True:
        g(f"""
        v_and_b32 v{vT+3}, 3, v{vT}
        v_bfe_u32 v{vT+6}, v{vT}, 2, 1
        v_lshl_add_u32 v{vT+3}, v{vT+6}, 3, v{vT+3}
        v_bfe_u32 v{vT+6}, v{vT}, 3, 1
        v_lshl_add_u32 v{vT+3}, v{vT+6}, 2, v{vT+3}
        v_lshl_add_u32 v{vT+3}, v{vT+1}, 5, v{vT+3}
        v_lshl_add_u32 v{vT+3}, v{vT+3}, 4, v{vT+2}
        s_lshl_b32 s{sT0}, s{sT0}, 8
        s_add_u32 s{sT1}, s{sT1}, s{sT0}
        buffer_store_dwordx2 v[16:17], v{vT+3}, {sr(rWS)}, s{sT1} offen sc1
        s_waitcnt lgkmcnt(0)
        """)
        for k in range(1, 8): g(f"v_add_f32 v48, v48, v{48+k}")
        g(f"""
        v_mul_f32 v48, {f2h(-1.4426950408889634)}, v48
        v_exp_f32 v48, v48
        s_lshr_b32 s{sT0}, s{sHP}, 1
        s_lshl_b32 s{sT0}, s{sT0}, 6
        v_add_f32 v48, 1.0, v48
        v_rcp_f32 v48, v48
        s_lshl_b32 s{sT1}, s{sTB}, 9
        s_add_u32 s{sT1}, s{sT1}, s{sT0}
        s_add_u32 s{sT1}, s{sT1}, {WS_GATE}
        v_lshlrev_b32 v{vT+3}, 2, v1
        s_mov_b64 exec, 0xffff
        buffer_store_dword v48, v{vT+3}, {sr(rWS)}, s{sT1} offen sc1
        s_mov_b64 exec, -1
        s_branch {le}
        {lv}:
        """)
        g(f"""
    v_lshl_add_u32 v{vT+3}, v{vT+1}, 4, v{vT}
    v_lshl_add_u32 v{vT+3}, v{vT+3}, 4, v{vT+2}
    s_lshl_b32 s{sT0}, s{sT0}, 9
    s_add_u32 s{sT1}, s{sT1}, s{sT0}
    s_add_u32 s{sT1}, s{sT1}, 8192
    buffer_store_dwordx2 v[16:17], v{vT+3}, {sr(rWS)}, s{sT1} offen sc1
    s_waitcnt lgkmcnt(0)
        """)
    g(f"{le}:\n{skip}:")

def get_nonce(g):
    lp, ok = g.lab("L_gn"), g.lab("L_gk")
    g(f"{lp}:\nv_readfirstlane_b32 s{sNONCE}, v{vNON}\ns_nop 3\ns_cmp_lg_u32 s{sNONCE}, 0\ns_cbranch_scc1 {ok}")
    spin_check(g)
    g(f"v_mov_b32 v{vT+3}, 0\nbuffer_load_dword v{vNON}, v{vT+3}, {sr(rDBG)}, 0 offen sc1\ns_waitcnt vmcnt(0)\ns_branch {lp}\n{ok}:")

def flag_store(g, off_expr_setup):
    g(off_expr_setup)
    g(f"v_mov_b32 v{vT}, s{sNONCE}\nv_mov_b32 v{vT+1}, 0\ns_mov_b64 exec, 1")
    g(f"buffer_store_dword v{vT}, v{vT+1}, {sr(rWS)}, s{sT1} offen sc1\ns_mov_b64 exec, -1")

def poll_issue(g, kind):
    if kind == 1:
        g(f"v_lshrrev_b32 v{vT}, 2, v1\nv_and_b32 v{vT+1}, 3, v1\nv_lshlrev_b32 v{vT}, 7, v{vT}\nv_lshl_add_u32 v{vFL}, v{vT+1}, 4, v{vT}\ns_mov_b32 s{sPOLL}, {WS_F1}")
    elif kind == 2:
        g(f"v_and_b32 v{vT}, 3, v1\nv_bfe_u32 v{vT+1}, v1, 2, 1\nv_lshlrev_b32 v{vT}, 4, v{vT}\nv_lshl_add_u32 v{vFL}, v{vT+1}, 7, v{vT}\ns_and_b32 s{sPOLL}, s{sHP}, 14\ns_lshl_b32 s{sPOLL}, s{sPOLL}, 7\ns_add_u32 s{sPOLL}, s{sPOLL}, {WS_F2}")
    elif kind == 3:
        g(f"v_and_b32 v{vT}, 3, v1\nv_lshlrev_b32 v{vFL}, 4, v{vT}\ns_lshl_b32 s{sPOLL}, s{sTB}, 7\ns_add_u32 s{sPOLL}, s{sPOLL}, {WS_F3}")
    else:
        g(f"v_mov_b32 v{vFL}, 0\ns_lshl_b32 s{sPOLL}, s{sTB}, 2\ns_add_u32 s{sPOLL}, s{sPOLL}, s{sI}\ns_lshl_b32 s{sPOLL}, s{sPOLL}, 7\ns_add_u32 s{sPOLL}, s{sPOLL}, {WS_F4}")
    g(f"buffer_load_dwordx4 {r(vPOLL,4)}, v{vFL}, {sr(rWS)}, s{sPOLL} offen sc1")

def poll_check(g):
    lp, ok = g.lab("L_pl"), g.lab("L_pk")
    g(f"{lp}:")
    for k in range(4): g(f"v_xor_b32 v{vPOLL+k}, s{sNONCE}, v{vPOLL+k}")
    g(f"v_or_b32 v{vPOLL}, v{vPOLL}, v{vPOLL+1}\nv_or3_b32 v{vPOLL}, v{vPOLL}, v{vPOLL+2}, v{vPOLL+3}\nv_cmp_ne_u32 vcc, 0, v{vPOLL}\ns_nop 4\ns_cbranch_vccz {ok}")
    spin_check(g)
    g(f"buffer_load_dwordx4 {r(vPOLL,4)}, v{vFL}, {sr(rWS)}, s{sPOLL} offen sc1\ns_waitcnt vmcnt(0)\ns_branch {lp}\n{ok}:")

def w0(g):
    skip = g.lab("L_w0")
    g(f"s_cmp_lg_u32 s{sW}, 0\ns_cbranch_scc1 {skip}")
    return skip

def kv_dma(g, src_expr, slot, tag):
    def setup(): g(f"s_lshl_b32 s{sT2}, s{sW}, 12\ns_add_u32 m0, s{sT2}, {slot*SLOT}"); g(src_expr)
    def op(e): return lambda: g.vmop(f"buffer_load_dwordx4 v{vL16}, {sr(rWS)}, s{sDS} offen offset:{e*1024} sc1 lds", tag)
    return [setup] + [op(e) for e in range(4)]
def dma_B(g, c, slot, tag):
    return kv_dma(g, f"s_add_u32 s{sDS}, s{sT2}, {WS_KVB + c*SLOT}", slot, tag)
def dma_A(g, c, slot, tag):
    return kv_dma(g, f"s_add_u32 s{sDS}, s{sDMA}, {WS_KVA + c*SLOT}", slot, tag)
def dma_Wo(g, rs, grp, ldsbase, tag):
    def setup(): g(f"s_lshl_b32 s{sDS}, s{sW}, 15\ns_and_b32 s{sT1}, s{sHP}, 7\ns_lshl_b32 s{sT1}, s{sT1}, 7\ns_add_u32 s{sDS}, s{sDS}, s{sT1}")
    def op(e):
        def f():
            g(f"s_lshl_b32 s{sT2}, s{sW}, 12\ns_add_u32 m0, s{sT2}, {ldsbase + grp*32768 + e*1024}\ns_add_u32 s{sT1}, s{sDS}, {grp*262144 + e*8192}")
            g.vmop(f"buffer_load_dwordx4 v{vDWO}, {sr(rs)}, s{sT1} offen lds", tag)
        return f
    return [setup] + [op(e) for e in range(4)]
def runall(fs):
    for f in fs: f()

def phase1(g, b):
    T1, TQ = ACC, ACC + 16
    def XF(s_): return PF + 12 * s_
    def W1(s_): return PF + 12 * s_ + 4
    def WQ(s_): return PF + 12 * s_ + 8
    def reads(p, s_):
        if g.opt.get('noread'): return
        g.ds(f"ds_read_b128 {r(XF(s_),4)}, v{vAX+s_} offset:{p*SLOT}", f'f{s_}')
        for e in range(2): g.ds(f"ds_read_b64_tr_b16 {r(W1(s_)+2*e,2)}, v{vAW1} offset:{p*SLOT+s_*2048+e*512}", f'f{s_}')
        for e in range(2): g.ds(f"ds_read_b64_tr_b16 {r(WQ(s_)+2*e,2)}, v{vAWQ} offset:{p*SLOT+s_*1024+e*256}", f'f{s_}')
    def mf(j, s_):
        g.wlg(f'f{s_}')
        if g.opt.get('nomf'): return
        if g.opt.get('mf16'):
            for (D, A, B) in ((T1, W1(s_), XF(s_)), (TQ, WQ(s_), XF(s_)), (T1+4, WQ(s_), XF(s_)), (TQ+4, W1(s_), XF(s_))):
                D2 = D + 8 * (s_ & 1)
                g(f"v_mfma_f32_16x16x32_bf16 {r(D2,4)}, {r(A,4)}, {r(B,4)}, {'0' if j == 0 and s_ < 2 else r(D2,4)}")
            return
        c1 = "0" if (j == 0 and s_ == 0) else r(T1, 16)
        cq = "0" if (j == 0 and s_ == 0) else r(TQ, 16)
        if b == 0: g(f"v_mfma_f32_32x32x16_bf16 {r(T1,16)}, {r(W1(s_),4)}, {r(XF(s_),4)}, {c1}")
        else:      g(f"v_mfma_f32_32x32x16_bf16 {r(T1,16)}, {r(XF(s_),4)}, {r(W1(s_),4)}, {c1}")
        g(f"v_mfma_f32_32x32x16_bf16 {r(TQ,16)}, {r(WQ(s_),4)}, {r(XF(s_),4)}, {cq}")
    f1chk = g.opt.get('f1chk', 6)
    def wait_c(j, extra0):
        if extra0 and f'c{j}' in g.vm:
            n = len(g.vm) - 1 - (len(g.vm) - 1 - g.vm[::-1].index(f'c{j}'))
            sk, dn = g.lab("L_wa"), g.lab("L_wb")
            g(f"s_cmp_eq_u32 s{sW}, 0\ns_cbranch_scc1 {sk}")
            g.wvm(f'c{j}')
            g(f"{sk}:\ns_waitcnt vmcnt({n + extra0})")
        else: g.wvm(f'c{j}')
    jf = g.opt.get('jflag', 2)
    for j in range(8):
        p = j & 3
        wait_c(j, {0: 1, 1: 2}.get(j, 0))
        if j == jf:
            sk = w0(g)
            get_nonce(g)
            flag_store(g, f"s_lshl_b32 s{sT1}, s{sTB}, 7\ns_lshl_b32 s{sT2}, s{sHP}, 2\ns_add_u32 s{sT1}, s{sT1}, s{sT2}\ns_add_u32 s{sT1}, s{sT1}, {WS_F1}")
            g(f"{sk}:")
        if j == f1chk:
            sk = w0(g); poll_check(g); g(f"{sk}:")
        g.wlg()
        g("s_barrier")
        g.stamp(f'b{j}')
        dm = p1_dma(g, j + 2) if j <= 5 else (dma_B(g, 0, 8, 'B01') if j == f1chk else [])
        if len(dm) == 5: dm = [lambda a=dm[0], c=dm[1]: (a(), c())] + dm[2:]
        if j == f1chk - 1:
            sk = w0(g); poll_issue(g, 1); g(f"{sk}:")
        if j == 0:
            sk = w0(g)
            g(f"v_mov_b32 v{vT+3}, 0\nbuffer_load_dword v{vNON}, v{vT+3}, {sr(rDBG)}, 0 offen sc1\n{sk}:")
        reads(p, 0); reads(p, 1)
        if j > 0: mf(j - 1, 3)
        if dm: dm[0]()
        reads(p, 2)
        mf(j, 0)
        if dm: dm[1]()
        reads(p, 3)
        mf(j, 1)
        if dm: dm[2]()
        mf(j, 2)
        if dm: dm[3]()
    mf(7, 3)
    g(f"""
    s_and_b32 s{sT1}, s{sHP}, 14
    s_add_u32 s{sT1}, s{sT1}, s{sB}
    s_lshl_b32 s{sT1}, s{sT1}, 18
    s_lshr_b32 s{sT2}, s{sTB}, 1
    s_lshl_b32 s{sT2}, s{sT2}, 14
    s_add_u32 s{sT1}, s{sT1}, s{sT2}
    s_and_b32 s{sT2}, s{sTB}, 1
    s_lshl_b32 s{sT2}, s{sT2}, 2
    s_add_u32 s{sT2}, s{sT2}, s{sI}
    s_lshl_b32 s{sT2}, s{sT2}, 10
    s_add_u32 s{sT1}, s{sT1}, s{sT2}
    """)
    if b == 0:
        g(f"""
        v_and_b32 v{vT}, 0x23, v1
        v_and_b32 v{vT+1}, 0x10, v1
        v_or_b32 v{vT}, v{vT}, v{vT+1}
        v_bfe_u32 v{vT+1}, v1, 2, 1
        v_lshl_or_b32 v{vT}, v{vT+1}, 3, v{vT}
        v_bfe_u32 v{vT+1}, v1, 3, 1
        v_lshl_or_b32 v{vT}, v{vT+1}, 2, v{vT}
        v_lshlrev_b32 v{vKVST}, 4, v{vT}
        s_add_u32 s{sT2}, s{sT1}, 131072
        """)
    else:
        g(f"""
        v_bfe_u32 v{vT}, v1, 4, 1
        v_lshlrev_b32 v{vT}, 17, v{vT}
        v_lshrrev_b32 v{vT+1}, 5, v1
        v_and_b32 v{vT+2}, 15, v1
        v_lshl_add_u32 v{vT+1}, v{vT+1}, 4, v{vT+2}
        v_lshl_add_u32 v{vKVST}, v{vT+1}, 4, v{vT}
        s_add_u32 s{sT1}, s{sT1}, 8192
        s_nop 0
        s_nop 0
        """)
    g("s_nop 3")
    for k in range(8): g(f"v_cvt_pk_bf16_f32 v{S0+k}, v{T1+2*k}, v{T1+2*k+1}")
    if b == 0:
        g.vmop(f"buffer_store_dwordx4 {r(S0,4)}, v{vKVST}, {sr(rWS)}, s{sT1} offen sc1", 'kvst')
        g.vmop(f"buffer_store_dwordx4 {r(S0+4,4)}, v{vKVST}, {sr(rWS)}, s{sT2} offen sc1", 'kvst')
    else:
        g.vmop(f"buffer_store_dwordx4 {r(S0,4)}, v{vKVST}, {sr(rWS)}, s{sT1} offen sc1", 'kvst')
        g.vmop(f"buffer_store_dwordx4 {r(S0+4,4)}, v{vKVST}, {sr(rWS)}, s{sT1} offen offset:512 sc1", 'kvst')
    g(f"s_mov_b32 s{sT3}, {f2h(QSCALE)}")
    for k in range(16): g(f"v_mul_f32 v{TQ+k}, s{sT3}, v{TQ+k}")
    for k in range(8): g(f"v_cvt_pk_bf16_f32 v{QA+k}, v{TQ+2*k}, v{TQ+2*k+1}")

def attn_consts(g):
    g(f"""
    v_mov_b32 v{vIDX}, 0xdddddddd
    v_lshrrev_b32 v{vT}, 5, v1
    v_and_b32 v{vT+1}, 15, v1
    v_lshl_add_u32 v{vT}, v{vT}, 4, v{vT+1}
    v_lshlrev_b32 v{vVOFF}, 4, v{vT}
    v_and_b32 v{vT}, 31, v1
    v_cmp_eq_u32 vcc, 16, v{vT}
    v_mov_b32 v{vT+1}, 0x3f803f80
    v_add_u32 v{vAK}, {8*SLOT}, v{vL16}
    v_cndmask_b32 v{vT+1}, 0, v{vT+1}, vcc
    v_add_u32 v{vAV}, {8*SLOT + 8192}, v{vVOFF}
    """)
    for k in range(16): g(f"v_mov_b32 v{V0[0]+k}, v{vT+1}")
    for k in range(9, 16): g(f"v_mov_b32 v{O+k}, 0")
    g(f"""
    s_lshl_b32 s{sT1}, s{sHP}, 1
    s_add_u32 s{sT1}, s{sT1}, s{sB}
    s_lshl_b32 s{sDMA}, s{sT1}, 17
    s_lshl_b32 s{sT2}, s{sI}, 12
    s_add_u32 s{sDMA}, s{sDMA}, s{sT2}
    s_lshl_b32 s{sT2}, s{sTB}, 2
    s_add_u32 s{sT2}, s{sT2}, s{sI}
    s_lshl_b32 s{sT2}, s{sT2}, 5
    s_add_u32 s{sT2}, s{sT2}, s{sT1}
    s_lshl_b32 s{sOST}, s{sT2}, 10
    """)

def task_prologue(g, Q):
    g.ds(f"ds_read_b128 {r(KF[0],4)}, v{vAK}", 'K0')
    g.ds(f"ds_read_b128 {r(KF[1],4)}, v{vAK} offset:1024", 'kv')
    g(f"s_mov_b64 exec, s[{sMASK}:{sMASK+1}]")
    g.ds(f"ds_read_b128 {r(V0[0],4)}, v{vAV}", 'kv')
    g.ds(f"ds_read_b128 {r(V1[0],4)}, v{vAV} offset:512", 'kv')
    g("s_mov_b64 exec, -1")
    g.wlg('K0')
    g(f"v_mfma_f32_32x32x16_bf16 {r(S1,16)}, {r(KF[0],4)}, {r(Q,4)}, 0")
    for k in range(9): g(f"v_mov_b32 v{O+k}, 0")
    g("s_nop 3")
    g(f"v_max3_f32 v{vT}, v{S1}, v{S1+1}, v{S1+2}")
    g(f"v_max3_f32 v{vT+1}, v{S1+3}, v{S1+4}, v{S1+5}")
    for k in range(6, 16, 4):
        g(f"v_max3_f32 v{vT}, v{vT}, v{S1+k}, v{S1+k+1}")
        if k + 3 < 16: g(f"v_max3_f32 v{vT+1}, v{vT+1}, v{S1+k+2}, v{S1+k+3}")
    g(f"v_max_f32 v{vT}, v{vT}, v{vT+1}")
    set_c_from_max(g, MOFF)
    g(f"v_mfma_f32_32x32x16_bf16 {r(S0,16)}, {r(KF[0],4)}, {r(Q,4)}, {r(C,16)}")
    g("s_nop 11")

def set_c_from_max(g, off):
    g(f"v_mov_b32 v{vT+1}, v{vT}\ns_nop 1\nv_permlane32_swap_b32 v{vT}, v{vT+1}\ns_nop 1")
    g(f"v_max_f32 v{vT}, v{vT}, v{vT+1}")
    g(f"v_sub_f32 v{C}, {f2h(-off)}, v{vT}")
    for k in range(1, 16): g(f"v_mov_b32 v{C+k}, v{C}")
    g("s_nop 1")

def tile(g, T, Q, ev, pos):
    t = T & 7
    p = T & 1
    cur, nxt = (S0, S1) if p == 0 else (S1, S0)
    p1, pq, p0 = pos
    def run(key):
        for f in ev.get((T, key), []): f()
    for i in range(16):
        if i == p1:
            if T > 0: g(f"v_smfmac_f32_32x32x32_bf16 {r(O,16)}, {r(V1[1-p],4)}, {r(nxt+8,8)}, v{vIDX}")
            run('m1')
            g.wlg()
            if T < 63:
                g(f"s_mov_b64 exec, s[{sMASK}:{sMASK+1}]")
                g.ds(f"ds_read_b128 {r(V0[1-p],4)}, v{vAV} offset:{((t + 1) & 7) * 1024}", 'kv')
                g.ds(f"ds_read_b128 {r(V1[1-p],4)}, v{vAV} offset:{((t + 1) & 7) * 1024 + 512}", 'kv')
                g("s_mov_b64 exec, -1")
            if T < 62: g.ds(f"ds_read_b128 {r(KF[p],4)}, v{vAK} offset:{((t + 2) & 7) * 1024}", 'kv')
            run('gap')
        if i == pq:
            if T < 63: g(f"v_mfma_f32_32x32x16_bf16 {r(nxt,16)}, {r(KF[1-p],4)}, {r(Q,4)}, {r(C,16)}")
            run('mq')
        if i == p0:
            g(f"v_smfmac_f32_32x32x32_bf16 {r(O,16)}, {r(V0[p],4)}, {r(cur,8)}, v{vIDX}")
            run('m0')
        run(i)
        g(f"v_exp_f32 v{cur+i}, v{cur+i}")
    if T == 63:
        g("s_nop 1")
        g(f"v_smfmac_f32_32x32x32_bf16 {r(O,16)}, {r(V1[p],4)}, {r(cur+8,8)}, v{vIDX}")

def task_epilogue(g, task):
    ret = f"L_fbret{task}"
    g(f"s_mov_b32 s{sFBRET}, {task}")
    if task == 0: g(f"s_mov_b32 s{sFBBASE}, {WS_KVB}")
    else: g(f"s_lshl_b32 s{sT1}, s{sI}, 12\ns_sub_u32 s{sFBBASE}, s{sDMA}, s{sT1}")
    g(f"v_mov_b32 v{vT+5}, {f2h(2.0**-97)}\nv_mov_b32 v{vT+6}, {f2h(2.0**120)}\nv_mov_b32 v{vT+7}, 0x207")
    g("s_nop 7")
    g(f"""
    v_mov_b32 v{vT}, v{O+8}
    v_mov_b32 v{vT+1}, v{O+8}
    v_max3_f32 v{vT+2}, |v{O}|, |v{O+1}|, |v{O+2}|
    v_max3_f32 v{vT+3}, |v{O+3}|, |v{O+4}|, |v{O+5}|
    v_permlane32_swap_b32 v{vT}, v{vT+1}
    v_max3_f32 v{vT+2}, v{vT+2}, |v{O+6}|, |v{O+7}|
    v_max_f32 v{vT+2}, v{vT+2}, v{vT+3}
    v_add_f32 v{vT+4}, v{O}, v{O+1}
    v_mov_b32 v{vT+3}, v{vT+2}
    """)
    for k in range(2, 8): g(f"v_add_f32 v{vT+4}, v{vT+4}, v{O+k}")
    g(f"""
    v_permlane32_swap_b32 v{vT+2}, v{vT+3}
    v_cmp_class_f32 vcc, v{vT+4}, v{vT+7}
    s_mov_b64 s[{sPC}:{sPC+1}], vcc
    v_max_f32 v{vT+2}, v{vT+2}, v{vT+3}
    v_cmp_nlt_f32 vcc, v{vT}, v{vT+6}
    s_or_b64 s[{sPC}:{sPC+1}], s[{sPC}:{sPC+1}], vcc
    v_cmp_nge_f32 vcc, v{vT+2}, v{vT+5}
    s_or_b64 s[{sPC}:{sPC+1}], s[{sPC}:{sPC+1}], vcc
    v_cmp_nge_f32 vcc, v{vT}, v{vT+5}
    s_or_b64 s[{sPC}:{sPC+1}], s[{sPC}:{sPC+1}], vcc
    """)
    if g.opt.get('force_fb'): g(f"s_mov_b64 s[{sPC}:{sPC+1}], -1")
    g(f"s_cmp_lg_u64 s[{sPC}:{sPC+1}], 0\ns_cbranch_scc1 L_fallback\n{ret}:")
    g(f"v_rcp_f32 v{vT}, v{vT}")
    if task == 0: g(f"v_sub_f32 v{vT+1}, 1.0, v{vG}")
    else: g(f"v_mov_b32 v{vT+1}, v{vG}")
    g(f"v_mul_f32 v{vT}, v{vT}, v{vT+1}")
    for k in range(8): g(f"v_mul_f32 v{O+k}, v{vT}, v{O+k}")
    for k in range(4): g(f"v_cvt_pk_bf16_f32 v{vT+4+k}, v{O+2*k}, v{O+2*k+1}")
    if task == 1:
        for k in range(4): g(f"v_min_u32 v{vT+4+k}, -2, v{vT+4+k}")
    g(f"s_add_u32 s{sT1}, s{sOST}, {WS_O + (0 if task == 0 else 0x200000)}")
    g.vmop(f"buffer_store_dwordx4 {r(vT+4,4)}, v{vL16}, {sr(rWS)}, s{sT1} offen sc1", 'ost')

def fallback(g):
    Q = QA
    g("L_fallback:")
    g(f"s_cmp_eq_u32 s{sFBRET}, 0")
    g(f"s_cselect_b64 vcc, -1, 0")
    g("s_nop 1")
    for k in range(4): g(f"v_cndmask_b32 v{vPOLL+k}, v{QA+k}, v{QB+k}, vcc")
    Q = vPOLL
    g(f"v_mov_b32 v{vT}, 0xff800000\ns_mov_b32 s{sFBT}, 0")
    def addr():
        g(f"s_lshr_b32 s{sT1}, s{sFBT}, 3\ns_lshl_b32 s{sT1}, s{sT1}, 14\ns_and_b32 s{sT2}, s{sFBT}, 7\ns_lshl_b32 s{sT2}, s{sT2}, 10\ns_add_u32 s{sT1}, s{sT1}, s{sT2}\ns_add_u32 s{sT1}, s{sT1}, s{sFBBASE}")
    g("L_fb1:"); addr()
    g(f"buffer_load_dwordx4 {r(KF[0],4)}, v{vL16}, {sr(rWS)}, s{sT1} offen sc1\ns_waitcnt vmcnt(0)")
    g(f"v_mfma_f32_32x32x16_bf16 {r(S0,16)}, {r(KF[0],4)}, {r(Q,4)}, 0\ns_nop 15")
    for k in range(0, 16, 2): g(f"v_max3_f32 v{vT}, v{vT}, v{S0+k}, v{S0+k+1}")
    g(f"s_add_u32 s{sFBT}, s{sFBT}, 1\ns_cmp_lt_u32 s{sFBT}, 64\ns_cbranch_scc1 L_fb1")
    set_c_from_max(g, 0.0)
    for k in range(16): g(f"v_mov_b32 v{O+k}, 0")
    g(f"s_mov_b32 s{sFBT}, 0")
    g("L_fb2:"); addr()
    g(f"buffer_load_dwordx4 {r(KF[0],4)}, v{vL16}, {sr(rWS)}, s{sT1} offen sc1\ns_add_u32 s{sT1}, s{sT1}, 8192")
    g(f"s_mov_b64 exec, s[{sMASK}:{sMASK+1}]")
    g(f"buffer_load_dwordx4 {r(V0[0],4)}, v{vVOFF}, {sr(rWS)}, s{sT1} offen sc1\nbuffer_load_dwordx4 {r(V1[0],4)}, v{vVOFF}, {sr(rWS)}, s{sT1} offen offset:512 sc1")
    g("s_mov_b64 exec, -1\ns_waitcnt vmcnt(0)")
    g(f"v_mfma_f32_32x32x16_bf16 {r(S0,16)}, {r(KF[0],4)}, {r(Q,4)}, {r(C,16)}\ns_nop 15")
    for k in range(16): g(f"v_exp_f32 v{S0+k}, v{S0+k}")
    g("s_nop 2")
    g(f"v_smfmac_f32_32x32x32_bf16 {r(O,16)}, {r(V0[0],4)}, {r(S0,8)}, v{vIDX}")
    g(f"v_smfmac_f32_32x32x32_bf16 {r(O,16)}, {r(V1[0],4)}, {r(S0+8,8)}, v{vIDX}")
    g(f"s_nop 15\ns_add_u32 s{sFBT}, s{sFBT}, 1\ns_cmp_lt_u32 s{sFBT}, 64\ns_cbranch_scc1 L_fb2")
    g(f"v_mov_b32 v{vT}, v{O+8}\nv_mov_b32 v{vT+1}, v{O+8}\ns_nop 1\nv_permlane32_swap_b32 v{vT}, v{vT+1}\ns_nop 1")
    g(f"s_cmp_eq_u32 s{sFBRET}, 0\ns_cbranch_scc1 L_fbret0\ns_branch L_fbret1")

def tail_addr(g):
    g(f"""
    v_lshrrev_b32 v{vT}, 3, v1
    v_bfe_u32 v{vT+1}, v1, 2, 1
    v_bfe_u32 v{vT+2}, v1, 4, 1
    v_xor_b32 v{vT+1}, v{vT+1}, v{vT+2}
    v_lshlrev_b32 v{vT+1}, 6, v{vT+1}
    v_lshl_add_u32 v{vT+1}, v{vT}, 10, v{vT+1}
    v_and_b32 v{vT+3}, 3, v1
    v_lshl_add_u32 v{vDWO}, v{vT+3}, 4, v{vT+1}
    v_lshrrev_b32 v{vT}, 5, v1
    v_bfe_u32 v{vT+1}, v1, 2, 2
    v_lshl_add_u32 v{vT}, v{vT}, 2, v{vT+1}
    v_lshlrev_b32 v{vT}, 7, v{vT}
    v_bfe_u32 v{vT+1}, v1, 3, 1
    v_lshl_add_u32 v{vT}, v{vT+1}, 6, v{vT}
    v_lshl_add_u32 v{vT}, v{vT+2}, 5, v{vT}
    v_lshl_add_u32 v{vT}, v{vT+3}, 3, v{vT}
    s_lshl_b32 s{sT1}, s{sI}, 13
    s_add_u32 s{sT1}, s{sT1}, {LDS_WOB}
    v_add_u32 v{vAT}, s{sT1}, v{vT}
    v_xor_b32 v{vAT+1}, 64, v{vAT}
    v_and_b32 v{vT}, 31, v1
    v_lshrrev_b32 v{vT+1}, 5, v1
    v_and_b32 v{vT+2}, 15, v1
    v_xor_b32 v{vT+1}, v{vT+1}, v{vT+2}
    v_lshlrev_b32 v{vT+1}, 4, v{vT+1}
    v_lshl_add_u32 v{vT}, v{vT}, 8, v{vT+1}
    s_lshl_b32 s{sT1}, s{sW}, 13
    v_add_u32 v{vRW}, s{sT1}, v{vT}
    v_lshrrev_b32 v{vT}, 3, v1
    s_lshl_b32 s{sT1}, s{sI}, 3
    v_add_u32 v{vT}, s{sT1}, v{vT}
    v_and_b32 v{vT+1}, 7, v1
    v_lshlrev_b32 v{vT+2}, 1, v{vT+1}
    v_and_b32 v{vT+3}, 15, v{vT}
    v_xor_b32 v{vT+2}, v{vT+2}, v{vT+3}
    v_lshlrev_b32 v{vT+2}, 4, v{vT+2}
    v_lshl_add_u32 v{vT+2}, v{vT}, 8, v{vT+2}
    s_lshl_b32 s{sT1}, s{sB}, 15
    v_add_u32 v{vRR}, s{sT1}, v{vT+2}
    v_xor_b32 v{vRR+1}, 16, v{vRR}
    s_lshl_b32 s{sT1}, s{sTB}, 7
    s_lshr_b32 s{sT2}, s{sHP}, 3
    s_lshl_b32 s{sT2}, s{sT2}, 6
    s_add_u32 s{sT1}, s{sT1}, s{sT2}
    s_lshl_b32 s{sT2}, s{sB}, 5
    s_add_u32 s{sT1}, s{sT1}, s{sT2}
    v_add_u32 v{vT}, s{sT1}, v{vT}
    v_lshlrev_b32 v{vT}, 10, v{vT}
    v_lshl_add_u32 v{vT}, v{vT+1}, 4, v{vT}
    s_and_b32 s{sT2}, s{sHP}, 7
    s_lshl_b32 s{sT2}, s{sT2}, 7
    v_add_u32 v{vOUTA}, s{sT2}, v{vT}
    """)

def of_loads(g, branch, tag, dst=None):
    dst = OF if dst is None else dst
    def setup():
        g(f"""
        s_lshl_b32 s{sT1}, s{sTB}, 2
        s_lshr_b32 s{sT2}, s{sHP}, 3
        s_lshl_b32 s{sT2}, s{sT2}, 1
        s_add_u32 s{sT1}, s{sT1}, s{sT2}
        s_add_u32 s{sT1}, s{sT1}, s{sB}
        s_lshl_b32 s{sT1}, s{sT1}, 15
        s_lshl_b32 s{sT2}, s{sI}, 12
        s_add_u32 s{sT1}, s{sT1}, s{sT2}
        s_add_u32 s{sOF}, s{sT1}, {WS_O + branch*0x200000}
        s_add_u32 s{sOF+1}, s{sOF}, 16384
        """)
    def op(n): return lambda: g.vmop(f"buffer_load_dwordx4 {r(dst+4*n,4)}, v{vL16}, {sr(rWS)}, s{sOF + (n >> 2)} offen offset:{(n&3)*1024} sc1", f'{tag}{n}')
    return [setup] + [op(n) for n in range(8)]

def wfrag_reads(g, n):
    for tc in range(2):
        for e in range(2):
            g.ds(f"ds_read_b64_tr_b16 {r(WF+8*n+4*tc+2*e,2)}, v{vAT+tc} offset:{(n>>2)*32768+(n&3)*2048+e*1024}", f'w{n}')

def tail(g):
    OA = PF
    fa = of_loads(g, 1, 'OA', OA)
    oat = g.opt.get('oat', 1)
    fa[0]()
    if oat == 0: runall(fa[1:])
    g.wvm('OB7')
    for n in range(3): wfrag_reads(g, n)
    for n in range(8):
        g.wlg(f'w{n}')
        for tc in range(2):
            c = "0" if n == 0 else r(ACC+16*tc, 16)
            g(f"v_mfma_f32_32x32x16_bf16 {r(ACC+16*tc,16)}, {r(WF+8*n+4*tc,4)}, {r(OF+4*n,4)}, {c}")
        if n + 3 < 8: wfrag_reads(g, n + 3)
        if oat == 2 and n == 4: runall(fa[1:])
    g.wvm('WoA1')
    if oat == 1: runall(fa[1:])
    g("s_barrier")
    g(f"v_add_u32 v{vAT}, {LDS_WOA - LDS_WOB}, v{vAT}\nv_add_u32 v{vAT+1}, {LDS_WOA - LDS_WOB}, v{vAT+1}")
    for n in range(8):
        if n >= 3: g.wlg(f'w{n-3}')
        wfrag_reads(g, n)
    g.wlg()
    g.stamp('poll')
    g(f"s_movk_i32 s{sDS}, 0xff\nL_oa_loop:")
    g.wvm()
    for n in range(8):
        sk, bad = g.lab("L_oa"), g.lab("L_ob")
        R = OA + 4 * n
        g(f"""
        s_bitcmp1_b32 s{sDS}, {n}
        s_cbranch_scc0 {sk}
        v_max3_u32 v{vT}, v{R}, v{R+1}, v{R+2}
        v_max_u32 v{vT}, v{vT}, v{R+3}
        v_cmp_eq_u32 vcc, -1, v{vT}
        s_nop 0
        s_cbranch_vccnz {bad}
        """)
        for tc in range(2):
            g(f"v_mfma_f32_32x32x16_bf16 {r(ACC+16*tc,16)}, {r(WF+8*n+4*tc,4)}, {r(R,4)}, {r(ACC+16*tc,16)}")
        g(f"s_bitset0_b32 s{sDS}, {n}\ns_branch {sk}\n{bad}:")
        fa[1 + n](); g.vm = []
        g(f"{sk}:")
    g(f"s_cmp_eq_u32 s{sDS}, 0\ns_cbranch_scc1 L_oa_done")
    spin_check(g)
    g("s_branch L_oa_loop\nL_oa_done:")
    g.stamp('mm')
    for k in range(1, 8): g(f"v_xor_b32 v{vT+k}, {k*32}, v{vRW}")
    g("s_nop 3")
    for tc in range(2):
        if tc == 1: g("s_nop 0")
        for q in range(4):
            k = 4 * tc + q
            a_ = vRW if k == 0 else vT + k
            g.ds(f"ds_write_b128 v{a_}, {r(ACC+16*tc+4*q,4)}", 'rw')
    g.wlg()
    g("s_barrier")
    for kq in range(4):
        for e in range(2):
            g.ds(f"ds_read_b128 {r(16+8*kq+4*e,4)}, v{vRR+e} offset:{kq*8192}", f'rr{kq}')
    g.wlg('rr1')
    for k in range(8): g(f"v_add_f32 v{16+k}, v{16+k}, v{24+k}")
    g.wlg('rr3')
    for k in range(8): g(f"v_add_f32 v{32+k}, v{32+k}, v{40+k}")
    for k in range(8): g(f"v_add_f32 v{16+k}, v{16+k}, v{32+k}")
    for k in range(4): g(f"v_cvt_pk_bf16_f32 v{16+k}, v{16+2*k}, v{17+2*k}")
    g.vmop(f"buffer_store_dwordx4 v[16:19], v{vOUTA}, {sr(rOUT)}, 0 offen {g.opt.get('outsc', '')}", 'out')

def schedule(g, task):
    o = g.opt
    ev = {}
    def at(T, key, *fs): ev.setdefault((T, key), []).extend(fs)
    slot = slotB if task == 0 else slotA
    dpos = o.get('dpos', ((2, 6), (2, 13), (3, 6), (3, 13)))
    pp = o.get('pp', {(2, 'm1'): 3, (5, 'm0'): 2, (0, 'm0'): 1, (1, 'mq'): 0})
    def wave0(*fs):
        def f():
            sk = w0(g)
            for x in fs: x()
            g(f"{sk}:")
        return f
    def flag(base, hi, lo):
        return lambda: flag_store(g, f"s_lshl_b32 s{sT1}, s{hi}, 7\ns_lshl_b32 s{sT2}, s{lo}, 2\ns_add_u32 s{sT1}, s{sT1}, s{sT2}\ns_add_u32 s{sT1}, s{sT1}, {base}")
    for c in range(8):
        gi = 8 * task + c
        T0 = 8 * c
        ppc = dict(pp)
        if c == 7:
            ppc = {k: v for k, v in pp.items() if k[0] < 2}
            ppc.update(o.get('pplast', {(2, 'm1'): 3, (4, 'm0'): 2, (6, 'm0'): 1, (7, 'm0'): 0}))
        for (t, key), pr in ppc.items(): at(T0 + t, key, lambda pr=pr: g(f"s_setprio {pr}"))
        if c < 7:
            d = ((slot(c + 1) - slot(c)) * SLOT) & 0xffffffff
            at(T0 + 6, 0, lambda d=d: g(f"v_add_u32 v{vAK}, {d}, v{vAK}"))
            at(T0 + 7, 0, lambda d=d: g(f"v_add_u32 v{vAV}, {d}, v{vAV}"))
        wait = {1: 'G1', 3: None, 7: 'A0', 8: 'A1', 9: 'A2', 10: 'ost', 11: 'A4', 12: 'A5', 13: 'A6', 14: 'WoB0', 15: 'WoB1'}
        if gi == 3: at(T0 + 1, 1, lambda: g.wvm(), wave0(lambda: poll_check(g)))
        if gi == 14: at(T0 + 1, 1, lambda: g.wvm('WoB0'), wave0(lambda: poll_check(g)))
        if gi in wait: at(T0 + 1, 'm0', lambda w=wait[gi]: g.wvm(w))
        at(T0 + 1, 'm0', lambda: g("s_barrier"))
        grp = {0: lambda: dma_B(g, 4, 2, 'G2'), 1: lambda: dma_B(g, 6, 4, 'G3'),
               3: lambda: dma_A(g, 0, 6, 'A0'), 4: lambda: dma_A(g, 1, 8, 'A1'), 5: lambda: dma_A(g, 2, 0, 'A2'), 6: lambda: dma_A(g, 3, 2, 'A3'),
               8: lambda: dma_A(g, 4, 4, 'A4'), 9: lambda: dma_A(g, 5, 6, 'A5'), 10: lambda: dma_A(g, 6, 8, 'A6'), 11: lambda: dma_A(g, 7, 0, 'A7'),
               12: lambda: dma_Wo(g, rWOB, 0, LDS_WOB, 'WoB0'), 13: lambda: dma_Wo(g, rWOB, 1, LDS_WOB, 'WoB1'),
               14: lambda: dma_Wo(g, rWOA, 0, LDS_WOA, 'WoA0'), 15: lambda: dma_Wo(g, rWOA, 1, LDS_WOA, 'WoA1')}
        if gi == 13: at(T0 + 2, 0, wave0(lambda: poll_issue(g, 3)))
        if gi in grp:
            fs = grp[gi]()
            at(T0 + dpos[0][0], dpos[0][1], fs[0])
            for (t, i), f in zip(dpos, fs[1:]): at(T0 + t, i, f)
        if gi == 1: at(T0 + 4, 6, wave0(flag(WS_F2, sHP, sTB)))
        if gi == 1:
            def sentinel():
                for k in range(4): g(f"v_mov_b32 v{vT+4+k}, -1")
                g(f"s_add_u32 s{sT1}, s{sOST}, {WS_O + 0x200000}")
                g.vmop(f"buffer_store_dwordx4 {r(vT+4,4)}, v{vL16}, {sr(rWS)}, s{sT1} offen sc1", 'sent')
            at(T0 + 5, 6, sentinel)
        if gi == 2:
            at(T0 + 2, 6, wave0(lambda: poll_issue(g, 2)))
        if gi == 10: at(T0 + 4, 6, wave0(flag(WS_F3, sTB, sHP)))
        if gi == 13 and o.get('wopf', 1):
            def wopf():
                g(f"s_and_b32 s{sT1}, s{sTB}, 3\ns_lshl_b32 s{sT1}, s{sT1}, 13\ns_add_u32 s{sT1}, s{sT1}, s{sDS}\ns_add_u32 s{sT1}, s{sT1}, 262144")
                g.vmop(f"buffer_load_dwordx4 {r(PF,4)}, v{vDWO}, {sr(rWOA)}, s{sT1} offen", 'pf')
            at(T0 + 5, 6, wopf)
        if gi == 14:
            fs = of_loads(g, 0, 'OB')
            at(T0 + 4, 6, fs[0])
            for n, f in enumerate(fs[1:]): at(T0 + 4 + n // 2, 6 if n % 2 == 0 else 13, f)
    return ev

def slotB(c): return (8 + c) % 10
def slotA(c): return 2 * ((3 + c) % 5)

def build(**opt):
    g = G(**opt)
    setup(g)
    p1_addr(g)
    tail_addr(g)
    attn_consts(g)
    fork = (list(g.lg), list(g.vm)); nst0 = g.nst
    g(f"s_bitcmp1_b32 s{sHP}, 0\ns_cbranch_scc1 L_p1b")
    phase1(g, 0)
    end0 = (list(g.lg), list(g.vm))
    g("s_branch L_p1done\nL_p1b:")
    g.lg, g.vm = list(fork[0]), list(fork[1]); g.nst = nst0
    phase1(g, 1)
    assert end0 == (g.lg, g.vm), (end0, g.lg, g.vm)
    g("L_p1done:")
    g.stamp('p1')
    if opt.get('dump_q'):
        g(f"s_lshl_b32 s{sT1}, s2, 3\ns_add_u32 s{sT1}, s{sT1}, s{sW}\ns_lshl_b32 s{sT1}, s{sT1}, 11\ns_add_u32 s{sT1}, s{sT1}, {WS_DBG + 0x10000}")
        g.vmop(f"buffer_store_dwordx4 {r(QA,4)}, v{vL16}, {sr(rWS)}, s{sT1} offen", 'dbg')
        g.vmop(f"buffer_store_dwordx4 {r(QB,4)}, v{vL16}, {sr(rWS)}, s{sT1} offen offset:1024", 'dbg')
    g.wvm('B01')
    g("s_barrier")
    runall(dma_B(g, 2, 0, 'G1'))
    g(f"v_and_b32 v{vT}, 31, v1\nv_lshlrev_b32 v{vT}, 2, v{vT}\ns_lshl_b32 s{sT1}, s{sTB}, 2\ns_add_u32 s{sT1}, s{sT1}, s{sI}\ns_lshl_b32 s{sT1}, s{sT1}, 7\ns_add_u32 s{sT1}, s{sT1}, {WS_GATE}")
    g.vmop(f"buffer_load_dword v{vG}, v{vT}, {sr(rWS)}, s{sT1} offen sc1", 'gate')
    g.stamp('bstart')
    for task in range(2):
        Q = QB if task == 0 else QA
        slot = slotB if task == 0 else slotA
        if task == 1:
            d = (slotA(0) - slotB(7)) * SLOT
            g(f"s_lshl_b32 s{sT1}, s{sB}, 14\ns_add_u32 s{sT1}, s{sT1}, {d & 0xffffffff}\nv_add_u32 v{vAK}, s{sT1}, v{vAK}\nv_add_u32 v{vAV}, s{sT1}, v{vAV}")
        task_prologue(g, Q)
        ev = schedule(g, task)
        for T in range(64): tile(g, T, Q, ev, opt.get('pos', (2, 4, 10)))
        task_epilogue(g, task)
        g.stamp('BA'[task])
    tail(g)
    if opt.get('stamps'):
        g.stamp('end')
        g(f"s_lshl_b32 s{sT1}, s2, 3\ns_add_u32 s{sT1}, s{sT1}, s{sW}\ns_lshl_b32 s{sT1}, s{sT1}, 6\ns_add_u32 s{sT1}, s{sT1}, {WS_DBG}")
        g("s_waitcnt lgkmcnt(0)")
        for k in range(12): g(f"v_mov_b32 v{16+k}, s{STAMP_SLOTS[min(k, g.nst-1)]}")
        g(f"v_mov_b32 v30, 0\ns_mov_b64 exec, 1")
        for k in range(3): g(f"buffer_store_dwordx4 v[{16+4*k}:{19+4*k}], v30, {sr(rWS)}, s{sT1} offen offset:{16*k}")
    if opt.get('dbgst'):
        sk = w0(g)
        g("s_waitcnt vmcnt(0) lgkmcnt(0)")
        last = STAMP_SLOTS[g.nst - 1]
        g(f"v_mov_b32 v16, s{last}\ns_not_b32 s{sT1}, s{STAMP_SLOTS[0]}\nv_mov_b32 v17, s{sT1}\nv_mov_b32 v30, 0\ns_mov_b64 exec, 1")
        g(f"buffer_atomic_umax v16, v30, {sr(rDBG)}, 0 offen offset:4\nbuffer_atomic_umax v17, v30, {sr(rDBG)}, 0 offen offset:8")
        sk2 = g.lab("L_d2")
        g(f"s_cmp_lg_u32 s2, {opt['dbgst'] - 1}\ns_cbranch_scc1 {sk2}")
        for k in range(12): g(f"s_sub_u32 s{sT1}, s{STAMP_SLOTS[min(k, g.nst-1)]}, s{STAMP_SLOTS[0]}\nv_mov_b32 v{16+k}, s{sT1}")
        g(f"v_mov_b32 v16, s{STAMP_SLOTS[0]}")
        for k in range(3): g(f"buffer_store_dwordx4 v[{16+4*k}:{19+4*k}], v30, {sr(rDBG)}, 0 offen offset:{16+16*k}")
        g(f"{sk2}:\ns_mov_b64 exec, -1\n{sk}:")
    if opt.get('spinend'):
        base, idx, mult = opt['spinend']
        sk = w0(g); sk2 = g.lab("L_sp")
        g(f"s_cmp_lg_u32 s2, {opt.get('spinwg', 0)}\ns_cbranch_scc1 {sk}\ns_waitcnt vmcnt(0) lgkmcnt(0)")
        g(f"s_sub_u32 s{sT1}, s{STAMP_SLOTS[idx]}, s{STAMP_SLOTS[0]}\ns_mul_i32 s{sT1}, s{sT1}, {mult}\ns_add_u32 s{sT1}, s{sT1}, {base*100}")
        g(f"{sk2}:\ns_memrealtime s[{sPC}:{sPC+1}]\ns_waitcnt lgkmcnt(0)\ns_sub_u32 s{sT2}, s{sPC}, s{STAMP_SLOTS[0]}\ns_cmp_lt_u32 s{sT2}, s{sT1}\ns_cbranch_scc1 {sk2}")
        g(f"{sk}:")
    g("L_abort:\ns_endpgm")
    fallback(g)
    g("L_end:\ns_endpgm\nL_codeend:")
    hdr = open('gated_mix__mha_block__grouped_kv_mqa__prompt.s.ref').read().split("; Override launch")[0]
    out = hdr + "; One fused launch: projections, MQA and MHA attention, gated output projection.\n"
    out += "; @launch grid=(256,1,1) block=(512,1,1) lds=163840\n"
    out += f""".amdgcn_target "amdgcn-amd-amdhsa--gfx950"
.text
.globl {NAME}
.p2align 8
.type {NAME},@function
{NAME}:
{g.text()}.section .rodata,"a"
.p2align 6
.amdhsa_kernel {NAME}
  .amdhsa_next_free_vgpr 256
  .amdhsa_next_free_sgpr 102
  .amdhsa_accum_offset 256
  .amdhsa_group_segment_fixed_size 0
  .amdhsa_kernarg_size 96
  .amdhsa_user_sgpr_count 2
  .amdhsa_user_sgpr_kernarg_segment_ptr 1
  .amdhsa_system_sgpr_workgroup_id_x 1
.end_amdhsa_kernel
"""
    return out

if __name__ == "__main__":
    path = sys.argv[1] if len(sys.argv) > 1 else 'gated_mix__mha_block__grouped_kv_mqa__prompt.s'
    opt = {}
    for a in sys.argv[2:]:
        k, _, v = a.partition('=')
        opt[k] = eval(v) if v else True
    open(path, 'w').write(build(**opt))
```

```python
import sys, struct, copy
NAME = "gated_mix__mha_block__grouped_kv_mqa__prompt_kernel"

def f2h(x): return "0x%08x" % struct.unpack('<I', struct.pack('<f', x))[0]

WS_KVA  = 0x000000
WS_KVB  = 0x400000
WS_GATE = 0x420000
WS_F1   = 0x424000
WS_F2   = WS_F1 + 2048
WS_F3   = WS_F1 + 4096
WS_F4   = WS_F1 + 6144
WS_O    = 0x500000
WS_DBG  = 0x900000
WS_SIZE = 0x1000000

SLOT = 16384
LDS_WST = 65536
LDS_EW  = 8 * SLOT
LDS_ER  = 9 * SLOT
LDS_EG  = 9 * SLOT + 8192
LDS_EX  = 3 * SLOT
LDS_WOB = 2 * SLOT
LDS_WOA = 6 * SLOT

sW, sHP, sTB, sROT, sB = 3, 4, 5, 6, 7
rX, rWS_, rWKV, rGATE, rWS, rDBG, rOUT, rWOA, rWOB = 8, 12, 16, 20, 24, 28, 32, 36, 40
sMASK = 44
sI, sNONCE, sSPIN, sT0, sT1, sT2 = 46, 47, 48, 49, 50, 51
pX, pWQKV, pWOA, pBX, pWQ, pWK, pWV, pWOB, pGATE, pOUT, pDBG, pWS = 52, 54, 56, 58, 60, 62, 64, 66, 68, 70, 72, 74
sXO, sWO, sWSTEP, sW16, sMX, sMW, sKX, sKW = 76, 77, 78, 79, 80, 81, 82, 83
sOF = 76
sPC = 84
sFBBASE, sKV, sFBT, sDMA, sOST, sT3 = 86, 87, 88, 89, 90, 91
sKV1, sSC = 98, 100
sPOLL, sDS = 92, 93
sST = 94
vIDX, vAK, vAV, vG, vL16, vVOFF = 2, 3, 4, 5, 6, 7
vT = 8
S0, S1, C, QA, QB = 16, 32, 64, 80, 84
OACC = (112, 48)
STMP, KTMP = (128, 144, 160, 176), 192
STB = (32, 16, 128, 208)
FB_S, FB_C, FB_K, FB_V0, FB_V1 = 176, 160, 144, 148, 152
KF, V0, V1 = (88, 92), (96, 100), (104, 108)
OF = 112
ACC = 144
PF = 176
WF = 16
vAX = 240
vAW1, vAWQ, vDX0, vDX1, vDW, vKVST = 244, 245, 246, 247, 248, 249
vDWO, vRR, vOUTA = 224, 225, 226
vAT = 228
vFL, vNON, vDUMMY = 250, 251, 251
vPOLL = 252
QSCALE = 0.25 * 1.4426950408889634
MOFF = 100.0
SPIN = 1 << 20

STAMP_SLOTS = [94, 96, 52, 54, 56, 58, 60, 62, 64, 66, 68, 70]
class G:
    def __init__(s, **opt):
        s.L = []; s.lg = []; s.vm = []; s.opt = opt; s.nlab = 0; s.nst = 0
    def __call__(s, txt):
        for line in txt.split("\n"):
            line = line.strip()
            if not line: continue
            s.L.append(line if (line.endswith(":") or line.startswith(".")) else "    " + line)
    def lab(s, p="L"):
        s.nlab += 1; return f"{p}_{s.nlab}"
    def ds(s, txt, tag=None):
        s(txt); s.lg.append(tag); assert len(s.lg) <= 15, "lgkm overflow"
    def wlg(s, tag=None):
        if tag is None:
            s("s_waitcnt lgkmcnt(0)"); s.lg = []; return
        if tag not in s.lg: return
        i = len(s.lg) - 1 - s.lg[::-1].index(tag)
        n = len(s.lg) - 1 - i
        s(f"s_waitcnt lgkmcnt({n})"); s.lg = s.lg[i + 1:]
    def vmop(s, txt, tag=None):
        s(txt); s.vm.append(tag); assert len(s.vm) <= 63
    def wvm(s, tag=None):
        if tag is None:
            s("s_waitcnt vmcnt(0)"); s.vm = []; return
        if tag not in s.vm: return
        i = len(s.vm) - 1 - s.vm[::-1].index(tag)
        n = len(s.vm) - 1 - i
        s(f"s_waitcnt vmcnt({n})"); s.vm = s.vm[i + 1:]
    def srd(s, d, base, nbytes):
        s(f"s_mov_b32 s{d}, s{base}\ns_and_b32 s{d+1}, s{base+1}, 0xffff\ns_mov_b32 s{d+2}, {nbytes}\ns_mov_b32 s{d+3}, 0x00020000")
    def stamp(s, name):
        if not s.opt.get('stamps'): return
        if name not in s.opt.get('at', ('setup', 'p1', 'bstart', 'B', 'A', 'poll', 'mm', 'end')): return
        ins = "s_memtime" if s.opt.get('stamps') == 2 else "s_memrealtime"
        slot = STAMP_SLOTS[s.nst]
        assert slot >= 94 or name not in ('entry', 'karg')
        s(f"{ins} s[{slot}:{slot+1}]")
        s.nst += 1
    def text(s): return "\n".join(s.L) + "\n"

def r(a, n): return f"v[{a}:{a+n-1}]"
def sr(a, n=4): return f"s[{a}:{a+n-1}]"

def spin_check(g):
    g(f"s_sub_u32 s{sSPIN}, s{sSPIN}, 1\ns_cbranch_scc1 L_abort")

def setup(g):
    g(f"""
    s_cmp_ge_u32 s2, 256
    s_cbranch_scc1 L_end
    """)
    g.stamp('entry')
    g(f"""
    s_load_dwordx16 s[52:67], s[0:1], 0
    s_load_dwordx8 s[68:75], s[0:1], 64
    v_lshrrev_b32 v{vT+1}, 6, v0
    v_and_b32 v1, 63, v0
    s_getpc_b64 s[{sPC}:{sPC+1}]
    L_pc:
    v_readfirstlane_b32 s{sW}, v{vT+1}
    s_and_b32 s{sT0}, s2, 0xf8
    s_add_u32 s{sT0}, s{sT0}, s{sW}
    s_lshl_b32 s{sT0}, s{sT0}, 7
    s_min_u32 s{sT0}, s{sT0}, L_codeend-L_pc-4
    {'' if g.opt.get('nopf') else f's_load_dword s{sFBT}, s[{sPC}:{sPC+1}], s{sT0}'}
    s_bfe_u32 s{sTB}, s2, 0x20001
    s_lshl_b32 s{sTB}, s{sTB}, 2
    s_bfe_u32 s{sT0}, s2, 0x20003
    s_add_u32 s{sTB}, s{sTB}, s{sT0}
    s_and_b32 s{sHP}, s2, 1
    s_lshl_b32 s{sHP}, s{sHP}, 3
    s_lshr_b32 s{sT0}, s2, 5
    s_add_u32 s{sHP}, s{sHP}, s{sT0}
    s_lshl_b32 s{sROT}, s{sTB}, 1
    s_add_u32 s{sROT}, s{sROT}, s{sHP}
    s_and_b32 s{sROT}, s{sROT}, {g.opt.get('rotmask', 4)}
    s_lshr_b32 s{sB}, s{sW}, 2
    s_and_b32 s{sI}, s{sW}, 3
    v_lshlrev_b32 v{vL16}, 4, v1
    """)
    g(f"""
    v_and_b32 v{vT+2}, 15, v1
    v_lshrrev_b32 v{vT+3}, 4, v1
    v_lshlrev_b32 v{vT+1}, 4, v{vT+3}
    v_lshl_add_u32 v{vT}, v{vT+2}, 10, v{vT+1}
    """)
    g(f"""
    v_lshrrev_b32 v{vT+4}, 3, v1
    v_and_b32 v{vT+5}, 7, v1
    v_lshrrev_b32 v{vT+6}, 4, v1
    v_xor_b32 v{vT+5}, v{vT+5}, v{vT+6}
    v_lshlrev_b32 v{vT+4}, 10, v{vT+4}
    v_lshl_add_u32 v{vDX0}, v{vT+5}, 4, v{vT+4}
    v_xor_b32 v{vDX1}, 64, v{vDX0}
    v_add_u32 v{vDX1}, 0x2000, v{vDX1}
    """)
    g(f"""
    s_lshr_b32 s{sT0}, s{sW}, 1
    s_cmp_eq_u32 s{sT0}, 3
    s_movk_i32 s{sT2}, 3072
    s_cselect_b32 s{sT1}, 1024, s{sT2}
    s_cselect_b32 s{sT2}, 2, 0
    s_lshl_b32 s{sWSTEP}, s{sT1}, 6
    s_lshl_b32 s{sMX}, s{sW}, 11
    s_add_u32 s{sMW}, s{sMX}, {LDS_WST}
    s_cmp_lg_u32 s{sB}, 0
    s_cbranch_scc1 L_su_q
    v_bfe_u32 v{vT+4}, v1, 2, 1
    v_bfe_u32 v{vT+5}, v1, 4, 1
    v_xor_b32 v{vT+4}, v{vT+4}, v{vT+5}
    v_and_b32 v{vT+5}, 3, v1
    v_lshl_add_u32 v{vT+5}, v{vT+4}, 2, v{vT+5}
    v_lshrrev_b32 v{vT+4}, 3, v1
    s_movk_i32 s{sW16}, 24576
    s_and_b32 s{sT2}, s{sHP}, 1
    s_add_u32 s{sT2}, s{sT2}, 1
    s_lshl_b32 s{sT2}, s{sT2}, 10
    s_lshr_b32 s{sWO}, s{sHP}, 1
    s_lshl_b32 s{sWO}, s{sWO}, 7
    s_add_u32 s{sWO}, s{sWO}, s{sT2}
    s_mul_i32 s{sT3}, s{sW}, 49152
    s_branch L_su_j
    L_su_q:
    v_lshrrev_b32 v{vT+4}, 2, v1
    v_and_b32 v{vT+5}, 3, v1
    v_xor_b32 v{vT+5}, s{sT2}, v{vT+5}
    s_lshl_b32 s{sW16}, s{sT1}, 4
    s_lshl_b32 s{sWO}, s{sHP}, 6
    s_and_b32 s{sT2}, s{sW}, 1
    s_mul_i32 s{sT3}, s{sT2}, s{sW16}
    s_lshl_b32 s{sT3}, s{sT3}, 1
    L_su_j:
    s_add_u32 s{sWO}, s{sWO}, s{sT3}
    v_mul_u32_u24 v{vT+4}, s{sT1}, v{vT+4}
    v_lshl_add_u32 v{vDW}, v{vT+5}, 4, v{vT+4}
    s_lshl_b32 s{sXO}, s{sTB}, 17
    s_lshl_b32 s{sT2}, s{sW}, 14
    s_add_u32 s{sXO}, s{sXO}, s{sT2}
    s_lshl_b32 s{sKX}, s{sROT}, 7
    s_mul_i32 s{sKW}, s{sROT}, s{sWSTEP}
    """)
    g(f"""
    s_lshr_b32 s{sT2}, s{sHP}, 1
    s_lshl_b32 s{sT2}, s{sT2}, 14
    s_lshl_b32 s{sDMA}, s{sTB}, 17
    s_add_u32 s{sDMA}, s{sDMA}, s{sT2}
    s_lshl_b32 s{sT2}, s{sW}, 7
    s_add_u32 s{sDMA}, s{sDMA}, s{sT2}
    s_mov_b32 s{sOST}, s{sT2}
    """)
    for k in range(8): g(f"v_mov_b32 v{40+k}, 0")
    g(f"v_mov_b32 v{vFL}, 0")
    g("s_waitcnt lgkmcnt(0)")
    g.stamp('karg')
    g.srd(rX, pX, 2097152)
    g(f"s_cmp_eq_u32 s{sT0}, 3\ns_cselect_b64 s[{rWS_}:{rWS_+1}], s[{pWQ}:{pWQ+1}], s[{pWQKV}:{pWQKV+1}]")
    g(f"s_mov_b32 s{rWS_+2}, 1572864\ns_cselect_b32 s{rWS_+2}, 524288, s{rWS_+2}\ns_and_b32 s{rWS_+1}, s{rWS_+1}, 0xffff\ns_mov_b32 s{rWS_+3}, 0x00020000")
    def early_loads():
        g(f"s_bitcmp1_b32 s{sHP}, 0\ns_cselect_b64 s[{rWKV}:{rWKV+1}], s[{pWV}:{pWV+1}], s[{pWK}:{pWK+1}]")
        g(f"s_and_b32 s{rWKV+1}, s{rWKV+1}, 0xffff\ns_mov_b32 s{rWKV+2}, 16384\ns_mov_b32 s{rWKV+3}, 0x00020000")
        g(f"s_add_u32 m0, s{sMX}, {LDS_EW}")
        g.srd(rGATE, pGATE, 1024)
        g.vmop(f"buffer_load_dwordx4 v{vL16}, {sr(rWKV)}, s{sMX} offen lds", 'e')
        g.vmop(f"buffer_load_dwordx4 v{vL16}, {sr(rWKV)}, s{sMX} offen offset:1024 lds", 'e')
        g(f"s_mov_b32 exec_lo, 0x00010001\ns_mov_b32 exec_hi, 0x00010001")
        g.vmop(f"buffer_load_dwordx4 v[40:43], v{vT+1}, {sr(rGATE)}, s{sOST} offen", 'e')
        g.vmop(f"buffer_load_dwordx4 v[44:47], v{vT+1}, {sr(rGATE)}, s{sOST} offen offset:64", 'e')
        g("s_mov_b64 exec, -1")
        g(f"s_add_u32 m0, s{sMX}, {LDS_EX}\ns_nop 0")
        g.vmop(f"buffer_load_dwordx4 v{vDX0}, {sr(rX)}, s{sDMA} offen lds", 'e')
        g(f"s_add_u32 m0, s{sMX}, {LDS_EX + 1024}\ns_nop 0")
        g.vmop(f"buffer_load_dwordx4 v{vDX1}, {sr(rX)}, s{sDMA} offen lds", 'e')
    nonce_scan(g)
    early_loads()
    g("s_barrier")
    early_addr(g)
    runall(p1_dma(g, 0))
    g.srd(rWS, pWS, WS_SIZE)
    g.srd(rDBG, pDBG, 256)
    nonce_producer(g)
    g.stamp('setup')
    early_compute(g)
    g("s_barrier")
    g.stamp('early')
    runall(p1_dma(g, 1))
    early_reduce(g)
    g.srd(rOUT, pOUT, 2097152)
    g.srd(rWOA, pWOA, 524288)
    g.srd(rWOB, pWOB, 524288)
    g(f"s_mov_b32 s{sMASK}, 0x0000ffff\ns_mov_b32 s{sMASK+1}, 0x0000ffff\ns_mov_b32 s{sSPIN}, {SPIN}\ns_mov_b32 s{sNONCE}, 0")

def p1_dma(g, j):
    p = j & 3
    def f0():
        g(f"s_add_u32 m0, s{sMX}, {p*SLOT}\ns_add_u32 s{sDS}, s{sXO}, s{sKX}")
        g.vmop(f"buffer_load_dwordx4 v{vDX0}, {sr(rX)}, s{sDS} offen lds", f'c{j}')
    def f1():
        g(f"s_add_u32 m0, s{sMX}, {p*SLOT+1024}\ns_add_u32 s{sPOLL+0 if False else sT3}, s{sWO}, s{sKW}")
        g.vmop(f"buffer_load_dwordx4 v{vDX1}, {sr(rX)}, s{sDS} offen lds", f'c{j}')
    def f2():
        g(f"s_add_u32 m0, s{sMW}, {p*SLOT}\ns_add_u32 s{sDS}, s{sT3}, s{sW16}")
        g.vmop(f"buffer_load_dwordx4 v{vDW}, {sr(rWS_)}, s{sT3} offen lds", f'c{j}')
    def f3():
        g(f"s_add_u32 m0, s{sMW}, {p*SLOT+1024}\ns_add_u32 s{sKW}, s{sKW}, s{sWSTEP}")
        g.vmop(f"buffer_load_dwordx4 v{vDW}, {sr(rWS_)}, s{sDS} offen lds", f'c{j}')
        if j < 7:
            g(f"s_add_u32 s{sKX}, s{sKX}, 128\ns_and_b32 s{sKX}, s{sKX}, 1023\ns_cselect_b32 s{sKW}, s{sKW}, 0")
    return [f0, f1, f2, f3]

def nonce_scan(g):
    skip = g.lab("L_ns")
    g(f"s_cmp_lg_u32 s2, 0\ns_cbranch_scc1 {skip}\ns_cmp_lg_u32 s{sW}, 0\ns_cbranch_scc1 {skip}")
    g.srd(rWS, pWS, WS_SIZE)
    g(f"v_lshrrev_b32 v{vT+4}, 2, v1\nv_and_b32 v{vT+5}, 3, v1\nv_lshlrev_b32 v{vT+4}, 7, v{vT+4}\nv_lshl_add_u32 v{vT+4}, v{vT+5}, 4, v{vT+4}")
    g(f"s_mov_b32 s{sT1}, {WS_F1}")
    g(f"buffer_load_dwordx4 v[176:179], v{vT+4}, {sr(rWS)}, s{sT1} offen sc1")
    g(f"buffer_load_dwordx4 v[180:183], v{vT+4}, {sr(rWS)}, s{sT1} offen offset:2048 sc1")
    g(f"s_mov_b32 s{sT1}, {WS_F3}")
    g(f"buffer_load_dwordx4 v[184:187], v{vT+4}, {sr(rWS)}, s{sT1} offen sc1")
    g(f"{skip}:")

def nonce_producer(g):
    skip = g.lab("L_nn")
    g(f"s_cmp_lg_u32 s2, 0\ns_cbranch_scc1 {skip}\ns_cmp_lg_u32 s{sW}, 0\ns_cbranch_scc1 {skip}")
    g("s_waitcnt vmcnt(10)")
    g(f"v_readfirstlane_b32 s{sT1}, v176")
    lp = g.lab("L_nl")
    g(f"{lp}:\ns_add_u32 s{sT1}, s{sT1}, 1\ns_cbranch_scc1 {lp}")
    g(f"s_mov_b64 s[{sPC}:{sPC+1}], 0")
    for k in range(12):
        g(f"v_cmp_eq_u32 vcc, s{sT1}, v{176+k}\ns_or_b64 s[{sPC}:{sPC+1}], s[{sPC}:{sPC+1}], vcc")
    g(f"s_cbranch_scc1 {lp}")
    g(f"v_mov_b32 v192, s{sT1}\nv_mov_b32 v193, 0\ns_mov_b64 exec, 1")
    g(f"buffer_store_dword v192, v193, {sr(rDBG)}, 0 offen sc1\ns_mov_b64 exec, -1")
    g(f"{skip}:")

def p1_addr(g):
    g(f"""
    v_and_b32 v{vT+2}, 31, v1
    v_lshrrev_b32 v{vT+3}, 5, v1
    v_bfe_u32 v{vT+4}, v1, 1, 3
    v_xor_b32 v{vT+4}, v{vT+4}, v{vT+3}
    v_lshlrev_b32 v{vT+4}, 4, v{vT+4}
    v_lshl_add_u32 v{vT+4}, v{vT+2}, 7, v{vT+4}
    s_lshl_b32 s{sT1}, s{sI}, 12
    v_add_u32 v{vAX}, s{sT1}, v{vT+4}
    v_xor_b32 v{vAX+1}, 32, v{vAX}
    v_xor_b32 v{vAX+2}, 64, v{vAX}
    v_xor_b32 v{vAX+3}, 0x60, v{vAX}
    v_bfe_u32 v{vT+4}, v1, 2, 2
    v_and_b32 v{vT+5}, 3, v1
    v_lshlrev_b32 v{vT+5}, 3, v{vT+5}
    v_lshl_add_u32 v{vT+5}, v{vT+4}, 6, v{vT+5}
    v_lshl_add_u32 v{vT+5}, v{vT+3}, 9, v{vT+5}
    v_bfe_u32 v{vT+6}, v1, 4, 1
    v_bfe_u32 v{vT+7}, v1, 3, 1
    v_xor_b32 v{vT+7}, s{sB}, v{vT+7}
    v_lshlrev_b32 v{vT+7}, 6, v{vT+7}
    v_lshl_add_u32 v{vT+7}, v{vT+4}, 7, v{vT+7}
    v_lshl_add_u32 v{vT+7}, v{vT+3}, 10, v{vT+7}
    v_lshl_add_u32 v{vT+7}, v{vT+6}, 5, v{vT+7}
    v_and_b32 v{vT+2}, 3, v1
    v_lshl_add_u32 v{vT+7}, v{vT+2}, 3, v{vT+7}
    v_add_u32 v{vAW1}, {LDS_WST}, v{vT+7}
    v_xor_b32 v{vT+4}, s{sB}, v{vT+6}
    v_lshl_add_u32 v{vT+5}, v{vT+4}, 5, v{vT+5}
    v_lshl_add_u32 v{vT+5}, v{vT+6}, 12, v{vT+5}
    v_add_u32 v{vAWQ}, {LDS_WST + 8192}, v{vT+5}
    """)

def early_addr(g):
    g(f"""
    v_lshrrev_b32 v{vT+4}, 4, v1
    v_bfe_u32 v{vT+5}, v1, 2, 2
    v_lshl_add_u32 v{vT+4}, v{vT+4}, 3, v{vT+5}
    v_and_b32 v{vT+5}, 3, v1
    v_lshlrev_b32 v{vT+5}, 3, v{vT+5}
    v_lshl_add_u32 v{vT+4}, v{vT+4}, 5, v{vT+5}
    s_add_u32 s{sT1}, s{sMX}, {LDS_EW}
    v_add_u32 v{vT+6}, s{sT1}, v{vT+4}
    s_lshl_b32 s{sT1}, s{sW}, 10
    s_add_u32 s{sT1}, s{sT1}, {LDS_ER}
    v_add_u32 v{vT+7}, s{sT1}, v{vL16}
    s_lshl_b32 s{sT1}, s{sW}, 8
    s_add_u32 s{sT1}, s{sT1}, {LDS_EG}
    v_lshlrev_b32 v{vT+5}, 2, v1
    v_add_u32 v{vT+5}, s{sT1}, v{vT+5}
    """)
    g(f"""
    v_and_b32 v{vT}, 15, v1
    v_lshrrev_b32 v{vT+1}, 4, v1
    v_bfe_u32 v{vT+2}, v1, 1, 3
    v_xor_b32 v{vT+1}, v{vT+1}, v{vT+2}
    v_lshlrev_b32 v{vT+1}, 4, v{vT+1}
    v_lshl_add_u32 v{vT}, v{vT}, 7, v{vT+1}
    s_add_u32 s{sT1}, s{sMX}, {LDS_EX}
    v_add_u32 v{vT}, s{sT1}, v{vT}
    v_xor_b32 v{vT+1}, 64, v{vT}
    """)

def early_compute(g):
    g.wvm('e')
    g.ds(f"ds_read_b128 v[16:19], v{vT}", 'ew')
    g.ds(f"ds_read_b128 v[20:23], v{vT+1}", 'ew')
    for s_ in range(2):
        for e in range(2):
            g.ds(f"ds_read_b64_tr_b16 v[{24+4*s_+2*e}:{25+4*s_+2*e}], v{vT+6} offset:{s_*1024+e*128}", 'ew')
    g.wlg('ew')
    lv, le = g.lab("L_ev"), g.lab("L_ee")
    g(f"s_bitcmp1_b32 s{sHP}, 0\ns_cbranch_scc1 {lv}")
    g("v_mfma_f32_16x16x32_bf16 v[32:35], v[24:27], v[16:19], 0")
    g("v_mfma_f32_16x16x32_bf16 v[36:39], v[40:43], v[16:19], 0")
    g("v_mfma_f32_16x16x32_bf16 v[32:35], v[28:31], v[20:23], v[32:35]")
    g("v_mfma_f32_16x16x32_bf16 v[36:39], v[44:47], v[20:23], v[36:39]")
    g(f"s_branch {le}\n{lv}:")
    g("v_mfma_f32_16x16x32_bf16 v[32:35], v[16:19], v[24:27], 0")
    g("v_mov_b32 v36, 0")
    g("v_mfma_f32_16x16x32_bf16 v[32:35], v[20:23], v[28:31], v[32:35]")
    g(f"{le}:\ns_nop 7")
    g.ds(f"ds_write_b128 v{vT+7}, v[32:35]", 'ep')
    g.ds(f"ds_write_b32 v{vT+5}, v36", 'ep')
    g.wlg()

def early_reduce(g):
    skip = g.lab("L_er")
    g(f"s_cmp_lg_u32 s{sW}, 0\ns_cbranch_scc1 {skip}")
    g(f"v_add_u32 v{vT+4}, {LDS_ER}, v{vL16}\nv_lshlrev_b32 v{vT+5}, 2, v1\nv_add_u32 v{vT+5}, {LDS_EG}, v{vT+5}")
    for k in range(8): g(f"ds_read_b128 v[{16+4*k}:{19+4*k}], v{vT+4} offset:{k*1024}")
    g("s_waitcnt lgkmcnt(0)")
    for k in range(8): g(f"ds_read_b32 v{48+k}, v{vT+5} offset:{k*256}")
    g(f"""
    s_lshr_b32 s{sT0}, s{sHP}, 1
    s_lshl_b32 s{sT1}, s{sTB}, 2
    s_lshr_b32 s{sT2}, s{sT0}, 1
    s_add_u32 s{sT1}, s{sT1}, s{sT2}
    s_lshr_b32 s{sT2}, s{sT1}, 3
    s_lshl_b32 s{sT2}, s{sT2}, 14
    s_and_b32 s{sT1}, s{sT1}, 7
    s_lshl_b32 s{sT1}, s{sT1}, 10
    s_add_u32 s{sT1}, s{sT1}, s{sT2}
    s_add_u32 s{sT1}, s{sT1}, {WS_KVB}
    s_and_b32 s{sT0}, s{sT0}, 1
    v_and_b32 v{vT}, 15, v1
    v_bfe_u32 v{vT+1}, v1, 4, 1
    v_lshrrev_b32 v{vT+2}, 5, v1
    v_lshlrev_b32 v{vT+2}, 3, v{vT+2}
    """)
    for k in range(1, 8):
        for q in range(4): g(f"v_add_f32 v{16+q}, v{16+q}, v{16+4*k+q}")
    g("v_cvt_pk_bf16_f32 v16, v16, v17\nv_cvt_pk_bf16_f32 v17, v18, v19")
    lv, le = g.lab("L_rv"), g.lab("L_re")
    g(f"s_bitcmp1_b32 s{sHP}, 0\ns_cbranch_scc1 {lv}")
    if True:
        g(f"""
        v_and_b32 v{vT+3}, 3, v{vT}
        v_bfe_u32 v{vT+6}, v{vT}, 2, 1
        v_lshl_add_u32 v{vT+3}, v{vT+6}, 3, v{vT+3}
        v_bfe_u32 v{vT+6}, v{vT}, 3, 1
        v_lshl_add_u32 v{vT+3}, v{vT+6}, 2, v{vT+3}
        v_lshl_add_u32 v{vT+3}, v{vT+1}, 5, v{vT+3}
        v_lshl_add_u32 v{vT+3}, v{vT+3}, 4, v{vT+2}
        s_lshl_b32 s{sT0}, s{sT0}, 8
        s_add_u32 s{sT1}, s{sT1}, s{sT0}
        buffer_store_dwordx2 v[16:17], v{vT+3}, {sr(rWS)}, s{sT1} offen sc1
        s_waitcnt lgkmcnt(0)
        """)
        for k in range(1, 8): g(f"v_add_f32 v48, v48, v{48+k}")
        g(f"""
        v_mul_f32 v48, {f2h(-1.4426950408889634)}, v48
        v_exp_f32 v48, v48
        s_lshr_b32 s{sT0}, s{sHP}, 1
        s_lshl_b32 s{sT0}, s{sT0}, 6
        v_add_f32 v48, 1.0, v48
        v_rcp_f32 v48, v48
        s_lshl_b32 s{sT1}, s{sTB}, 9
        s_add_u32 s{sT1}, s{sT1}, s{sT0}
        s_add_u32 s{sT1}, s{sT1}, {WS_GATE}
        v_lshlrev_b32 v{vT+3}, 2, v1
        s_mov_b64 exec, 0xffff
        buffer_store_dword v48, v{vT+3}, {sr(rWS)}, s{sT1} offen sc1
        s_mov_b64 exec, -1
        s_branch {le}
        {lv}:
        """)
        g(f"""
    v_lshl_add_u32 v{vT+3}, v{vT+1}, 4, v{vT}
    v_lshl_add_u32 v{vT+3}, v{vT+3}, 4, v{vT+2}
    s_lshl_b32 s{sT0}, s{sT0}, 9
    s_add_u32 s{sT1}, s{sT1}, s{sT0}
    s_add_u32 s{sT1}, s{sT1}, 8192
    buffer_store_dwordx2 v[16:17], v{vT+3}, {sr(rWS)}, s{sT1} offen sc1
    s_waitcnt lgkmcnt(0)
        """)
    g(f"{le}:\n{skip}:")

def get_nonce(g):
    lp, ok = g.lab("L_gn"), g.lab("L_gk")
    g(f"{lp}:\nv_readfirstlane_b32 s{sNONCE}, v{vNON}\ns_nop 3\ns_cmp_lg_u32 s{sNONCE}, 0\ns_cbranch_scc1 {ok}")
    spin_check(g)
    g(f"v_mov_b32 v{vT+3}, 0\nbuffer_load_dword v{vNON}, v{vT+3}, {sr(rDBG)}, 0 offen sc1\ns_waitcnt vmcnt(0)\ns_branch {lp}\n{ok}:")

def flag_store(g, off_expr_setup):
    g(off_expr_setup)
    g(f"v_mov_b32 v{vT}, s{sNONCE}\nv_mov_b32 v{vT+1}, 0\ns_mov_b64 exec, 1")
    g(f"buffer_store_dword v{vT}, v{vT+1}, {sr(rWS)}, s{sT1} offen sc1\ns_mov_b64 exec, -1")

def poll_issue(g, kind):
    if kind == 1:
        g(f"v_lshrrev_b32 v{vT}, 2, v1\nv_and_b32 v{vT+1}, 3, v1\nv_lshlrev_b32 v{vT}, 7, v{vT}\nv_lshl_add_u32 v{vFL}, v{vT+1}, 4, v{vT}\ns_mov_b32 s{sPOLL}, {WS_F1}")
    elif kind == 2:
        g(f"v_and_b32 v{vT}, 3, v1\nv_bfe_u32 v{vT+1}, v1, 2, 1\nv_lshlrev_b32 v{vT}, 4, v{vT}\nv_lshl_add_u32 v{vFL}, v{vT+1}, 7, v{vT}\ns_and_b32 s{sPOLL}, s{sHP}, 14\ns_lshl_b32 s{sPOLL}, s{sPOLL}, 7\ns_add_u32 s{sPOLL}, s{sPOLL}, {WS_F2}")
    elif kind == 3:
        g(f"v_and_b32 v{vT}, 3, v1\nv_lshlrev_b32 v{vFL}, 4, v{vT}\ns_lshl_b32 s{sPOLL}, s{sTB}, 7\ns_add_u32 s{sPOLL}, s{sPOLL}, {WS_F3}")
    else:
        g(f"v_mov_b32 v{vFL}, 0\ns_lshl_b32 s{sPOLL}, s{sTB}, 2\ns_add_u32 s{sPOLL}, s{sPOLL}, s{sI}\ns_lshl_b32 s{sPOLL}, s{sPOLL}, 7\ns_add_u32 s{sPOLL}, s{sPOLL}, {WS_F4}")
    g(f"buffer_load_dwordx4 {r(vPOLL,4)}, v{vFL}, {sr(rWS)}, s{sPOLL} offen sc1")

def poll_check(g):
    lp, ok = g.lab("L_pl"), g.lab("L_pk")
    g(f"{lp}:")
    for k in range(4): g(f"v_xor_b32 v{vPOLL+k}, s{sNONCE}, v{vPOLL+k}")
    g(f"v_or_b32 v{vPOLL}, v{vPOLL}, v{vPOLL+1}\nv_or3_b32 v{vPOLL}, v{vPOLL}, v{vPOLL+2}, v{vPOLL+3}\nv_cmp_ne_u32 vcc, 0, v{vPOLL}\ns_nop 4\ns_cbranch_vccz {ok}")
    spin_check(g)
    g(f"buffer_load_dwordx4 {r(vPOLL,4)}, v{vFL}, {sr(rWS)}, s{sPOLL} offen sc1\ns_waitcnt vmcnt(0)\ns_branch {lp}\n{ok}:")

def w0(g):
    skip = g.lab("L_w0")
    g(f"s_cmp_lg_u32 s{sW}, 0\ns_cbranch_scc1 {skip}")
    return skip

def kv_dma(g, src_expr, slot, tag):
    def setup(): g(f"s_lshl_b32 s{sT2}, s{sW}, 12\ns_add_u32 m0, s{sT2}, {slot*SLOT}"); g(src_expr)
    def op(e): return lambda: g.vmop(f"buffer_load_dwordx4 v{vL16}, {sr(rWS)}, s{sDS} offen offset:{e*1024} sc1 lds", tag)
    return [setup] + [op(e) for e in range(4)]
def dma_B(g, c, slot, tag):
    return kv_dma(g, f"s_add_u32 s{sDS}, s{sT2}, {WS_KVB + c*SLOT}", slot, tag)
def dma_A(g, c, slot, tag):
    return kv_dma(g, f"s_add_u32 s{sDS}, s{sDMA}, {WS_KVA + c*SLOT}", slot, tag)
def dma_Wo(g, rs, grp, ldsbase, tag):
    def setup(): g(f"s_lshl_b32 s{sDS}, s{sW}, 15\ns_and_b32 s{sT1}, s{sHP}, 7\ns_lshl_b32 s{sT1}, s{sT1}, 7\ns_add_u32 s{sDS}, s{sDS}, s{sT1}")
    def op(e):
        def f():
            g(f"s_lshl_b32 s{sT2}, s{sW}, 12\ns_add_u32 m0, s{sT2}, {ldsbase + grp*32768 + e*1024}\ns_add_u32 s{sT1}, s{sDS}, {grp*262144 + e*8192}")
            g.vmop(f"buffer_load_dwordx4 v{vDWO}, {sr(rs)}, s{sT1} offen lds", tag)
        return f
    return [setup] + [op(e) for e in range(4)]
def runall(fs):
    for f in fs: f()

def phase1(g, b):
    T1, TQ = ACC, ACC + 16
    def XF(s_): return PF + 12 * s_
    def W1(s_): return PF + 12 * s_ + 4
    def WQ(s_): return PF + 12 * s_ + 8
    def reads(p, s_):
        if g.opt.get('noread'): return
        g.ds(f"ds_read_b128 {r(XF(s_),4)}, v{vAX+s_} offset:{p*SLOT}", f'f{s_}')
        for e in range(2): g.ds(f"ds_read_b64_tr_b16 {r(W1(s_)+2*e,2)}, v{vAW1} offset:{p*SLOT+s_*2048+e*512}", f'f{s_}')
        for e in range(2): g.ds(f"ds_read_b64_tr_b16 {r(WQ(s_)+2*e,2)}, v{vAWQ} offset:{p*SLOT+s_*1024+e*256}", f'f{s_}')
    def mf(j, s_, qfirst=False):
        g.wlg(f'f{s_}')
        if g.opt.get('nomf'): return
        if g.opt.get('mf16'):
            for (D, A, B) in ((T1, W1(s_), XF(s_)), (TQ, WQ(s_), XF(s_)), (T1+4, WQ(s_), XF(s_)), (TQ+4, W1(s_), XF(s_))):
                D2 = D + 8 * (s_ & 1)
                g(f"v_mfma_f32_16x16x32_bf16 {r(D2,4)}, {r(A,4)}, {r(B,4)}, {'0' if j == 0 and s_ < 2 else r(D2,4)}")
            return
        c1 = "0" if (j == 0 and s_ == 0) else r(T1, 16)
        cq = "0" if (j == 0 and s_ == 0) else r(TQ, 16)
        if qfirst: g(f"v_mfma_f32_32x32x16_bf16 {r(TQ,16)}, {r(WQ(s_),4)}, {r(XF(s_),4)}, {cq}")
        if b == 0: g(f"v_mfma_f32_32x32x16_bf16 {r(T1,16)}, {r(W1(s_),4)}, {r(XF(s_),4)}, {c1}")
        else:      g(f"v_mfma_f32_32x32x16_bf16 {r(T1,16)}, {r(XF(s_),4)}, {r(W1(s_),4)}, {c1}")
        if not qfirst: g(f"v_mfma_f32_32x32x16_bf16 {r(TQ,16)}, {r(WQ(s_),4)}, {r(XF(s_),4)}, {cq}")
    f1chk = g.opt.get('f1chk', 6)
    def wait_c(j, extra0):
        if extra0 and f'c{j}' in g.vm:
            n = len(g.vm) - 1 - (len(g.vm) - 1 - g.vm[::-1].index(f'c{j}'))
            sk, dn = g.lab("L_wa"), g.lab("L_wb")
            g(f"s_cmp_eq_u32 s{sW}, 0\ns_cbranch_scc1 {sk}")
            g.wvm(f'c{j}')
            g(f"{sk}:\ns_waitcnt vmcnt({n + extra0})")
        else: g.wvm(f'c{j}')
    jf = g.opt.get('jflag', 2)
    for j in range(8):
        p = j & 3
        wait_c(j, {0: 1, 1: 2}.get(j, 0))
        if j == jf:
            sk = w0(g)
            get_nonce(g)
            flag_store(g, f"s_lshl_b32 s{sT1}, s{sTB}, 7\ns_lshl_b32 s{sT2}, s{sHP}, 2\ns_add_u32 s{sT1}, s{sT1}, s{sT2}\ns_add_u32 s{sT1}, s{sT1}, {WS_F1}")
            g(f"{sk}:")
        if j == f1chk:
            sk = w0(g); poll_check(g); g(f"{sk}:")
        g.wlg()
        g("s_barrier")
        g.stamp(f'b{j}')
        dm = p1_dma(g, j + 2) if j <= 5 else (dma_B(g, 0, 8, 'B01') if j == f1chk else [])
        if len(dm) == 5: dm = [lambda a=dm[0], c=dm[1]: (a(), c())] + dm[2:]
        if j == f1chk - 1:
            sk = w0(g); poll_issue(g, 1); g(f"{sk}:")
        if j == 0:
            sk = w0(g)
            g(f"v_mov_b32 v{vT+3}, 0\nbuffer_load_dword v{vNON}, v{vT+3}, {sr(rDBG)}, 0 offen sc1\n{sk}:")
        reads(p, 0); reads(p, 1)
        if j > 0: mf(j - 1, 3)
        if dm: dm[0]()
        reads(p, 2)
        mf(j, 0)
        if dm: dm[1]()
        reads(p, 3)
        mf(j, 1)
        if dm: dm[2]()
        if j == 7: break
        mf(j, 2)
        if dm: dm[3]()
    g.wlg()
    g.wvm('B01')
    g("s_barrier")
    g.stamp('bstart')
    g.ds(f"ds_read_b128 {r(KF[0],4)}, v{vAK}", 'K0')
    g.ds(f"ds_read_b128 {r(KF[1],4)}, v{vAK} offset:1024", 'kv')
    g(f"s_mov_b64 exec, s[{sMASK}:{sMASK+1}]")
    g.ds(f"ds_read_b128 {r(V0[0],4)}, v{vAV}", 'kv')
    g.ds(f"ds_read_b128 {r(V1[0],4)}, v{vAV} offset:512", 'kv')
    g("s_mov_b64 exec, -1")
    g.wlg('never')
    mf(7, 2, True)
    for k in range(2, g.opt.get('m0t', 4)): g.ds(f"ds_read_b128 {r(KTMP+4*(k-2),4)}, v{vAK} offset:{k*1024}", 'kv')
    mf(7, 3, True)

def kv_store_addr(g):
    lv, le = g.lab("L_ka"), g.lab("L_kb")
    g(f"""
    s_and_b32 s{sT1}, s{sHP}, 14
    s_add_u32 s{sT1}, s{sT1}, s{sB}
    s_lshl_b32 s{sT1}, s{sT1}, 18
    s_lshr_b32 s{sT2}, s{sTB}, 1
    s_lshl_b32 s{sT2}, s{sT2}, 14
    s_add_u32 s{sT1}, s{sT1}, s{sT2}
    s_and_b32 s{sT2}, s{sTB}, 1
    s_lshl_b32 s{sT2}, s{sT2}, 2
    s_add_u32 s{sT2}, s{sT2}, s{sI}
    s_lshl_b32 s{sT2}, s{sT2}, 10
    s_add_u32 s{sKV}, s{sT1}, s{sT2}
    s_mov_b32 s{sSC}, {f2h(QSCALE)}
    s_mov_b32 s{sSC+1}, {f2h(QSCALE)}
    s_bitcmp1_b32 s{sHP}, 0
    s_cbranch_scc1 {lv}
    v_and_b32 v{vT}, 0x33, v1
    v_bfe_u32 v{vT+1}, v1, 2, 1
    v_lshl_or_b32 v{vT}, v{vT+1}, 3, v{vT}
    v_bfe_u32 v{vT+1}, v1, 3, 1
    v_lshl_or_b32 v{vT}, v{vT+1}, 2, v{vT}
    v_lshlrev_b32 v{vKVST}, 4, v{vT}
    s_add_u32 s{sKV1}, s{sKV}, 131072
    s_branch {le}
    {lv}:
    v_bfe_u32 v{vT}, v1, 4, 1
    v_lshlrev_b32 v{vT}, 17, v{vT}
    v_lshrrev_b32 v{vT+1}, 5, v1
    v_and_b32 v{vT+2}, 15, v1
    v_lshl_add_u32 v{vT+1}, v{vT+1}, 4, v{vT+2}
    v_lshl_add_u32 v{vKVST}, v{vT+1}, 4, v{vT}
    s_add_u32 s{sKV}, s{sKV}, 8192
    s_add_u32 s{sKV1}, s{sKV}, 512
    {le}:
    """)

def max_tree(Ss):
    regs = [S + k for S in Ss for k in range(16)]
    L = [f"v_max3_f32 v{vT}, v{regs[0]}, v{regs[1]}, v{regs[2]}", f"v_max3_f32 v{vT+1}, v{regs[3]}, v{regs[4]}, v{regs[5]}"]
    rest, k = regs[6:], 0
    while len(rest) >= 2:
        L.append(f"v_max3_f32 v{vT+k}, v{vT+k}, v{rest[0]}, v{rest[1]}"); rest = rest[2:]; k ^= 1
    L += [f"v_max_f32 v{vT}, v{vT}, v{vT+1}", f"v_mov_b32 v{vT+1}, v{vT}"]
    return L
def fill_c(Cr, off):
    L = [f"v_max_f32 v{vT}, v{vT}, v{vT+1}", f"v_sub_f32 v{Cr}, {f2h(-off)}, v{vT}", f"v_sub_f32 v{Cr+1}, {f2h(-off)}, v{vT}"]
    L += [f"v_mov_b64 v[{Cr+k}:{Cr+k+1}], v[{Cr}:{Cr+1}]" for k in range(2, 16, 2)]
    return "\n".join(L)
SWAP = f"v_permlane32_swap_b32 v{vT}, v{vT+1}"

def b_prologue(g):
    T1, TQ = ACC, ACC + 16
    g(f"v_mov_b64 v[{vT+4}:{vT+5}], -1\nv_mov_b64 v[{vT+6}:{vT+7}], -1\ns_nop 8")
    for k in range(8, 16, 2): g(f"v_pk_mul_f32 v[{TQ+k}:{TQ+k+1}], v[{TQ+k}:{TQ+k+1}], s[{sSC}:{sSC+1}]")
    for k in range(4): g(f"v_cvt_pk_bf16_f32 v{QB+k}, v{TQ+8+2*k}, v{TQ+9+2*k}")
    g.wlg('K0'); g("s_nop 0")
    nt = g.opt.get('m0t', 4)
    if nt > 1: g.wlg()
    for k in range(nt): g(f"v_mfma_f32_32x32x16_bf16 {r(STB[k],16)}, {r((KF[0], KF[1], KTMP, KTMP+4)[k],4)}, {r(QB,4)}, 0")
    for k in range(8): g(f"v_cvt_pk_bf16_f32 v{PF+k}, v{T1+2*k}, v{T1+2*k+1}")
    for k in range(0, 8, 2): g(f"v_pk_mul_f32 v[{TQ+k}:{TQ+k+1}], v[{TQ+k}:{TQ+k+1}], s[{sSC}:{sSC+1}]")
    L = max_tree(STB[:nt])
    for k, x in enumerate(L):
        g(x)
    g("s_nop 1")
    g(SWAP)
    g("s_nop 0")
    g(fill_c(C, g.opt.get('moff', MOFF)))
    g("s_nop 1")
    g(f"v_mfma_f32_32x32x16_bf16 {r(S0,16)}, {r(KF[0],4)}, {r(QB,4)}, {r(C,16)}")
    for k in range(4): g(f"v_cvt_pk_bf16_f32 v{QA+k}, v{TQ+2*k}, v{TQ+2*k+1}")
    g("s_nop 7")

def start_ops(g):
    def kv(k): return lambda: g.vmop(f"buffer_store_dwordx4 {r(PF+4*k,4)}, v{vKVST}, {sr(rWS)}, s{(sKV, sKV1)[k]} offen sc1", 'kvst')
    def sent():
        g(f"s_add_u32 s{sT1}, s{sOST}, {WS_O + 0x200000}")
        g.vmop(f"buffer_store_dwordx4 {r(vT+4,4)}, v{vL16}, {sr(rWS)}, s{sT1} offen sc1", 'sent')
    def gate():
        g(f"v_and_b32 v{vT}, 31, v1\nv_lshlrev_b32 v{vT}, 2, v{vT}\ns_lshl_b32 s{sT1}, s{sTB}, 2\ns_add_u32 s{sT1}, s{sT1}, s{sI}\ns_lshl_b32 s{sT1}, s{sT1}, 7\ns_add_u32 s{sT1}, s{sT1}, {WS_GATE}")
        g.vmop(f"buffer_load_dword v{vG}, v{vT}, {sr(rWS)}, s{sT1} offen sc1", 'gate')
    return kv(0), kv(1), sent, gate

def attn_consts(g):
    g(f"""
    v_mov_b32 v{vIDX}, 0xdddddddd
    v_lshrrev_b32 v{vT}, 5, v1
    v_and_b32 v{vT+1}, 15, v1
    v_lshl_add_u32 v{vT}, v{vT}, 4, v{vT+1}
    v_lshlrev_b32 v{vVOFF}, 4, v{vT}
    v_and_b32 v{vT}, 31, v1
    v_cmp_eq_u32 vcc, 16, v{vT}
    v_mov_b32 v{vT+1}, 0x3f803f80
    v_add_u32 v{vAK}, {8*SLOT}, v{vL16}
    v_cndmask_b32 v{vT+1}, 0, v{vT+1}, vcc
    v_add_u32 v{vAV}, {8*SLOT + 8192}, v{vVOFF}
    """)
    for k in range(16): g(f"v_mov_b32 v{V0[0]+k}, v{vT+1}")
    for Or in OACC:
        for k in range(0, 16, 2): g(f"v_mov_b64 v[{Or+k}:{Or+k+1}], 0")
    g(f"""
    s_lshl_b32 s{sT1}, s{sHP}, 1
    s_add_u32 s{sT1}, s{sT1}, s{sB}
    s_lshl_b32 s{sDMA}, s{sT1}, 17
    s_lshl_b32 s{sT2}, s{sI}, 12
    s_add_u32 s{sDMA}, s{sDMA}, s{sT2}
    s_lshl_b32 s{sT2}, s{sTB}, 2
    s_add_u32 s{sT2}, s{sT2}, s{sI}
    s_lshl_b32 s{sT2}, s{sT2}, 5
    s_add_u32 s{sT2}, s{sT2}, s{sT1}
    s_lshl_b32 s{sOST}, s{sT2}, 10
    """)

def tile(g, U, ev, pos):
    t = U & 7
    p = U & 1
    cur, nxt = (S0, S1) if p == 0 else (S1, S0)
    p1, pq, p0 = pos
    Qn = QB if U + 1 < 64 else QA
    def run(key):
        for f in ev.get((U, key), []): f()
    for i in range(16):
        if i == p1:
            if U > 0: g(f"v_smfmac_f32_32x32x32_bf16 {r(OACC[(U-1) >> 6],16)}, {r(V1[1-p],4)}, {r(nxt+8,8)}, v{vIDX}")
            run('m1')
            g.wlg()
            if U < 127:
                g(f"s_mov_b64 exec, s[{sMASK}:{sMASK+1}]")
                g.ds(f"ds_read_b128 {r(V0[1-p],4)}, v{vAV} offset:{((t + 1) & 7) * 1024}", 'kv')
                g.ds(f"ds_read_b128 {r(V1[1-p],4)}, v{vAV} offset:{((t + 1) & 7) * 1024 + 512}", 'kv')
                g("s_mov_b64 exec, -1")
            if U < 126: g.ds(f"ds_read_b128 {r(KF[p],4)}, v{vAK} offset:{((t + 2) & 7) * 1024}", 'kv')
            run('gap')
        if i == pq:
            if U < 127: g(f"v_mfma_f32_32x32x16_bf16 {r(nxt,16)}, {r(KF[1-p],4)}, {r(Qn,4)}, {r(C,16)}")
            run('mq')
        if i == p0:
            g(f"v_smfmac_f32_32x32x32_bf16 {r(OACC[U >> 6],16)}, {r(V0[p],4)}, {r(cur,8)}, v{vIDX}")
            run('m0')
        run(i)
        g(f"v_exp_f32 v{cur+i}, v{cur+i}")
    if U == 127:
        g("s_nop 1")
        g(f"v_smfmac_f32_32x32x32_bf16 {r(OACC[1],16)}, {r(V1[p],4)}, {r(cur+8,8)}, v{vIDX}")

def epilogue_parts(g, task):
    O = OACC[task]
    lo, hi = struct.unpack('<I', struct.pack('<f', 2.0**-110))[0], struct.unpack('<I', struct.pack('<f', 2.0**120))[0]
    def p1():
        g(f"v_mov_b32 v{vT}, v{O+8}\nv_add_f32 v{vT+2}, |v{O}|, |v{O+1}|")
        for k in range(2, 8): g(f"v_add_f32 v{vT+2}, v{vT+2}, |v{O+k}|")
        g(f"v_permlane32_swap_b32 v{vT}, v{O+8}")
        g(f"v_subrev_u32 v{vT+2}, {lo}, v{vT+2}\ns_mov_b32 s{sT1}, {hi - lo}")
    def p2():
        g(f"v_subrev_u32 v{vT+3}, {lo}, v{vT}\nv_max_u32 v{vT+2}, v{vT+2}, v{vT+3}\nv_cmp_le_u32 vcc, s{sT1}, v{vT+2}")
        if g.opt.get('force_fb'): g("s_mov_b64 vcc, -1")
        g(f"s_nop 0\ns_cbranch_vccnz L_fallback{task}\nL_fbret{task}:\nv_rcp_f32 v{vT}, v{vT}")
        if task == 0: g(f"v_sub_f32 v{vT+3}, 1.0, v{vG}")
    def p3():
        g(f"v_mul_f32 v{vT}, v{vT}, v{vT+3 if task == 0 else vG}")
        for k in range(0, 8, 2): g(f"v_pk_mul_f32 v[{O+k}:{O+k+1}], v[{O+k}:{O+k+1}], v[{vT}:{vT+1}] op_sel_hi:[1,0]")
        for k in range(4): g(f"v_cvt_pk_bf16_f32 v{vT+4+k}, v{O+2*k}, v{O+2*k+1}")
        if task == 1:
            for k in range(4): g(f"v_min_u32 v{vT+4+k}, -2, v{vT+4+k}")
        g(f"s_add_u32 s{sT1}, s{sOST}, {WS_O + (0 if task == 0 else 0x200000)}")
        g.vmop(f"buffer_store_dwordx4 {r(vT+4,4)}, v{vL16}, {sr(rWS)}, s{sT1} offen sc1", 'ost')
    return p1, p2, p3

def fallback(g, task):
    Q, O = (QB, QA)[task], OACC[task]
    S_, C_, K_, A0, A1 = FB_S, FB_C, FB_K, FB_V0, FB_V1
    g(f"L_fallback{task}:")
    if task == 0: g(f"s_mov_b32 s{sFBBASE}, {WS_KVB}")
    else: g(f"s_lshl_b32 s{sT1}, s{sI}, 12\ns_sub_u32 s{sFBBASE}, s{sDMA}, s{sT1}")
    g(f"v_and_b32 v{vT}, 31, v1\nv_cmp_eq_u32 vcc, 16, v{vT}\nv_mov_b32 v{vT+1}, 0x3f803f80\ns_nop 1\nv_cndmask_b32 v{vT+1}, 0, v{vT+1}, vcc")
    for k in range(8): g(f"v_mov_b32 v{A0+k}, v{vT+1}")
    g(f"v_mov_b32 v{vT}, 0xff800000\ns_mov_b32 s{sFBT}, 0")
    def addr():
        g(f"s_lshr_b32 s{sT1}, s{sFBT}, 3\ns_lshl_b32 s{sT1}, s{sT1}, 14\ns_and_b32 s{sT2}, s{sFBT}, 7\ns_lshl_b32 s{sT2}, s{sT2}, 10\ns_add_u32 s{sT1}, s{sT1}, s{sT2}\ns_add_u32 s{sT1}, s{sT1}, s{sFBBASE}")
    g(f"L_fb1_{task}:"); addr()
    g(f"buffer_load_dwordx4 {r(K_,4)}, v{vL16}, {sr(rWS)}, s{sT1} offen sc1\ns_waitcnt vmcnt(0)")
    g(f"v_mfma_f32_32x32x16_bf16 {r(S_,16)}, {r(K_,4)}, {r(Q,4)}, 0\ns_nop 15")
    for k in range(0, 16, 2): g(f"v_max3_f32 v{vT}, v{vT}, v{S_+k}, v{S_+k+1}")
    g(f"s_add_u32 s{sFBT}, s{sFBT}, 1\ns_cmp_lt_u32 s{sFBT}, 64\ns_cbranch_scc1 L_fb1_{task}")
    g(f"v_mov_b32 v{vT+1}, v{vT}\ns_nop 1\n{SWAP}\ns_nop 1")
    g(fill_c(C_, 0.0))
    for k in range(0, 16, 2): g(f"v_mov_b64 v[{O+k}:{O+k+1}], 0")
    g(f"s_mov_b32 s{sFBT}, 0")
    g(f"L_fb2_{task}:"); addr()
    g(f"buffer_load_dwordx4 {r(K_,4)}, v{vL16}, {sr(rWS)}, s{sT1} offen sc1\ns_add_u32 s{sT1}, s{sT1}, 8192")
    g(f"s_mov_b64 exec, s[{sMASK}:{sMASK+1}]")
    g(f"buffer_load_dwordx4 {r(A0,4)}, v{vVOFF}, {sr(rWS)}, s{sT1} offen sc1\nbuffer_load_dwordx4 {r(A1,4)}, v{vVOFF}, {sr(rWS)}, s{sT1} offen offset:512 sc1")
    g("s_mov_b64 exec, -1\ns_waitcnt vmcnt(0)")
    g(f"v_mfma_f32_32x32x16_bf16 {r(S_,16)}, {r(K_,4)}, {r(Q,4)}, {r(C_,16)}\ns_nop 15")
    for k in range(16): g(f"v_exp_f32 v{S_+k}, v{S_+k}")
    g("s_nop 2")
    g(f"v_smfmac_f32_32x32x32_bf16 {r(O,16)}, {r(A0,4)}, {r(S_,8)}, v{vIDX}")
    g(f"v_smfmac_f32_32x32x32_bf16 {r(O,16)}, {r(A1,4)}, {r(S_+8,8)}, v{vIDX}")
    g(f"s_nop 15\ns_add_u32 s{sFBT}, s{sFBT}, 1\ns_cmp_lt_u32 s{sFBT}, 64\ns_cbranch_scc1 L_fb2_{task}")
    g(f"v_mov_b32 v{vT}, v{O+8}\nv_mov_b32 v{vT+1}, v{O+8}\ns_nop 1\n{SWAP}\ns_nop 1\ns_branch L_fbret{task}")

def tail_addr(g):
    g(f"""
    v_lshrrev_b32 v{vT}, 3, v1
    v_bfe_u32 v{vT+1}, v1, 2, 1
    v_bfe_u32 v{vT+2}, v1, 4, 1
    v_xor_b32 v{vT+1}, v{vT+1}, v{vT+2}
    v_lshlrev_b32 v{vT+1}, 6, v{vT+1}
    v_lshl_add_u32 v{vT+1}, v{vT}, 10, v{vT+1}
    v_and_b32 v{vT+3}, 3, v1
    v_lshl_add_u32 v{vDWO}, v{vT+3}, 4, v{vT+1}
    v_lshrrev_b32 v{vT}, 5, v1
    v_bfe_u32 v{vT+1}, v1, 2, 2
    v_lshl_add_u32 v{vT}, v{vT}, 2, v{vT+1}
    v_lshlrev_b32 v{vT}, 7, v{vT}
    v_bfe_u32 v{vT+1}, v1, 3, 1
    v_lshl_add_u32 v{vT}, v{vT+1}, 6, v{vT}
    v_lshl_add_u32 v{vT}, v{vT+2}, 5, v{vT}
    v_lshl_add_u32 v{vT}, v{vT+3}, 3, v{vT}
    s_lshl_b32 s{sT1}, s{sI}, 13
    s_add_u32 s{sT1}, s{sT1}, {LDS_WOB}
    s_lshr_b32 s{sT2}, s{sHP}, 3
    s_lshl_b32 s{sT2}, s{sT2}, 15
    s_add_u32 s{sT1}, s{sT1}, s{sT2}
    v_add_u32 v{vAT+2}, s{sT1}, v{vT}
    v_xor_b32 v{vAT+3}, 64, v{vAT+2}
    s_lshl_b32 s{sT2}, s{sT2}, 1
    s_sub_u32 s{sT1}, s{sT1}, s{sT2}
    s_add_u32 s{sT1}, s{sT1}, 32768
    v_add_u32 v{vAT}, s{sT1}, v{vT}
    v_xor_b32 v{vAT+1}, 64, v{vAT}
    s_mul_i32 s{sT1}, s{sW}, 6144
    v_add_u32 v{vRR}, s{sT1}, v{vL16}
    s_lshl_b32 s{sT1}, s{sTB}, 7
    s_lshr_b32 s{sT2}, s{sHP}, 3
    s_lshl_b32 s{sT2}, s{sT2}, 6
    s_add_u32 s{sT1}, s{sT1}, s{sT2}
    s_lshl_b32 s{sT2}, s{sB}, 5
    s_add_u32 s{sT1}, s{sT1}, s{sT2}
    v_and_b32 v{vT}, 31, v1
    v_add_u32 v{vT}, s{sT1}, v{vT}
    v_lshlrev_b32 v{vT}, 10, v{vT}
    v_lshrrev_b32 v{vT+1}, 5, v1
    v_lshl_add_u32 v{vT}, v{vT+1}, 4, v{vT}
    s_and_b32 s{sT2}, s{sHP}, 7
    s_lshl_b32 s{sT2}, s{sT2}, 7
    s_lshl_b32 s{sT1}, s{sI}, 5
    s_add_u32 s{sT2}, s{sT2}, s{sT1}
    v_add_u32 v{vOUTA}, s{sT2}, v{vT}
    """)

def of_loads(g, branch, tag, dst=None):
    dst = OF if dst is None else dst
    def setup():
        g(f"""
        s_lshl_b32 s{sT1}, s{sTB}, 2
        s_lshr_b32 s{sT2}, s{sHP}, 3
        s_lshl_b32 s{sT2}, s{sT2}, 1
        s_add_u32 s{sT1}, s{sT1}, s{sT2}
        s_add_u32 s{sT1}, s{sT1}, s{sB}
        s_lshl_b32 s{sT1}, s{sT1}, 15
        s_lshl_b32 s{sT2}, s{sI}, 12
        s_add_u32 s{sT1}, s{sT1}, s{sT2}
        s_add_u32 s{sT1}, s{sT1}, {WS_O + branch*0x200000}
        s_lshr_b32 s{sT2}, s{sHP}, 3
        s_lshl_b32 s{sT2}, s{sT2}, 14
        s_add_u32 s{sOF+1}, s{sT1}, s{sT2}
        s_sub_u32 s{sT1}, s{sT1}, s{sT2}
        s_add_u32 s{sOF}, s{sT1}, 16384
        """)
    def op(n): return lambda: g.vmop(f"buffer_load_dwordx4 {r(dst+4*n,4)}, v{vL16}, {sr(rWS)}, s{sOF + (n >> 2)} offen offset:{(n&3)*1024} sc1", f'{tag}{n}')
    return [setup] + [op(n) for n in range(8)]

def wfrag_reads(g, n, base, tag):
    for tc in range(2):
        for e in range(2):
            g.ds(f"ds_read_b64_tr_b16 {r(WF+8*n+4*tc+2*e,2)}, v{vAT+2*(n>>2)+tc} offset:{base+(n&3)*2048+e*1024}", f'{tag}{n}')

def tail(g):
    OA = PF
    p1, p2, p3 = epilogue_parts(g, 1)
    fa = of_loads(g, 1, 'OA', OA)
    oat = list(g.opt.get('oat', (8, 8, 8, 8, 9, 9, 10, 10)))
    for n in range(3): wfrag_reads(g, n, 0, 'w')
    p1(); g("s_nop 0"); p2(); fa[0](); p3()
    g.stamp('A')
    g.wvm('WoA1')
    g("s_barrier")
    g.stamp('T1')
    DA = LDS_WOA - LDS_WOB
    nload = 0
    for n in range(8):
        g.wlg(f'w{n}')
        for tc in range(2):
            c = "0" if n == 0 else r(ACC+16*tc, 16)
            g(f"v_mfma_f32_32x32x16_bf16 {r(ACC+16*tc,16)}, {r(WF+8*n+4*tc,4)}, {r(OF+4*n,4)}, {c}")
        if n + 3 < 8: wfrag_reads(g, n + 3, 0, 'w')
        else: wfrag_reads(g, n - 5, 0, 'x')
        if n in (1, 5):
            for k in range(2): g(f"v_add_u32 v{vAT + (n >> 2) * 2 + k}, {DA}, v{vAT + (n >> 2) * 2 + k}")
        for k in range(8):
            if oat[k] == n: fa[1 + k]()
    g.stamp('bp')
    for n in range(3, 8):
        g.wlg(f'x{n-3}')
        wfrag_reads(g, n, 0, 'x')
        for k in range(8):
            if oat[k] == n + 5: fa[1 + k]()
    for d in range(4):
        g(f"s_sub_u32 s{sT1}, {d + 3}, s{sI}\ns_and_b32 s{sT1}, s{sT1}, 3\ns_lshl_b32 s{sT1}, s{sT1}, 11\ns_mul_i32 s{sT2}, s{sB}, 24576\ns_add_u32 s{sT1}, s{sT1}, s{sT2}\ns_add_u32 s{sT1}, s{sT1}, {d * 6144}\nv_add_u32 v{vT+4+d}, s{sT1}, v{vL16}")
    g.wlg()
    g.stamp('poll')
    def check(q, bad):
        R = OA + 16 * q
        g(f"v_max3_u32 v{vT}, v{R}, v{R+1}, v{R+2}\nv_max3_u32 v{vT+1}, v{R+3}, v{R+4}, v{R+5}")
        for k in range(6, 16, 4):
            g(f"v_max3_u32 v{vT}, v{vT}, v{R+k}, v{R+k+1}")
            if k + 3 < 16: g(f"v_max3_u32 v{vT+1}, v{vT+1}, v{R+k+2}, v{R+k+3}")
        g(f"v_max_u32 v{vT}, v{vT}, v{vT+1}\nv_cmp_eq_u32 vcc, -1, v{vT}\ns_nop 0\ns_cbranch_vccnz {bad}")
        for n in range(4 * q, 4 * q + 4):
            for tc in range(2):
                g(f"v_mfma_f32_32x32x16_bf16 {r(ACC+16*tc,16)}, {r(WF+8*n+4*tc,4)}, {r(OA+4*n,4)}, {r(ACC+16*tc,16)}")
    g(f"s_mov_b32 s{sDS}, 0")
    for q in range(2):
        sk, bad = g.lab("L_oa"), g.lab("L_ob")
        g.wvm(f'OA{4*q+3}')
        check(q, bad)
        g(f"s_branch {sk}\n{bad}:\ns_bitset1_b32 s{sDS}, {q}\n{sk}:")
    g.stamp('pass1')
    g(f"L_oa_loop:\ns_cmp_eq_u32 s{sDS}, 0\ns_cbranch_scc1 L_oa_done")
    spin_check(g)
    for q in range(2):
        sk = g.lab("L_oc")
        g(f"s_bitcmp1_b32 s{sDS}, {q}\ns_cbranch_scc0 {sk}")
        for n in range(4 * q, 4 * q + 4): fa[1 + n]()
        g.vm = []
        g(f"{sk}:")
    g("s_waitcnt vmcnt(0)")
    for q in range(2):
        sk = g.lab("L_od")
        g(f"s_bitcmp1_b32 s{sDS}, {q}\ns_cbranch_scc0 {sk}")
        check(q, sk)
        g(f"s_bitset0_b32 s{sDS}, {q}\n{sk}:")
    g("s_branch L_oa_loop\nL_oa_done:")
    g.stamp('mm')
    g("s_barrier\ns_nop 8")
    def piece(d): return ACC + 16 * (d >> 1) + 8 * (d & 1)
    for d in range(4):
        sk = g.lab("L_rw")
        g(f"s_cmp_eq_u32 s{sI}, {d}\ns_cbranch_scc1 {sk}")
        g(f"ds_write_b128 v{vT+4+d}, {r(piece(d),4)}\nds_write_b128 v{vT+4+d}, {r(piece(d)+4,4)} offset:1024\n{sk}:")
    g("s_waitcnt lgkmcnt(0)\ns_barrier")
    g.stamp('red')
    for k in range(3):
        for e in range(2):
            g.ds(f"ds_read_b128 {r(16+8*k+4*e,4)}, v{vRR} offset:{k*2048+e*1024}", f'rr{k}')
    lj = g.lab("L_rj")
    for d in range(4):
        sk = g.lab("L_rs")
        if d < 3: g(f"s_cmp_lg_u32 s{sI}, {d}\ns_cbranch_scc1 {sk}")
        for k in range(0, 8, 2): g(f"v_mov_b64 v[{40+k}:{41+k}], v[{piece(d)+k}:{piece(d)+k+1}]")
        if d < 3: g(f"s_branch {lj}\n{sk}:")
    g(f"{lj}:")
    g.wlg('rr0')
    for k in range(0, 8, 2): g(f"v_pk_add_f32 v[{40+k}:{41+k}], v[{40+k}:{41+k}], v[{16+k}:{17+k}]")
    g.wlg('rr2')
    for k in range(0, 8, 2): g(f"v_pk_add_f32 v[{24+k}:{25+k}], v[{24+k}:{25+k}], v[{32+k}:{33+k}]")
    for k in range(0, 8, 2): g(f"v_pk_add_f32 v[{40+k}:{41+k}], v[{40+k}:{41+k}], v[{24+k}:{25+k}]")
    for k in range(4): g(f"v_cvt_pk_bf16_f32 v{16+k}, v{40+2*k}, v{41+2*k}")
    g("s_nop 1\nv_permlane32_swap_b32 v16, v18\nv_permlane32_swap_b32 v17, v19")
    g.vmop(f"buffer_store_dwordx4 v[16:19], v{vOUTA}, {sr(rOUT)}, 0 offen {g.opt.get('outsc', '')}", 'out')

def schedule(g):
    o = g.opt
    ev = {}
    def at(T, key, *fs): ev.setdefault((T, key), []).extend(fs)
    dpos = o.get('dpos', ((2, 6), (2, 13), (3, 6), (3, 13)))
    pp = o.get('pp', {(2, 'm1'): 3, (5, 'm0'): 2, (0, 'm0'): 1, (1, 'mq'): 0})
    def wave0(*fs):
        def f():
            sk = w0(g)
            for x in fs: x()
            g(f"{sk}:")
        return f
    def flag(base, hi, lo):
        return lambda: flag_store(g, f"s_lshl_b32 s{sT1}, s{hi}, 7\ns_lshl_b32 s{sT2}, s{lo}, 2\ns_add_u32 s{sT1}, s{sT1}, s{sT2}\ns_add_u32 s{sT1}, s{sT1}, {base}")
    def slot(gi): return slotB(gi) if gi < 8 else slotA(gi - 8)
    def vadd(reg, src, gi):
        d = ((slot(gi + 1) - slot(gi)) * SLOT) & 0xffffffff
        if gi != 7: return lambda: g(f"v_add_u32 v{reg}, {d}, v{src}")
        return lambda: g(f"s_lshl_b32 s{sT1}, s{sB}, 14\ns_add_u32 s{sT1}, s{sT1}, {d}\nv_add_u32 v{reg}, s{sT1}, v{src}")
    nt = o.get('m0t', 4)
    at(59, 0, vadd(vT + 3, vAK, 7))
    for k in range(nt):
        at(59, 'gap', lambda k=k: g.ds(f"ds_read_b128 {r(KTMP+4*k,4)}, v{vT+3} offset:{k*1024}", 'kv'))
        at(60 + k // 2, 7 if k % 2 == 0 else 13, lambda k=k: g(f"v_mfma_f32_32x32x16_bf16 {r(STMP[k],16)}, {r(KTMP+4*k,4)}, {r(QA,4)}, 0"))
    L = max_tree(STMP[:nt])
    if nt > 2:
        at(61, 6, lambda: g("\n".join(L[:8]))); at(62, 1, lambda: g("\n".join(L[8:16]))); at(62, 6, lambda: g("\n".join(L[16:])))
    else:
        at(61, 6, lambda: g("\n".join(L[:8]))); at(62, 6, lambda: g("\n".join(L[8:])))
    at(62, 8, lambda: g(SWAP))
    at(62, 12, lambda: g(fill_c(C, o.get('moff', MOFF))))
    e1, e2, e3 = epilogue_parts(g, 0)
    at(65, 0, e1); at(65, 1, e2); at(65, 6, e3, lambda: g.stamp('B'))
    fs = dma_B(g, 2, 0, 'G1')
    at(0, 6, fs[0], fs[1]); at(0, 13, fs[2]); at(1, 1, fs[3]); at(1, 6, fs[4])
    k0, k1, sent, gate = start_ops(g)
    at(4, 6, k0); at(5, 6, k1); at(6, 6, sent); at(7, 6, gate)
    for gi in range(16):
        T0 = 8 * gi
        ppc = dict(pp)
        if gi == 15:
            ppc = {k: v for k, v in pp.items() if k[0] < 2}
            ppc.update(o.get('pplast', {(2, 'm1'): 3, (4, 'm0'): 2, (6, 'm0'): 1, (7, 'm0'): 0}))
        for (t, key), pr in ppc.items(): at(T0 + t, key, lambda pr=pr: g(f"s_setprio {pr}"))
        if gi < 15:
            at(T0 + 6, 0, vadd(vAK, vAK, gi))
            at(T0 + 7, 0, vadd(vAV, vAV, gi))
        wait = {1: 'G1', 2: 'kvst', 3: 'G3', 4: None, 7: 'A0', 8: 'A1', 9: 'A2', 10: 'ost', 11: 'A4', 12: 'A5', 13: 'A6', 14: 'WoB0', 15: 'WoB1'}
        if gi == 4: at(T0 + 1, 1, lambda: g.wvm(), wave0(lambda: poll_check(g)))
        if gi == 14: at(T0 + 1, 1, lambda: g.wvm('WoB0'), wave0(lambda: poll_check(g)))
        if gi in wait: at(T0 + 1, 'm0', lambda w=wait[gi]: g.wvm(w))
        at(T0 + 1, 'm0', lambda: g("s_barrier"))
        at(T0 + 1, 'm0', lambda gi=gi: g.stamp(f'g{gi}'))
        grp = {0: lambda: dma_B(g, 4, 2, 'G2'), 1: lambda: dma_B(g, 6, 4, 'G3'),
               4: lambda: dma_A(g, 0, 6, 'A0'), 5: lambda: dma_A(g, 1, 8, 'A1'), 6: lambda: dma_A(g, 2, 0, 'A2'), 7: lambda: dma_A(g, 3, 2, 'A3'),
               8: lambda: dma_A(g, 4, 4, 'A4'), 9: lambda: dma_A(g, 5, 6, 'A5'), 10: lambda: dma_A(g, 6, 8, 'A6'), 11: lambda: dma_A(g, 7, 0, 'A7'),
               12: lambda: dma_Wo(g, rWOB, 0, LDS_WOB, 'WoB0'), 13: lambda: dma_Wo(g, rWOB, 1, LDS_WOB, 'WoB1'),
               14: lambda: dma_Wo(g, rWOA, 0, LDS_WOA, 'WoA0'), 15: lambda: dma_Wo(g, rWOA, 1, LDS_WOA, 'WoA1')}
        if gi == 13: at(T0 + 2, 0, wave0(lambda: poll_issue(g, 3)))
        if gi in grp:
            fs = grp[gi]()
            at(T0 + dpos[0][0], dpos[0][1], fs[0])
            for (t, i), f in zip(dpos, fs[1:]): at(T0 + t, i, f)
        if gi == 2: at(T0 + 2, 6, wave0(flag(WS_F2, sHP, sTB)))
        if gi == 3:
            at(T0 + 4, 6, wave0(lambda: poll_issue(g, 2)))
        if gi == 10: at(T0 + 4, 6, wave0(flag(WS_F3, sTB, sHP)))
        if gi == 13 and o.get('wopf', 1):
            def wopf():
                g(f"s_and_b32 s{sT1}, s{sTB}, 3\ns_lshl_b32 s{sT1}, s{sT1}, 13\ns_add_u32 s{sT1}, s{sT1}, s{sDS}\ns_add_u32 s{sT1}, s{sT1}, 262144")
                g.vmop(f"buffer_load_dwordx4 {r(208,4)}, v{vDWO}, {sr(rWOA)}, s{sT1} offen", 'pf')
            at(T0 + 5, 6, wopf)
        if gi == 14:
            fs = of_loads(g, 0, 'OB')
            at(T0 + 4, 6, fs[0])
            for n, f in enumerate(fs[1:]): at(T0 + 4 + n // 2, 6 if n % 2 == 0 else 13, f)
    return ev

def slotB(c): return (8 + c) % 10
def slotA(c): return 2 * ((3 + c) % 5)

def build(**opt):
    g = G(**opt)
    setup(g)
    p1_addr(g)
    tail_addr(g)
    attn_consts(g)
    kv_store_addr(g)
    fork = (list(g.lg), list(g.vm)); nst0 = g.nst
    g(f"s_bitcmp1_b32 s{sHP}, 0\ns_cbranch_scc1 L_p1b")
    phase1(g, 0)
    end0 = (list(g.lg), list(g.vm))
    g("s_branch L_p1done\nL_p1b:")
    g.lg, g.vm = list(fork[0]), list(fork[1]); g.nst = nst0
    phase1(g, 1)
    assert end0 == (g.lg, g.vm), (end0, g.lg, g.vm)
    g("L_p1done:")
    g.stamp('p1')
    b_prologue(g)
    g.stamp('t0')
    ev = schedule(g)
    for U in range(128): tile(g, U, ev, opt.get('pos', (2, 4, 10)))
    tail(g)
    if opt.get('stamps'):
        g.stamp('end')
        g(f"s_lshl_b32 s{sT1}, s2, 3\ns_add_u32 s{sT1}, s{sT1}, s{sW}\ns_lshl_b32 s{sT1}, s{sT1}, 6\ns_add_u32 s{sT1}, s{sT1}, {WS_DBG}")
        g("s_waitcnt lgkmcnt(0)")
        for k in range(12): g(f"v_mov_b32 v{16+k}, s{STAMP_SLOTS[min(k, g.nst-1)]}")
        g(f"v_mov_b32 v30, 0\ns_mov_b64 exec, 1")
        for k in range(3): g(f"buffer_store_dwordx4 v[{16+4*k}:{19+4*k}], v30, {sr(rWS)}, s{sT1} offen offset:{16*k}")
    if opt.get('dbgst'):
        sk = w0(g)
        g("s_waitcnt vmcnt(0) lgkmcnt(0)")
        last = STAMP_SLOTS[g.nst - 1]
        g(f"v_mov_b32 v16, s{last}\ns_not_b32 s{sT1}, s{STAMP_SLOTS[0]}\nv_mov_b32 v17, s{sT1}\nv_mov_b32 v30, 0\ns_mov_b64 exec, 1")
        g(f"buffer_atomic_umax v16, v30, {sr(rDBG)}, 0 offen offset:4\nbuffer_atomic_umax v17, v30, {sr(rDBG)}, 0 offen offset:8")
        sk2 = g.lab("L_d2")
        g(f"s_cmp_lg_u32 s2, {opt['dbgst'] - 1}\ns_cbranch_scc1 {sk2}")
        for k in range(12): g(f"s_sub_u32 s{sT1}, s{STAMP_SLOTS[min(k, g.nst-1)]}, s{STAMP_SLOTS[0]}\nv_mov_b32 v{16+k}, s{sT1}")
        g(f"v_mov_b32 v16, s{STAMP_SLOTS[0]}")
        for k in range(3): g(f"buffer_store_dwordx4 v[{16+4*k}:{19+4*k}], v30, {sr(rDBG)}, 0 offen offset:{16+16*k}")
        g(f"{sk2}:\ns_mov_b64 exec, -1\n{sk}:")
    if opt.get('spinend'):
        base, idx, mult = opt['spinend']
        sk = w0(g); sk2 = g.lab("L_sp")
        g(f"s_cmp_lg_u32 s2, {opt.get('spinwg', 0)}\ns_cbranch_scc1 {sk}\ns_waitcnt vmcnt(0) lgkmcnt(0)")
        g(f"s_sub_u32 s{sT1}, s{STAMP_SLOTS[idx]}, s{STAMP_SLOTS[0]}\ns_mul_i32 s{sT1}, s{sT1}, {mult}\ns_add_u32 s{sT1}, s{sT1}, {base*100}")
        g(f"{sk2}:\ns_memrealtime s[{sPC}:{sPC+1}]\ns_waitcnt lgkmcnt(0)\ns_sub_u32 s{sT2}, s{sPC}, s{STAMP_SLOTS[0]}\ns_cmp_lt_u32 s{sT2}, s{sT1}\ns_cbranch_scc1 {sk2}")
        g(f"{sk}:")
    g("L_abort:\ns_endpgm")
    fallback(g, 0)
    fallback(g, 1)
    g("L_end:\ns_endpgm\nL_codeend:")
    hdr = open('gated_mix__mha_block__grouped_kv_mqa__prompt.s.ref').read().split("; Override launch")[0]
    out = hdr + "; One fused launch: projections, MQA and MHA attention, gated output projection.\n"
    out += "; @launch grid=(256,1,1) block=(512,1,1) lds=163840\n"
    out += f""".amdgcn_target "amdgcn-amd-amdhsa--gfx950"
.text
.globl {NAME}
.p2align 8
.type {NAME},@function
{NAME}:
{g.text()}.section .rodata,"a"
.p2align 6
.amdhsa_kernel {NAME}
  .amdhsa_next_free_vgpr 256
  .amdhsa_next_free_sgpr 102
  .amdhsa_accum_offset 256
  .amdhsa_group_segment_fixed_size 0
  .amdhsa_kernarg_size 96
  .amdhsa_user_sgpr_count 2
  .amdhsa_user_sgpr_kernarg_segment_ptr 1
  .amdhsa_system_sgpr_workgroup_id_x 1
.end_amdhsa_kernel
"""
    return out

if __name__ == "__main__":
    path = sys.argv[1] if len(sys.argv) > 1 else 'gated_mix__mha_block__grouped_kv_mqa__prompt.s'
    opt = {}
    for a in sys.argv[2:]:
        k, _, v = a.partition('=')
        opt[k] = eval(v) if v else True
    open(path, 'w').write(build(**opt))
```

```python
import sys, struct, copy
NAME = "gated_mix__mha_block__grouped_kv_mqa__prompt_kernel"

def f2h(x): return "0x%08x" % struct.unpack('<I', struct.pack('<f', x))[0]

WS_KVA  = 0x000000
WS_KVB  = 0x400000
WS_GATE = 0x420000
WS_F1   = 0x424000
WS_F2   = WS_F1 + 2048
WS_F3   = WS_F1 + 4096
WS_F4   = WS_F1 + 6144
WS_O    = 0x500000
WS_DBG  = 0x900000
WS_SIZE = 0x1000000

SLOT = 16384
LDS_WST = 65536
LDS_EW  = 8 * SLOT
LDS_ER  = 9 * SLOT
LDS_EG  = 9 * SLOT + 8192
LDS_EX  = 3 * SLOT
LDS_WOB = 2 * SLOT
LDS_WOA = 6 * SLOT

sW, sHP, sTB, sROT, sB = 3, 4, 5, 6, 7
rX, rWS_, rWKV, rGATE, rWS, rDBG, rOUT, rWOA, rWOB = 8, 12, 16, 20, 24, 28, 32, 36, 40
sMASK = 44
sI, sNONCE, sSPIN, sT0, sT1, sT2 = 46, 47, 48, 49, 50, 51
pX, pWQKV, pWOA, pBX, pWQ, pWK, pWV, pWOB, pGATE, pOUT, pDBG, pWS = 52, 54, 56, 58, 60, 62, 64, 66, 68, 70, 72, 74
sXO, sWO, sWSTEP, sW16, sMX, sMW, sKX, sKW = 76, 77, 78, 79, 80, 81, 82, 83
sOF = 76
sPC = 84
sFBBASE, sKV, sFBT, sDMA, sOST, sT3 = 86, 87, 88, 89, 90, 91
sKV1, sSC = 98, 100
sPOLL, sDS = 92, 93
sST = 94
vIDX, vAK, vAV, vG, vL16, vVOFF = 2, 3, 4, 5, 6, 7
vT = 8
S0, S1, C, QA, QB = 16, 32, 64, 80, 84
OACC = (112, 48)
STMP, KTMP = (128, 144, 160, 176), 192
STB = (32, 16, 128, 208)
FB_S, FB_C, FB_K, FB_V0, FB_V1 = 176, 160, 144, 148, 152
KF, V0, V1 = (88, 92), (96, 100), (104, 108)
OF = 112
ACC = 144
PF = 176
WF = 16
vAX = 240
vAW1, vAWQ, vDX0, vDX1, vDW, vKVST = 244, 245, 246, 247, 248, 249
vDWO, vRR, vOUTA = 224, 225, 226
vAT = 228
vFL, vNON, vDUMMY = 250, 251, 251
vPOLL = 252
QSCALE = 0.25 * 1.4426950408889634
MOFF = 102.0
SPIN = 1 << 20

STAMP_SLOTS = [94, 96, 52, 54, 58, 60, 62, 64, 68, 72, 74, 56]
class G:
    def __init__(s, **opt):
        s.L = []; s.lg = []; s.vm = []; s.opt = opt; s.nlab = 0; s.nst = 0
    def __call__(s, txt):
        for line in txt.split("\n"):
            line = line.strip()
            if not line: continue
            s.L.append(line if (line.endswith(":") or line.startswith(".")) else "    " + line)
    def lab(s, p="L"):
        s.nlab += 1; return f"{p}_{s.nlab}"
    def ds(s, txt, tag=None):
        s(txt); s.lg.append(tag); assert len(s.lg) <= 15, "lgkm overflow"
    def wlg(s, tag=None):
        if tag is None:
            s("s_waitcnt lgkmcnt(0)"); s.lg = []; return
        if tag not in s.lg: return
        i = len(s.lg) - 1 - s.lg[::-1].index(tag)
        n = len(s.lg) - 1 - i
        s(f"s_waitcnt lgkmcnt({n})"); s.lg = s.lg[i + 1:]
    def vmop(s, txt, tag=None):
        s(txt); s.vm.append(tag); assert len(s.vm) <= 63
    def wvm(s, tag=None):
        if tag is None:
            s("s_waitcnt vmcnt(0)"); s.vm = []; return
        if tag not in s.vm: return
        i = len(s.vm) - 1 - s.vm[::-1].index(tag)
        n = len(s.vm) - 1 - i
        s(f"s_waitcnt vmcnt({n})"); s.vm = s.vm[i + 1:]
    def srd(s, d, base, nbytes):
        s(f"s_mov_b32 s{d}, s{base}\ns_and_b32 s{d+1}, s{base+1}, 0xffff\ns_mov_b32 s{d+2}, {nbytes}\ns_mov_b32 s{d+3}, 0x00020000")
    def stamp(s, name):
        if not s.opt.get('stamps'): return
        if name not in s.opt.get('at', ('setup', 'p1', 'bstart', 'B', 'A', 'poll', 'mm', 'end')): return
        ins = "s_memtime" if s.opt.get('stamps') == 2 else "s_memrealtime"
        slot = STAMP_SLOTS[s.nst]
        assert slot >= 94 or name not in ('entry', 'karg')
        s(f"{ins} s[{slot}:{slot+1}]")
        s.nst += 1
    def jitter(s, salt):
        j = s.opt.get('jitter')
        if not j: return
        lp, sk = s.lab("L_j"), s.lab("L_jk")
        if salt % 2: s(f"s_lshl_b32 s{sT2}, s2, 3\ns_add_u32 s{sT2}, s{sT2}, s{sW}")
        else: s(f"s_mov_b32 s{sT2}, s2")
        s(f"s_add_u32 s{sT2}, s{sT2}, {salt * 7919 + j * 104729}\ns_mul_i32 s{sT1}, s{sT2}, 0x9e3779b1\ns_lshr_b32 s{sT1}, s{sT1}, 27")
        s(f"{lp}:\ns_sub_u32 s{sT1}, s{sT1}, 1\ns_cbranch_scc1 {sk}\ns_sleep 8\ns_branch {lp}\n{sk}:")
    def text(s): return "\n".join(s.L) + "\n"

def r(a, n): return f"v[{a}:{a+n-1}]"
def sr(a, n=4): return f"s[{a}:{a+n-1}]"

def spin_check(g):
    g(f"s_sub_u32 s{sSPIN}, s{sSPIN}, 1\ns_cbranch_scc1 L_abort")

def setup(g):
    g(f"""
    s_cmp_ge_u32 s2, 256
    s_cbranch_scc1 L_end
    """)
    g.stamp('entry')
    g(f"""
    s_load_dwordx16 s[52:67], s[0:1], 0
    s_load_dwordx8 s[68:75], s[0:1], 64
    v_lshrrev_b32 v{vT+1}, 6, v0
    v_and_b32 v1, 63, v0
    s_getpc_b64 s[{sPC}:{sPC+1}]
    L_pc:
    v_readfirstlane_b32 s{sW}, v{vT+1}
    s_and_b32 s{sT0}, s2, 0xf8
    s_add_u32 s{sT0}, s{sT0}, s{sW}
    s_lshl_b32 s{sT0}, s{sT0}, 7
    s_min_u32 s{sT0}, s{sT0}, L_codeend-L_pc-4
    {'' if g.opt.get('nopf') else f's_load_dword s{sFBT}, s[{sPC}:{sPC+1}], s{sT0}'}
    s_bfe_u32 s{sTB}, s2, 0x20001
    s_lshl_b32 s{sTB}, s{sTB}, 2
    s_bfe_u32 s{sT0}, s2, 0x20003
    s_add_u32 s{sTB}, s{sTB}, s{sT0}
    s_and_b32 s{sHP}, s2, 1
    s_lshl_b32 s{sHP}, s{sHP}, 3
    s_lshr_b32 s{sT0}, s2, 5
    s_add_u32 s{sHP}, s{sHP}, s{sT0}
    s_lshl_b32 s{sROT}, s{sTB}, 1
    s_add_u32 s{sROT}, s{sROT}, s{sHP}
    s_and_b32 s{sROT}, s{sROT}, {g.opt.get('rotmask', 4)}
    s_lshr_b32 s{sB}, s{sW}, 2
    s_and_b32 s{sI}, s{sW}, 3
    v_lshlrev_b32 v{vL16}, 4, v1
    """)
    g(f"""
    v_and_b32 v{vT+2}, 15, v1
    v_lshrrev_b32 v{vT+3}, 4, v1
    v_lshlrev_b32 v{vT+1}, 4, v{vT+3}
    v_lshl_add_u32 v{vT}, v{vT+2}, 10, v{vT+1}
    """)
    g(f"""
    v_lshrrev_b32 v{vT+4}, 3, v1
    v_and_b32 v{vT+5}, 7, v1
    v_lshrrev_b32 v{vT+6}, 4, v1
    v_xor_b32 v{vT+5}, v{vT+5}, v{vT+6}
    v_lshlrev_b32 v{vT+4}, 10, v{vT+4}
    v_lshl_add_u32 v{vDX0}, v{vT+5}, 4, v{vT+4}
    v_xor_b32 v{vDX1}, 64, v{vDX0}
    v_add_u32 v{vDX1}, 0x2000, v{vDX1}
    """)
    g(f"""
    s_lshr_b32 s{sT0}, s{sW}, 1
    s_cmp_eq_u32 s{sT0}, 3
    s_movk_i32 s{sT2}, 3072
    s_cselect_b32 s{sT1}, 1024, s{sT2}
    s_cselect_b32 s{sT2}, 2, 0
    s_lshl_b32 s{sWSTEP}, s{sT1}, 6
    s_lshl_b32 s{sMX}, s{sW}, 11
    s_add_u32 s{sMW}, s{sMX}, {LDS_WST}
    s_cmp_lg_u32 s{sB}, 0
    s_cbranch_scc1 L_su_q
    v_bfe_u32 v{vT+4}, v1, 2, 1
    v_bfe_u32 v{vT+5}, v1, 4, 1
    v_xor_b32 v{vT+4}, v{vT+4}, v{vT+5}
    v_and_b32 v{vT+5}, 3, v1
    v_lshl_add_u32 v{vT+5}, v{vT+4}, 2, v{vT+5}
    v_lshrrev_b32 v{vT+4}, 3, v1
    s_movk_i32 s{sW16}, 24576
    s_and_b32 s{sT2}, s{sHP}, 1
    s_add_u32 s{sT2}, s{sT2}, 1
    s_lshl_b32 s{sT2}, s{sT2}, 10
    s_lshr_b32 s{sWO}, s{sHP}, 1
    s_lshl_b32 s{sWO}, s{sWO}, 7
    s_add_u32 s{sWO}, s{sWO}, s{sT2}
    s_mul_i32 s{sT3}, s{sW}, 49152
    s_branch L_su_j
    L_su_q:
    v_lshrrev_b32 v{vT+4}, 2, v1
    v_and_b32 v{vT+5}, 3, v1
    v_xor_b32 v{vT+5}, s{sT2}, v{vT+5}
    s_lshl_b32 s{sW16}, s{sT1}, 4
    s_lshl_b32 s{sWO}, s{sHP}, 6
    s_and_b32 s{sT2}, s{sW}, 1
    s_mul_i32 s{sT3}, s{sT2}, s{sW16}
    s_lshl_b32 s{sT3}, s{sT3}, 1
    L_su_j:
    s_add_u32 s{sWO}, s{sWO}, s{sT3}
    v_mul_u32_u24 v{vT+4}, s{sT1}, v{vT+4}
    v_lshl_add_u32 v{vDW}, v{vT+5}, 4, v{vT+4}
    s_lshl_b32 s{sXO}, s{sTB}, 17
    s_lshl_b32 s{sT2}, s{sW}, 14
    s_add_u32 s{sXO}, s{sXO}, s{sT2}
    s_lshl_b32 s{sKX}, s{sROT}, 7
    s_mul_i32 s{sKW}, s{sROT}, s{sWSTEP}
    """)
    g(f"""
    s_lshr_b32 s{sT2}, s{sHP}, 1
    s_lshl_b32 s{sT2}, s{sT2}, 14
    s_lshl_b32 s{sDMA}, s{sTB}, 17
    s_add_u32 s{sDMA}, s{sDMA}, s{sT2}
    s_lshl_b32 s{sT2}, s{sW}, 7
    s_add_u32 s{sDMA}, s{sDMA}, s{sT2}
    s_mov_b32 s{sOST}, s{sT2}
    """)
    for k in range(8): g(f"v_mov_b32 v{40+k}, 0")
    g(f"v_mov_b32 v{vFL}, 0")
    g("s_waitcnt lgkmcnt(0)")
    g.stamp('karg')
    g.jitter(1)
    g.srd(rX, pX, 2097152)
    g(f"s_cmp_eq_u32 s{sT0}, 3\ns_cselect_b64 s[{rWS_}:{rWS_+1}], s[{pWQ}:{pWQ+1}], s[{pWQKV}:{pWQKV+1}]")
    g(f"s_mov_b32 s{rWS_+2}, 1572864\ns_cselect_b32 s{rWS_+2}, 524288, s{rWS_+2}\ns_and_b32 s{rWS_+1}, s{rWS_+1}, 0xffff\ns_mov_b32 s{rWS_+3}, 0x00020000")
    def early_loads():
        g(f"s_bitcmp1_b32 s{sHP}, 0\ns_cselect_b64 s[{rWKV}:{rWKV+1}], s[{pWV}:{pWV+1}], s[{pWK}:{pWK+1}]")
        g(f"s_and_b32 s{rWKV+1}, s{rWKV+1}, 0xffff\ns_mov_b32 s{rWKV+2}, 16384\ns_mov_b32 s{rWKV+3}, 0x00020000")
        g(f"s_add_u32 m0, s{sMX}, {LDS_EW}")
        g.srd(rGATE, pGATE, 1024)
        g.vmop(f"buffer_load_dwordx4 v{vL16}, {sr(rWKV)}, s{sMX} offen lds", 'e')
        g.vmop(f"buffer_load_dwordx4 v{vL16}, {sr(rWKV)}, s{sMX} offen offset:1024 lds", 'e')
        g(f"s_mov_b32 exec_lo, 0x00010001\ns_mov_b32 exec_hi, 0x00010001")
        g.vmop(f"buffer_load_dwordx4 v[40:43], v{vT+1}, {sr(rGATE)}, s{sOST} offen", 'e')
        g.vmop(f"buffer_load_dwordx4 v[44:47], v{vT+1}, {sr(rGATE)}, s{sOST} offen offset:64", 'e')
        g("s_mov_b64 exec, -1")
        g(f"s_add_u32 m0, s{sMX}, {LDS_EX}\ns_nop 0")
        g.vmop(f"buffer_load_dwordx4 v{vDX0}, {sr(rX)}, s{sDMA} offen lds", 'e')
        g(f"s_add_u32 m0, s{sMX}, {LDS_EX + 1024}\ns_nop 0")
        g.vmop(f"buffer_load_dwordx4 v{vDX1}, {sr(rX)}, s{sDMA} offen lds", 'e')
    nonce_scan(g)
    early_loads()
    if g.opt.get('spf', 0): scalar_prefetch(g)
    g("s_barrier")
    g(f"s_mov_b32 s{sMASK}, 0x0000ffff\ns_mov_b32 s{sMASK+1}, 0x0000ffff\ns_mov_b32 s{sSPIN}, {SPIN}\ns_mov_b32 s{sNONCE}, 0")
    if g.opt.get('pre', 1): p1_addr(g)
    early_addr(g)
    runall(p1_dma(g, 0))
    g.srd(rWS, pWS, WS_SIZE)
    g.srd(rDBG, pDBG, 256)
    nonce_producer(g)
    g.stamp('setup')
    g.jitter(2)
    early_compute(g)
    g("s_barrier")
    g.stamp('early')
    runall(p1_dma(g, 1))
    early_reduce(g)
    if not g.opt.get('pre', 1): p1_addr(g)


def p1_dma(g, j):
    p = j & 3
    def f0():
        g(f"s_add_u32 m0, s{sMX}, {p*SLOT}\ns_add_u32 s{sDS}, s{sXO}, s{sKX}")
        g.vmop(f"buffer_load_dwordx4 v{vDX0}, {sr(rX)}, s{sDS} offen lds", f'c{j}')
    def f1():
        g(f"s_add_u32 m0, s{sMX}, {p*SLOT+1024}\ns_add_u32 s{sPOLL+0 if False else sT3}, s{sWO}, s{sKW}")
        g.vmop(f"buffer_load_dwordx4 v{vDX1}, {sr(rX)}, s{sDS} offen lds", f'c{j}')
    def f2():
        g(f"s_add_u32 m0, s{sMW}, {p*SLOT}\ns_add_u32 s{sDS}, s{sT3}, s{sW16}")
        g.vmop(f"buffer_load_dwordx4 v{vDW}, {sr(rWS_)}, s{sT3} offen lds", f'c{j}')
    def f3():
        g(f"s_add_u32 m0, s{sMW}, {p*SLOT+1024}\ns_add_u32 s{sKW}, s{sKW}, s{sWSTEP}")
        g.vmop(f"buffer_load_dwordx4 v{vDW}, {sr(rWS_)}, s{sDS} offen lds", f'c{j}')
        if j < 7:
            g(f"s_add_u32 s{sKX}, s{sKX}, 128\ns_and_b32 s{sKX}, s{sKX}, 1023\ns_cselect_b32 s{sKW}, s{sKW}, 0")
    return [f0, f1, f2, f3]

def scalar_prefetch(g):
    P = sPC
    def base(ptr, off): g(f"s_add_u32 s{P}, s{ptr}, s{off}\ns_addc_u32 s{P+1}, s{ptr+1}, 0")
    g(f"s_and_b32 s{sT1}, s{sHP}, 3\ns_lshl_b32 s{sT1}, s{sT1}, 3\ns_add_u32 s{sT1}, s{sT1}, s{sW}\ns_lshl_b32 s{sT1}, s{sT1}, 12\ns_lshl_b32 s{sT2}, s{sTB}, 17\ns_add_u32 s{sT1}, s{sT1}, s{sT2}\ns_add_u32 s{sT1}, s{sT1}, s{sKX}")
    base(pX, sT1)
    for j in range(4): g(f"s_load_dword s{sFBT}, s[{P}:{P+1}], {j*1024}")
    g(f"s_lshl_b32 s{sT1}, s{sROT}, 1\ns_and_b32 s{sT2}, s{sTB}, 1\ns_add_u32 s{sT1}, s{sT1}, s{sT2}\ns_lshl_b32 s{sT1}, s{sT1}, 3\ns_add_u32 s{sT1}, s{sT1}, s{sW}\ns_mul_i32 s{sT1}, s{sT1}, {4*3072}")
    g(f"s_lshr_b32 s{sT3}, s{sHP}, 1\ns_lshl_b32 s{sT3}, s{sT3}, 7\ns_add_u32 s{sT1}, s{sT1}, s{sT3}\ns_and_b32 s{sT2}, s{sHP}, 1\ns_add_u32 s{sT2}, s{sT2}, 1\ns_lshl_b32 s{sT2}, s{sT2}, 10\ns_add_u32 s{sT1}, s{sT1}, s{sT2}")
    base(pWQKV, sT1)
    for j in range(4): g(f"s_load_dword s{sFBT}, s[{P}:{P+1}], {j*3072}")
    g(f"s_lshl_b32 s{sT1}, s{sROT}, 1\ns_and_b32 s{sT2}, s{sHP}, 1\ns_add_u32 s{sT1}, s{sT1}, s{sT2}\ns_lshl_b32 s{sT1}, s{sT1}, 1\ns_and_b32 s{sT2}, s{sTB}, 1\ns_add_u32 s{sT1}, s{sT1}, s{sT2}\ns_lshl_b32 s{sT1}, s{sT1}, 3\ns_add_u32 s{sT1}, s{sT1}, s{sW}")
    g(f"s_mul_i32 s{sT2}, s{sT1}, {2*3072}\ns_add_u32 s{sT2}, s{sT2}, s{sT3}")
    base(pWQKV, sT2)
    for j in range(2): g(f"s_load_dword s{sFBT}, s[{P}:{P+1}], {j*3072}")
    g(f"s_lshl_b32 s{sT1}, s{sT1}, 11\ns_add_u32 s{sT1}, s{sT1}, s{sT3}")
    base(pWQ, sT1)
    for j in range(2): g(f"s_load_dword s{sFBT}, s[{P}:{P+1}], {j*1024}")

def nonce_scan(g):
    skip = g.lab("L_ns")
    g(f"s_cmp_lg_u32 s2, 0\ns_cbranch_scc1 {skip}\ns_cmp_lg_u32 s{sW}, 0\ns_cbranch_scc1 {skip}")
    g.srd(rWS, pWS, WS_SIZE)
    g(f"v_lshrrev_b32 v{vT+4}, 2, v1\nv_and_b32 v{vT+5}, 3, v1\nv_lshlrev_b32 v{vT+4}, 7, v{vT+4}\nv_lshl_add_u32 v{vT+4}, v{vT+5}, 4, v{vT+4}")
    g(f"s_mov_b32 s{sT1}, {WS_F1}")
    g(f"buffer_load_dwordx4 v[176:179], v{vT+4}, {sr(rWS)}, s{sT1} offen sc1")
    g(f"buffer_load_dwordx4 v[180:183], v{vT+4}, {sr(rWS)}, s{sT1} offen offset:2048 sc1")
    g(f"s_mov_b32 s{sT1}, {WS_F3}")
    g(f"buffer_load_dwordx4 v[184:187], v{vT+4}, {sr(rWS)}, s{sT1} offen sc1")
    g(f"{skip}:")

def nonce_producer(g):
    skip = g.lab("L_nn")
    g(f"s_cmp_lg_u32 s2, 0\ns_cbranch_scc1 {skip}\ns_cmp_lg_u32 s{sW}, 0\ns_cbranch_scc1 {skip}")
    g("s_waitcnt vmcnt(10)")
    g(f"v_readfirstlane_b32 s{sT1}, v176")
    lp = g.lab("L_nl")
    g(f"{lp}:\ns_add_u32 s{sT1}, s{sT1}, 1\ns_cbranch_scc1 {lp}")
    g(f"s_mov_b64 s[{sPC}:{sPC+1}], 0")
    for k in range(12):
        g(f"v_cmp_eq_u32 vcc, s{sT1}, v{176+k}\ns_or_b64 s[{sPC}:{sPC+1}], s[{sPC}:{sPC+1}], vcc")
    g(f"s_cbranch_scc1 {lp}")
    g(f"v_mov_b32 v192, s{sT1}\nv_mov_b32 v193, 0\ns_mov_b64 exec, 1")
    g(f"buffer_store_dword v192, v193, {sr(rDBG)}, 0 offen sc1\ns_mov_b64 exec, -1")
    g(f"{skip}:")

def p1_addr(g):
    g(f"""
    v_and_b32 v{vT+2}, 31, v1
    v_lshrrev_b32 v{vT+3}, 5, v1
    v_bfe_u32 v{vT+4}, v1, 1, 3
    v_xor_b32 v{vT+4}, v{vT+4}, v{vT+3}
    v_lshlrev_b32 v{vT+4}, 4, v{vT+4}
    v_lshl_add_u32 v{vT+4}, v{vT+2}, 7, v{vT+4}
    s_lshl_b32 s{sT1}, s{sI}, 12
    v_add_u32 v{vAX}, s{sT1}, v{vT+4}
    v_xor_b32 v{vAX+1}, 32, v{vAX}
    v_xor_b32 v{vAX+2}, 64, v{vAX}
    v_xor_b32 v{vAX+3}, 0x60, v{vAX}
    v_bfe_u32 v{vT+4}, v1, 2, 2
    v_and_b32 v{vT+5}, 3, v1
    v_lshlrev_b32 v{vT+5}, 3, v{vT+5}
    v_lshl_add_u32 v{vT+5}, v{vT+4}, 6, v{vT+5}
    v_lshl_add_u32 v{vT+5}, v{vT+3}, 9, v{vT+5}
    v_bfe_u32 v{vT+6}, v1, 4, 1
    v_bfe_u32 v{vT+7}, v1, 3, 1
    v_xor_b32 v{vT+7}, s{sB}, v{vT+7}
    v_lshlrev_b32 v{vT+7}, 6, v{vT+7}
    v_lshl_add_u32 v{vT+7}, v{vT+4}, 7, v{vT+7}
    v_lshl_add_u32 v{vT+7}, v{vT+3}, 10, v{vT+7}
    v_lshl_add_u32 v{vT+7}, v{vT+6}, 5, v{vT+7}
    v_and_b32 v{vT+2}, 3, v1
    v_lshl_add_u32 v{vT+7}, v{vT+2}, 3, v{vT+7}
    v_add_u32 v{vAW1}, {LDS_WST}, v{vT+7}
    v_xor_b32 v{vT+4}, s{sB}, v{vT+6}
    v_lshl_add_u32 v{vT+5}, v{vT+4}, 5, v{vT+5}
    v_lshl_add_u32 v{vT+5}, v{vT+6}, 12, v{vT+5}
    v_add_u32 v{vAWQ}, {LDS_WST + 8192}, v{vT+5}
    """)

def early_addr(g):
    g(f"""
    v_lshrrev_b32 v{vT+4}, 4, v1
    v_bfe_u32 v{vT+5}, v1, 2, 2
    v_lshl_add_u32 v{vT+4}, v{vT+4}, 3, v{vT+5}
    v_and_b32 v{vT+5}, 3, v1
    v_lshlrev_b32 v{vT+5}, 3, v{vT+5}
    v_lshl_add_u32 v{vT+4}, v{vT+4}, 5, v{vT+5}
    s_add_u32 s{sT1}, s{sMX}, {LDS_EW}
    v_add_u32 v{vT+6}, s{sT1}, v{vT+4}
    s_lshl_b32 s{sT1}, s{sW}, 10
    s_add_u32 s{sT1}, s{sT1}, {LDS_ER}
    v_add_u32 v{vT+7}, s{sT1}, v{vL16}
    s_lshl_b32 s{sT1}, s{sW}, 8
    s_add_u32 s{sT1}, s{sT1}, {LDS_EG}
    v_lshlrev_b32 v{vT+5}, 2, v1
    v_add_u32 v{vT+5}, s{sT1}, v{vT+5}
    """)
    g(f"""
    v_and_b32 v{vT}, 15, v1
    v_lshrrev_b32 v{vT+1}, 4, v1
    v_bfe_u32 v{vT+2}, v1, 1, 3
    v_xor_b32 v{vT+1}, v{vT+1}, v{vT+2}
    v_lshlrev_b32 v{vT+1}, 4, v{vT+1}
    v_lshl_add_u32 v{vT}, v{vT}, 7, v{vT+1}
    s_add_u32 s{sT1}, s{sMX}, {LDS_EX}
    v_add_u32 v{vT}, s{sT1}, v{vT}
    v_xor_b32 v{vT+1}, 64, v{vT}
    """)

def early_compute(g):
    g.wvm('e')
    g.wlg()
    g.ds(f"ds_read_b128 v[16:19], v{vT}", 'ew')
    g.ds(f"ds_read_b128 v[20:23], v{vT+1}", 'ew')
    for s_ in range(2):
        for e in range(2):
            g.ds(f"ds_read_b64_tr_b16 v[{24+4*s_+2*e}:{25+4*s_+2*e}], v{vT+6} offset:{s_*1024+e*128}", 'ew')
    g.wlg('ew')
    lv, le = g.lab("L_ev"), g.lab("L_ee")
    g(f"s_bitcmp1_b32 s{sHP}, 0\ns_cbranch_scc1 {lv}")
    g("v_mfma_f32_16x16x32_bf16 v[32:35], v[24:27], v[16:19], 0")
    g("v_mfma_f32_16x16x32_bf16 v[36:39], v[40:43], v[16:19], 0")
    g("v_mfma_f32_16x16x32_bf16 v[32:35], v[28:31], v[20:23], v[32:35]")
    g("v_mfma_f32_16x16x32_bf16 v[36:39], v[44:47], v[20:23], v[36:39]")
    g(f"s_branch {le}\n{lv}:")
    g("v_mfma_f32_16x16x32_bf16 v[32:35], v[16:19], v[24:27], 0")
    g("v_mov_b32 v36, 0")
    g("v_mfma_f32_16x16x32_bf16 v[32:35], v[20:23], v[28:31], v[32:35]")
    g(f"{le}:\ns_nop 7")
    g.ds(f"ds_write_b128 v{vT+7}, v[32:35]", 'ep')
    g.ds(f"ds_write_b32 v{vT+5}, v36", 'ep')
    g.wlg()

def early_reduce(g):
    skip = g.lab("L_er")
    g(f"s_cmp_lg_u32 s{sW}, 0\ns_cbranch_scc1 {skip}")
    g(f"v_add_u32 v{vT+4}, {LDS_ER}, v{vL16}\nv_lshlrev_b32 v{vT+5}, 2, v1\nv_add_u32 v{vT+5}, {LDS_EG}, v{vT+5}")
    for k in range(8): g(f"ds_read_b128 v[{16+4*k}:{19+4*k}], v{vT+4} offset:{k*1024}")
    g("s_waitcnt lgkmcnt(0)")
    for k in range(8): g(f"ds_read_b32 v{64+k}, v{vT+5} offset:{k*256}")
    g(f"""
    s_lshr_b32 s{sT0}, s{sHP}, 1
    s_lshl_b32 s{sT1}, s{sTB}, 2
    s_lshr_b32 s{sT2}, s{sT0}, 1
    s_add_u32 s{sT1}, s{sT1}, s{sT2}
    s_lshr_b32 s{sT2}, s{sT1}, 3
    s_lshl_b32 s{sT2}, s{sT2}, 14
    s_and_b32 s{sT1}, s{sT1}, 7
    s_lshl_b32 s{sT1}, s{sT1}, 10
    s_add_u32 s{sT1}, s{sT1}, s{sT2}
    s_add_u32 s{sT1}, s{sT1}, {WS_KVB}
    s_and_b32 s{sT0}, s{sT0}, 1
    v_and_b32 v{vT}, 15, v1
    v_bfe_u32 v{vT+1}, v1, 4, 1
    v_lshrrev_b32 v{vT+2}, 5, v1
    v_lshlrev_b32 v{vT+2}, 3, v{vT+2}
    """)
    for k in range(1, 8):
        for q in range(4): g(f"v_add_f32 v{16+q}, v{16+q}, v{16+4*k+q}")
    g("v_cvt_pk_bf16_f32 v16, v16, v17\nv_cvt_pk_bf16_f32 v17, v18, v19")
    lv, le = g.lab("L_rv"), g.lab("L_re")
    g(f"s_bitcmp1_b32 s{sHP}, 0\ns_cbranch_scc1 {lv}")
    if True:
        g(f"""
        v_and_b32 v{vT+3}, 3, v{vT}
        v_bfe_u32 v{vT+6}, v{vT}, 2, 1
        v_lshl_add_u32 v{vT+3}, v{vT+6}, 3, v{vT+3}
        v_bfe_u32 v{vT+6}, v{vT}, 3, 1
        v_lshl_add_u32 v{vT+3}, v{vT+6}, 2, v{vT+3}
        v_lshl_add_u32 v{vT+3}, v{vT+1}, 5, v{vT+3}
        v_lshl_add_u32 v{vT+3}, v{vT+3}, 4, v{vT+2}
        s_lshl_b32 s{sT0}, s{sT0}, 8
        s_add_u32 s{sT1}, s{sT1}, s{sT0}
        buffer_store_dwordx2 v[16:17], v{vT+3}, {sr(rWS)}, s{sT1} offen sc1
        s_waitcnt lgkmcnt(0)
        """)
        for k in range(1, 8): g(f"v_add_f32 v64, v64, v{64+k}")
        g(f"""
        v_mul_f32 v64, {f2h(-1.4426950408889634)}, v64
        v_exp_f32 v64, v64
        s_lshr_b32 s{sT0}, s{sHP}, 1
        s_lshl_b32 s{sT0}, s{sT0}, 6
        v_add_f32 v64, 1.0, v64
        v_rcp_f32 v64, v64
        s_lshl_b32 s{sT1}, s{sTB}, 9
        s_add_u32 s{sT1}, s{sT1}, s{sT0}
        s_add_u32 s{sT1}, s{sT1}, {WS_GATE}
        v_lshlrev_b32 v{vT+3}, 2, v1
        s_mov_b64 exec, 0xffff
        buffer_store_dword v64, v{vT+3}, {sr(rWS)}, s{sT1} offen sc1
        s_mov_b64 exec, -1
        s_branch {le}
        {lv}:
        """)
        g(f"""
    v_lshl_add_u32 v{vT+3}, v{vT+1}, 4, v{vT}
    v_lshl_add_u32 v{vT+3}, v{vT+3}, 4, v{vT+2}
    s_lshl_b32 s{sT0}, s{sT0}, 9
    s_add_u32 s{sT1}, s{sT1}, s{sT0}
    s_add_u32 s{sT1}, s{sT1}, 8192
    buffer_store_dwordx2 v[16:17], v{vT+3}, {sr(rWS)}, s{sT1} offen sc1
    s_waitcnt lgkmcnt(0)
        """)
    g(f"{le}:\n{skip}:")

def get_nonce(g):
    lp, ok = g.lab("L_gn"), g.lab("L_gk")
    g(f"{lp}:\nv_readfirstlane_b32 s{sNONCE}, v{vNON}\ns_nop 3\ns_cmp_lg_u32 s{sNONCE}, 0\ns_cbranch_scc1 {ok}")
    spin_check(g)
    g(f"v_mov_b32 v{vT+3}, 0\nbuffer_load_dword v{vNON}, v{vT+3}, {sr(rDBG)}, 0 offen sc1\ns_waitcnt vmcnt(0)\ns_branch {lp}\n{ok}:")

def flag_store(g, off_expr_setup):
    g(off_expr_setup)
    g(f"v_mov_b32 v{vT}, s{sNONCE}\nv_mov_b32 v{vT+1}, 0\ns_mov_b64 exec, 1")
    g(f"buffer_store_dword v{vT}, v{vT+1}, {sr(rWS)}, s{sT1} offen sc1\ns_mov_b64 exec, -1")

def poll_issue(g, kind):
    if kind == 1:
        g(f"v_lshrrev_b32 v{vT}, 2, v1\nv_and_b32 v{vT+1}, 3, v1\nv_lshlrev_b32 v{vT}, 7, v{vT}\nv_lshl_add_u32 v{vFL}, v{vT+1}, 4, v{vT}\ns_mov_b32 s{sPOLL}, {WS_F1}")
    elif kind == 2:
        g(f"v_and_b32 v{vT}, 3, v1\nv_bfe_u32 v{vT+1}, v1, 2, 1\nv_lshlrev_b32 v{vT}, 4, v{vT}\nv_lshl_add_u32 v{vFL}, v{vT+1}, 7, v{vT}\ns_and_b32 s{sPOLL}, s{sHP}, 14\ns_lshl_b32 s{sPOLL}, s{sPOLL}, 7\ns_add_u32 s{sPOLL}, s{sPOLL}, {WS_F2}")
    elif kind == 3:
        g(f"v_and_b32 v{vT}, 3, v1\nv_lshlrev_b32 v{vFL}, 4, v{vT}\ns_lshl_b32 s{sPOLL}, s{sTB}, 7\ns_add_u32 s{sPOLL}, s{sPOLL}, {WS_F3}")
    else:
        g(f"v_mov_b32 v{vFL}, 0\ns_lshl_b32 s{sPOLL}, s{sTB}, 2\ns_add_u32 s{sPOLL}, s{sPOLL}, s{sI}\ns_lshl_b32 s{sPOLL}, s{sPOLL}, 7\ns_add_u32 s{sPOLL}, s{sPOLL}, {WS_F4}")
    g(f"buffer_load_dwordx4 {r(vPOLL,4)}, v{vFL}, {sr(rWS)}, s{sPOLL} offen sc1")

def poll_check(g):
    lp, ok = g.lab("L_pl"), g.lab("L_pk")
    g(f"{lp}:")
    for k in range(4): g(f"v_xor_b32 v{vPOLL+k}, s{sNONCE}, v{vPOLL+k}")
    g(f"v_or_b32 v{vPOLL}, v{vPOLL}, v{vPOLL+1}\nv_or3_b32 v{vPOLL}, v{vPOLL}, v{vPOLL+2}, v{vPOLL+3}\nv_cmp_ne_u32 vcc, 0, v{vPOLL}\ns_nop 4\ns_cbranch_vccz {ok}")
    spin_check(g)
    g(f"buffer_load_dwordx4 {r(vPOLL,4)}, v{vFL}, {sr(rWS)}, s{sPOLL} offen sc1\ns_waitcnt vmcnt(0)\ns_branch {lp}\n{ok}:")

def w0(g):
    skip = g.lab("L_w0")
    g(f"s_cmp_lg_u32 s{sW}, 0\ns_cbranch_scc1 {skip}")
    return skip

def kv_dma(g, src_expr, slot, tag):
    def setup(): g(f"s_lshl_b32 s{sT2}, s{sW}, 12\ns_add_u32 m0, s{sT2}, {slot*SLOT}"); g(src_expr)
    def op(e): return lambda: g.vmop(f"buffer_load_dwordx4 v{vL16}, {sr(rWS)}, s{sDS} offen offset:{e*1024} sc1 lds", tag)
    return [setup] + [op(e) for e in range(4)]
def dma_B(g, c, slot, tag):
    return kv_dma(g, f"s_add_u32 s{sDS}, s{sT2}, {WS_KVB + c*SLOT}", slot, tag)
def dma_A(g, c, slot, tag):
    return kv_dma(g, f"s_add_u32 s{sDS}, s{sDMA}, {WS_KVA + c*SLOT}", slot, tag)
def dma_Wo(g, rs, grp, ldsbase, tag):
    def setup(): g(f"s_lshl_b32 s{sDS}, s{sW}, 15\ns_and_b32 s{sT1}, s{sHP}, 7\ns_lshl_b32 s{sT1}, s{sT1}, 7\ns_add_u32 s{sDS}, s{sDS}, s{sT1}")
    def op(e):
        def f():
            g(f"s_lshl_b32 s{sT2}, s{sW}, 12\ns_add_u32 m0, s{sT2}, {ldsbase + grp*32768 + e*1024}\ns_add_u32 s{sT1}, s{sDS}, {grp*262144 + e*8192}")
            g.vmop(f"buffer_load_dwordx4 v{vDWO}, {sr(rs)}, s{sT1} offen lds", tag)
        return f
    return [setup] + [op(e) for e in range(4)]
def runall(fs):
    for f in fs: f()

def phase1(g, b):
    T1, TQ = ACC, ACC + 16
    def XF(s_): return PF + 12 * s_
    def W1(s_): return PF + 12 * s_ + 4
    def WQ(s_): return PF + 12 * s_ + 8
    def reads(p, s_):
        if g.opt.get('noread'): return
        g.ds(f"ds_read_b128 {r(XF(s_),4)}, v{vAX+s_} offset:{p*SLOT}", f'f{s_}')
        for e in range(2): g.ds(f"ds_read_b64_tr_b16 {r(W1(s_)+2*e,2)}, v{vAW1} offset:{p*SLOT+s_*2048+e*512}", f'f{s_}')
        for e in range(2): g.ds(f"ds_read_b64_tr_b16 {r(WQ(s_)+2*e,2)}, v{vAWQ} offset:{p*SLOT+s_*1024+e*256}", f'f{s_}')
    def mf(j, s_, qfirst=False):
        g.wlg(f'f{s_}')
        if g.opt.get('nomf'): return
        if g.opt.get('mf16'):
            for (D, A, B) in ((T1, W1(s_), XF(s_)), (TQ, WQ(s_), XF(s_)), (T1+4, WQ(s_), XF(s_)), (TQ+4, W1(s_), XF(s_))):
                D2 = D + 8 * (s_ & 1)
                g(f"v_mfma_f32_16x16x32_bf16 {r(D2,4)}, {r(A,4)}, {r(B,4)}, {'0' if j == 0 and s_ < 2 else r(D2,4)}")
            return
        c1 = "0" if (j == 0 and s_ == 0) else r(T1, 16)
        cq = "0" if (j == 0 and s_ == 0) else r(TQ, 16)
        if qfirst: g(f"v_mfma_f32_32x32x16_bf16 {r(TQ,16)}, {r(WQ(s_),4)}, {r(XF(s_),4)}, {cq}")
        if b == 0: g(f"v_mfma_f32_32x32x16_bf16 {r(T1,16)}, {r(W1(s_),4)}, {r(XF(s_),4)}, {c1}")
        else:      g(f"v_mfma_f32_32x32x16_bf16 {r(T1,16)}, {r(XF(s_),4)}, {r(W1(s_),4)}, {c1}")
        if g.opt.get('pad1'): g(f"s_nop {g.opt['pad1'] - 1}")
        if not qfirst: g(f"v_mfma_f32_32x32x16_bf16 {r(TQ,16)}, {r(WQ(s_),4)}, {r(XF(s_),4)}, {cq}")
        if g.opt.get('pad2'): g(f"s_nop {g.opt['pad2'] - 1}")
    f1chk = g.opt.get('f1chk', 6)
    def wait_c(j, extra0):
        if extra0 and f'c{j}' in g.vm:
            n = len(g.vm) - 1 - (len(g.vm) - 1 - g.vm[::-1].index(f'c{j}'))
            sk, dn = g.lab("L_wa"), g.lab("L_wb")
            g(f"s_cmp_eq_u32 s{sW}, 0\ns_cbranch_scc1 {sk}")
            g.wvm(f'c{j}')
            g(f"{sk}:\ns_waitcnt vmcnt({n + extra0})")
        else: g.wvm(f'c{j}')
    jf = g.opt.get('jflag', 2); pd3 = g.opt.get('pdist', 2) == 3
    for j in range(8):
        p = j & 3
        wait_c(j, {0: 1, 1: 2}.get(j, 0) if not (pd3 and j == 2) else 0)
        if j == jf:
            sk = w0(g)
            get_nonce(g)
            flag_store(g, f"s_lshl_b32 s{sT1}, s{sTB}, 7\ns_lshl_b32 s{sT2}, s{sHP}, 2\ns_add_u32 s{sT1}, s{sT1}, s{sT2}\ns_add_u32 s{sT1}, s{sT1}, {WS_F1}")
            g(f"{sk}:")
        if j == f1chk:
            sk = w0(g); poll_check(g); g(f"{sk}:")
        g.wlg()
        g("s_barrier")
        g.stamp(f'b{j}')
        if j in (1, 4, 6): g.jitter(3 + j)
        pd = g.opt.get('pdist', 2)
        dm = []
        if j + pd <= 7 and not (pd == 3 and j == 0): dm = p1_dma(g, j + pd)
        if pd == 3 and j == 0: dm = p1_dma(g, 2) + p1_dma(g, 3)
        if j == f1chk: dm = dma_B(g, 0, 8, 'B01')
        if len(dm) == 5: dm = [lambda a=dm[0], c=dm[1]: (a(), c())] + dm[2:]
        if len(dm) == 8: dm = [lambda a=dm[2*k], c=dm[2*k+1]: (a(), c()) for k in range(4)]
        dp = g.opt.get('dmpos', (1, 2, 3, 4))
        def issue(k):
            for q in range(len(dm)):
                if dp[q] == k: dm[q]()
        if j == f1chk - 1:
            sk = w0(g); poll_issue(g, 1); g(f"{sk}:")
        if j == 0:
            sk = w0(g)
            g(f"v_mov_b32 v{vT+3}, 0\nbuffer_load_dword v{vNON}, v{vT+3}, {sr(rDBG)}, 0 offen sc1\n{sk}:")
        issue(-1)
        reads(p, 0); reads(p, 1)
        issue(0)
        if j > 0: mf(j - 1, 3)
        issue(1)
        reads(p, 2)
        mf(j, 0)
        issue(2)
        reads(p, 3)
        mf(j, 1)
        issue(3)
        if j == 7:
            issue(4); break
        mf(j, 2)
        issue(4)
        if j == 0: attn_consts(g)
        if j == 1: kv_store_addr(g)
        if j == 3:
            g.srd(rOUT, pOUT, 2097152); g.srd(rWOA, pWOA, 524288); g.srd(rWOB, pWOB, 524288)
        if j == 4: tail_addr(g)
    g.wlg()
    g.wvm('B01')
    g("s_barrier")
    g.stamp('bstart')
    g.ds(f"ds_read_b128 {r(KF[0],4)}, v{vAK}", 'K0')
    g.ds(f"ds_read_b128 {r(KF[1],4)}, v{vAK} offset:1024", 'kv')
    g(f"s_mov_b64 exec, s[{sMASK}:{sMASK+1}]")
    g.ds(f"ds_read_b128 {r(V0[0],4)}, v{vAV}", 'kv')
    g.ds(f"ds_read_b128 {r(V1[0],4)}, v{vAV} offset:512", 'kv')
    g("s_mov_b64 exec, -1")
    g.wlg('never')
    mf(7, 2, True)
    for k in range(2, g.opt.get('m0t', 4)): g.ds(f"ds_read_b128 {r(KTMP+4*(k-2),4)}, v{vAK} offset:{k*1024}", 'kv')
    mf(7, 3, True)

def kv_store_addr(g):
    lv, le = g.lab("L_ka"), g.lab("L_kb")
    g(f"""
    s_and_b32 s{sT1}, s{sHP}, 14
    s_add_u32 s{sT1}, s{sT1}, s{sB}
    s_lshl_b32 s{sT1}, s{sT1}, 18
    s_lshr_b32 s{sT2}, s{sTB}, 1
    s_lshl_b32 s{sT2}, s{sT2}, 14
    s_add_u32 s{sT1}, s{sT1}, s{sT2}
    s_and_b32 s{sT2}, s{sTB}, 1
    s_lshl_b32 s{sT2}, s{sT2}, 2
    s_add_u32 s{sT2}, s{sT2}, s{sI}
    s_lshl_b32 s{sT2}, s{sT2}, 10
    s_add_u32 s{sKV}, s{sT1}, s{sT2}
    s_mov_b32 s{sSC}, {f2h(QSCALE)}
    s_mov_b32 s{sSC+1}, {f2h(QSCALE)}
    s_bitcmp1_b32 s{sHP}, 0
    s_cbranch_scc1 {lv}
    v_and_b32 v{vT}, 0x33, v1
    v_bfe_u32 v{vT+1}, v1, 2, 1
    v_lshl_or_b32 v{vT}, v{vT+1}, 3, v{vT}
    v_bfe_u32 v{vT+1}, v1, 3, 1
    v_lshl_or_b32 v{vT}, v{vT+1}, 2, v{vT}
    v_lshlrev_b32 v{vKVST}, 4, v{vT}
    s_add_u32 s{sKV1}, s{sKV}, 131072
    s_branch {le}
    {lv}:
    v_bfe_u32 v{vT}, v1, 4, 1
    v_lshlrev_b32 v{vT}, 17, v{vT}
    v_lshrrev_b32 v{vT+1}, 5, v1
    v_and_b32 v{vT+2}, 15, v1
    v_lshl_add_u32 v{vT+1}, v{vT+1}, 4, v{vT+2}
    v_lshl_add_u32 v{vKVST}, v{vT+1}, 4, v{vT}
    s_add_u32 s{sKV}, s{sKV}, 8192
    s_add_u32 s{sKV1}, s{sKV}, 512
    {le}:
    """)

def max_tree(Ss):
    regs = [S + k for S in Ss for k in range(16)]
    L = [f"v_max3_f32 v{vT}, v{regs[0]}, v{regs[1]}, v{regs[2]}", f"v_max3_f32 v{vT+1}, v{regs[3]}, v{regs[4]}, v{regs[5]}"]
    rest, k = regs[6:], 0
    while len(rest) >= 2:
        L.append(f"v_max3_f32 v{vT+k}, v{vT+k}, v{rest[0]}, v{rest[1]}"); rest = rest[2:]; k ^= 1
    L += [f"v_max_f32 v{vT}, v{vT}, v{vT+1}", f"v_mov_b32 v{vT+1}, v{vT}"]
    return L
def fill_c(Cr, off):
    L = [f"v_max_f32 v{vT}, v{vT}, v{vT+1}", f"v_sub_f32 v{Cr}, {f2h(-off)}, v{vT}", f"v_sub_f32 v{Cr+1}, {f2h(-off)}, v{vT}"]
    L += [f"v_mov_b64 v[{Cr+k}:{Cr+k+1}], v[{Cr}:{Cr+1}]" for k in range(2, 16, 2)]
    return "\n".join(L)
SWAP = f"v_permlane32_swap_b32 v{vT}, v{vT+1}"

def b_prologue(g):
    T1, TQ = ACC, ACC + 16
    g(f"v_mov_b64 v[{vT+4}:{vT+5}], -1\nv_mov_b64 v[{vT+6}:{vT+7}], -1\ns_nop 8")
    for k in range(8, 16, 2): g(f"v_pk_mul_f32 v[{TQ+k}:{TQ+k+1}], v[{TQ+k}:{TQ+k+1}], s[{sSC}:{sSC+1}]")
    for k in range(4): g(f"v_cvt_pk_bf16_f32 v{QB+k}, v{TQ+8+2*k}, v{TQ+9+2*k}")
    g.wlg('K0'); g("s_nop 0")
    nt = g.opt.get('m0t', 4)
    if nt > 1: g.wlg()
    for k in range(nt): g(f"v_mfma_f32_32x32x16_bf16 {r(STB[k],16)}, {r((KF[0], KF[1], KTMP, KTMP+4)[k],4)}, {r(QB,4)}, 0")
    for k in range(8): g(f"v_cvt_pk_bf16_f32 v{PF+k}, v{T1+2*k}, v{T1+2*k+1}")
    for k in range(0, 8, 2): g(f"v_pk_mul_f32 v[{TQ+k}:{TQ+k+1}], v[{TQ+k}:{TQ+k+1}], s[{sSC}:{sSC+1}]")
    L = max_tree(STB[:nt])
    for k, x in enumerate(L):
        g(x)
    g("s_nop 1")
    g(SWAP)
    g("s_nop 0")
    g(fill_c(C, g.opt.get('moff', MOFF)))
    g("s_nop 1")
    g(f"v_mfma_f32_32x32x16_bf16 {r(S0,16)}, {r(KF[0],4)}, {r(QB,4)}, {r(C,16)}")
    for k in range(4): g(f"v_cvt_pk_bf16_f32 v{QA+k}, v{TQ+2*k}, v{TQ+2*k+1}")
    g("s_nop 7")

def start_ops(g):
    def kv(k): return lambda: g.vmop(f"buffer_store_dwordx4 {r(PF+4*k,4)}, v{vKVST}, {sr(rWS)}, s{(sKV, sKV1)[k]} offen sc1", 'kvst')
    def sent():
        g(f"s_add_u32 s{sT1}, s{sOST}, {WS_O + 0x200000}")
        g.vmop(f"buffer_store_dwordx4 {r(vT+4,4)}, v{vL16}, {sr(rWS)}, s{sT1} offen sc1", 'sent')
    def gate():
        g(f"v_and_b32 v{vT}, 31, v1\nv_lshlrev_b32 v{vT}, 2, v{vT}\ns_lshl_b32 s{sT1}, s{sTB}, 2\ns_add_u32 s{sT1}, s{sT1}, s{sI}\ns_lshl_b32 s{sT1}, s{sT1}, 7\ns_add_u32 s{sT1}, s{sT1}, {WS_GATE}")
        g.vmop(f"buffer_load_dword v{vG}, v{vT}, {sr(rWS)}, s{sT1} offen sc1", 'gate')
    return kv(0), kv(1), sent, gate

def attn_consts(g):
    g(f"""
    v_mov_b32 v{vIDX}, 0xdddddddd
    v_lshrrev_b32 v{vT}, 5, v1
    v_and_b32 v{vT+1}, 15, v1
    v_lshl_add_u32 v{vT}, v{vT}, 4, v{vT+1}
    v_lshlrev_b32 v{vVOFF}, 4, v{vT}
    v_and_b32 v{vT}, 31, v1
    v_cmp_eq_u32 vcc, 16, v{vT}
    v_mov_b32 v{vT+1}, 0x3f803f80
    v_add_u32 v{vAK}, {8*SLOT}, v{vL16}
    v_cndmask_b32 v{vT+1}, 0, v{vT+1}, vcc
    v_add_u32 v{vAV}, {8*SLOT + 8192}, v{vVOFF}
    """)
    for k in range(16): g(f"v_mov_b32 v{V0[0]+k}, v{vT+1}")
    for Or in OACC:
        for k in range(0, 16, 2): g(f"v_mov_b64 v[{Or+k}:{Or+k+1}], 0")
    g(f"""
    s_lshl_b32 s{sT1}, s{sHP}, 1
    s_add_u32 s{sT1}, s{sT1}, s{sB}
    s_lshl_b32 s{sDMA}, s{sT1}, 17
    s_lshl_b32 s{sT2}, s{sI}, 12
    s_add_u32 s{sDMA}, s{sDMA}, s{sT2}
    s_lshl_b32 s{sT2}, s{sTB}, 2
    s_add_u32 s{sT2}, s{sT2}, s{sI}
    s_lshl_b32 s{sT2}, s{sT2}, 5
    s_add_u32 s{sT2}, s{sT2}, s{sT1}
    s_lshl_b32 s{sOST}, s{sT2}, 10
    """)

def tile(g, U, ev, pos):
    t = U & 7
    p = U & 1
    cur, nxt = (S0, S1) if p == 0 else (S1, S0)
    p1, pq, p0 = pos
    Qn = QB if U + 1 < 64 else QA
    def run(key):
        for f in ev.get((U, key), []): f()
    for i in range(16):
        if i == p1:
            if U > 0: g(f"v_smfmac_f32_32x32x32_bf16 {r(OACC[(U-1) >> 6],16)}, {r(V1[1-p],4)}, {r(nxt+8,8)}, v{vIDX}")
            run('m1')
            g.wlg()
            if U < 127:
                g(f"s_mov_b64 exec, s[{sMASK}:{sMASK+1}]")
                g.ds(f"ds_read_b128 {r(V0[1-p],4)}, v{vAV} offset:{((t + 1) & 7) * 1024}", 'kv')
                g.ds(f"ds_read_b128 {r(V1[1-p],4)}, v{vAV} offset:{((t + 1) & 7) * 1024 + 512}", 'kv')
                g("s_mov_b64 exec, -1")
            if U < 126: g.ds(f"ds_read_b128 {r(KF[p],4)}, v{vAK} offset:{((t + 2) & 7) * 1024}", 'kv')
            run('gap')
        if i == pq:
            if U < 127: g(f"v_mfma_f32_32x32x16_bf16 {r(nxt,16)}, {r(KF[1-p],4)}, {r(Qn,4)}, {r(C,16)}")
            run('mq')
        if i == p0:
            g(f"v_smfmac_f32_32x32x32_bf16 {r(OACC[U >> 6],16)}, {r(V0[p],4)}, {r(cur,8)}, v{vIDX}")
            run('m0')
        run(i)
        g(f"v_exp_f32 v{cur+i}, v{cur+i}")
    if U == 127:
        g("s_nop 1")
        g(f"v_smfmac_f32_32x32x32_bf16 {r(OACC[1],16)}, {r(V1[p],4)}, {r(cur+8,8)}, v{vIDX}")

def epilogue_parts(g, task):
    O = OACC[task]
    lo, hi = struct.unpack('<I', struct.pack('<f', 2.0**g.opt.get('lo', -110)))[0], struct.unpack('<I', struct.pack('<f', 2.0**120))[0]
    def p1():
        g(f"v_mov_b32 v{vT}, v{O+8}\nv_add_f32 v{vT+2}, |v{O}|, |v{O+1}|")
        for k in range(2, 8): g(f"v_add_f32 v{vT+2}, v{vT+2}, |v{O+k}|")
        g(f"v_permlane32_swap_b32 v{vT}, v{O+8}")
        g(f"v_subrev_u32 v{vT+2}, {lo}, v{vT+2}\ns_mov_b32 s{sT1}, {hi - lo}")
    def p2():
        g(f"v_subrev_u32 v{vT+3}, {lo}, v{vT}\nv_max_u32 v{vT+2}, v{vT+2}, v{vT+3}\nv_cmp_le_u32 vcc, s{sT1}, v{vT+2}")
        if g.opt.get('force_fb'): g("s_mov_b64 vcc, -1")
        g(f"s_nop 0\ns_cbranch_vccnz L_fallback{task}\nL_fbret{task}:\nv_rcp_f32 v{vT}, v{vT}")
        if task == 0: g(f"v_sub_f32 v{vT+3}, 1.0, v{vG}")
    def p3():
        g(f"v_mul_f32 v{vT}, v{vT}, v{vT+3 if task == 0 else vG}")
        for k in range(0, 8, 2): g(f"v_pk_mul_f32 v[{O+k}:{O+k+1}], v[{O+k}:{O+k+1}], v[{vT}:{vT+1}] op_sel_hi:[1,0]")
        for k in range(4): g(f"v_cvt_pk_bf16_f32 v{vT+4+k}, v{O+2*k}, v{O+2*k+1}")
        if task == 1:
            for k in range(4): g(f"v_min_u32 v{vT+4+k}, -2, v{vT+4+k}")
        g(f"s_add_u32 s{sT1}, s{sOST}, {WS_O + (0 if task == 0 else 0x200000)}")
        g.vmop(f"buffer_store_dwordx4 {r(vT+4,4)}, v{vL16}, {sr(rWS)}, s{sT1} offen sc1", 'ost')
    return p1, p2, p3

def fallback(g, task):
    Q, O = (QB, QA)[task], OACC[task]
    S_, C_, K_, A0, A1 = FB_S, FB_C, FB_K, FB_V0, FB_V1
    g(f"L_fallback{task}:")
    if g.opt.get('fbcount'):
        g(f"v_mov_b32 v{vT}, 1\nv_mov_b32 v{vT+1}, 0\ns_mov_b64 exec, 1\nbuffer_atomic_add v{vT}, v{vT+1}, {sr(rDBG)}, 0 offen offset:128\ns_mov_b64 exec, -1")
    if task == 0: g(f"s_mov_b32 s{sFBBASE}, {WS_KVB}")
    else: g(f"s_lshl_b32 s{sT1}, s{sI}, 12\ns_sub_u32 s{sFBBASE}, s{sDMA}, s{sT1}")
    g(f"v_and_b32 v{vT}, 31, v1\nv_cmp_eq_u32 vcc, 16, v{vT}\nv_mov_b32 v{vT+1}, 0x3f803f80\ns_nop 1\nv_cndmask_b32 v{vT+1}, 0, v{vT+1}, vcc")
    for k in range(8): g(f"v_mov_b32 v{A0+k}, v{vT+1}")
    g(f"v_mov_b32 v{vT}, 0xff800000\ns_mov_b32 s{sFBT}, 0")
    def addr():
        g(f"s_lshr_b32 s{sT1}, s{sFBT}, 3\ns_lshl_b32 s{sT1}, s{sT1}, 14\ns_and_b32 s{sT2}, s{sFBT}, 7\ns_lshl_b32 s{sT2}, s{sT2}, 10\ns_add_u32 s{sT1}, s{sT1}, s{sT2}\ns_add_u32 s{sT1}, s{sT1}, s{sFBBASE}")
    g(f"L_fb1_{task}:"); addr()
    g(f"buffer_load_dwordx4 {r(K_,4)}, v{vL16}, {sr(rWS)}, s{sT1} offen sc1\ns_waitcnt vmcnt(0)")
    g(f"v_mfma_f32_32x32x16_bf16 {r(S_,16)}, {r(K_,4)}, {r(Q,4)}, 0\ns_nop 15")
    for k in range(0, 16, 2): g(f"v_max3_f32 v{vT}, v{vT}, v{S_+k}, v{S_+k+1}")
    g(f"s_add_u32 s{sFBT}, s{sFBT}, 1\ns_cmp_lt_u32 s{sFBT}, 64\ns_cbranch_scc1 L_fb1_{task}")
    g(f"v_mov_b32 v{vT+1}, v{vT}\ns_nop 1\n{SWAP}\ns_nop 1")
    g(fill_c(C_, 0.0))
    for k in range(0, 16, 2): g(f"v_mov_b64 v[{O+k}:{O+k+1}], 0")
    g(f"s_mov_b32 s{sFBT}, 0")
    g(f"L_fb2_{task}:"); addr()
    g(f"buffer_load_dwordx4 {r(K_,4)}, v{vL16}, {sr(rWS)}, s{sT1} offen sc1\ns_add_u32 s{sT1}, s{sT1}, 8192")
    g(f"s_mov_b64 exec, s[{sMASK}:{sMASK+1}]")
    g(f"buffer_load_dwordx4 {r(A0,4)}, v{vVOFF}, {sr(rWS)}, s{sT1} offen sc1\nbuffer_load_dwordx4 {r(A1,4)}, v{vVOFF}, {sr(rWS)}, s{sT1} offen offset:512 sc1")
    g("s_mov_b64 exec, -1\ns_waitcnt vmcnt(0)")
    g(f"v_mfma_f32_32x32x16_bf16 {r(S_,16)}, {r(K_,4)}, {r(Q,4)}, {r(C_,16)}\ns_nop 15")
    for k in range(16): g(f"v_exp_f32 v{S_+k}, v{S_+k}")
    g("s_nop 2")
    g(f"v_smfmac_f32_32x32x32_bf16 {r(O,16)}, {r(A0,4)}, {r(S_,8)}, v{vIDX}")
    g(f"v_smfmac_f32_32x32x32_bf16 {r(O,16)}, {r(A1,4)}, {r(S_+8,8)}, v{vIDX}")
    g(f"s_nop 15\ns_add_u32 s{sFBT}, s{sFBT}, 1\ns_cmp_lt_u32 s{sFBT}, 64\ns_cbranch_scc1 L_fb2_{task}")
    g(f"v_mov_b32 v{vT}, v{O+8}\nv_mov_b32 v{vT+1}, v{O+8}\ns_nop 1\n{SWAP}\ns_nop 1\ns_branch L_fbret{task}")

def tail_addr(g):
    g(f"""
    v_lshrrev_b32 v{vT}, 3, v1
    v_bfe_u32 v{vT+1}, v1, 2, 1
    v_bfe_u32 v{vT+2}, v1, 4, 1
    v_xor_b32 v{vT+1}, v{vT+1}, v{vT+2}
    v_lshlrev_b32 v{vT+1}, 6, v{vT+1}
    v_lshl_add_u32 v{vT+1}, v{vT}, 10, v{vT+1}
    v_and_b32 v{vT+3}, 3, v1
    v_lshl_add_u32 v{vDWO}, v{vT+3}, 4, v{vT+1}
    v_lshrrev_b32 v{vT}, 5, v1
    v_bfe_u32 v{vT+1}, v1, 2, 2
    v_lshl_add_u32 v{vT}, v{vT}, 2, v{vT+1}
    v_lshlrev_b32 v{vT}, 7, v{vT}
    v_bfe_u32 v{vT+1}, v1, 3, 1
    v_lshl_add_u32 v{vT}, v{vT+1}, 6, v{vT}
    v_lshl_add_u32 v{vT}, v{vT+2}, 5, v{vT}
    v_lshl_add_u32 v{vT}, v{vT+3}, 3, v{vT}
    s_lshl_b32 s{sT1}, s{sI}, 13
    s_add_u32 s{sT1}, s{sT1}, {LDS_WOB}
    s_lshr_b32 s{sT2}, s{sHP}, 3
    s_lshl_b32 s{sT2}, s{sT2}, 15
    s_add_u32 s{sT1}, s{sT1}, s{sT2}
    v_add_u32 v{vAT+2}, s{sT1}, v{vT}
    v_xor_b32 v{vAT+3}, 64, v{vAT+2}
    s_lshl_b32 s{sT2}, s{sT2}, 1
    s_sub_u32 s{sT1}, s{sT1}, s{sT2}
    s_add_u32 s{sT1}, s{sT1}, 32768
    v_add_u32 v{vAT}, s{sT1}, v{vT}
    v_xor_b32 v{vAT+1}, 64, v{vAT}
    s_mul_i32 s{sT1}, s{sW}, 6144
    v_add_u32 v{vRR}, s{sT1}, v{vL16}
    s_lshl_b32 s{sT1}, s{sTB}, 7
    s_lshr_b32 s{sT2}, s{sHP}, 3
    s_lshl_b32 s{sT2}, s{sT2}, 6
    s_add_u32 s{sT1}, s{sT1}, s{sT2}
    s_lshl_b32 s{sT2}, s{sB}, 5
    s_add_u32 s{sT1}, s{sT1}, s{sT2}
    v_and_b32 v{vT}, 31, v1
    v_add_u32 v{vT}, s{sT1}, v{vT}
    v_lshlrev_b32 v{vT}, 10, v{vT}
    v_lshrrev_b32 v{vT+1}, 5, v1
    v_lshl_add_u32 v{vT}, v{vT+1}, 4, v{vT}
    s_and_b32 s{sT2}, s{sHP}, 7
    s_lshl_b32 s{sT2}, s{sT2}, 7
    s_lshl_b32 s{sT1}, s{sI}, 5
    s_add_u32 s{sT2}, s{sT2}, s{sT1}
    v_add_u32 v{vOUTA}, s{sT2}, v{vT}
    """)

def of_loads(g, branch, tag, dst=None):
    dst = OF if dst is None else dst
    def setup():
        g(f"""
        s_lshl_b32 s{sT1}, s{sTB}, 2
        s_lshr_b32 s{sT2}, s{sHP}, 3
        s_lshl_b32 s{sT2}, s{sT2}, 1
        s_add_u32 s{sT1}, s{sT1}, s{sT2}
        s_add_u32 s{sT1}, s{sT1}, s{sB}
        s_lshl_b32 s{sT1}, s{sT1}, 15
        s_lshl_b32 s{sT2}, s{sI}, 12
        s_add_u32 s{sT1}, s{sT1}, s{sT2}
        s_add_u32 s{sT1}, s{sT1}, {WS_O + branch*0x200000}
        s_lshr_b32 s{sT2}, s{sHP}, 3
        s_lshl_b32 s{sT2}, s{sT2}, 14
        s_add_u32 s{sOF+1}, s{sT1}, s{sT2}
        s_sub_u32 s{sT1}, s{sT1}, s{sT2}
        s_add_u32 s{sOF}, s{sT1}, 16384
        """)
    def op(n): return lambda: g.vmop(f"buffer_load_dwordx4 {r(dst+4*n,4)}, v{vL16}, {sr(rWS)}, s{sOF + (n >> 2)} offen offset:{(n&3)*1024} sc1", f'{tag}{n}')
    return [setup] + [op(n) for n in range(8)]

def wfrag_reads(g, n, base, tag):
    for tc in range(2):
        for e in range(2):
            g.ds(f"ds_read_b64_tr_b16 {r(WF+8*n+4*tc+2*e,2)}, v{vAT+2*(n>>2)+tc} offset:{base+(n&3)*2048+e*1024}", f'{tag}{n}')

def tail(g):
    OA = PF
    p1, p2, p3 = epilogue_parts(g, 1)
    fa = of_loads(g, 1, 'OA', OA)
    oat = list(g.opt.get('oat', (8, 8, 8, 8, 9, 9, 10, 10)))
    for n in range(3): wfrag_reads(g, n, 0, 'w')
    p1(); g("s_nop 0"); p2(); fa[0](); p3()
    g.stamp('A')
    g.jitter(200)
    g.wvm('WoA1')
    g("s_barrier")
    g.stamp('T1')
    DA = LDS_WOA - LDS_WOB
    nload = 0
    for n in range(8):
        g.wlg(f'w{n}')
        for tc in range(2):
            c = "0" if n == 0 else r(ACC+16*tc, 16)
            g(f"v_mfma_f32_32x32x16_bf16 {r(ACC+16*tc,16)}, {r(WF+8*n+4*tc,4)}, {r(OF+4*n,4)}, {c}")
        if n + 3 < 8: wfrag_reads(g, n + 3, 0, 'w')
        else: wfrag_reads(g, n - 5, 0, 'x')
        if n in (1, 5):
            for k in range(2): g(f"v_add_u32 v{vAT + (n >> 2) * 2 + k}, {DA}, v{vAT + (n >> 2) * 2 + k}")
        for k in range(8):
            if oat[k] == n: fa[1 + k]()
    g.stamp('bp')
    for n in range(3, 8):
        g.wlg(f'x{n-3}')
        wfrag_reads(g, n, 0, 'x')
        for k in range(8):
            if oat[k] == n + 5: fa[1 + k]()
    for d in range(4):
        g(f"s_sub_u32 s{sT1}, {d + 3}, s{sI}\ns_and_b32 s{sT1}, s{sT1}, 3\ns_lshl_b32 s{sT1}, s{sT1}, 11\ns_mul_i32 s{sT2}, s{sB}, 24576\ns_add_u32 s{sT1}, s{sT1}, s{sT2}\ns_add_u32 s{sT1}, s{sT1}, {d * 6144}\nv_add_u32 v{vT+4+d}, s{sT1}, v{vL16}")
    g.wlg()
    g.stamp('poll')
    def check(q, bad):
        R = OA + 16 * q
        g(f"v_max3_u32 v{vT}, v{R}, v{R+1}, v{R+2}\nv_max3_u32 v{vT+1}, v{R+3}, v{R+4}, v{R+5}")
        for k in range(6, 16, 4):
            g(f"v_max3_u32 v{vT}, v{vT}, v{R+k}, v{R+k+1}")
            if k + 3 < 16: g(f"v_max3_u32 v{vT+1}, v{vT+1}, v{R+k+2}, v{R+k+3}")
        g(f"v_max_u32 v{vT}, v{vT}, v{vT+1}\nv_cmp_eq_u32 vcc, -1, v{vT}\ns_nop 0\ns_cbranch_vccnz {bad}")
        for n in range(4 * q, 4 * q + 4):
            for tc in range(2):
                g(f"v_mfma_f32_32x32x16_bf16 {r(ACC+16*tc,16)}, {r(WF+8*n+4*tc,4)}, {r(OA+4*n,4)}, {r(ACC+16*tc,16)}")
    g(f"s_mov_b32 s{sDS}, 0")
    for q in range(2):
        sk, bad = g.lab("L_oa"), g.lab("L_ob")
        g.wvm(f'OA{4*q+3}')
        check(q, bad)
        g(f"s_branch {sk}\n{bad}:\ns_bitset1_b32 s{sDS}, {q}\n{sk}:")
    g.stamp('pass1')
    g(f"L_oa_loop:\ns_cmp_eq_u32 s{sDS}, 0\ns_cbranch_scc1 L_oa_done")
    spin_check(g)
    for q in range(2):
        sk = g.lab("L_oc")
        g(f"s_bitcmp1_b32 s{sDS}, {q}\ns_cbranch_scc0 {sk}")
        for n in range(4 * q, 4 * q + 4): fa[1 + n]()
        g.vm = []
        g(f"{sk}:")
    g("s_waitcnt vmcnt(0)")
    for q in range(2):
        sk = g.lab("L_od")
        g(f"s_bitcmp1_b32 s{sDS}, {q}\ns_cbranch_scc0 {sk}")
        check(q, sk)
        g(f"s_bitset0_b32 s{sDS}, {q}\n{sk}:")
    g("s_branch L_oa_loop\nL_oa_done:")
    g.stamp('mm')
    g.jitter(201)
    g("s_barrier\ns_nop 8")
    def piece(d): return ACC + 16 * (d >> 1) + 8 * (d & 1)
    for d in range(4):
        sk = g.lab("L_rw")
        g(f"s_cmp_eq_u32 s{sI}, {d}\ns_cbranch_scc1 {sk}")
        g(f"ds_write_b128 v{vT+4+d}, {r(piece(d),4)}\nds_write_b128 v{vT+4+d}, {r(piece(d)+4,4)} offset:1024\n{sk}:")
    g("s_waitcnt lgkmcnt(0)\ns_barrier")
    g.stamp('red')
    for k in range(3):
        for e in range(2):
            g.ds(f"ds_read_b128 {r(16+8*k+4*e,4)}, v{vRR} offset:{k*2048+e*1024}", f'rr{k}')
    lj = g.lab("L_rj")
    for d in range(4):
        sk = g.lab("L_rs")
        if d < 3: g(f"s_cmp_lg_u32 s{sI}, {d}\ns_cbranch_scc1 {sk}")
        for k in range(0, 8, 2): g(f"v_mov_b64 v[{40+k}:{41+k}], v[{piece(d)+k}:{piece(d)+k+1}]")
        if d < 3: g(f"s_branch {lj}\n{sk}:")
    g(f"{lj}:")
    g.wlg('rr0')
    for k in range(0, 8, 2): g(f"v_pk_add_f32 v[{40+k}:{41+k}], v[{40+k}:{41+k}], v[{16+k}:{17+k}]")
    g.wlg('rr2')
    for k in range(0, 8, 2): g(f"v_pk_add_f32 v[{24+k}:{25+k}], v[{24+k}:{25+k}], v[{32+k}:{33+k}]")
    for k in range(0, 8, 2): g(f"v_pk_add_f32 v[{40+k}:{41+k}], v[{40+k}:{41+k}], v[{24+k}:{25+k}]")
    for k in range(4): g(f"v_cvt_pk_bf16_f32 v{16+k}, v{40+2*k}, v{41+2*k}")
    g("s_nop 1\nv_permlane32_swap_b32 v16, v18\nv_permlane32_swap_b32 v17, v19")
    g.vmop(f"buffer_store_dwordx4 v[16:19], v{vOUTA}, {sr(rOUT)}, 0 offen {g.opt.get('outsc', '')}", 'out')

def schedule(g):
    o = g.opt
    ev = {}
    def at(T, key, *fs): ev.setdefault((T, key), []).extend(fs)
    dpos = o.get('dpos', ((2, 6), (2, 13), (3, 6), (3, 13)))
    pp = o.get('pp', {(2, 'm1'): 3, (5, 'm0'): 2, (0, 'm0'): 1, (1, 'mq'): 0})
    def wave0(*fs):
        def f():
            sk = w0(g)
            for x in fs: x()
            g(f"{sk}:")
        return f
    def flag(base, hi, lo):
        return lambda: flag_store(g, f"s_lshl_b32 s{sT1}, s{hi}, 7\ns_lshl_b32 s{sT2}, s{lo}, 2\ns_add_u32 s{sT1}, s{sT1}, s{sT2}\ns_add_u32 s{sT1}, s{sT1}, {base}")
    def slot(gi): return slotB(gi) if gi < 8 else slotA(gi - 8)
    def vadd(reg, src, gi):
        d = ((slot(gi + 1) - slot(gi)) * SLOT) & 0xffffffff
        if gi != 7: return lambda: g(f"v_add_u32 v{reg}, {d}, v{src}")
        return lambda: g(f"s_lshl_b32 s{sT1}, s{sB}, 14\ns_add_u32 s{sT1}, s{sT1}, {d}\nv_add_u32 v{reg}, s{sT1}, v{src}")
    nt = o.get('m0t', 4)
    at(59, 0, vadd(vT + 3, vAK, 7))
    for k in range(nt):
        at(59, 'gap', lambda k=k: g.ds(f"ds_read_b128 {r(KTMP+4*k,4)}, v{vT+3} offset:{k*1024}", 'kv'))
        at(60 + k // 2, 7 if k % 2 == 0 else 13, lambda k=k: g(f"v_mfma_f32_32x32x16_bf16 {r(STMP[k],16)}, {r(KTMP+4*k,4)}, {r(QA,4)}, 0"))
    L = max_tree(STMP[:nt])
    if nt > 2:
        at(61, 6, lambda: g("\n".join(L[:8]))); at(62, 1, lambda: g("\n".join(L[8:16]))); at(62, 6, lambda: g("\n".join(L[16:])))
    else:
        at(61, 6, lambda: g("\n".join(L[:8]))); at(62, 6, lambda: g("\n".join(L[8:])))
    at(62, 8, lambda: g(SWAP))
    at(62, 12, lambda: g(fill_c(C, o.get('moff', MOFF))))
    e1, e2, e3 = epilogue_parts(g, 0)
    at(65, 0, e1); at(65, 1, e2); at(65, 6, e3, lambda: g.stamp('B'))
    fs = dma_B(g, 2, 0, 'G1')
    at(0, 6, fs[0], fs[1]); at(0, 13, fs[2]); at(1, 1, fs[3]); at(1, 6, fs[4])
    k0, k1, sent, gate = start_ops(g)
    at(4, 6, k0); at(5, 6, k1); at(6, 6, sent); at(7, 6, gate)
    for U in (3, 17, 30, 63, 70, 90, 111, 125): at(U, 9, lambda U=U: g.jitter(U))
    for gi in range(16):
        T0 = 8 * gi
        ppc = dict(pp)
        if gi == 15:
            ppc = {k: v for k, v in pp.items() if k[0] < 2}
            ppc.update(o.get('pplast', {(2, 'm1'): 3, (4, 'm0'): 2, (6, 'm0'): 1, (7, 'm0'): 0}))
        for (t, key), pr in ppc.items(): at(T0 + t, key, lambda pr=pr: g(f"s_setprio {pr}"))
        if gi < 15:
            at(T0 + 6, 0, vadd(vAK, vAK, gi))
            at(T0 + 7, 0, vadd(vAV, vAV, gi))
        wait = {1: 'G1', 2: 'kvst', 3: 'G3', 4: None, 7: 'A0', 8: 'A1', 9: 'A2', 10: 'ost', 11: 'A4', 12: 'A5', 13: 'A6', 14: 'WoB0', 15: 'WoB1'}
        if gi == 4: at(T0 + 1, 1, lambda: g.wvm(), wave0(lambda: poll_check(g)))
        if gi == 14: at(T0 + 1, 1, lambda: g.wvm('WoB0'), wave0(lambda: poll_check(g)))
        if gi in wait: at(T0 + 1, 'm0', lambda w=wait[gi]: g.wvm(w))
        at(T0 + 1, 'm0', lambda: g("s_barrier"))
        at(T0 + 1, 'm0', lambda gi=gi: g.stamp(f'g{gi}'))
        grp = {0: lambda: dma_B(g, 4, 2, 'G2'), 1: lambda: dma_B(g, 6, 4, 'G3'),
               4: lambda: dma_A(g, 0, 6, 'A0'), 5: lambda: dma_A(g, 1, 8, 'A1'), 6: lambda: dma_A(g, 2, 0, 'A2'), 7: lambda: dma_A(g, 3, 2, 'A3'),
               8: lambda: dma_A(g, 4, 4, 'A4'), 9: lambda: dma_A(g, 5, 6, 'A5'), 10: lambda: dma_A(g, 6, 8, 'A6'), 11: lambda: dma_A(g, 7, 0, 'A7'),
               12: lambda: dma_Wo(g, rWOB, 0, LDS_WOB, 'WoB0'), 13: lambda: dma_Wo(g, rWOB, 1, LDS_WOB, 'WoB1'),
               14: lambda: dma_Wo(g, rWOA, 0, LDS_WOA, 'WoA0'), 15: lambda: dma_Wo(g, rWOA, 1, LDS_WOA, 'WoA1')}
        if gi == 13: at(T0 + 2, 0, wave0(lambda: poll_issue(g, 3)))
        if gi in grp:
            fs = grp[gi]()
            at(T0 + dpos[0][0], dpos[0][1], fs[0])
            for (t, i), f in zip(dpos, fs[1:]): at(T0 + t, i, f)
        if gi == 2: at(T0 + 2, 6, wave0(flag(WS_F2, sHP, sTB)))
        if gi == 3:
            at(T0 + 4, 6, wave0(lambda: poll_issue(g, 2)))
        if gi == 10: at(T0 + 4, 6, wave0(flag(WS_F3, sTB, sHP)))
        if gi == 13 and o.get('wopf', 1):
            def wopf():
                g(f"s_and_b32 s{sT1}, s{sTB}, 3\ns_lshl_b32 s{sT1}, s{sT1}, 13\ns_add_u32 s{sT1}, s{sT1}, s{sDS}\ns_add_u32 s{sT1}, s{sT1}, 262144")
                g.vmop(f"buffer_load_dwordx4 {r(208,4)}, v{vDWO}, {sr(rWOA)}, s{sT1} offen", 'pf')
            at(T0 + 5, 6, wopf)
        if gi == 14:
            fs = of_loads(g, 0, 'OB')
            at(T0 + 4, 6, fs[0])
            for n, f in enumerate(fs[1:]): at(T0 + 4 + n // 2, 6 if n % 2 == 0 else 13, f)
    return ev

def slotB(c): return (8 + c) % 10
def slotA(c): return 2 * ((3 + c) % 5)

def build(**opt):
    g = G(**opt)
    setup(g)
    fork = (list(g.lg), list(g.vm)); nst0 = g.nst
    g(f"s_bitcmp1_b32 s{sHP}, 0\ns_cbranch_scc1 L_p1b")
    phase1(g, 0)
    end0 = (list(g.lg), list(g.vm))
    g("s_branch L_p1done\nL_p1b:")
    g.lg, g.vm = list(fork[0]), list(fork[1]); g.nst = nst0
    phase1(g, 1)
    assert end0 == (g.lg, g.vm), (end0, g.lg, g.vm)
    g("L_p1done:")
    g.stamp('p1')
    b_prologue(g)
    g.stamp('t0')
    ev = schedule(g)
    for U in range(128): tile(g, U, ev, opt.get('pos', (2, 4, 10)))
    tail(g)
    if opt.get('stamps'):
        g.stamp('end')
        g(f"s_lshl_b32 s{sT1}, s2, 3\ns_add_u32 s{sT1}, s{sT1}, s{sW}\ns_lshl_b32 s{sT1}, s{sT1}, 6\ns_add_u32 s{sT1}, s{sT1}, {WS_DBG}")
        g("s_waitcnt lgkmcnt(0)")
        for k in range(12): g(f"v_mov_b32 v{16+k}, s{STAMP_SLOTS[min(k, g.nst-1)]}")
        g(f"v_mov_b32 v30, 0\ns_mov_b64 exec, 1")
        for k in range(3): g(f"buffer_store_dwordx4 v[{16+4*k}:{19+4*k}], v30, {sr(rWS)}, s{sT1} offen offset:{16*k}")
    if opt.get('dbgst'):
        sk = w0(g)
        g("s_waitcnt vmcnt(0) lgkmcnt(0)")
        last = STAMP_SLOTS[g.nst - 1]
        g(f"v_mov_b32 v16, s{last}\ns_not_b32 s{sT1}, s{STAMP_SLOTS[0]}\nv_mov_b32 v17, s{sT1}\nv_mov_b32 v30, 0\ns_mov_b64 exec, 1")
        g(f"buffer_atomic_umax v16, v30, {sr(rDBG)}, 0 offen offset:4\nbuffer_atomic_umax v17, v30, {sr(rDBG)}, 0 offen offset:8")
        sk2 = g.lab("L_d2")
        g(f"s_cmp_lg_u32 s2, {opt['dbgst'] - 1}\ns_cbranch_scc1 {sk2}")
        for k in range(12): g(f"s_sub_u32 s{sT1}, s{STAMP_SLOTS[min(k, g.nst-1)]}, s{STAMP_SLOTS[0]}\nv_mov_b32 v{16+k}, s{sT1}")
        g(f"v_mov_b32 v16, s{STAMP_SLOTS[0]}")
        for k in range(3): g(f"buffer_store_dwordx4 v[{16+4*k}:{19+4*k}], v30, {sr(rDBG)}, 0 offen offset:{16+16*k}")
        g(f"{sk2}:\ns_mov_b64 exec, -1\n{sk}:")
    if opt.get('spinend'):
        base, idx, mult = opt['spinend']
        sk = w0(g); sk2 = g.lab("L_sp")
        g(f"s_cmp_lg_u32 s2, {opt.get('spinwg', 0)}\ns_cbranch_scc1 {sk}\ns_waitcnt vmcnt(0) lgkmcnt(0)")
        g(f"s_sub_u32 s{sT1}, s{STAMP_SLOTS[idx]}, s{STAMP_SLOTS[0]}\ns_mul_i32 s{sT1}, s{sT1}, {mult}\ns_add_u32 s{sT1}, s{sT1}, {base*100}")
        g(f"{sk2}:\ns_memrealtime s[{sPC}:{sPC+1}]\ns_waitcnt lgkmcnt(0)\ns_sub_u32 s{sT2}, s{sPC}, s{STAMP_SLOTS[0]}\ns_cmp_lt_u32 s{sT2}, s{sT1}\ns_cbranch_scc1 {sk2}")
        g(f"{sk}:")
    g("L_abort:\ns_endpgm")
    fallback(g, 0)
    fallback(g, 1)
    g("L_end:\ns_endpgm\nL_codeend:")
    hdr = open('gated_mix__mha_block__grouped_kv_mqa__prompt.s.ref').read().split("; Override launch")[0]
    out = hdr + "; One fused launch: projections, MQA and MHA attention, gated output projection.\n"
    out += "; @launch grid=(256,1,1) block=(512,1,1) lds=163840\n"
    out += f""".amdgcn_target "amdgcn-amd-amdhsa--gfx950"
.text
.globl {NAME}
.p2align 8
.type {NAME},@function
{NAME}:
{g.text()}.section .rodata,"a"
.p2align 6
.amdhsa_kernel {NAME}
  .amdhsa_next_free_vgpr 256
  .amdhsa_next_free_sgpr 102
  .amdhsa_accum_offset 256
  .amdhsa_group_segment_fixed_size 0
  .amdhsa_kernarg_size 96
  .amdhsa_user_sgpr_count 2
  .amdhsa_user_sgpr_kernarg_segment_ptr 1
  .amdhsa_system_sgpr_workgroup_id_x 1
.end_amdhsa_kernel
"""
    return out

if __name__ == "__main__":
    path = sys.argv[1] if len(sys.argv) > 1 else 'gated_mix__mha_block__grouped_kv_mqa__prompt.s'
    opt = {}
    for a in sys.argv[2:]:
        k, _, v = a.partition('=')
        opt[k] = eval(v) if v else True
    open(path, 'w').write(build(**opt))
```

```python
import sys, struct, copy
NAME = "gated_mix__mha_block__grouped_kv_mqa__prompt_kernel"

def f2h(x): return "0x%08x" % struct.unpack('<I', struct.pack('<f', x))[0]

WS_KVA  = 0x000000
WS_KVB  = 0x400000
WS_GATE = 0x420000
WS_F1   = 0x424000
WS_F2   = WS_F1 + 2048
WS_F3   = WS_F1 + 4096
WS_F4   = WS_F1 + 6144
WS_O    = 0x500000
WS_DBG  = 0x900000
WS_SIZE = 0x1000000

SLOT = 16384
LDS_WST = 65536
LDS_EW  = 8 * SLOT
LDS_ER  = 9 * SLOT
LDS_EG  = 9 * SLOT + 8192
LDS_EX  = 3 * SLOT
LDS_WOB = 2 * SLOT
LDS_WOA = 6 * SLOT

sW, sHP, sTB, sROT, sB = 3, 4, 5, 6, 7
rX, rWS_, rWKV, rGATE, rWS, rDBG, rOUT, rWOA, rWOB = 8, 12, 16, 20, 24, 28, 32, 36, 40
sMASK = 44
sI, sNONCE, sSPIN, sT0, sT1, sT2 = 46, 47, 48, 49, 50, 51
pX, pWQKV, pWOA, pBX, pWQ, pWK, pWV, pWOB, pGATE, pOUT, pDBG, pWS = 52, 54, 56, 58, 60, 62, 64, 66, 68, 70, 72, 74
sXO, sWO, sWSTEP, sW16, sMX, sMW, sKX, sKW = 76, 77, 78, 79, 80, 81, 82, 83
sOF = 76
sPC = 84
sFBBASE, sKV, sFBT, sDMA, sOST, sT3 = 86, 87, 88, 89, 90, 91
sKV1, sSC = 98, 100
sPOLL, sDS = 92, 93
sST = 94
vIDX, vAK, vAV, vG, vL16, vVOFF = 2, 3, 4, 5, 6, 7
vT = 8
S0, S1, C, QA, QB = 16, 32, 64, 80, 84
OACC = (112, 48)
STMP, KTMP = (128, 144, 160, 176), 192
STB = (32, 16, 128, 208)
FB_S, FB_C, FB_K, FB_V0, FB_V1 = 176, 160, 144, 148, 152
KF, V0, V1 = (88, 92), (96, 100), (104, 108)
OF = 112
ACC = 144
PF = 176
WF = 16
vAX = 240
vAW1, vAWQ, vDX0, vDX1, vDW, vKVST = 244, 245, 246, 247, 248, 249
vDWO, vRR, vOUTA = 224, 225, 226
vAT = 228
vFL, vNON, vDUMMY = 250, 251, 251
vPOLL = 252
QSCALE = 0.25 * 1.4426950408889634
MOFF = 102.0
SPIN = 1 << 20

STAMP_SLOTS = [94, 96, 52, 54, 58, 60, 62, 64, 68, 72, 74, 56]
class G:
    def __init__(s, **opt):
        s.L = []; s.lg = []; s.vm = []; s.opt = opt; s.nlab = 0; s.nst = 0
    def __call__(s, txt):
        for line in txt.split("\n"):
            line = line.strip()
            if not line: continue
            s.L.append(line if (line.endswith(":") or line.startswith(".")) else "    " + line)
    def lab(s, p="L"):
        s.nlab += 1; return f"{p}_{s.nlab}"
    def ds(s, txt, tag=None):
        s(txt); s.lg.append(tag); assert len(s.lg) <= 15, "lgkm overflow"
    def wlg(s, tag=None):
        if tag is None:
            s("s_waitcnt lgkmcnt(0)"); s.lg = []; return
        if tag not in s.lg: return
        i = len(s.lg) - 1 - s.lg[::-1].index(tag)
        n = len(s.lg) - 1 - i
        s(f"s_waitcnt lgkmcnt({n})"); s.lg = s.lg[i + 1:]
    def vmop(s, txt, tag=None):
        s(txt); s.vm.append(tag); assert len(s.vm) <= 63
    def wvm(s, tag=None):
        if tag is None:
            s("s_waitcnt vmcnt(0)"); s.vm = []; return
        if tag not in s.vm: return
        i = len(s.vm) - 1 - s.vm[::-1].index(tag)
        n = len(s.vm) - 1 - i
        s(f"s_waitcnt vmcnt({n})"); s.vm = s.vm[i + 1:]
    def srd(s, d, base, nbytes):
        s(f"s_mov_b32 s{d}, s{base}\ns_and_b32 s{d+1}, s{base+1}, 0xffff\ns_mov_b32 s{d+2}, {nbytes}\ns_mov_b32 s{d+3}, 0x00020000")
    def stamp(s, name):
        if not s.opt.get('stamps'): return
        if name not in s.opt.get('at', ('setup', 'p1', 'bstart', 'B', 'A', 'poll', 'mm', 'end')): return
        ins = "s_memtime" if s.opt.get('stamps') == 2 else "s_memrealtime"
        slot = STAMP_SLOTS[s.nst]
        assert slot >= 94 or name not in ('entry', 'karg')
        s(f"{ins} s[{slot}:{slot+1}]")
        s.nst += 1
    def jitter(s, salt):
        j = s.opt.get('jitter')
        if not j: return
        lp, sk = s.lab("L_j"), s.lab("L_jk")
        if salt % 2: s(f"s_lshl_b32 s{sT2}, s2, 3\ns_add_u32 s{sT2}, s{sT2}, s{sW}")
        else: s(f"s_mov_b32 s{sT2}, s2")
        s(f"s_add_u32 s{sT2}, s{sT2}, {salt * 7919 + j * 104729}\ns_mul_i32 s{sT1}, s{sT2}, 0x9e3779b1\ns_lshr_b32 s{sT1}, s{sT1}, 27")
        s(f"{lp}:\ns_sub_u32 s{sT1}, s{sT1}, 1\ns_cbranch_scc1 {sk}\ns_sleep 8\ns_branch {lp}\n{sk}:")
    def text(s): return "\n".join(s.L) + "\n"

def r(a, n): return f"v[{a}:{a+n-1}]"
def sr(a, n=4): return f"s[{a}:{a+n-1}]"

def spin_check(g):
    g(f"s_sub_u32 s{sSPIN}, s{sSPIN}, 1\ns_cbranch_scc1 L_abort")

def setup(g):
    g(f"""
    s_cmp_ge_u32 s2, 256
    s_cbranch_scc1 L_end
    """)
    g.stamp('entry')
    g(f"""
    s_load_dwordx16 s[52:67], s[0:1], 0
    s_load_dwordx8 s[68:75], s[0:1], 64
    v_lshrrev_b32 v{vT+1}, 6, v0
    v_and_b32 v1, 63, v0
    s_getpc_b64 s[{sPC}:{sPC+1}]
    L_pc:
    v_readfirstlane_b32 s{sW}, v{vT+1}
    s_and_b32 s{sT0}, s2, 0xf8
    s_add_u32 s{sT0}, s{sT0}, s{sW}
    s_lshl_b32 s{sT0}, s{sT0}, 7
    s_min_u32 s{sT0}, s{sT0}, L_codeend-L_pc-4
    {'' if g.opt.get('nopf') else f's_load_dword s{sFBT}, s[{sPC}:{sPC+1}], s{sT0}'}
    s_bfe_u32 s{sTB}, s2, 0x20001
    s_lshl_b32 s{sTB}, s{sTB}, 2
    s_bfe_u32 s{sT0}, s2, 0x20003
    s_add_u32 s{sTB}, s{sTB}, s{sT0}
    s_and_b32 s{sHP}, s2, 1
    s_lshl_b32 s{sHP}, s{sHP}, 3
    s_lshr_b32 s{sT0}, s2, 5
    s_add_u32 s{sHP}, s{sHP}, s{sT0}
    s_lshl_b32 s{sROT}, s{sTB}, 1
    s_add_u32 s{sROT}, s{sROT}, s{sHP}
    s_and_b32 s{sROT}, s{sROT}, {g.opt.get('rotmask', 4)}
    s_lshr_b32 s{sB}, s{sW}, 2
    s_and_b32 s{sI}, s{sW}, 3
    v_lshlrev_b32 v{vL16}, 4, v1
    """)
    g(f"""
    v_and_b32 v{vT+2}, 15, v1
    v_lshrrev_b32 v{vT+3}, 4, v1
    v_lshlrev_b32 v{vT+1}, 4, v{vT+3}
    v_lshl_add_u32 v{vT}, v{vT+2}, 10, v{vT+1}
    """)
    g(f"""
    v_lshrrev_b32 v{vT+4}, 3, v1
    v_and_b32 v{vT+5}, 7, v1
    v_lshrrev_b32 v{vT+6}, 4, v1
    v_xor_b32 v{vT+5}, v{vT+5}, v{vT+6}
    v_lshlrev_b32 v{vT+4}, 10, v{vT+4}
    v_lshl_add_u32 v{vDX0}, v{vT+5}, 4, v{vT+4}
    v_xor_b32 v{vDX1}, 64, v{vDX0}
    v_add_u32 v{vDX1}, 0x2000, v{vDX1}
    """)
    g(f"""
    s_lshr_b32 s{sT0}, s{sW}, 1
    s_cmp_eq_u32 s{sT0}, 3
    s_movk_i32 s{sT2}, 3072
    s_cselect_b32 s{sT1}, 1024, s{sT2}
    s_cselect_b32 s{sT2}, 2, 0
    s_lshl_b32 s{sWSTEP}, s{sT1}, 6
    s_lshl_b32 s{sMX}, s{sW}, 11
    s_add_u32 s{sMW}, s{sMX}, {LDS_WST}
    s_cmp_lg_u32 s{sB}, 0
    s_cbranch_scc1 L_su_q
    v_bfe_u32 v{vT+4}, v1, 2, 1
    v_bfe_u32 v{vT+5}, v1, 4, 1
    v_xor_b32 v{vT+4}, v{vT+4}, v{vT+5}
    v_and_b32 v{vT+5}, 3, v1
    v_lshl_add_u32 v{vT+5}, v{vT+4}, 2, v{vT+5}
    v_lshrrev_b32 v{vT+4}, 3, v1
    s_movk_i32 s{sW16}, 24576
    s_and_b32 s{sT2}, s{sHP}, 1
    s_add_u32 s{sT2}, s{sT2}, 1
    s_lshl_b32 s{sT2}, s{sT2}, 10
    s_lshr_b32 s{sWO}, s{sHP}, 1
    s_lshl_b32 s{sWO}, s{sWO}, 7
    s_add_u32 s{sWO}, s{sWO}, s{sT2}
    s_mul_i32 s{sT3}, s{sW}, 49152
    s_branch L_su_j
    L_su_q:
    v_lshrrev_b32 v{vT+4}, 2, v1
    v_and_b32 v{vT+5}, 3, v1
    v_xor_b32 v{vT+5}, s{sT2}, v{vT+5}
    s_lshl_b32 s{sW16}, s{sT1}, 4
    s_lshl_b32 s{sWO}, s{sHP}, 6
    s_and_b32 s{sT2}, s{sW}, 1
    s_mul_i32 s{sT3}, s{sT2}, s{sW16}
    s_lshl_b32 s{sT3}, s{sT3}, 1
    L_su_j:
    s_add_u32 s{sWO}, s{sWO}, s{sT3}
    v_mul_u32_u24 v{vT+4}, s{sT1}, v{vT+4}
    v_lshl_add_u32 v{vDW}, v{vT+5}, 4, v{vT+4}
    s_lshl_b32 s{sXO}, s{sTB}, 17
    s_lshl_b32 s{sT2}, s{sW}, 14
    s_add_u32 s{sXO}, s{sXO}, s{sT2}
    s_lshl_b32 s{sKX}, s{sROT}, 7
    s_mul_i32 s{sKW}, s{sROT}, s{sWSTEP}
    """)
    g(f"""
    s_lshr_b32 s{sT2}, s{sHP}, 1
    s_lshl_b32 s{sT2}, s{sT2}, 14
    s_lshl_b32 s{sDMA}, s{sTB}, 17
    s_add_u32 s{sDMA}, s{sDMA}, s{sT2}
    s_lshl_b32 s{sT2}, s{sW}, 7
    s_add_u32 s{sDMA}, s{sDMA}, s{sT2}
    s_mov_b32 s{sOST}, s{sT2}
    """)
    for k in range(8): g(f"v_mov_b32 v{40+k}, 0")
    g(f"v_mov_b32 v{vFL}, 0")
    g("s_waitcnt lgkmcnt(0)")
    g.stamp('karg')
    g.jitter(1)
    g.srd(rX, pX, 2097152)
    g(f"s_cmp_eq_u32 s{sT0}, 3\ns_cselect_b64 s[{rWS_}:{rWS_+1}], s[{pWQ}:{pWQ+1}], s[{pWQKV}:{pWQKV+1}]")
    g(f"s_mov_b32 s{rWS_+2}, 1572864\ns_cselect_b32 s{rWS_+2}, 524288, s{rWS_+2}\ns_and_b32 s{rWS_+1}, s{rWS_+1}, 0xffff\ns_mov_b32 s{rWS_+3}, 0x00020000")
    def early_loads():
        g(f"s_bitcmp1_b32 s{sHP}, 0\ns_cselect_b64 s[{rWKV}:{rWKV+1}], s[{pWV}:{pWV+1}], s[{pWK}:{pWK+1}]")
        g(f"s_and_b32 s{rWKV+1}, s{rWKV+1}, 0xffff\ns_mov_b32 s{rWKV+2}, 16384\ns_mov_b32 s{rWKV+3}, 0x00020000")
        g(f"s_add_u32 m0, s{sMX}, {LDS_EW}")
        g.srd(rGATE, pGATE, 1024)
        g.vmop(f"buffer_load_dwordx4 v{vL16}, {sr(rWKV)}, s{sMX} offen lds", 'e')
        g.vmop(f"buffer_load_dwordx4 v{vL16}, {sr(rWKV)}, s{sMX} offen offset:1024 lds", 'e')
        g(f"s_mov_b32 exec_lo, 0x00010001\ns_mov_b32 exec_hi, 0x00010001")
        g.vmop(f"buffer_load_dwordx4 v[40:43], v{vT+1}, {sr(rGATE)}, s{sOST} offen", 'e')
        g.vmop(f"buffer_load_dwordx4 v[44:47], v{vT+1}, {sr(rGATE)}, s{sOST} offen offset:64", 'e')
        g("s_mov_b64 exec, -1")
        g(f"s_add_u32 m0, s{sMX}, {LDS_EX}\ns_nop 0")
        g.vmop(f"buffer_load_dwordx4 v{vDX0}, {sr(rX)}, s{sDMA} offen lds", 'e')
        g(f"s_add_u32 m0, s{sMX}, {LDS_EX + 1024}\ns_nop 0")
        g.vmop(f"buffer_load_dwordx4 v{vDX1}, {sr(rX)}, s{sDMA} offen lds", 'e')
    nonce_scan(g)
    early_loads()
    if g.opt.get('spf', 0): scalar_prefetch(g)
    g("s_barrier")
    g(f"s_mov_b32 s{sMASK}, 0x0000ffff\ns_mov_b32 s{sMASK+1}, 0x0000ffff\ns_mov_b32 s{sSPIN}, {SPIN}\ns_mov_b32 s{sNONCE}, 0")
    if g.opt.get('pre', 1): p1_addr(g)
    early_addr(g)
    runall(p1_dma(g, 0))
    g.srd(rWS, pWS, WS_SIZE)
    g.srd(rDBG, pDBG, 256)
    nonce_producer(g)
    g.stamp('setup')
    g.jitter(2)
    early_compute(g)
    g("s_barrier")
    g.stamp('early')
    runall(p1_dma(g, 1))
    early_reduce(g)
    if not g.opt.get('pre', 1): p1_addr(g)


def p1_dma(g, j):
    p = j & 3
    def f0():
        g(f"s_add_u32 m0, s{sMX}, {p*SLOT}\ns_add_u32 s{sDS}, s{sXO}, s{sKX}")
        g.vmop(f"buffer_load_dwordx4 v{vDX0}, {sr(rX)}, s{sDS} offen lds", f'c{j}')
    def f1():
        g(f"s_add_u32 m0, s{sMX}, {p*SLOT+1024}\ns_add_u32 s{sPOLL+0 if False else sT3}, s{sWO}, s{sKW}")
        g.vmop(f"buffer_load_dwordx4 v{vDX1}, {sr(rX)}, s{sDS} offen lds", f'c{j}')
    def f2():
        g(f"s_add_u32 m0, s{sMW}, {p*SLOT}\ns_add_u32 s{sDS}, s{sT3}, s{sW16}")
        g.vmop(f"buffer_load_dwordx4 v{vDW}, {sr(rWS_)}, s{sT3} offen lds", f'c{j}')
    def f3():
        g(f"s_add_u32 m0, s{sMW}, {p*SLOT+1024}\ns_add_u32 s{sKW}, s{sKW}, s{sWSTEP}")
        g.vmop(f"buffer_load_dwordx4 v{vDW}, {sr(rWS_)}, s{sDS} offen lds", f'c{j}')
        if j < 7:
            g(f"s_add_u32 s{sKX}, s{sKX}, 128\ns_and_b32 s{sKX}, s{sKX}, 1023\ns_cselect_b32 s{sKW}, s{sKW}, 0")
    return [f0, f1, f2, f3]

def scalar_prefetch(g):
    P = sPC
    def base(ptr, off): g(f"s_add_u32 s{P}, s{ptr}, s{off}\ns_addc_u32 s{P+1}, s{ptr+1}, 0")
    g(f"s_and_b32 s{sT1}, s{sHP}, 3\ns_lshl_b32 s{sT1}, s{sT1}, 3\ns_add_u32 s{sT1}, s{sT1}, s{sW}\ns_lshl_b32 s{sT1}, s{sT1}, 12\ns_lshl_b32 s{sT2}, s{sTB}, 17\ns_add_u32 s{sT1}, s{sT1}, s{sT2}\ns_add_u32 s{sT1}, s{sT1}, s{sKX}")
    base(pX, sT1)
    for j in range(4): g(f"s_load_dword s{sFBT}, s[{P}:{P+1}], {j*1024}")
    g(f"s_lshl_b32 s{sT1}, s{sROT}, 1\ns_and_b32 s{sT2}, s{sTB}, 1\ns_add_u32 s{sT1}, s{sT1}, s{sT2}\ns_lshl_b32 s{sT1}, s{sT1}, 3\ns_add_u32 s{sT1}, s{sT1}, s{sW}\ns_mul_i32 s{sT1}, s{sT1}, {4*3072}")
    g(f"s_lshr_b32 s{sT3}, s{sHP}, 1\ns_lshl_b32 s{sT3}, s{sT3}, 7\ns_add_u32 s{sT1}, s{sT1}, s{sT3}\ns_and_b32 s{sT2}, s{sHP}, 1\ns_add_u32 s{sT2}, s{sT2}, 1\ns_lshl_b32 s{sT2}, s{sT2}, 10\ns_add_u32 s{sT1}, s{sT1}, s{sT2}")
    base(pWQKV, sT1)
    for j in range(4): g(f"s_load_dword s{sFBT}, s[{P}:{P+1}], {j*3072}")
    g(f"s_lshl_b32 s{sT1}, s{sROT}, 1\ns_and_b32 s{sT2}, s{sHP}, 1\ns_add_u32 s{sT1}, s{sT1}, s{sT2}\ns_lshl_b32 s{sT1}, s{sT1}, 1\ns_and_b32 s{sT2}, s{sTB}, 1\ns_add_u32 s{sT1}, s{sT1}, s{sT2}\ns_lshl_b32 s{sT1}, s{sT1}, 3\ns_add_u32 s{sT1}, s{sT1}, s{sW}")
    g(f"s_mul_i32 s{sT2}, s{sT1}, {2*3072}\ns_add_u32 s{sT2}, s{sT2}, s{sT3}")
    base(pWQKV, sT2)
    for j in range(2): g(f"s_load_dword s{sFBT}, s[{P}:{P+1}], {j*3072}")
    g(f"s_lshl_b32 s{sT1}, s{sT1}, 11\ns_add_u32 s{sT1}, s{sT1}, s{sT3}")
    base(pWQ, sT1)
    for j in range(2): g(f"s_load_dword s{sFBT}, s[{P}:{P+1}], {j*1024}")

def nonce_scan(g):
    skip = g.lab("L_ns")
    g(f"s_cmp_lg_u32 s2, 0\ns_cbranch_scc1 {skip}\ns_cmp_lg_u32 s{sW}, 0\ns_cbranch_scc1 {skip}")
    g.srd(rWS, pWS, WS_SIZE)
    g(f"v_lshrrev_b32 v{vT+4}, 2, v1\nv_and_b32 v{vT+5}, 3, v1\nv_lshlrev_b32 v{vT+4}, 7, v{vT+4}\nv_lshl_add_u32 v{vT+4}, v{vT+5}, 4, v{vT+4}")
    g(f"s_mov_b32 s{sT1}, {WS_F1}")
    g(f"buffer_load_dwordx4 v[176:179], v{vT+4}, {sr(rWS)}, s{sT1} offen sc1")
    g(f"buffer_load_dwordx4 v[180:183], v{vT+4}, {sr(rWS)}, s{sT1} offen offset:2048 sc1")
    g(f"s_mov_b32 s{sT1}, {WS_F3}")
    g(f"buffer_load_dwordx4 v[184:187], v{vT+4}, {sr(rWS)}, s{sT1} offen sc1")
    g(f"{skip}:")

def nonce_producer(g):
    skip = g.lab("L_nn")
    g(f"s_cmp_lg_u32 s2, 0\ns_cbranch_scc1 {skip}\ns_cmp_lg_u32 s{sW}, 0\ns_cbranch_scc1 {skip}")
    g("s_waitcnt vmcnt(10)")
    g(f"v_readfirstlane_b32 s{sT1}, v176")
    lp = g.lab("L_nl")
    g(f"{lp}:\ns_add_u32 s{sT1}, s{sT1}, 1\ns_cbranch_scc1 {lp}")
    g(f"s_mov_b64 s[{sPC}:{sPC+1}], 0")
    for k in range(12):
        g(f"v_cmp_eq_u32 vcc, s{sT1}, v{176+k}\ns_or_b64 s[{sPC}:{sPC+1}], s[{sPC}:{sPC+1}], vcc")
    g(f"s_cbranch_scc1 {lp}")
    g(f"v_mov_b32 v192, s{sT1}\nv_mov_b32 v193, 0\ns_mov_b64 exec, 1")
    g(f"buffer_store_dword v192, v193, {sr(rDBG)}, 0 offen sc1\ns_mov_b64 exec, -1")
    g(f"{skip}:")

def p1_addr(g):
    g(f"""
    v_and_b32 v{vT+2}, 31, v1
    v_lshrrev_b32 v{vT+3}, 5, v1
    v_bfe_u32 v{vT+4}, v1, 1, 3
    v_xor_b32 v{vT+4}, v{vT+4}, v{vT+3}
    v_lshlrev_b32 v{vT+4}, 4, v{vT+4}
    v_lshl_add_u32 v{vT+4}, v{vT+2}, 7, v{vT+4}
    s_lshl_b32 s{sT1}, s{sI}, 12
    v_add_u32 v{vAX}, s{sT1}, v{vT+4}
    v_xor_b32 v{vAX+1}, 32, v{vAX}
    v_xor_b32 v{vAX+2}, 64, v{vAX}
    v_xor_b32 v{vAX+3}, 0x60, v{vAX}
    v_bfe_u32 v{vT+4}, v1, 2, 2
    v_and_b32 v{vT+5}, 3, v1
    v_lshlrev_b32 v{vT+5}, 3, v{vT+5}
    v_lshl_add_u32 v{vT+5}, v{vT+4}, 6, v{vT+5}
    v_lshl_add_u32 v{vT+5}, v{vT+3}, 9, v{vT+5}
    v_bfe_u32 v{vT+6}, v1, 4, 1
    v_bfe_u32 v{vT+7}, v1, 3, 1
    v_xor_b32 v{vT+7}, s{sB}, v{vT+7}
    v_lshlrev_b32 v{vT+7}, 6, v{vT+7}
    v_lshl_add_u32 v{vT+7}, v{vT+4}, 7, v{vT+7}
    v_lshl_add_u32 v{vT+7}, v{vT+3}, 10, v{vT+7}
    v_lshl_add_u32 v{vT+7}, v{vT+6}, 5, v{vT+7}
    v_and_b32 v{vT+2}, 3, v1
    v_lshl_add_u32 v{vT+7}, v{vT+2}, 3, v{vT+7}
    v_add_u32 v{vAW1}, {LDS_WST}, v{vT+7}
    v_xor_b32 v{vT+4}, s{sB}, v{vT+6}
    v_lshl_add_u32 v{vT+5}, v{vT+4}, 5, v{vT+5}
    v_lshl_add_u32 v{vT+5}, v{vT+6}, 12, v{vT+5}
    v_add_u32 v{vAWQ}, {LDS_WST + 8192}, v{vT+5}
    """)

def early_addr(g):
    g(f"""
    v_lshrrev_b32 v{vT+4}, 4, v1
    v_bfe_u32 v{vT+5}, v1, 2, 2
    v_lshl_add_u32 v{vT+4}, v{vT+4}, 3, v{vT+5}
    v_and_b32 v{vT+5}, 3, v1
    v_lshlrev_b32 v{vT+5}, 3, v{vT+5}
    v_lshl_add_u32 v{vT+4}, v{vT+4}, 5, v{vT+5}
    s_add_u32 s{sT1}, s{sMX}, {LDS_EW}
    v_add_u32 v{vT+6}, s{sT1}, v{vT+4}
    s_lshl_b32 s{sT1}, s{sW}, 10
    s_add_u32 s{sT1}, s{sT1}, {LDS_ER}
    v_add_u32 v{vT+7}, s{sT1}, v{vL16}
    s_lshl_b32 s{sT1}, s{sW}, 8
    s_add_u32 s{sT1}, s{sT1}, {LDS_EG}
    v_lshlrev_b32 v{vT+5}, 2, v1
    v_add_u32 v{vT+5}, s{sT1}, v{vT+5}
    """)
    g(f"""
    v_and_b32 v{vT}, 15, v1
    v_lshrrev_b32 v{vT+1}, 4, v1
    v_bfe_u32 v{vT+2}, v1, 1, 3
    v_xor_b32 v{vT+1}, v{vT+1}, v{vT+2}
    v_lshlrev_b32 v{vT+1}, 4, v{vT+1}
    v_lshl_add_u32 v{vT}, v{vT}, 7, v{vT+1}
    s_add_u32 s{sT1}, s{sMX}, {LDS_EX}
    v_add_u32 v{vT}, s{sT1}, v{vT}
    v_xor_b32 v{vT+1}, 64, v{vT}
    """)

def early_compute(g):
    g.wvm('e')
    g.wlg()
    g.ds(f"ds_read_b128 v[16:19], v{vT}", 'ew')
    g.ds(f"ds_read_b128 v[20:23], v{vT+1}", 'ew')
    for s_ in range(2):
        for e in range(2):
            g.ds(f"ds_read_b64_tr_b16 v[{24+4*s_+2*e}:{25+4*s_+2*e}], v{vT+6} offset:{s_*1024+e*128}", 'ew')
    g.wlg('ew')
    lv, le = g.lab("L_ev"), g.lab("L_ee")
    g(f"s_bitcmp1_b32 s{sHP}, 0\ns_cbranch_scc1 {lv}")
    g("v_mfma_f32_16x16x32_bf16 v[32:35], v[24:27], v[16:19], 0")
    g("v_mfma_f32_16x16x32_bf16 v[36:39], v[40:43], v[16:19], 0")
    g("v_mfma_f32_16x16x32_bf16 v[32:35], v[28:31], v[20:23], v[32:35]")
    g("v_mfma_f32_16x16x32_bf16 v[36:39], v[44:47], v[20:23], v[36:39]")
    g(f"s_branch {le}\n{lv}:")
    g("v_mfma_f32_16x16x32_bf16 v[32:35], v[16:19], v[24:27], 0")
    g("v_mov_b32 v36, 0")
    g("v_mfma_f32_16x16x32_bf16 v[32:35], v[20:23], v[28:31], v[32:35]")
    g(f"{le}:\ns_nop 7")
    g.ds(f"ds_write_b128 v{vT+7}, v[32:35]", 'ep')
    g.ds(f"ds_write_b32 v{vT+5}, v36", 'ep')
    g.wlg()

def early_reduce(g):
    skip = g.lab("L_er")
    g(f"s_cmp_lg_u32 s{sW}, 0\ns_cbranch_scc1 {skip}")
    g(f"v_add_u32 v{vT+4}, {LDS_ER}, v{vL16}\nv_lshlrev_b32 v{vT+5}, 2, v1\nv_add_u32 v{vT+5}, {LDS_EG}, v{vT+5}")
    for k in range(8): g(f"ds_read_b128 v[{16+4*k}:{19+4*k}], v{vT+4} offset:{k*1024}")
    g("s_waitcnt lgkmcnt(0)")
    for k in range(8): g(f"ds_read_b32 v{64+k}, v{vT+5} offset:{k*256}")
    g(f"""
    s_lshr_b32 s{sT0}, s{sHP}, 1
    s_lshl_b32 s{sT1}, s{sTB}, 2
    s_lshr_b32 s{sT2}, s{sT0}, 1
    s_add_u32 s{sT1}, s{sT1}, s{sT2}
    s_lshr_b32 s{sT2}, s{sT1}, 3
    s_lshl_b32 s{sT2}, s{sT2}, 14
    s_and_b32 s{sT1}, s{sT1}, 7
    s_lshl_b32 s{sT1}, s{sT1}, 10
    s_add_u32 s{sT1}, s{sT1}, s{sT2}
    s_add_u32 s{sT1}, s{sT1}, {WS_KVB}
    s_and_b32 s{sT0}, s{sT0}, 1
    v_and_b32 v{vT}, 15, v1
    v_bfe_u32 v{vT+1}, v1, 4, 1
    v_lshrrev_b32 v{vT+2}, 5, v1
    v_lshlrev_b32 v{vT+2}, 3, v{vT+2}
    """)
    for k in range(1, 8):
        for q in range(4): g(f"v_add_f32 v{16+q}, v{16+q}, v{16+4*k+q}")
    g("v_cvt_pk_bf16_f32 v16, v16, v17\nv_cvt_pk_bf16_f32 v17, v18, v19")
    lv, le = g.lab("L_rv"), g.lab("L_re")
    g(f"s_bitcmp1_b32 s{sHP}, 0\ns_cbranch_scc1 {lv}")
    if True:
        g(f"""
        v_and_b32 v{vT+3}, 3, v{vT}
        v_bfe_u32 v{vT+6}, v{vT}, 2, 1
        v_lshl_add_u32 v{vT+3}, v{vT+6}, 3, v{vT+3}
        v_bfe_u32 v{vT+6}, v{vT}, 3, 1
        v_lshl_add_u32 v{vT+3}, v{vT+6}, 2, v{vT+3}
        v_lshl_add_u32 v{vT+3}, v{vT+1}, 5, v{vT+3}
        v_lshl_add_u32 v{vT+3}, v{vT+3}, 4, v{vT+2}
        s_lshl_b32 s{sT0}, s{sT0}, 8
        s_add_u32 s{sT1}, s{sT1}, s{sT0}
        buffer_store_dwordx2 v[16:17], v{vT+3}, {sr(rWS)}, s{sT1} offen sc1
        s_waitcnt lgkmcnt(0)
        """)
        for k in range(1, 8): g(f"v_add_f32 v64, v64, v{64+k}")
        g(f"""
        v_mul_f32 v64, {f2h(-1.4426950408889634)}, v64
        v_exp_f32 v64, v64
        s_lshr_b32 s{sT0}, s{sHP}, 1
        s_lshl_b32 s{sT0}, s{sT0}, 6
        v_add_f32 v64, 1.0, v64
        v_rcp_f32 v64, v64
        s_lshl_b32 s{sT1}, s{sTB}, 9
        s_add_u32 s{sT1}, s{sT1}, s{sT0}
        s_add_u32 s{sT1}, s{sT1}, {WS_GATE}
        v_lshlrev_b32 v{vT+3}, 2, v1
        s_mov_b64 exec, 0xffff
        buffer_store_dword v64, v{vT+3}, {sr(rWS)}, s{sT1} offen sc1
        s_mov_b64 exec, -1
        s_branch {le}
        {lv}:
        """)
        g(f"""
    v_lshl_add_u32 v{vT+3}, v{vT+1}, 4, v{vT}
    v_lshl_add_u32 v{vT+3}, v{vT+3}, 4, v{vT+2}
    s_lshl_b32 s{sT0}, s{sT0}, 9
    s_add_u32 s{sT1}, s{sT1}, s{sT0}
    s_add_u32 s{sT1}, s{sT1}, 8192
    buffer_store_dwordx2 v[16:17], v{vT+3}, {sr(rWS)}, s{sT1} offen sc1
    s_waitcnt lgkmcnt(0)
        """)
    g(f"{le}:\n{skip}:")

def get_nonce(g):
    lp, ok = g.lab("L_gn"), g.lab("L_gk")
    g(f"{lp}:\nv_readfirstlane_b32 s{sNONCE}, v{vNON}\ns_nop 3\ns_cmp_lg_u32 s{sNONCE}, 0\ns_cbranch_scc1 {ok}")
    spin_check(g)
    g(f"v_mov_b32 v{vT+3}, 0\nbuffer_load_dword v{vNON}, v{vT+3}, {sr(rDBG)}, 0 offen sc1\ns_waitcnt vmcnt(0)\ns_branch {lp}\n{ok}:")

def flag_store(g, off_expr_setup):
    g(off_expr_setup)
    g(f"v_mov_b32 v{vT}, s{sNONCE}\nv_mov_b32 v{vT+1}, 0\ns_mov_b64 exec, 1")
    g(f"buffer_store_dword v{vT}, v{vT+1}, {sr(rWS)}, s{sT1} offen sc1\ns_mov_b64 exec, -1")

def poll_issue(g, kind):
    if kind == 1:
        g(f"v_lshrrev_b32 v{vT}, 2, v1\nv_and_b32 v{vT+1}, 3, v1\nv_lshlrev_b32 v{vT}, 7, v{vT}\nv_lshl_add_u32 v{vFL}, v{vT+1}, 4, v{vT}\ns_mov_b32 s{sPOLL}, {WS_F1}")
    elif kind == 2:
        g(f"v_and_b32 v{vT}, 3, v1\nv_bfe_u32 v{vT+1}, v1, 2, 1\nv_lshlrev_b32 v{vT}, 4, v{vT}\nv_lshl_add_u32 v{vFL}, v{vT+1}, 7, v{vT}\ns_and_b32 s{sPOLL}, s{sHP}, 14\ns_lshl_b32 s{sPOLL}, s{sPOLL}, 7\ns_add_u32 s{sPOLL}, s{sPOLL}, {WS_F2}")
    elif kind == 3:
        g(f"v_and_b32 v{vT}, 3, v1\nv_lshlrev_b32 v{vFL}, 4, v{vT}\ns_lshl_b32 s{sPOLL}, s{sTB}, 7\ns_add_u32 s{sPOLL}, s{sPOLL}, {WS_F3}")
    else:
        g(f"v_mov_b32 v{vFL}, 0\ns_lshl_b32 s{sPOLL}, s{sTB}, 2\ns_add_u32 s{sPOLL}, s{sPOLL}, s{sI}\ns_lshl_b32 s{sPOLL}, s{sPOLL}, 7\ns_add_u32 s{sPOLL}, s{sPOLL}, {WS_F4}")
    g(f"buffer_load_dwordx4 {r(vPOLL,4)}, v{vFL}, {sr(rWS)}, s{sPOLL} offen sc1")

def poll_check(g):
    lp, ok = g.lab("L_pl"), g.lab("L_pk")
    g(f"{lp}:")
    for k in range(4): g(f"v_xor_b32 v{vPOLL+k}, s{sNONCE}, v{vPOLL+k}")
    g(f"v_or_b32 v{vPOLL}, v{vPOLL}, v{vPOLL+1}\nv_or3_b32 v{vPOLL}, v{vPOLL}, v{vPOLL+2}, v{vPOLL+3}\nv_cmp_ne_u32 vcc, 0, v{vPOLL}\ns_nop 4\ns_cbranch_vccz {ok}")
    spin_check(g)
    g(f"buffer_load_dwordx4 {r(vPOLL,4)}, v{vFL}, {sr(rWS)}, s{sPOLL} offen sc1\ns_waitcnt vmcnt(0)\ns_branch {lp}\n{ok}:")

def w0(g):
    skip = g.lab("L_w0")
    g(f"s_cmp_lg_u32 s{sW}, 0\ns_cbranch_scc1 {skip}")
    return skip

def kv_dma(g, src_expr, slot, tag):
    def setup(): g(f"s_lshl_b32 s{sT2}, s{sW}, 12\ns_add_u32 m0, s{sT2}, {slot*SLOT}"); g(src_expr)
    def op(e): return lambda: g.vmop(f"buffer_load_dwordx4 v{vL16}, {sr(rWS)}, s{sDS} offen offset:{e*1024} sc1 lds", tag)
    return [setup] + [op(e) for e in range(4)]
def dma_B(g, c, slot, tag):
    return kv_dma(g, f"s_add_u32 s{sDS}, s{sT2}, {WS_KVB + c*SLOT}", slot, tag)
def dma_A(g, c, slot, tag):
    return kv_dma(g, f"s_add_u32 s{sDS}, s{sDMA}, {WS_KVA + c*SLOT}", slot, tag)
def dma_Wo(g, rs, grp, ldsbase, tag):
    def setup(): g(f"s_lshl_b32 s{sDS}, s{sW}, 15\ns_and_b32 s{sT1}, s{sHP}, 7\ns_lshl_b32 s{sT1}, s{sT1}, 7\ns_add_u32 s{sDS}, s{sDS}, s{sT1}")
    def op(e):
        def f():
            g(f"s_lshl_b32 s{sT2}, s{sW}, 12\ns_add_u32 m0, s{sT2}, {ldsbase + grp*32768 + e*1024}\ns_add_u32 s{sT1}, s{sDS}, {grp*262144 + e*8192}")
            g.vmop(f"buffer_load_dwordx4 v{vDWO}, {sr(rs)}, s{sT1} offen lds", tag)
        return f
    return [setup] + [op(e) for e in range(4)]
def runall(fs):
    for f in fs: f()

def phase1(g, b):
    T1, TQ = ACC, ACC + 16
    def XF(s_): return PF + 12 * s_
    def W1(s_): return PF + 12 * s_ + 4
    def WQ(s_): return PF + 12 * s_ + 8
    def reads(p, s_):
        if g.opt.get('noread'): return
        g.ds(f"ds_read_b128 {r(XF(s_),4)}, v{vAX+s_} offset:{p*SLOT}", f'f{s_}')
        for e in range(2): g.ds(f"ds_read_b64_tr_b16 {r(W1(s_)+2*e,2)}, v{vAW1} offset:{p*SLOT+s_*2048+e*512}", f'f{s_}')
        for e in range(2): g.ds(f"ds_read_b64_tr_b16 {r(WQ(s_)+2*e,2)}, v{vAWQ} offset:{p*SLOT+s_*1024+e*256}", f'f{s_}')
    def mf(j, s_, qfirst=False):
        g.wlg(f'f{s_}')
        if g.opt.get('nomf'): return
        if g.opt.get('mf16'):
            for (D, A, B) in ((T1, W1(s_), XF(s_)), (TQ, WQ(s_), XF(s_)), (T1+4, WQ(s_), XF(s_)), (TQ+4, W1(s_), XF(s_))):
                D2 = D + 8 * (s_ & 1)
                g(f"v_mfma_f32_16x16x32_bf16 {r(D2,4)}, {r(A,4)}, {r(B,4)}, {'0' if j == 0 and s_ < 2 else r(D2,4)}")
            return
        c1 = "0" if (j == 0 and s_ == 0) else r(T1, 16)
        cq = "0" if (j == 0 and s_ == 0) else r(TQ, 16)
        if qfirst: g(f"v_mfma_f32_32x32x16_bf16 {r(TQ,16)}, {r(WQ(s_),4)}, {r(XF(s_),4)}, {cq}")
        if b == 0: g(f"v_mfma_f32_32x32x16_bf16 {r(T1,16)}, {r(W1(s_),4)}, {r(XF(s_),4)}, {c1}")
        else:      g(f"v_mfma_f32_32x32x16_bf16 {r(T1,16)}, {r(XF(s_),4)}, {r(W1(s_),4)}, {c1}")
        if g.opt.get('pad1'): g(f"s_nop {g.opt['pad1'] - 1}")
        if not qfirst: g(f"v_mfma_f32_32x32x16_bf16 {r(TQ,16)}, {r(WQ(s_),4)}, {r(XF(s_),4)}, {cq}")
        if g.opt.get('pad2'): g(f"s_nop {g.opt['pad2'] - 1}")
    f1chk = g.opt.get('f1chk', 6)
    def wait_c(j, extra0):
        if extra0 and f'c{j}' in g.vm:
            n = len(g.vm) - 1 - (len(g.vm) - 1 - g.vm[::-1].index(f'c{j}'))
            sk, dn = g.lab("L_wa"), g.lab("L_wb")
            g(f"s_cmp_eq_u32 s{sW}, 0\ns_cbranch_scc1 {sk}")
            g.wvm(f'c{j}')
            g(f"{sk}:\ns_waitcnt vmcnt({n + extra0})")
        else: g.wvm(f'c{j}')
    jf = g.opt.get('jflag', 2); pd3 = g.opt.get('pdist', 2) == 3
    for j in range(8):
        p = j & 3
        wait_c(j, {0: 1, 1: 2}.get(j, 0) if not (pd3 and j == 2) else 0)
        if j == jf:
            sk = w0(g)
            get_nonce(g)
            flag_store(g, f"s_lshl_b32 s{sT1}, s{sTB}, 7\ns_lshl_b32 s{sT2}, s{sHP}, 2\ns_add_u32 s{sT1}, s{sT1}, s{sT2}\ns_add_u32 s{sT1}, s{sT1}, {WS_F1}")
            g(f"{sk}:")
        if j == f1chk:
            sk = w0(g); poll_check(g); g(f"{sk}:")
        g.wlg()
        g("s_barrier")
        g.stamp(f'b{j}')
        if j in (1, 4, 6): g.jitter(3 + j)
        pd = g.opt.get('pdist', 2)
        dm = []
        if j + pd <= 7 and not (pd == 3 and j == 0): dm = p1_dma(g, j + pd)
        if pd == 3 and j == 0: dm = p1_dma(g, 2) + p1_dma(g, 3)
        if j == f1chk: dm = dma_B(g, 0, 8, 'B01')
        if len(dm) == 5: dm = [lambda a=dm[0], c=dm[1]: (a(), c())] + dm[2:]
        if len(dm) == 8: dm = [lambda a=dm[2*k], c=dm[2*k+1]: (a(), c()) for k in range(4)]
        dp = g.opt.get('dmpos', (1, 2, 3, 4))
        def issue(k):
            for q in range(len(dm)):
                if dp[q] == k: dm[q]()
        if j == f1chk - 1:
            sk = w0(g); poll_issue(g, 1); g(f"{sk}:")
        if j == 0:
            sk = w0(g)
            g(f"v_mov_b32 v{vT+3}, 0\nbuffer_load_dword v{vNON}, v{vT+3}, {sr(rDBG)}, 0 offen sc1\n{sk}:")
        issue(-1)
        reads(p, 0); reads(p, 1)
        issue(0)
        if j > 0: mf(j - 1, 3)
        issue(1)
        reads(p, 2)
        mf(j, 0)
        issue(2)
        reads(p, 3)
        mf(j, 1)
        issue(3)
        if j == 7:
            issue(4); break
        mf(j, 2)
        issue(4)
        if j == 0: attn_consts(g)
        if j == 1: kv_store_addr(g)
        if j == 3:
            g.srd(rOUT, pOUT, 2097152); g.srd(rWOA, pWOA, 524288); g.srd(rWOB, pWOB, 524288)
        if j == 4: tail_addr(g)
    g.wlg()
    g.wvm('B01')
    g("s_barrier")
    g.stamp('bstart')
    g.ds(f"ds_read_b128 {r(KF[0],4)}, v{vAK}", 'K0')
    g.ds(f"ds_read_b128 {r(KF[1],4)}, v{vAK} offset:1024", 'kv')
    g(f"s_mov_b64 exec, s[{sMASK}:{sMASK+1}]")
    g.ds(f"ds_read_b128 {r(V0[0],4)}, v{vAV}", 'kv')
    g.ds(f"ds_read_b128 {r(V1[0],4)}, v{vAV} offset:512", 'kv')
    g("s_mov_b64 exec, -1")
    g.wlg('never')
    mf(7, 2, True)
    for k in range(2, g.opt.get('m0t', 4)): g.ds(f"ds_read_b128 {r(KTMP+4*(k-2),4)}, v{vAK} offset:{k*1024}", 'kv')
    mf(7, 3, True)

def kv_store_addr(g):
    lv, le = g.lab("L_ka"), g.lab("L_kb")
    g(f"""
    s_and_b32 s{sT1}, s{sHP}, 14
    s_add_u32 s{sT1}, s{sT1}, s{sB}
    s_lshl_b32 s{sT1}, s{sT1}, 18
    s_lshr_b32 s{sT2}, s{sTB}, 1
    s_lshl_b32 s{sT2}, s{sT2}, 14
    s_add_u32 s{sT1}, s{sT1}, s{sT2}
    s_and_b32 s{sT2}, s{sTB}, 1
    s_lshl_b32 s{sT2}, s{sT2}, 2
    s_add_u32 s{sT2}, s{sT2}, s{sI}
    s_lshl_b32 s{sT2}, s{sT2}, 10
    s_add_u32 s{sKV}, s{sT1}, s{sT2}
    s_mov_b32 s{sSC}, {f2h(QSCALE)}
    s_mov_b32 s{sSC+1}, {f2h(QSCALE)}
    s_bitcmp1_b32 s{sHP}, 0
    s_cbranch_scc1 {lv}
    v_and_b32 v{vT}, 0x33, v1
    v_bfe_u32 v{vT+1}, v1, 2, 1
    v_lshl_or_b32 v{vT}, v{vT+1}, 3, v{vT}
    v_bfe_u32 v{vT+1}, v1, 3, 1
    v_lshl_or_b32 v{vT}, v{vT+1}, 2, v{vT}
    v_lshlrev_b32 v{vKVST}, 4, v{vT}
    s_add_u32 s{sKV1}, s{sKV}, 131072
    s_branch {le}
    {lv}:
    v_bfe_u32 v{vT}, v1, 4, 1
    v_lshlrev_b32 v{vT}, 17, v{vT}
    v_lshrrev_b32 v{vT+1}, 5, v1
    v_and_b32 v{vT+2}, 15, v1
    v_lshl_add_u32 v{vT+1}, v{vT+1}, 4, v{vT+2}
    v_lshl_add_u32 v{vKVST}, v{vT+1}, 4, v{vT}
    s_add_u32 s{sKV}, s{sKV}, 8192
    s_add_u32 s{sKV1}, s{sKV}, 512
    {le}:
    """)

def max_tree(Ss):
    regs = [S + k for S in Ss for k in range(16)]
    L = [f"v_max3_f32 v{vT}, v{regs[0]}, v{regs[1]}, v{regs[2]}", f"v_max3_f32 v{vT+1}, v{regs[3]}, v{regs[4]}, v{regs[5]}"]
    rest, k = regs[6:], 0
    while len(rest) >= 2:
        L.append(f"v_max3_f32 v{vT+k}, v{vT+k}, v{rest[0]}, v{rest[1]}"); rest = rest[2:]; k ^= 1
    L += [f"v_max_f32 v{vT}, v{vT}, v{vT+1}", f"v_mov_b32 v{vT+1}, v{vT}"]
    return L
def fill_c(Cr, off):
    L = [f"v_max_f32 v{vT}, v{vT}, v{vT+1}", f"v_sub_f32 v{Cr}, {f2h(-off)}, v{vT}", f"v_sub_f32 v{Cr+1}, {f2h(-off)}, v{vT}"]
    L += [f"v_mov_b64 v[{Cr+k}:{Cr+k+1}], v[{Cr}:{Cr+1}]" for k in range(2, 16, 2)]
    return "\n".join(L)
SWAP = f"v_permlane32_swap_b32 v{vT}, v{vT+1}"

def b_prologue(g):
    T1, TQ = ACC, ACC + 16
    g(f"v_mov_b64 v[{vT+4}:{vT+5}], -1\nv_mov_b64 v[{vT+6}:{vT+7}], -1\ns_nop 8")
    for k in range(8, 16, 2): g(f"v_pk_mul_f32 v[{TQ+k}:{TQ+k+1}], v[{TQ+k}:{TQ+k+1}], s[{sSC}:{sSC+1}]")
    for k in range(4): g(f"v_cvt_pk_bf16_f32 v{QB+k}, v{TQ+8+2*k}, v{TQ+9+2*k}")
    g.wlg('K0'); g("s_nop 0")
    nt = g.opt.get('m0t', 4)
    if nt > 1: g.wlg()
    for k in range(nt): g(f"v_mfma_f32_32x32x16_bf16 {r(STB[k],16)}, {r((KF[0], KF[1], KTMP, KTMP+4)[k],4)}, {r(QB,4)}, 0")
    for k in range(8): g(f"v_cvt_pk_bf16_f32 v{PF+k}, v{T1+2*k}, v{T1+2*k+1}")
    for k in range(0, 8, 2): g(f"v_pk_mul_f32 v[{TQ+k}:{TQ+k+1}], v[{TQ+k}:{TQ+k+1}], s[{sSC}:{sSC+1}]")
    L = max_tree(STB[:nt])
    for k, x in enumerate(L):
        g(x)
    g("s_nop 1")
    g(SWAP)
    g("s_nop 0")
    g(fill_c(C, g.opt.get('moff', MOFF)))
    g("s_nop 1")
    g(f"v_mfma_f32_32x32x16_bf16 {r(S0,16)}, {r(KF[0],4)}, {r(QB,4)}, {r(C,16)}")
    for k in range(4): g(f"v_cvt_pk_bf16_f32 v{QA+k}, v{TQ+2*k}, v{TQ+2*k+1}")
    g("s_nop 7")

def start_ops(g):
    def kv(k): return lambda: g.vmop(f"buffer_store_dwordx4 {r(PF+4*k,4)}, v{vKVST}, {sr(rWS)}, s{(sKV, sKV1)[k]} offen sc1", 'kvst')
    def sent():
        g(f"s_add_u32 s{sT1}, s{sOST}, {WS_O + 0x200000}")
        g.vmop(f"buffer_store_dwordx4 {r(vT+4,4)}, v{vL16}, {sr(rWS)}, s{sT1} offen sc1", 'sent')
    def gate():
        g(f"v_and_b32 v{vT}, 31, v1\nv_lshlrev_b32 v{vT}, 2, v{vT}\ns_lshl_b32 s{sT1}, s{sTB}, 2\ns_add_u32 s{sT1}, s{sT1}, s{sI}\ns_lshl_b32 s{sT1}, s{sT1}, 7\ns_add_u32 s{sT1}, s{sT1}, {WS_GATE}")
        g.vmop(f"buffer_load_dword v{vG}, v{vT}, {sr(rWS)}, s{sT1} offen sc1", 'gate')
    return kv(0), kv(1), sent, gate

def attn_consts(g):
    g(f"""
    v_mov_b32 v{vIDX}, 0xdddddddd
    v_lshrrev_b32 v{vT}, 5, v1
    v_and_b32 v{vT+1}, 15, v1
    v_lshl_add_u32 v{vT}, v{vT}, 4, v{vT+1}
    v_lshlrev_b32 v{vVOFF}, 4, v{vT}
    v_and_b32 v{vT}, 31, v1
    v_cmp_eq_u32 vcc, 16, v{vT}
    v_mov_b32 v{vT+1}, 0x3f803f80
    v_add_u32 v{vAK}, {8*SLOT}, v{vL16}
    v_cndmask_b32 v{vT+1}, 0, v{vT+1}, vcc
    v_add_u32 v{vAV}, {8*SLOT + 8192}, v{vVOFF}
    """)
    for k in range(16): g(f"v_mov_b32 v{V0[0]+k}, v{vT+1}")
    for Or in OACC:
        for k in range(0, 16, 2): g(f"v_mov_b64 v[{Or+k}:{Or+k+1}], 0")
    g(f"""
    s_lshl_b32 s{sT1}, s{sHP}, 1
    s_add_u32 s{sT1}, s{sT1}, s{sB}
    s_lshl_b32 s{sDMA}, s{sT1}, 17
    s_lshl_b32 s{sT2}, s{sI}, 12
    s_add_u32 s{sDMA}, s{sDMA}, s{sT2}
    s_lshl_b32 s{sT2}, s{sTB}, 2
    s_add_u32 s{sT2}, s{sT2}, s{sI}
    s_lshl_b32 s{sT2}, s{sT2}, 5
    s_add_u32 s{sT2}, s{sT2}, s{sT1}
    s_lshl_b32 s{sOST}, s{sT2}, 10
    """)

def tile(g, U, ev, pos):
    t = U & 7
    p = U & 1
    cur, nxt = (S0, S1) if p == 0 else (S1, S0)
    p1, pq, p0 = pos
    Qn = QB if U + 1 < 64 else QA
    def run(key):
        for f in ev.get((U, key), []): f()
    for i in range(16):
        if i == p1:
            if U > 0: g(f"v_smfmac_f32_32x32x32_bf16 {r(OACC[(U-1) >> 6],16)}, {r(V1[1-p],4)}, {r(nxt+8,8)}, v{vIDX}")
            run('m1')
            g.wlg()
            if U < 127:
                g(f"s_mov_b64 exec, s[{sMASK}:{sMASK+1}]")
                g.ds(f"ds_read_b128 {r(V0[1-p],4)}, v{vAV} offset:{((t + 1) & 7) * 1024}", 'kv')
                g.ds(f"ds_read_b128 {r(V1[1-p],4)}, v{vAV} offset:{((t + 1) & 7) * 1024 + 512}", 'kv')
                g("s_mov_b64 exec, -1")
            if U < 126: g.ds(f"ds_read_b128 {r(KF[p],4)}, v{vAK} offset:{((t + 2) & 7) * 1024}", 'kv')
            run('gap')
        if i == pq:
            if U < 127: g(f"v_mfma_f32_32x32x16_bf16 {r(nxt,16)}, {r(KF[1-p],4)}, {r(Qn,4)}, {r(C,16)}")
            run('mq')
        if i == p0:
            g(f"v_smfmac_f32_32x32x32_bf16 {r(OACC[U >> 6],16)}, {r(V0[p],4)}, {r(cur,8)}, v{vIDX}")
            run('m0')
        run(i)
        g(f"v_exp_f32 v{cur+i}, v{cur+i}")
    if U == 127:
        g("s_nop 1")
        g(f"v_smfmac_f32_32x32x32_bf16 {r(OACC[1],16)}, {r(V1[p],4)}, {r(cur+8,8)}, v{vIDX}")

def epilogue_parts(g, task):
    O = OACC[task]
    lo, hi = struct.unpack('<I', struct.pack('<f', 2.0**g.opt.get('lo', -110)))[0], struct.unpack('<I', struct.pack('<f', 2.0**120))[0]
    def p1():
        g(f"v_mov_b32 v{vT}, v{O+8}\nv_add_f32 v{vT+2}, |v{O}|, |v{O+1}|")
        for k in range(2, 8): g(f"v_add_f32 v{vT+2}, v{vT+2}, |v{O+k}|")
        g(f"v_permlane32_swap_b32 v{vT}, v{O+8}")
        g(f"v_subrev_u32 v{vT+2}, {lo}, v{vT+2}\ns_mov_b32 s{sT1}, {hi - lo}")
    def p2():
        g(f"v_subrev_u32 v{vT+3}, {lo}, v{vT}\nv_max_u32 v{vT+2}, v{vT+2}, v{vT+3}\nv_cmp_le_u32 vcc, s{sT1}, v{vT+2}")
        if g.opt.get('force_fb'): g("s_mov_b64 vcc, -1")
        g(f"s_nop 0\ns_cbranch_vccnz L_fallback{task}\nL_fbret{task}:\nv_rcp_f32 v{vT}, v{vT}")
        if task == 0: g(f"v_sub_f32 v{vT+3}, 1.0, v{vG}")
    def p3():
        g(f"v_mul_f32 v{vT}, v{vT}, v{vT+3 if task == 0 else vG}")
        for k in range(0, 8, 2): g(f"v_pk_mul_f32 v[{O+k}:{O+k+1}], v[{O+k}:{O+k+1}], v[{vT}:{vT+1}] op_sel_hi:[1,0]")
        for k in range(4): g(f"v_cvt_pk_bf16_f32 v{vT+4+k}, v{O+2*k}, v{O+2*k+1}")
        if task == 1:
            for k in range(4): g(f"v_min_u32 v{vT+4+k}, -2, v{vT+4+k}")
        g(f"s_add_u32 s{sT1}, s{sOST}, {WS_O + (0 if task == 0 else 0x200000)}")
        g.vmop(f"buffer_store_dwordx4 {r(vT+4,4)}, v{vL16}, {sr(rWS)}, s{sT1} offen sc1", 'ost')
    return p1, p2, p3

def fallback(g, task):
    Q, O = (QB, QA)[task], OACC[task]
    S_, C_, K_, A0, A1 = FB_S, FB_C, FB_K, FB_V0, FB_V1
    g(f"L_fallback{task}:")
    if g.opt.get('fbcount'):
        g(f"v_mov_b32 v{vT}, 1\nv_mov_b32 v{vT+1}, 0\ns_mov_b64 exec, 1\nbuffer_atomic_add v{vT}, v{vT+1}, {sr(rDBG)}, 0 offen offset:128\ns_mov_b64 exec, -1")
    if task == 0: g(f"s_mov_b32 s{sFBBASE}, {WS_KVB}")
    else: g(f"s_lshl_b32 s{sT1}, s{sI}, 12\ns_sub_u32 s{sFBBASE}, s{sDMA}, s{sT1}")
    g(f"v_and_b32 v{vT}, 31, v1\nv_cmp_eq_u32 vcc, 16, v{vT}\nv_mov_b32 v{vT+1}, 0x3f803f80\ns_nop 1\nv_cndmask_b32 v{vT+1}, 0, v{vT+1}, vcc")
    for k in range(8): g(f"v_mov_b32 v{A0+k}, v{vT+1}")
    g(f"v_mov_b32 v{vT}, 0xff800000\ns_mov_b32 s{sFBT}, 0")
    def addr():
        g(f"s_lshr_b32 s{sT1}, s{sFBT}, 3\ns_lshl_b32 s{sT1}, s{sT1}, 14\ns_and_b32 s{sT2}, s{sFBT}, 7\ns_lshl_b32 s{sT2}, s{sT2}, 10\ns_add_u32 s{sT1}, s{sT1}, s{sT2}\ns_add_u32 s{sT1}, s{sT1}, s{sFBBASE}")
    g(f"L_fb1_{task}:"); addr()
    g(f"buffer_load_dwordx4 {r(K_,4)}, v{vL16}, {sr(rWS)}, s{sT1} offen sc1\ns_waitcnt vmcnt(0)")
    g(f"v_mfma_f32_32x32x16_bf16 {r(S_,16)}, {r(K_,4)}, {r(Q,4)}, 0\ns_nop 15")
    for k in range(0, 16, 2): g(f"v_max3_f32 v{vT}, v{vT}, v{S_+k}, v{S_+k+1}")
    g(f"s_add_u32 s{sFBT}, s{sFBT}, 1\ns_cmp_lt_u32 s{sFBT}, 64\ns_cbranch_scc1 L_fb1_{task}")
    g(f"v_mov_b32 v{vT+1}, v{vT}\ns_nop 1\n{SWAP}\ns_nop 1")
    g(fill_c(C_, 0.0))
    for k in range(0, 16, 2): g(f"v_mov_b64 v[{O+k}:{O+k+1}], 0")
    g(f"s_mov_b32 s{sFBT}, 0")
    g(f"L_fb2_{task}:"); addr()
    g(f"buffer_load_dwordx4 {r(K_,4)}, v{vL16}, {sr(rWS)}, s{sT1} offen sc1\ns_add_u32 s{sT1}, s{sT1}, 8192")
    g(f"s_mov_b64 exec, s[{sMASK}:{sMASK+1}]")
    g(f"buffer_load_dwordx4 {r(A0,4)}, v{vVOFF}, {sr(rWS)}, s{sT1} offen sc1\nbuffer_load_dwordx4 {r(A1,4)}, v{vVOFF}, {sr(rWS)}, s{sT1} offen offset:512 sc1")
    g("s_mov_b64 exec, -1\ns_waitcnt vmcnt(0)")
    g(f"v_mfma_f32_32x32x16_bf16 {r(S_,16)}, {r(K_,4)}, {r(Q,4)}, {r(C_,16)}\ns_nop 15")
    for k in range(16): g(f"v_exp_f32 v{S_+k}, v{S_+k}")
    g("s_nop 2")
    g(f"v_smfmac_f32_32x32x32_bf16 {r(O,16)}, {r(A0,4)}, {r(S_,8)}, v{vIDX}")
    g(f"v_smfmac_f32_32x32x32_bf16 {r(O,16)}, {r(A1,4)}, {r(S_+8,8)}, v{vIDX}")
    g(f"s_nop 15\ns_add_u32 s{sFBT}, s{sFBT}, 1\ns_cmp_lt_u32 s{sFBT}, 64\ns_cbranch_scc1 L_fb2_{task}")
    g(f"v_mov_b32 v{vT}, v{O+8}\nv_mov_b32 v{vT+1}, v{O+8}\ns_nop 1\n{SWAP}\ns_nop 1\ns_branch L_fbret{task}")

def tail_addr(g):
    g(f"""
    v_lshrrev_b32 v{vT}, 3, v1
    v_bfe_u32 v{vT+1}, v1, 2, 1
    v_bfe_u32 v{vT+2}, v1, 4, 1
    v_xor_b32 v{vT+1}, v{vT+1}, v{vT+2}
    v_lshlrev_b32 v{vT+1}, 6, v{vT+1}
    v_lshl_add_u32 v{vT+1}, v{vT}, 10, v{vT+1}
    v_and_b32 v{vT+3}, 3, v1
    v_lshl_add_u32 v{vDWO}, v{vT+3}, 4, v{vT+1}
    v_lshrrev_b32 v{vT}, 5, v1
    v_bfe_u32 v{vT+1}, v1, 2, 2
    v_lshl_add_u32 v{vT}, v{vT}, 2, v{vT+1}
    v_lshlrev_b32 v{vT}, 7, v{vT}
    v_bfe_u32 v{vT+1}, v1, 3, 1
    v_lshl_add_u32 v{vT}, v{vT+1}, 6, v{vT}
    v_lshl_add_u32 v{vT}, v{vT+2}, 5, v{vT}
    v_lshl_add_u32 v{vT}, v{vT+3}, 3, v{vT}
    s_lshl_b32 s{sT1}, s{sI}, 13
    s_add_u32 s{sT1}, s{sT1}, {LDS_WOB}
    s_lshr_b32 s{sT2}, s{sHP}, 3
    s_lshl_b32 s{sT2}, s{sT2}, 15
    s_add_u32 s{sT1}, s{sT1}, s{sT2}
    v_add_u32 v{vAT+2}, s{sT1}, v{vT}
    v_xor_b32 v{vAT+3}, 64, v{vAT+2}
    s_lshl_b32 s{sT2}, s{sT2}, 1
    s_sub_u32 s{sT1}, s{sT1}, s{sT2}
    s_add_u32 s{sT1}, s{sT1}, 32768
    v_add_u32 v{vAT}, s{sT1}, v{vT}
    v_xor_b32 v{vAT+1}, 64, v{vAT}
    s_mul_i32 s{sT1}, s{sW}, 6144
    v_add_u32 v{vRR}, s{sT1}, v{vL16}
    s_lshl_b32 s{sT1}, s{sTB}, 7
    s_lshr_b32 s{sT2}, s{sHP}, 3
    s_lshl_b32 s{sT2}, s{sT2}, 6
    s_add_u32 s{sT1}, s{sT1}, s{sT2}
    s_lshl_b32 s{sT2}, s{sB}, 5
    s_add_u32 s{sT1}, s{sT1}, s{sT2}
    v_and_b32 v{vT}, 31, v1
    v_add_u32 v{vT}, s{sT1}, v{vT}
    v_lshlrev_b32 v{vT}, 10, v{vT}
    v_lshrrev_b32 v{vT+1}, 5, v1
    v_lshl_add_u32 v{vT}, v{vT+1}, 4, v{vT}
    s_and_b32 s{sT2}, s{sHP}, 7
    s_lshl_b32 s{sT2}, s{sT2}, 7
    s_lshl_b32 s{sT1}, s{sI}, 5
    s_add_u32 s{sT2}, s{sT2}, s{sT1}
    v_add_u32 v{vOUTA}, s{sT2}, v{vT}
    """)

def of_loads(g, branch, tag, dst=None):
    dst = OF if dst is None else dst
    def setup():
        g(f"""
        s_lshl_b32 s{sT1}, s{sTB}, 2
        s_lshr_b32 s{sT2}, s{sHP}, 3
        s_lshl_b32 s{sT2}, s{sT2}, 1
        s_add_u32 s{sT1}, s{sT1}, s{sT2}
        s_add_u32 s{sT1}, s{sT1}, s{sB}
        s_lshl_b32 s{sT1}, s{sT1}, 15
        s_lshl_b32 s{sT2}, s{sI}, 12
        s_add_u32 s{sT1}, s{sT1}, s{sT2}
        s_add_u32 s{sT1}, s{sT1}, {WS_O + branch*0x200000}
        s_lshr_b32 s{sT2}, s{sHP}, 3
        s_lshl_b32 s{sT2}, s{sT2}, 14
        s_add_u32 s{sOF+1}, s{sT1}, s{sT2}
        s_sub_u32 s{sT1}, s{sT1}, s{sT2}
        s_add_u32 s{sOF}, s{sT1}, 16384
        """)
    def op(n): return lambda: g.vmop(f"buffer_load_dwordx4 {r(dst+4*n,4)}, v{vL16}, {sr(rWS)}, s{sOF + (n >> 2)} offen offset:{(n&3)*1024} sc1", f'{tag}{n}')
    return [setup] + [op(n) for n in range(8)]

def wfrag_reads(g, n, base, tag):
    for tc in range(2):
        for e in range(2):
            g.ds(f"ds_read_b64_tr_b16 {r(WF+8*n+4*tc+2*e,2)}, v{vAT+2*(n>>2)+tc} offset:{base+(n&3)*2048+e*1024}", f'{tag}{n}')

def tail(g):
    OA = PF
    p1, p2, p3 = epilogue_parts(g, 1)
    fa = of_loads(g, 1, 'OA', OA)
    oat = list(g.opt.get('oat', (8, 8, 8, 8, 9, 9, 10, 10)))
    for n in range(3): wfrag_reads(g, n, 0, 'w')
    p1(); g("s_nop 0"); p2(); fa[0](); p3()
    g.stamp('A')
    g.jitter(200)
    g.wvm('WoA1')
    g("s_barrier")
    g.stamp('T1')
    DA = LDS_WOA - LDS_WOB
    nload = 0
    for n in range(8):
        g.wlg(f'w{n}')
        for tc in range(2):
            c = "0" if n == 0 else r(ACC+16*tc, 16)
            g(f"v_mfma_f32_32x32x16_bf16 {r(ACC+16*tc,16)}, {r(WF+8*n+4*tc,4)}, {r(OF+4*n,4)}, {c}")
        if n + 3 < 8: wfrag_reads(g, n + 3, 0, 'w')
        else: wfrag_reads(g, n - 5, 0, 'x')
        if n in (1, 5):
            for k in range(2): g(f"v_add_u32 v{vAT + (n >> 2) * 2 + k}, {DA}, v{vAT + (n >> 2) * 2 + k}")
        for k in range(8):
            if oat[k] == n: fa[1 + k]()
    g.stamp('bp')
    for n in range(3, 8):
        g.wlg(f'x{n-3}')
        wfrag_reads(g, n, 0, 'x')
        for k in range(8):
            if oat[k] == n + 5: fa[1 + k]()
    for d in range(4):
        g(f"s_sub_u32 s{sT1}, {d + 3}, s{sI}\ns_and_b32 s{sT1}, s{sT1}, 3\ns_lshl_b32 s{sT1}, s{sT1}, 11\ns_mul_i32 s{sT2}, s{sB}, 24576\ns_add_u32 s{sT1}, s{sT1}, s{sT2}\ns_add_u32 s{sT1}, s{sT1}, {d * 6144}\nv_add_u32 v{vT+4+d}, s{sT1}, v{vL16}")
    g.wlg()
    g.stamp('poll')
    def check(q, bad):
        R = OA + 16 * q
        g(f"v_max3_u32 v{vT}, v{R}, v{R+1}, v{R+2}\nv_max3_u32 v{vT+1}, v{R+3}, v{R+4}, v{R+5}")
        for k in range(6, 16, 4):
            g(f"v_max3_u32 v{vT}, v{vT}, v{R+k}, v{R+k+1}")
            if k + 3 < 16: g(f"v_max3_u32 v{vT+1}, v{vT+1}, v{R+k+2}, v{R+k+3}")
        g(f"v_max_u32 v{vT}, v{vT}, v{vT+1}\nv_cmp_eq_u32 vcc, -1, v{vT}\ns_nop 0\ns_cbranch_vccnz {bad}")
        for n in range(4 * q, 4 * q + 4):
            for tc in range(2):
                g(f"v_mfma_f32_32x32x16_bf16 {r(ACC+16*tc,16)}, {r(WF+8*n+4*tc,4)}, {r(OA+4*n,4)}, {r(ACC+16*tc,16)}")
    g(f"s_mov_b32 s{sDS}, 0")
    for q in range(2):
        sk, bad = g.lab("L_oa"), g.lab("L_ob")
        g.wvm(f'OA{4*q+3}')
        check(q, bad)
        g(f"s_branch {sk}\n{bad}:\ns_bitset1_b32 s{sDS}, {q}\n{sk}:")
    g.stamp('pass1')
    g(f"L_oa_loop:\ns_cmp_eq_u32 s{sDS}, 0\ns_cbranch_scc1 L_oa_done")
    spin_check(g)
    for q in range(2):
        sk = g.lab("L_oc")
        g(f"s_bitcmp1_b32 s{sDS}, {q}\ns_cbranch_scc0 {sk}")
        for n in range(4 * q, 4 * q + 4): fa[1 + n]()
        g.vm = []
        g(f"{sk}:")
    g("s_waitcnt vmcnt(0)")
    for q in range(2):
        sk = g.lab("L_od")
        g(f"s_bitcmp1_b32 s{sDS}, {q}\ns_cbranch_scc0 {sk}")
        check(q, sk)
        g(f"s_bitset0_b32 s{sDS}, {q}\n{sk}:")
    g("s_branch L_oa_loop\nL_oa_done:")
    g.stamp('mm')
    g.jitter(201)
    g("s_barrier\ns_nop 8")
    def piece(d): return ACC + 16 * (d >> 1) + 8 * (d & 1)
    for d in range(4):
        sk = g.lab("L_rw")
        g(f"s_cmp_eq_u32 s{sI}, {d}\ns_cbranch_scc1 {sk}")
        g(f"ds_write_b128 v{vT+4+d}, {r(piece(d),4)}\nds_write_b128 v{vT+4+d}, {r(piece(d)+4,4)} offset:1024\n{sk}:")
    g("s_waitcnt lgkmcnt(0)\ns_barrier")
    g.stamp('red')
    for k in range(3):
        for e in range(2):
            g.ds(f"ds_read_b128 {r(16+8*k+4*e,4)}, v{vRR} offset:{k*2048+e*1024}", f'rr{k}')
    lj = g.lab("L_rj")
    for d in range(4):
        sk = g.lab("L_rs")
        if d < 3: g(f"s_cmp_lg_u32 s{sI}, {d}\ns_cbranch_scc1 {sk}")
        for k in range(0, 8, 2): g(f"v_mov_b64 v[{40+k}:{41+k}], v[{piece(d)+k}:{piece(d)+k+1}]")
        if d < 3: g(f"s_branch {lj}\n{sk}:")
    g(f"{lj}:")
    g.wlg('rr0')
    for k in range(0, 8, 2): g(f"v_pk_add_f32 v[{40+k}:{41+k}], v[{40+k}:{41+k}], v[{16+k}:{17+k}]")
    g.wlg('rr2')
    for k in range(0, 8, 2): g(f"v_pk_add_f32 v[{24+k}:{25+k}], v[{24+k}:{25+k}], v[{32+k}:{33+k}]")
    for k in range(0, 8, 2): g(f"v_pk_add_f32 v[{40+k}:{41+k}], v[{40+k}:{41+k}], v[{24+k}:{25+k}]")
    for k in range(4): g(f"v_cvt_pk_bf16_f32 v{16+k}, v{40+2*k}, v{41+2*k}")
    g("s_nop 1\nv_permlane32_swap_b32 v16, v18\nv_permlane32_swap_b32 v17, v19")
    g.vmop(f"buffer_store_dwordx4 v[16:19], v{vOUTA}, {sr(rOUT)}, 0 offen {g.opt.get('outsc', '')}", 'out')

def schedule(g):
    o = g.opt
    ev = {}
    def at(T, key, *fs): ev.setdefault((T, key), []).extend(fs)
    dpos = o.get('dpos', ((2, 6), (2, 13), (3, 6), (3, 13)))
    pp = o.get('pp', {(2, 'm1'): 3, (5, 'm0'): 2, (0, 'm0'): 1, (1, 'mq'): 0})
    def wave0(*fs):
        def f():
            sk = w0(g)
            for x in fs: x()
            g(f"{sk}:")
        return f
    def flag(base, hi, lo):
        return lambda: flag_store(g, f"s_lshl_b32 s{sT1}, s{hi}, 7\ns_lshl_b32 s{sT2}, s{lo}, 2\ns_add_u32 s{sT1}, s{sT1}, s{sT2}\ns_add_u32 s{sT1}, s{sT1}, {base}")
    def slot(gi): return slotB(gi) if gi < 8 else slotA(gi - 8)
    def vadd(reg, src, gi):
        d = ((slot(gi + 1) - slot(gi)) * SLOT) & 0xffffffff
        if gi != 7: return lambda: g(f"v_add_u32 v{reg}, {d}, v{src}")
        return lambda: g(f"s_lshl_b32 s{sT1}, s{sB}, 14\ns_add_u32 s{sT1}, s{sT1}, {d}\nv_add_u32 v{reg}, s{sT1}, v{src}")
    nt = o.get('m0t', 4)
    at(59, 0, vadd(vT + 3, vAK, 7))
    for k in range(nt):
        at(59, 'gap', lambda k=k: g.ds(f"ds_read_b128 {r(KTMP+4*k,4)}, v{vT+3} offset:{k*1024}", 'kv'))
        at(60 + k // 2, 7 if k % 2 == 0 else 13, lambda k=k: g(f"v_mfma_f32_32x32x16_bf16 {r(STMP[k],16)}, {r(KTMP+4*k,4)}, {r(QA,4)}, 0"))
    L = max_tree(STMP[:nt])
    if nt > 2:
        at(61, 6, lambda: g("\n".join(L[:8]))); at(62, 1, lambda: g("\n".join(L[8:16]))); at(62, 6, lambda: g("\n".join(L[16:])))
    else:
        at(61, 6, lambda: g("\n".join(L[:8]))); at(62, 6, lambda: g("\n".join(L[8:])))
    at(62, 8, lambda: g(SWAP))
    at(62, 12, lambda: g(fill_c(C, o.get('moff', MOFF))))
    e1, e2, e3 = epilogue_parts(g, 0)
    at(65, 0, e1); at(65, 1, e2); at(65, 6, e3, lambda: g.stamp('B'))
    fs = dma_B(g, 2, 0, 'G1')
    at(0, 6, fs[0], fs[1]); at(0, 13, fs[2]); at(1, 1, fs[3]); at(1, 6, fs[4])
    k0, k1, sent, gate = start_ops(g)
    at(4, 6, k0); at(5, 6, k1); at(6, 6, sent); at(7, 6, gate)
    for U in (3, 17, 30, 63, 70, 90, 111, 125): at(U, 9, lambda U=U: g.jitter(U))
    for gi in range(16):
        T0 = 8 * gi
        ppc = dict(pp)
        if gi == 15:
            ppc = {k: v for k, v in pp.items() if k[0] < 2}
            ppc.update(o.get('pplast', {(2, 'm1'): 3, (4, 'm0'): 2, (6, 'm0'): 1, (7, 'm0'): 0}))
        for (t, key), pr in ppc.items(): at(T0 + t, key, lambda pr=pr: g(f"s_setprio {pr}"))
        if gi < 15:
            at(T0 + 6, 0, vadd(vAK, vAK, gi))
            at(T0 + 7, 0, vadd(vAV, vAV, gi))
        wait = {1: 'G1', 2: 'kvst', 3: 'G3', 4: None, 7: 'A0', 8: 'A1', 9: 'A2', 10: 'ost', 11: 'A4', 12: 'A5', 13: 'A6', 14: 'WoB0', 15: 'WoB1'}
        if gi == 4: at(T0 + 1, 1, lambda: g.wvm(), wave0(lambda: poll_check(g)))
        if gi == 14: at(T0 + 1, 1, lambda: g.wvm('WoB0'), wave0(lambda: poll_check(g)))
        if gi in wait: at(T0 + 1, 'm0', lambda w=wait[gi]: g.wvm(w))
        at(T0 + 1, 'm0', lambda: g("s_barrier"))
        at(T0 + 1, 'm0', lambda gi=gi: g.stamp(f'g{gi}'))
        grp = {0: lambda: dma_B(g, 4, 2, 'G2'), 1: lambda: dma_B(g, 6, 4, 'G3'),
               4: lambda: dma_A(g, 0, 6, 'A0'), 5: lambda: dma_A(g, 1, 8, 'A1'), 6: lambda: dma_A(g, 2, 0, 'A2'), 7: lambda: dma_A(g, 3, 2, 'A3'),
               8: lambda: dma_A(g, 4, 4, 'A4'), 9: lambda: dma_A(g, 5, 6, 'A5'), 10: lambda: dma_A(g, 6, 8, 'A6'), 11: lambda: dma_A(g, 7, 0, 'A7'),
               12: lambda: dma_Wo(g, rWOB, 0, LDS_WOB, 'WoB0'), 13: lambda: dma_Wo(g, rWOB, 1, LDS_WOB, 'WoB1'),
               14: lambda: dma_Wo(g, rWOA, 0, LDS_WOA, 'WoA0'), 15: lambda: dma_Wo(g, rWOA, 1, LDS_WOA, 'WoA1')}
        if gi == 13: at(T0 + 2, 0, wave0(lambda: poll_issue(g, 3)))
        if gi in grp:
            fs = grp[gi]()
            at(T0 + dpos[0][0], dpos[0][1], fs[0])
            for (t, i), f in zip(dpos, fs[1:]): at(T0 + t, i, f)
        if gi == 2: at(T0 + 2, 6, wave0(flag(WS_F2, sHP, sTB)))
        if gi == 3:
            at(T0 + 4, 6, wave0(lambda: poll_issue(g, 2)))
        if gi == 10: at(T0 + 4, 6, wave0(flag(WS_F3, sTB, sHP)))
        if gi == 13 and o.get('wopf', 1):
            def wopf():
                g(f"s_and_b32 s{sT1}, s{sTB}, 3\ns_lshl_b32 s{sT1}, s{sT1}, 13\ns_add_u32 s{sT1}, s{sT1}, s{sDS}\ns_add_u32 s{sT1}, s{sT1}, 262144")
                g.vmop(f"buffer_load_dwordx4 {r(208,4)}, v{vDWO}, {sr(rWOA)}, s{sT1} offen", 'pf')
            at(T0 + 5, 6, wopf)
        if gi == 14:
            fs = of_loads(g, 0, 'OB')
            at(T0 + 4, 6, fs[0])
            for n, f in enumerate(fs[1:]): at(T0 + 4 + n // 2, 6 if n % 2 == 0 else 13, f)
    return ev

def slotB(c): return (8 + c) % 10
def slotA(c): return 2 * ((3 + c) % 5)

def build(**opt):
    g = G(**opt)
    setup(g)
    fork = (list(g.lg), list(g.vm)); nst0 = g.nst
    g(f"s_bitcmp1_b32 s{sHP}, 0\ns_cbranch_scc1 L_p1b")
    phase1(g, 0)
    end0 = (list(g.lg), list(g.vm))
    g("s_branch L_p1done\nL_p1b:")
    g.lg, g.vm = list(fork[0]), list(fork[1]); g.nst = nst0
    phase1(g, 1)
    assert end0 == (g.lg, g.vm), (end0, g.lg, g.vm)
    g("L_p1done:")
    g.stamp('p1')
    b_prologue(g)
    g.stamp('t0')
    ev = schedule(g)
    for U in range(128): tile(g, U, ev, opt.get('pos', (2, 4, 10)))
    tail(g)
    if opt.get('stamps'):
        g.stamp('end')
        g(f"s_lshl_b32 s{sT1}, s2, 3\ns_add_u32 s{sT1}, s{sT1}, s{sW}\ns_lshl_b32 s{sT1}, s{sT1}, 6\ns_add_u32 s{sT1}, s{sT1}, {WS_DBG}")
        g("s_waitcnt lgkmcnt(0)")
        for k in range(12): g(f"v_mov_b32 v{16+k}, s{STAMP_SLOTS[min(k, g.nst-1)]}")
        g(f"v_mov_b32 v30, 0\ns_mov_b64 exec, 1")
        for k in range(3): g(f"buffer_store_dwordx4 v[{16+4*k}:{19+4*k}], v30, {sr(rWS)}, s{sT1} offen offset:{16*k}")
    if opt.get('dbgst'):
        sk = w0(g)
        g("s_waitcnt vmcnt(0) lgkmcnt(0)")
        last = STAMP_SLOTS[g.nst - 1]
        g(f"v_mov_b32 v16, s{last}\ns_not_b32 s{sT1}, s{STAMP_SLOTS[0]}\nv_mov_b32 v17, s{sT1}\nv_mov_b32 v30, 0\ns_mov_b64 exec, 1")
        g(f"buffer_atomic_umax v16, v30, {sr(rDBG)}, 0 offen offset:4\nbuffer_atomic_umax v17, v30, {sr(rDBG)}, 0 offen offset:8")
        sk2 = g.lab("L_d2")
        g(f"s_cmp_lg_u32 s2, {opt['dbgst'] - 1}\ns_cbranch_scc1 {sk2}")
        for k in range(12): g(f"s_sub_u32 s{sT1}, s{STAMP_SLOTS[min(k, g.nst-1)]}, s{STAMP_SLOTS[0]}\nv_mov_b32 v{16+k}, s{sT1}")
        g(f"v_mov_b32 v16, s{STAMP_SLOTS[0]}")
        for k in range(3): g(f"buffer_store_dwordx4 v[{16+4*k}:{19+4*k}], v30, {sr(rDBG)}, 0 offen offset:{16+16*k}")
        g(f"{sk2}:\ns_mov_b64 exec, -1\n{sk}:")
    if opt.get('spinend'):
        base, idx, mult = opt['spinend']
        sk = w0(g); sk2 = g.lab("L_sp")
        g(f"s_cmp_lg_u32 s2, {opt.get('spinwg', 0)}\ns_cbranch_scc1 {sk}\ns_waitcnt vmcnt(0) lgkmcnt(0)")
        g(f"s_sub_u32 s{sT1}, s{STAMP_SLOTS[idx]}, s{STAMP_SLOTS[0]}\ns_mul_i32 s{sT1}, s{sT1}, {mult}\ns_add_u32 s{sT1}, s{sT1}, {base*100}")
        g(f"{sk2}:\ns_memrealtime s[{sPC}:{sPC+1}]\ns_waitcnt lgkmcnt(0)\ns_sub_u32 s{sT2}, s{sPC}, s{STAMP_SLOTS[0]}\ns_cmp_lt_u32 s{sT2}, s{sT1}\ns_cbranch_scc1 {sk2}")
        g(f"{sk}:")
    if opt.get('spinrel'):
        a_, b_, mult, shift = opt['spinrel']
        sk = w0(g); sk2 = g.lab("L_sq")
        g(f"s_cmp_lg_u32 s2, {opt.get('spinwg', 0)}\ns_cbranch_scc1 {sk}\ns_waitcnt vmcnt(0) lgkmcnt(0)")
        g(f"s_sub_u32 s{sT1}, s{STAMP_SLOTS[b_]}, s{STAMP_SLOTS[a_]}\ns_mul_i32 s{sT1}, s{sT1}, {mult}\ns_lshr_b32 s{sT1}, s{sT1}, {shift}")
        g(f"s_memrealtime s[{sSC}:{sSC+1}]\ns_waitcnt lgkmcnt(0)")
        g(f"{sk2}:\ns_memrealtime s[{sPC}:{sPC+1}]\ns_waitcnt lgkmcnt(0)\ns_sub_u32 s{sT2}, s{sPC}, s{sSC}\ns_cmp_lt_u32 s{sT2}, s{sT1}\ns_cbranch_scc1 {sk2}")
        g(f"{sk}:")
    g("L_abort:\ns_endpgm")
    fallback(g, 0)
    fallback(g, 1)
    g("L_end:\ns_endpgm\nL_codeend:")
    hdr = open('gated_mix__mha_block__grouped_kv_mqa__prompt.s.ref').read().split("; Override launch")[0]
    out = hdr + "; One fused launch: projections, MQA and MHA attention, gated output projection.\n"
    out += "; @launch grid=(256,1,1) block=(512,1,1) lds=163840\n"
    out += f""".amdgcn_target "amdgcn-amd-amdhsa--gfx950"
.text
.globl {NAME}
.p2align 8
.type {NAME},@function
{NAME}:
{g.text()}.section .rodata,"a"
.p2align 6
.amdhsa_kernel {NAME}
  .amdhsa_next_free_vgpr 256
  .amdhsa_next_free_sgpr 102
  .amdhsa_accum_offset 256
  .amdhsa_group_segment_fixed_size 0
  .amdhsa_kernarg_size 96
  .amdhsa_user_sgpr_count 2
  .amdhsa_user_sgpr_kernarg_segment_ptr 1
  .amdhsa_system_sgpr_workgroup_id_x 1
.end_amdhsa_kernel
"""
    return out

if __name__ == "__main__":
    path = sys.argv[1] if len(sys.argv) > 1 else 'gated_mix__mha_block__grouped_kv_mqa__prompt.s'
    opt = {}
    for a in sys.argv[2:]:
        k, _, v = a.partition('=')
        opt[k] = eval(v) if v else True
    open(path, 'w').write(build(**opt))
```

```python
import sys, struct, copy
NAME = "gated_mix__mha_block__grouped_kv_mqa__prompt_kernel"

def f2h(x): return "0x%08x" % struct.unpack('<I', struct.pack('<f', x))[0]

WS_KVA  = 0x000000
WS_KVB  = 0x400000
WS_GATE = 0x420000
WS_F1   = 0x424000
WS_F2   = WS_F1 + 2048
WS_F3   = WS_F1 + 4096
WS_F4   = WS_F1 + 6144
WS_O    = 0x500000
WS_DBG  = 0x900000
WS_SIZE = 0x1000000

SLOT = 16384
LDS_WST = 65536
LDS_EW  = 8 * SLOT
LDS_ER  = 9 * SLOT
LDS_EG  = 9 * SLOT + 8192
LDS_EX  = 3 * SLOT
LDS_WOB = 2 * SLOT
LDS_WOA = 6 * SLOT

sW, sHP, sTB, sROT, sB = 3, 4, 5, 6, 7
rX, rWS_, rWKV, rGATE, rWS, rDBG, rOUT, rWOA, rWOB = 8, 12, 16, 20, 24, 28, 32, 36, 40
sMASK = 44
sI, sNONCE, sSPIN, sT0, sT1, sT2 = 46, 47, 48, 49, 50, 51
pX, pWQKV, pWOA, pBX, pWQ, pWK, pWV, pWOB, pGATE, pOUT, pDBG, pWS = 52, 54, 56, 58, 60, 62, 64, 66, 68, 70, 72, 74
sXO, sWO, sWSTEP, sW16, sMX, sMW, sKX, sKW = 76, 77, 78, 79, 80, 81, 82, 83
sOF = 76
sPC = 84
sFBBASE, sKV, sFBT, sDMA, sOST, sT3 = 86, 87, 88, 89, 90, 91
sKV1, sSC = 98, 100
sPOLL, sDS = 92, 93
sST = 94
vIDX, vAK, vAV, vG, vL16, vVOFF = 2, 3, 4, 5, 6, 7
vT = 8
S0, S1, C, QA, QB = 16, 32, 64, 80, 84
OACC = (112, 48)
STMP, KTMP = (128, 144, 160, 176), 192
STB = (32, 16, 128, 208)
FB_S, FB_C, FB_K, FB_V0, FB_V1 = 176, 160, 144, 148, 152
KF, V0, V1 = (88, 92), (96, 100), (104, 108)
OF = 112
ACC = 144
PF = 176
WF = 16
vAX = 240
vAW1, vAWQ, vDX0, vDX1, vDW, vKVST = 244, 245, 246, 247, 248, 249
vDWO, vRR, vOUTA = 224, 225, 226
vAT = 228
vFL, vNON, vDUMMY = 250, 251, 251
vPOLL = 252
QSCALE = 0.25 * 1.4426950408889634
MOFF = 102.0
SPIN = 1 << 20

STAMP_SLOTS = [94, 96, 52, 54, 58, 60, 62, 64, 68, 72, 74, 56]
class G:
    def __init__(s, **opt):
        s.L = []; s.lg = []; s.vm = []; s.opt = opt; s.nlab = 0; s.nst = 0
    def __call__(s, txt):
        for line in txt.split("\n"):
            line = line.strip()
            if not line: continue
            s.L.append(line if (line.endswith(":") or line.startswith(".")) else "    " + line)
    def lab(s, p="L"):
        s.nlab += 1; return f"{p}_{s.nlab}"
    def ds(s, txt, tag=None):
        s(txt); s.lg.append(tag); assert len(s.lg) <= 15, "lgkm overflow"
    def wlg(s, tag=None):
        if tag is None:
            s("s_waitcnt lgkmcnt(0)"); s.lg = []; return
        if tag not in s.lg: return
        i = len(s.lg) - 1 - s.lg[::-1].index(tag)
        n = len(s.lg) - 1 - i
        s(f"s_waitcnt lgkmcnt({n})"); s.lg = s.lg[i + 1:]
    def vmop(s, txt, tag=None):
        s(txt); s.vm.append(tag); assert len(s.vm) <= 63
    def wvm(s, tag=None):
        if tag is None:
            s("s_waitcnt vmcnt(0)"); s.vm = []; return
        if tag not in s.vm: return
        i = len(s.vm) - 1 - s.vm[::-1].index(tag)
        n = len(s.vm) - 1 - i
        s(f"s_waitcnt vmcnt({n})"); s.vm = s.vm[i + 1:]
    def srd(s, d, base, nbytes):
        s(f"s_mov_b32 s{d}, s{base}\ns_and_b32 s{d+1}, s{base+1}, 0xffff\ns_mov_b32 s{d+2}, {nbytes}\ns_mov_b32 s{d+3}, 0x00020000")
    def stamp(s, name):
        if not s.opt.get('stamps'): return
        if name not in s.opt.get('at', ('setup', 'p1', 'bstart', 'B', 'A', 'poll', 'mm', 'end')): return
        ins = "s_memtime" if s.opt.get('stamps') == 2 else "s_memrealtime"
        slot = STAMP_SLOTS[s.nst]
        assert slot >= 94 or name not in ('entry', 'karg')
        s(f"{ins} s[{slot}:{slot+1}]")
        s.nst += 1
    def jitter(s, salt):
        j = s.opt.get('jitter')
        if not j: return
        lp, sk = s.lab("L_j"), s.lab("L_jk")
        if salt % 2: s(f"s_lshl_b32 s{sT2}, s2, 3\ns_add_u32 s{sT2}, s{sT2}, s{sW}")
        else: s(f"s_mov_b32 s{sT2}, s2")
        s(f"s_add_u32 s{sT2}, s{sT2}, {salt * 7919 + j * 104729}\ns_mul_i32 s{sT1}, s{sT2}, 0x9e3779b1\ns_lshr_b32 s{sT1}, s{sT1}, 27")
        s(f"{lp}:\ns_sub_u32 s{sT1}, s{sT1}, 1\ns_cbranch_scc1 {sk}\ns_sleep 8\ns_branch {lp}\n{sk}:")
    def text(s): return "\n".join(s.L) + "\n"

def r(a, n): return f"v[{a}:{a+n-1}]"
def sr(a, n=4): return f"s[{a}:{a+n-1}]"

def spin_check(g):
    g(f"s_sub_u32 s{sSPIN}, s{sSPIN}, 1\ns_cbranch_scc1 L_abort")

def setup(g):
    g(f"""
    s_cmp_ge_u32 s2, 256
    s_cbranch_scc1 L_end
    """)
    g.stamp('entry')
    g(f"""
    s_load_dwordx16 s[52:67], s[0:1], 0
    s_load_dwordx8 s[68:75], s[0:1], 64
    v_lshrrev_b32 v{vT+1}, 6, v0
    v_and_b32 v1, 63, v0
    s_getpc_b64 s[{sPC}:{sPC+1}]
    L_pc:
    v_readfirstlane_b32 s{sW}, v{vT+1}
    s_and_b32 s{sT0}, s2, 0xf8
    s_add_u32 s{sT0}, s{sT0}, s{sW}
    s_lshl_b32 s{sT0}, s{sT0}, 7
    s_min_u32 s{sT0}, s{sT0}, L_codeend-L_pc-4
    {'' if g.opt.get('nopf') else f's_load_dword s{sFBT}, s[{sPC}:{sPC+1}], s{sT0}'}
    s_bfe_u32 s{sTB}, s2, 0x20001
    s_lshl_b32 s{sTB}, s{sTB}, 2
    s_bfe_u32 s{sT0}, s2, 0x20003
    s_add_u32 s{sTB}, s{sTB}, s{sT0}
    s_and_b32 s{sHP}, s2, 1
    s_lshl_b32 s{sHP}, s{sHP}, 3
    s_lshr_b32 s{sT0}, s2, 5
    s_add_u32 s{sHP}, s{sHP}, s{sT0}
    s_lshl_b32 s{sROT}, s{sTB}, 1
    s_add_u32 s{sROT}, s{sROT}, s{sHP}
    s_and_b32 s{sROT}, s{sROT}, {g.opt.get('rotmask', 4)}
    s_lshr_b32 s{sB}, s{sW}, 2
    s_and_b32 s{sI}, s{sW}, 3
    v_lshlrev_b32 v{vL16}, 4, v1
    """)
    g(f"""
    v_and_b32 v{vT+2}, 15, v1
    v_lshrrev_b32 v{vT+3}, 4, v1
    v_lshlrev_b32 v{vT+1}, 4, v{vT+3}
    v_lshl_add_u32 v{vT}, v{vT+2}, 10, v{vT+1}
    """)
    g(f"""
    v_lshrrev_b32 v{vT+4}, 3, v1
    v_and_b32 v{vT+5}, 7, v1
    v_lshrrev_b32 v{vT+6}, 4, v1
    v_xor_b32 v{vT+5}, v{vT+5}, v{vT+6}
    v_lshlrev_b32 v{vT+4}, 10, v{vT+4}
    v_lshl_add_u32 v{vDX0}, v{vT+5}, 4, v{vT+4}
    v_xor_b32 v{vDX1}, 64, v{vDX0}
    v_add_u32 v{vDX1}, 0x2000, v{vDX1}
    """)
    g(f"""
    s_lshr_b32 s{sT0}, s{sW}, 1
    s_cmp_eq_u32 s{sT0}, 3
    s_movk_i32 s{sT2}, 3072
    s_cselect_b32 s{sT1}, 1024, s{sT2}
    s_cselect_b32 s{sT2}, 2, 0
    s_lshl_b32 s{sWSTEP}, s{sT1}, 6
    s_lshl_b32 s{sMX}, s{sW}, 11
    s_add_u32 s{sMW}, s{sMX}, {LDS_WST}
    s_cmp_lg_u32 s{sB}, 0
    s_cbranch_scc1 L_su_q
    v_bfe_u32 v{vT+4}, v1, 2, 1
    v_bfe_u32 v{vT+5}, v1, 4, 1
    v_xor_b32 v{vT+4}, v{vT+4}, v{vT+5}
    v_and_b32 v{vT+5}, 3, v1
    v_lshl_add_u32 v{vT+5}, v{vT+4}, 2, v{vT+5}
    v_lshrrev_b32 v{vT+4}, 3, v1
    s_movk_i32 s{sW16}, 24576
    s_and_b32 s{sT2}, s{sHP}, 1
    s_add_u32 s{sT2}, s{sT2}, 1
    s_lshl_b32 s{sT2}, s{sT2}, 10
    s_lshr_b32 s{sWO}, s{sHP}, 1
    s_lshl_b32 s{sWO}, s{sWO}, 7
    s_add_u32 s{sWO}, s{sWO}, s{sT2}
    s_mul_i32 s{sT3}, s{sW}, 49152
    s_branch L_su_j
    L_su_q:
    v_lshrrev_b32 v{vT+4}, 2, v1
    v_and_b32 v{vT+5}, 3, v1
    v_xor_b32 v{vT+5}, s{sT2}, v{vT+5}
    s_lshl_b32 s{sW16}, s{sT1}, 4
    s_lshl_b32 s{sWO}, s{sHP}, 6
    s_and_b32 s{sT2}, s{sW}, 1
    s_mul_i32 s{sT3}, s{sT2}, s{sW16}
    s_lshl_b32 s{sT3}, s{sT3}, 1
    L_su_j:
    s_add_u32 s{sWO}, s{sWO}, s{sT3}
    v_mul_u32_u24 v{vT+4}, s{sT1}, v{vT+4}
    v_lshl_add_u32 v{vDW}, v{vT+5}, 4, v{vT+4}
    s_lshl_b32 s{sXO}, s{sTB}, 17
    s_lshl_b32 s{sT2}, s{sW}, 14
    s_add_u32 s{sXO}, s{sXO}, s{sT2}
    s_lshl_b32 s{sKX}, s{sROT}, 7
    s_mul_i32 s{sKW}, s{sROT}, s{sWSTEP}
    """)
    g(f"""
    s_lshr_b32 s{sT2}, s{sHP}, 1
    s_lshl_b32 s{sT2}, s{sT2}, 14
    s_lshl_b32 s{sDMA}, s{sTB}, 17
    s_add_u32 s{sDMA}, s{sDMA}, s{sT2}
    s_lshl_b32 s{sT2}, s{sW}, 7
    s_add_u32 s{sDMA}, s{sDMA}, s{sT2}
    s_mov_b32 s{sOST}, s{sT2}
    """)
    for k in range(8): g(f"v_mov_b32 v{40+k}, 0")
    g(f"v_mov_b32 v{vFL}, 0")
    g("s_waitcnt lgkmcnt(0)")
    g.stamp('karg')
    g.jitter(1)
    g.srd(rX, pX, 2097152)
    g(f"s_cmp_eq_u32 s{sT0}, 3\ns_cselect_b64 s[{rWS_}:{rWS_+1}], s[{pWQ}:{pWQ+1}], s[{pWQKV}:{pWQKV+1}]")
    g(f"s_mov_b32 s{rWS_+2}, 1572864\ns_cselect_b32 s{rWS_+2}, 524288, s{rWS_+2}\ns_and_b32 s{rWS_+1}, s{rWS_+1}, 0xffff\ns_mov_b32 s{rWS_+3}, 0x00020000")
    def early_loads():
        g(f"s_bitcmp1_b32 s{sHP}, 0\ns_cselect_b64 s[{rWKV}:{rWKV+1}], s[{pWV}:{pWV+1}], s[{pWK}:{pWK+1}]")
        g(f"s_and_b32 s{rWKV+1}, s{rWKV+1}, 0xffff\ns_mov_b32 s{rWKV+2}, 16384\ns_mov_b32 s{rWKV+3}, 0x00020000")
        g(f"s_add_u32 m0, s{sMX}, {LDS_EW}")
        g.srd(rGATE, pGATE, 1024)
        g.vmop(f"buffer_load_dwordx4 v{vL16}, {sr(rWKV)}, s{sMX} offen lds", 'e')
        g.vmop(f"buffer_load_dwordx4 v{vL16}, {sr(rWKV)}, s{sMX} offen offset:1024 lds", 'e')
        g(f"s_mov_b32 exec_lo, 0x00010001\ns_mov_b32 exec_hi, 0x00010001")
        g.vmop(f"buffer_load_dwordx4 v[40:43], v{vT+1}, {sr(rGATE)}, s{sOST} offen", 'e')
        g.vmop(f"buffer_load_dwordx4 v[44:47], v{vT+1}, {sr(rGATE)}, s{sOST} offen offset:64", 'e')
        g("s_mov_b64 exec, -1")
        g(f"s_add_u32 m0, s{sMX}, {LDS_EX}\ns_nop 0")
        g.vmop(f"buffer_load_dwordx4 v{vDX0}, {sr(rX)}, s{sDMA} offen lds", 'e')
        g(f"s_add_u32 m0, s{sMX}, {LDS_EX + 1024}\ns_nop 0")
        g.vmop(f"buffer_load_dwordx4 v{vDX1}, {sr(rX)}, s{sDMA} offen lds", 'e')
    nonce_scan(g)
    early_loads()
    if g.opt.get('spf', 0): scalar_prefetch(g)
    g("s_barrier")
    g(f"s_mov_b32 s{sMASK}, 0x0000ffff\ns_mov_b32 s{sMASK+1}, 0x0000ffff\ns_mov_b32 s{sSPIN}, {SPIN}\ns_mov_b32 s{sNONCE}, 0")
    if g.opt.get('pre', 1): p1_addr(g)
    early_addr(g)
    runall(p1_dma(g, 0))
    g.srd(rWS, pWS, WS_SIZE)
    g.srd(rDBG, pDBG, 256)
    nonce_producer(g)
    g.stamp('setup')
    g.jitter(2)
    early_compute(g)
    g("s_barrier")
    g.stamp('early')
    runall(p1_dma(g, 1))
    early_reduce(g)
    if not g.opt.get('pre', 1): p1_addr(g)


def p1_dma(g, j):
    p = j & 3
    def f0():
        g(f"s_add_u32 m0, s{sMX}, {p*SLOT}\ns_add_u32 s{sDS}, s{sXO}, s{sKX}")
        g.vmop(f"buffer_load_dwordx4 v{vDX0}, {sr(rX)}, s{sDS} offen lds", f'c{j}')
    def f1():
        g(f"s_add_u32 m0, s{sMX}, {p*SLOT+1024}\ns_add_u32 s{sPOLL+0 if False else sT3}, s{sWO}, s{sKW}")
        g.vmop(f"buffer_load_dwordx4 v{vDX1}, {sr(rX)}, s{sDS} offen lds", f'c{j}')
    def f2():
        g(f"s_add_u32 m0, s{sMW}, {p*SLOT}\ns_add_u32 s{sDS}, s{sT3}, s{sW16}")
        g.vmop(f"buffer_load_dwordx4 v{vDW}, {sr(rWS_)}, s{sT3} offen lds", f'c{j}')
    def f3():
        g(f"s_add_u32 m0, s{sMW}, {p*SLOT+1024}\ns_add_u32 s{sKW}, s{sKW}, s{sWSTEP}")
        g.vmop(f"buffer_load_dwordx4 v{vDW}, {sr(rWS_)}, s{sDS} offen lds", f'c{j}')
        if j < 7:
            g(f"s_add_u32 s{sKX}, s{sKX}, 128\ns_and_b32 s{sKX}, s{sKX}, 1023\ns_cselect_b32 s{sKW}, s{sKW}, 0")
    return [f0, f1, f2, f3]

def scalar_prefetch(g):
    P = sPC
    def base(ptr, off): g(f"s_add_u32 s{P}, s{ptr}, s{off}\ns_addc_u32 s{P+1}, s{ptr+1}, 0")
    g(f"s_and_b32 s{sT1}, s{sHP}, 3\ns_lshl_b32 s{sT1}, s{sT1}, 3\ns_add_u32 s{sT1}, s{sT1}, s{sW}\ns_lshl_b32 s{sT1}, s{sT1}, 12\ns_lshl_b32 s{sT2}, s{sTB}, 17\ns_add_u32 s{sT1}, s{sT1}, s{sT2}\ns_add_u32 s{sT1}, s{sT1}, s{sKX}")
    base(pX, sT1)
    for j in range(4): g(f"s_load_dword s{sFBT}, s[{P}:{P+1}], {j*1024}")
    g(f"s_lshl_b32 s{sT1}, s{sROT}, 1\ns_and_b32 s{sT2}, s{sTB}, 1\ns_add_u32 s{sT1}, s{sT1}, s{sT2}\ns_lshl_b32 s{sT1}, s{sT1}, 3\ns_add_u32 s{sT1}, s{sT1}, s{sW}\ns_mul_i32 s{sT1}, s{sT1}, {4*3072}")
    g(f"s_lshr_b32 s{sT3}, s{sHP}, 1\ns_lshl_b32 s{sT3}, s{sT3}, 7\ns_add_u32 s{sT1}, s{sT1}, s{sT3}\ns_and_b32 s{sT2}, s{sHP}, 1\ns_add_u32 s{sT2}, s{sT2}, 1\ns_lshl_b32 s{sT2}, s{sT2}, 10\ns_add_u32 s{sT1}, s{sT1}, s{sT2}")
    base(pWQKV, sT1)
    for j in range(4): g(f"s_load_dword s{sFBT}, s[{P}:{P+1}], {j*3072}")
    g(f"s_lshl_b32 s{sT1}, s{sROT}, 1\ns_and_b32 s{sT2}, s{sHP}, 1\ns_add_u32 s{sT1}, s{sT1}, s{sT2}\ns_lshl_b32 s{sT1}, s{sT1}, 1\ns_and_b32 s{sT2}, s{sTB}, 1\ns_add_u32 s{sT1}, s{sT1}, s{sT2}\ns_lshl_b32 s{sT1}, s{sT1}, 3\ns_add_u32 s{sT1}, s{sT1}, s{sW}")
    g(f"s_mul_i32 s{sT2}, s{sT1}, {2*3072}\ns_add_u32 s{sT2}, s{sT2}, s{sT3}")
    base(pWQKV, sT2)
    for j in range(2): g(f"s_load_dword s{sFBT}, s[{P}:{P+1}], {j*3072}")
    g(f"s_lshl_b32 s{sT1}, s{sT1}, 11\ns_add_u32 s{sT1}, s{sT1}, s{sT3}")
    base(pWQ, sT1)
    for j in range(2): g(f"s_load_dword s{sFBT}, s[{P}:{P+1}], {j*1024}")

def nonce_scan(g):
    skip = g.lab("L_ns")
    g(f"s_cmp_lg_u32 s2, 0\ns_cbranch_scc1 {skip}\ns_cmp_lg_u32 s{sW}, 0\ns_cbranch_scc1 {skip}")
    g.srd(rWS, pWS, WS_SIZE)
    g(f"v_lshrrev_b32 v{vT+4}, 2, v1\nv_and_b32 v{vT+5}, 3, v1\nv_lshlrev_b32 v{vT+4}, 7, v{vT+4}\nv_lshl_add_u32 v{vT+4}, v{vT+5}, 4, v{vT+4}")
    g(f"s_mov_b32 s{sT1}, {WS_F1}")
    g(f"buffer_load_dwordx4 v[176:179], v{vT+4}, {sr(rWS)}, s{sT1} offen sc1")
    g(f"buffer_load_dwordx4 v[180:183], v{vT+4}, {sr(rWS)}, s{sT1} offen offset:2048 sc1")
    g(f"s_mov_b32 s{sT1}, {WS_F3}")
    g(f"buffer_load_dwordx4 v[184:187], v{vT+4}, {sr(rWS)}, s{sT1} offen sc1")
    g(f"{skip}:")

def nonce_producer(g):
    skip = g.lab("L_nn")
    g(f"s_cmp_lg_u32 s2, 0\ns_cbranch_scc1 {skip}\ns_cmp_lg_u32 s{sW}, 0\ns_cbranch_scc1 {skip}")
    g("s_waitcnt vmcnt(10)")
    g(f"v_readfirstlane_b32 s{sT1}, v176")
    lp = g.lab("L_nl")
    g(f"{lp}:\ns_add_u32 s{sT1}, s{sT1}, 1\ns_cbranch_scc1 {lp}")
    g(f"s_mov_b64 s[{sPC}:{sPC+1}], 0")
    for k in range(12):
        g(f"v_cmp_eq_u32 vcc, s{sT1}, v{176+k}\ns_or_b64 s[{sPC}:{sPC+1}], s[{sPC}:{sPC+1}], vcc")
    g(f"s_cbranch_scc1 {lp}")
    g(f"v_mov_b32 v192, s{sT1}\nv_mov_b32 v193, 0\ns_mov_b64 exec, 1")
    g(f"buffer_store_dword v192, v193, {sr(rDBG)}, 0 offen sc1\ns_mov_b64 exec, -1")
    g(f"{skip}:")

def p1_addr(g):
    g(f"""
    v_and_b32 v{vT+2}, 31, v1
    v_lshrrev_b32 v{vT+3}, 5, v1
    v_bfe_u32 v{vT+4}, v1, 1, 3
    v_xor_b32 v{vT+4}, v{vT+4}, v{vT+3}
    v_lshlrev_b32 v{vT+4}, 4, v{vT+4}
    v_lshl_add_u32 v{vT+4}, v{vT+2}, 7, v{vT+4}
    s_lshl_b32 s{sT1}, s{sI}, 12
    v_add_u32 v{vAX}, s{sT1}, v{vT+4}
    v_xor_b32 v{vAX+1}, 32, v{vAX}
    v_xor_b32 v{vAX+2}, 64, v{vAX}
    v_xor_b32 v{vAX+3}, 0x60, v{vAX}
    v_bfe_u32 v{vT+4}, v1, 2, 2
    v_and_b32 v{vT+5}, 3, v1
    v_lshlrev_b32 v{vT+5}, 3, v{vT+5}
    v_lshl_add_u32 v{vT+5}, v{vT+4}, 6, v{vT+5}
    v_lshl_add_u32 v{vT+5}, v{vT+3}, 9, v{vT+5}
    v_bfe_u32 v{vT+6}, v1, 4, 1
    v_bfe_u32 v{vT+7}, v1, 3, 1
    v_xor_b32 v{vT+7}, s{sB}, v{vT+7}
    v_lshlrev_b32 v{vT+7}, 6, v{vT+7}
    v_lshl_add_u32 v{vT+7}, v{vT+4}, 7, v{vT+7}
    v_lshl_add_u32 v{vT+7}, v{vT+3}, 10, v{vT+7}
    v_lshl_add_u32 v{vT+7}, v{vT+6}, 5, v{vT+7}
    v_and_b32 v{vT+2}, 3, v1
    v_lshl_add_u32 v{vT+7}, v{vT+2}, 3, v{vT+7}
    v_add_u32 v{vAW1}, {LDS_WST}, v{vT+7}
    v_xor_b32 v{vT+4}, s{sB}, v{vT+6}
    v_lshl_add_u32 v{vT+5}, v{vT+4}, 5, v{vT+5}
    v_lshl_add_u32 v{vT+5}, v{vT+6}, 12, v{vT+5}
    v_add_u32 v{vAWQ}, {LDS_WST + 8192}, v{vT+5}
    """)

def early_addr(g):
    g(f"""
    v_lshrrev_b32 v{vT+4}, 4, v1
    v_bfe_u32 v{vT+5}, v1, 2, 2
    v_lshl_add_u32 v{vT+4}, v{vT+4}, 3, v{vT+5}
    v_and_b32 v{vT+5}, 3, v1
    v_lshlrev_b32 v{vT+5}, 3, v{vT+5}
    v_lshl_add_u32 v{vT+4}, v{vT+4}, 5, v{vT+5}
    s_add_u32 s{sT1}, s{sMX}, {LDS_EW}
    v_add_u32 v{vT+6}, s{sT1}, v{vT+4}
    s_lshl_b32 s{sT1}, s{sW}, 10
    s_add_u32 s{sT1}, s{sT1}, {LDS_ER}
    v_add_u32 v{vT+7}, s{sT1}, v{vL16}
    s_lshl_b32 s{sT1}, s{sW}, 8
    s_add_u32 s{sT1}, s{sT1}, {LDS_EG}
    v_lshlrev_b32 v{vT+5}, 2, v1
    v_add_u32 v{vT+5}, s{sT1}, v{vT+5}
    """)
    g(f"""
    v_and_b32 v{vT}, 15, v1
    v_lshrrev_b32 v{vT+1}, 4, v1
    v_bfe_u32 v{vT+2}, v1, 1, 3
    v_xor_b32 v{vT+1}, v{vT+1}, v{vT+2}
    v_lshlrev_b32 v{vT+1}, 4, v{vT+1}
    v_lshl_add_u32 v{vT}, v{vT}, 7, v{vT+1}
    s_add_u32 s{sT1}, s{sMX}, {LDS_EX}
    v_add_u32 v{vT}, s{sT1}, v{vT}
    v_xor_b32 v{vT+1}, 64, v{vT}
    """)

def early_compute(g):
    g.wvm('e')
    g.wlg()
    g.ds(f"ds_read_b128 v[16:19], v{vT}", 'ew')
    g.ds(f"ds_read_b128 v[20:23], v{vT+1}", 'ew')
    for s_ in range(2):
        for e in range(2):
            g.ds(f"ds_read_b64_tr_b16 v[{24+4*s_+2*e}:{25+4*s_+2*e}], v{vT+6} offset:{s_*1024+e*128}", 'ew')
    g.wlg('ew')
    lv, le = g.lab("L_ev"), g.lab("L_ee")
    g(f"s_bitcmp1_b32 s{sHP}, 0\ns_cbranch_scc1 {lv}")
    g("v_mfma_f32_16x16x32_bf16 v[32:35], v[24:27], v[16:19], 0")
    g("v_mfma_f32_16x16x32_bf16 v[36:39], v[40:43], v[16:19], 0")
    g("v_mfma_f32_16x16x32_bf16 v[32:35], v[28:31], v[20:23], v[32:35]")
    g("v_mfma_f32_16x16x32_bf16 v[36:39], v[44:47], v[20:23], v[36:39]")
    g(f"s_branch {le}\n{lv}:")
    g("v_mfma_f32_16x16x32_bf16 v[32:35], v[16:19], v[24:27], 0")
    g("v_mov_b32 v36, 0")
    g("v_mfma_f32_16x16x32_bf16 v[32:35], v[20:23], v[28:31], v[32:35]")
    g(f"{le}:\ns_nop 7")
    g.ds(f"ds_write_b128 v{vT+7}, v[32:35]", 'ep')
    g.ds(f"ds_write_b32 v{vT+5}, v36", 'ep')
    g.wlg()

def early_reduce(g):
    skip = g.lab("L_er")
    g(f"s_cmp_lg_u32 s{sW}, 0\ns_cbranch_scc1 {skip}")
    g(f"v_add_u32 v{vT+4}, {LDS_ER}, v{vL16}\nv_lshlrev_b32 v{vT+5}, 2, v1\nv_add_u32 v{vT+5}, {LDS_EG}, v{vT+5}")
    for k in range(8): g(f"ds_read_b128 v[{16+4*k}:{19+4*k}], v{vT+4} offset:{k*1024}")
    g("s_waitcnt lgkmcnt(0)")
    for k in range(8): g(f"ds_read_b32 v{64+k}, v{vT+5} offset:{k*256}")
    g(f"""
    s_lshr_b32 s{sT0}, s{sHP}, 1
    s_lshl_b32 s{sT1}, s{sTB}, 2
    s_lshr_b32 s{sT2}, s{sT0}, 1
    s_add_u32 s{sT1}, s{sT1}, s{sT2}
    s_lshr_b32 s{sT2}, s{sT1}, 3
    s_lshl_b32 s{sT2}, s{sT2}, 14
    s_and_b32 s{sT1}, s{sT1}, 7
    s_lshl_b32 s{sT1}, s{sT1}, 10
    s_add_u32 s{sT1}, s{sT1}, s{sT2}
    s_add_u32 s{sT1}, s{sT1}, {WS_KVB}
    s_and_b32 s{sT0}, s{sT0}, 1
    v_and_b32 v{vT}, 15, v1
    v_bfe_u32 v{vT+1}, v1, 4, 1
    v_lshrrev_b32 v{vT+2}, 5, v1
    v_lshlrev_b32 v{vT+2}, 3, v{vT+2}
    """)
    for k in range(1, 8):
        for q in range(4): g(f"v_add_f32 v{16+q}, v{16+q}, v{16+4*k+q}")
    g("v_cvt_pk_bf16_f32 v16, v16, v17\nv_cvt_pk_bf16_f32 v17, v18, v19")
    lv, le = g.lab("L_rv"), g.lab("L_re")
    g(f"s_bitcmp1_b32 s{sHP}, 0\ns_cbranch_scc1 {lv}")
    if True:
        g(f"""
        v_and_b32 v{vT+3}, 3, v{vT}
        v_bfe_u32 v{vT+6}, v{vT}, 2, 1
        v_lshl_add_u32 v{vT+3}, v{vT+6}, 3, v{vT+3}
        v_bfe_u32 v{vT+6}, v{vT}, 3, 1
        v_lshl_add_u32 v{vT+3}, v{vT+6}, 2, v{vT+3}
        v_lshl_add_u32 v{vT+3}, v{vT+1}, 5, v{vT+3}
        v_lshl_add_u32 v{vT+3}, v{vT+3}, 4, v{vT+2}
        s_lshl_b32 s{sT0}, s{sT0}, 8
        s_add_u32 s{sT1}, s{sT1}, s{sT0}
        buffer_store_dwordx2 v[16:17], v{vT+3}, {sr(rWS)}, s{sT1} offen sc1
        s_waitcnt lgkmcnt(0)
        """)
        for k in range(1, 8): g(f"v_add_f32 v64, v64, v{64+k}")
        g(f"""
        v_mul_f32 v64, {f2h(-1.4426950408889634)}, v64
        v_exp_f32 v64, v64
        s_lshr_b32 s{sT0}, s{sHP}, 1
        s_lshl_b32 s{sT0}, s{sT0}, 6
        v_add_f32 v64, 1.0, v64
        v_rcp_f32 v64, v64
        s_lshl_b32 s{sT1}, s{sTB}, 9
        s_add_u32 s{sT1}, s{sT1}, s{sT0}
        s_add_u32 s{sT1}, s{sT1}, {WS_GATE}
        v_lshlrev_b32 v{vT+3}, 2, v1
        s_mov_b64 exec, 0xffff
        buffer_store_dword v64, v{vT+3}, {sr(rWS)}, s{sT1} offen sc1
        s_mov_b64 exec, -1
        s_branch {le}
        {lv}:
        """)
        g(f"""
    v_lshl_add_u32 v{vT+3}, v{vT+1}, 4, v{vT}
    v_lshl_add_u32 v{vT+3}, v{vT+3}, 4, v{vT+2}
    s_lshl_b32 s{sT0}, s{sT0}, 9
    s_add_u32 s{sT1}, s{sT1}, s{sT0}
    s_add_u32 s{sT1}, s{sT1}, 8192
    buffer_store_dwordx2 v[16:17], v{vT+3}, {sr(rWS)}, s{sT1} offen sc1
    s_waitcnt lgkmcnt(0)
        """)
    g(f"{le}:\n{skip}:")

def get_nonce(g):
    lp, ok = g.lab("L_gn"), g.lab("L_gk")
    g(f"{lp}:\nv_readfirstlane_b32 s{sNONCE}, v{vNON}\ns_nop 3\ns_cmp_lg_u32 s{sNONCE}, 0\ns_cbranch_scc1 {ok}")
    spin_check(g)
    g(f"v_mov_b32 v{vT+3}, 0\nbuffer_load_dword v{vNON}, v{vT+3}, {sr(rDBG)}, 0 offen sc1\ns_waitcnt vmcnt(0)\ns_branch {lp}\n{ok}:")

def flag_store(g, off_expr_setup):
    g(off_expr_setup)
    g(f"v_mov_b32 v{vT}, s{sNONCE}\nv_mov_b32 v{vT+1}, 0\ns_mov_b64 exec, 1")
    g(f"buffer_store_dword v{vT}, v{vT+1}, {sr(rWS)}, s{sT1} offen sc1\ns_mov_b64 exec, -1")

def poll_issue(g, kind):
    if kind == 1:
        g(f"v_lshrrev_b32 v{vT}, 2, v1\nv_and_b32 v{vT+1}, 3, v1\nv_lshlrev_b32 v{vT}, 7, v{vT}\nv_lshl_add_u32 v{vFL}, v{vT+1}, 4, v{vT}\ns_mov_b32 s{sPOLL}, {WS_F1}")
    elif kind == 2:
        g(f"v_and_b32 v{vT}, 3, v1\nv_bfe_u32 v{vT+1}, v1, 2, 1\nv_lshlrev_b32 v{vT}, 4, v{vT}\nv_lshl_add_u32 v{vFL}, v{vT+1}, 7, v{vT}\ns_and_b32 s{sPOLL}, s{sHP}, 14\ns_lshl_b32 s{sPOLL}, s{sPOLL}, 7\ns_add_u32 s{sPOLL}, s{sPOLL}, {WS_F2}")
    elif kind == 3:
        g(f"v_and_b32 v{vT}, 3, v1\nv_lshlrev_b32 v{vFL}, 4, v{vT}\ns_lshl_b32 s{sPOLL}, s{sTB}, 7\ns_add_u32 s{sPOLL}, s{sPOLL}, {WS_F3}")
    else:
        g(f"v_mov_b32 v{vFL}, 0\ns_lshl_b32 s{sPOLL}, s{sTB}, 2\ns_add_u32 s{sPOLL}, s{sPOLL}, s{sI}\ns_lshl_b32 s{sPOLL}, s{sPOLL}, 7\ns_add_u32 s{sPOLL}, s{sPOLL}, {WS_F4}")
    g(f"buffer_load_dwordx4 {r(vPOLL,4)}, v{vFL}, {sr(rWS)}, s{sPOLL} offen sc1")

def poll_check(g):
    lp, ok = g.lab("L_pl"), g.lab("L_pk")
    g(f"{lp}:")
    for k in range(4): g(f"v_xor_b32 v{vPOLL+k}, s{sNONCE}, v{vPOLL+k}")
    g(f"v_or_b32 v{vPOLL}, v{vPOLL}, v{vPOLL+1}\nv_or3_b32 v{vPOLL}, v{vPOLL}, v{vPOLL+2}, v{vPOLL+3}\nv_cmp_ne_u32 vcc, 0, v{vPOLL}\ns_nop 4\ns_cbranch_vccz {ok}")
    spin_check(g)
    g(f"buffer_load_dwordx4 {r(vPOLL,4)}, v{vFL}, {sr(rWS)}, s{sPOLL} offen sc1\ns_waitcnt vmcnt(0)\ns_branch {lp}\n{ok}:")

def w0(g):
    skip = g.lab("L_w0")
    g(f"s_cmp_lg_u32 s{sW}, 0\ns_cbranch_scc1 {skip}")
    return skip

def kv_dma(g, src_expr, slot, tag):
    def setup(): g(f"s_lshl_b32 s{sT2}, s{sW}, 12\ns_add_u32 m0, s{sT2}, {slot*SLOT}"); g(src_expr)
    def op(e): return lambda: g.vmop(f"buffer_load_dwordx4 v{vL16}, {sr(rWS)}, s{sDS} offen offset:{e*1024} sc1 lds", tag)
    return [setup] + [op(e) for e in range(4)]
def dma_B(g, c, slot, tag):
    return kv_dma(g, f"s_add_u32 s{sDS}, s{sT2}, {WS_KVB + c*SLOT}", slot, tag)
def dma_A(g, c, slot, tag):
    return kv_dma(g, f"s_add_u32 s{sDS}, s{sDMA}, {WS_KVA + c*SLOT}", slot, tag)
def dma_Wo(g, rs, grp, ldsbase, tag):
    def setup(): g(f"s_lshl_b32 s{sDS}, s{sW}, 15\ns_and_b32 s{sT1}, s{sHP}, 7\ns_lshl_b32 s{sT1}, s{sT1}, 7\ns_add_u32 s{sDS}, s{sDS}, s{sT1}")
    def op(e):
        def f():
            g(f"s_lshl_b32 s{sT2}, s{sW}, 12\ns_add_u32 m0, s{sT2}, {ldsbase + grp*32768 + e*1024}\ns_add_u32 s{sT1}, s{sDS}, {grp*262144 + e*8192}")
            g.vmop(f"buffer_load_dwordx4 v{vDWO}, {sr(rs)}, s{sT1} offen lds", tag)
        return f
    return [setup] + [op(e) for e in range(4)]
def runall(fs):
    for f in fs: f()

def phase1(g, b):
    T1, TQ = ACC, ACC + 16
    def XF(s_): return PF + 12 * s_
    def W1(s_): return PF + 12 * s_ + 4
    def WQ(s_): return PF + 12 * s_ + 8
    def reads(p, s_):
        if g.opt.get('noread'): return
        g.ds(f"ds_read_b128 {r(XF(s_),4)}, v{vAX+s_} offset:{p*SLOT}", f'f{s_}')
        for e in range(2): g.ds(f"ds_read_b64_tr_b16 {r(W1(s_)+2*e,2)}, v{vAW1} offset:{p*SLOT+s_*2048+e*512}", f'f{s_}')
        for e in range(2): g.ds(f"ds_read_b64_tr_b16 {r(WQ(s_)+2*e,2)}, v{vAWQ} offset:{p*SLOT+s_*1024+e*256}", f'f{s_}')
    def mf(j, s_, qfirst=False):
        g.wlg(f'f{s_}')
        if g.opt.get('nomf'): return
        if g.opt.get('mf16'):
            for (D, A, B) in ((T1, W1(s_), XF(s_)), (TQ, WQ(s_), XF(s_)), (T1+4, WQ(s_), XF(s_)), (TQ+4, W1(s_), XF(s_))):
                D2 = D + 8 * (s_ & 1)
                g(f"v_mfma_f32_16x16x32_bf16 {r(D2,4)}, {r(A,4)}, {r(B,4)}, {'0' if j == 0 and s_ < 2 else r(D2,4)}")
            return
        c1 = "0" if (j == 0 and s_ == 0) else r(T1, 16)
        cq = "0" if (j == 0 and s_ == 0) else r(TQ, 16)
        if qfirst: g(f"v_mfma_f32_32x32x16_bf16 {r(TQ,16)}, {r(WQ(s_),4)}, {r(XF(s_),4)}, {cq}")
        if b == 0: g(f"v_mfma_f32_32x32x16_bf16 {r(T1,16)}, {r(W1(s_),4)}, {r(XF(s_),4)}, {c1}")
        else:      g(f"v_mfma_f32_32x32x16_bf16 {r(T1,16)}, {r(XF(s_),4)}, {r(W1(s_),4)}, {c1}")
        if g.opt.get('pad1'): g(f"s_nop {g.opt['pad1'] - 1}")
        if not qfirst: g(f"v_mfma_f32_32x32x16_bf16 {r(TQ,16)}, {r(WQ(s_),4)}, {r(XF(s_),4)}, {cq}")
        if g.opt.get('pad2'): g(f"s_nop {g.opt['pad2'] - 1}")
    f1chk = g.opt.get('f1chk', 6)
    def wait_c(j, extra0):
        if extra0 and f'c{j}' in g.vm:
            n = len(g.vm) - 1 - (len(g.vm) - 1 - g.vm[::-1].index(f'c{j}'))
            sk, dn = g.lab("L_wa"), g.lab("L_wb")
            g(f"s_cmp_eq_u32 s{sW}, 0\ns_cbranch_scc1 {sk}")
            g.wvm(f'c{j}')
            g(f"{sk}:\ns_waitcnt vmcnt({n + extra0})")
        else: g.wvm(f'c{j}')
    jf = g.opt.get('jflag', 2); pd3 = g.opt.get('pdist', 2) == 3
    for j in range(8):
        p = j & 3
        wait_c(j, {0: 1, 1: 2}.get(j, 0) if not (pd3 and j == 2) else 0)
        if j == jf:
            sk = w0(g)
            get_nonce(g)
            flag_store(g, f"s_lshl_b32 s{sT1}, s{sTB}, 7\ns_lshl_b32 s{sT2}, s{sHP}, 2\ns_add_u32 s{sT1}, s{sT1}, s{sT2}\ns_add_u32 s{sT1}, s{sT1}, {WS_F1}")
            g(f"{sk}:")
        if j == f1chk:
            sk = w0(g); poll_check(g); g(f"{sk}:")
        g.wlg()
        g("s_barrier")
        g.stamp(f'b{j}')
        if j in (1, 4, 6): g.jitter(3 + j)
        pd = g.opt.get('pdist', 2)
        dm = []
        if j + pd <= 7 and not (pd == 3 and j == 0): dm = p1_dma(g, j + pd)
        if pd == 3 and j == 0: dm = p1_dma(g, 2) + p1_dma(g, 3)
        if j == f1chk: dm = dma_B(g, 0, 8, 'B01')
        if len(dm) == 5: dm = [lambda a=dm[0], c=dm[1]: (a(), c())] + dm[2:]
        if len(dm) == 8: dm = [lambda a=dm[2*k], c=dm[2*k+1]: (a(), c()) for k in range(4)]
        dp = g.opt.get('dmpos', (1, 2, 3, 4))
        def issue(k):
            for q in range(len(dm)):
                if dp[q] == k: dm[q]()
        if j == f1chk - 1:
            sk = w0(g); poll_issue(g, 1); g(f"{sk}:")
        if j == 0:
            sk = w0(g)
            g(f"v_mov_b32 v{vT+3}, 0\nbuffer_load_dword v{vNON}, v{vT+3}, {sr(rDBG)}, 0 offen sc1\n{sk}:")
        issue(-1)
        reads(p, 0); reads(p, 1)
        issue(0)
        if j > 0: mf(j - 1, 3)
        issue(1)
        reads(p, 2)
        mf(j, 0)
        issue(2)
        reads(p, 3)
        mf(j, 1)
        issue(3)
        if j == 7:
            issue(4); break
        mf(j, 2)
        issue(4)
        if j == 0: attn_consts(g)
        if j == 1: kv_store_addr(g)
        if j == 3:
            g.srd(rOUT, pOUT, 2097152); g.srd(rWOA, pWOA, 524288); g.srd(rWOB, pWOB, 524288)
        if j == 4: tail_addr(g)
    g.wlg()
    g.wvm('B01')
    g("s_barrier")
    g.stamp('bstart')
    g.ds(f"ds_read_b128 {r(KF[0],4)}, v{vAK}", 'K0')
    g.ds(f"ds_read_b128 {r(KF[1],4)}, v{vAK} offset:1024", 'kv')
    g(f"s_mov_b64 exec, s[{sMASK}:{sMASK+1}]")
    g.ds(f"ds_read_b128 {r(V0[0],4)}, v{vAV}", 'kv')
    g.ds(f"ds_read_b128 {r(V1[0],4)}, v{vAV} offset:512", 'kv')
    g("s_mov_b64 exec, -1")
    g.wlg('never')
    mf(7, 2, True)
    for k in range(2, g.opt.get('m0t', 4)): g.ds(f"ds_read_b128 {r(KTMP+4*(k-2),4)}, v{vAK} offset:{k*1024}", 'kv')
    mf(7, 3, True)

def kv_store_addr(g):
    lv, le = g.lab("L_ka"), g.lab("L_kb")
    g(f"""
    s_and_b32 s{sT1}, s{sHP}, 14
    s_add_u32 s{sT1}, s{sT1}, s{sB}
    s_lshl_b32 s{sT1}, s{sT1}, 18
    s_lshr_b32 s{sT2}, s{sTB}, 1
    s_lshl_b32 s{sT2}, s{sT2}, 14
    s_add_u32 s{sT1}, s{sT1}, s{sT2}
    s_and_b32 s{sT2}, s{sTB}, 1
    s_lshl_b32 s{sT2}, s{sT2}, 2
    s_add_u32 s{sT2}, s{sT2}, s{sI}
    s_lshl_b32 s{sT2}, s{sT2}, 10
    s_add_u32 s{sKV}, s{sT1}, s{sT2}
    s_mov_b32 s{sSC}, {f2h(QSCALE)}
    s_mov_b32 s{sSC+1}, {f2h(QSCALE)}
    s_bitcmp1_b32 s{sHP}, 0
    s_cbranch_scc1 {lv}
    v_and_b32 v{vT}, 0x33, v1
    v_bfe_u32 v{vT+1}, v1, 2, 1
    v_lshl_or_b32 v{vT}, v{vT+1}, 3, v{vT}
    v_bfe_u32 v{vT+1}, v1, 3, 1
    v_lshl_or_b32 v{vT}, v{vT+1}, 2, v{vT}
    v_lshlrev_b32 v{vKVST}, 4, v{vT}
    s_add_u32 s{sKV1}, s{sKV}, 131072
    s_branch {le}
    {lv}:
    v_bfe_u32 v{vT}, v1, 4, 1
    v_lshlrev_b32 v{vT}, 17, v{vT}
    v_lshrrev_b32 v{vT+1}, 5, v1
    v_and_b32 v{vT+2}, 15, v1
    v_lshl_add_u32 v{vT+1}, v{vT+1}, 4, v{vT+2}
    v_lshl_add_u32 v{vKVST}, v{vT+1}, 4, v{vT}
    s_add_u32 s{sKV}, s{sKV}, 8192
    s_add_u32 s{sKV1}, s{sKV}, 512
    {le}:
    """)

def max_tree(Ss):
    regs = [S + k for S in Ss for k in range(16)]
    L = [f"v_max3_f32 v{vT}, v{regs[0]}, v{regs[1]}, v{regs[2]}", f"v_max3_f32 v{vT+1}, v{regs[3]}, v{regs[4]}, v{regs[5]}"]
    rest, k = regs[6:], 0
    while len(rest) >= 2:
        L.append(f"v_max3_f32 v{vT+k}, v{vT+k}, v{rest[0]}, v{rest[1]}"); rest = rest[2:]; k ^= 1
    L += [f"v_max_f32 v{vT}, v{vT}, v{vT+1}", f"v_mov_b32 v{vT+1}, v{vT}"]
    return L
def fill_c(Cr, off):
    L = [f"v_max_f32 v{vT}, v{vT}, v{vT+1}", f"v_sub_f32 v{Cr}, {f2h(-off)}, v{vT}", f"v_sub_f32 v{Cr+1}, {f2h(-off)}, v{vT}"]
    L += [f"v_mov_b64 v[{Cr+k}:{Cr+k+1}], v[{Cr}:{Cr+1}]" for k in range(2, 16, 2)]
    return "\n".join(L)
SWAP = f"v_permlane32_swap_b32 v{vT}, v{vT+1}"

def b_prologue(g):
    T1, TQ = ACC, ACC + 16
    g(f"v_mov_b64 v[{vT+4}:{vT+5}], -1\nv_mov_b64 v[{vT+6}:{vT+7}], -1\ns_nop 8")
    for k in range(8, 16, 2): g(f"v_pk_mul_f32 v[{TQ+k}:{TQ+k+1}], v[{TQ+k}:{TQ+k+1}], s[{sSC}:{sSC+1}]")
    for k in range(4): g(f"v_cvt_pk_bf16_f32 v{QB+k}, v{TQ+8+2*k}, v{TQ+9+2*k}")
    g.wlg('K0'); g("s_nop 0")
    nt = g.opt.get('m0t', 4)
    if nt > 1: g.wlg()
    for k in range(nt): g(f"v_mfma_f32_32x32x16_bf16 {r(STB[k],16)}, {r((KF[0], KF[1], KTMP, KTMP+4)[k],4)}, {r(QB,4)}, 0")
    for k in range(8): g(f"v_cvt_pk_bf16_f32 v{PF+k}, v{T1+2*k}, v{T1+2*k+1}")
    for k in range(0, 8, 2): g(f"v_pk_mul_f32 v[{TQ+k}:{TQ+k+1}], v[{TQ+k}:{TQ+k+1}], s[{sSC}:{sSC+1}]")
    L = max_tree(STB[:nt])
    for k, x in enumerate(L):
        g(x)
    g("s_nop 1")
    g(SWAP)
    g("s_nop 0")
    g(fill_c(C, g.opt.get('moff', MOFF)))
    g("s_nop 1")
    g(f"v_mfma_f32_32x32x16_bf16 {r(S0,16)}, {r(KF[0],4)}, {r(QB,4)}, {r(C,16)}")
    for k in range(4): g(f"v_cvt_pk_bf16_f32 v{QA+k}, v{TQ+2*k}, v{TQ+2*k+1}")
    g("s_nop 7")

def start_ops(g):
    def kv(k): return lambda: g.vmop(f"buffer_store_dwordx4 {r(PF+4*k,4)}, v{vKVST}, {sr(rWS)}, s{(sKV, sKV1)[k]} offen sc1", 'kvst')
    def sent():
        g(f"s_add_u32 s{sT1}, s{sOST}, {WS_O + 0x200000}")
        g.vmop(f"buffer_store_dwordx4 {r(vT+4,4)}, v{vL16}, {sr(rWS)}, s{sT1} offen sc1", 'sent')
    def gate():
        g(f"v_and_b32 v{vT}, 31, v1\nv_lshlrev_b32 v{vT}, 2, v{vT}\ns_lshl_b32 s{sT1}, s{sTB}, 2\ns_add_u32 s{sT1}, s{sT1}, s{sI}\ns_lshl_b32 s{sT1}, s{sT1}, 7\ns_add_u32 s{sT1}, s{sT1}, {WS_GATE}")
        g.vmop(f"buffer_load_dword v{vG}, v{vT}, {sr(rWS)}, s{sT1} offen sc1", 'gate')
    return kv(0), kv(1), sent, gate

def attn_consts(g):
    g(f"""
    v_mov_b32 v{vIDX}, 0xdddddddd
    v_lshrrev_b32 v{vT}, 5, v1
    v_and_b32 v{vT+1}, 15, v1
    v_lshl_add_u32 v{vT}, v{vT}, 4, v{vT+1}
    v_lshlrev_b32 v{vVOFF}, 4, v{vT}
    v_and_b32 v{vT}, 31, v1
    v_cmp_eq_u32 vcc, 16, v{vT}
    v_mov_b32 v{vT+1}, 0x3f803f80
    v_add_u32 v{vAK}, {8*SLOT}, v{vL16}
    v_cndmask_b32 v{vT+1}, 0, v{vT+1}, vcc
    v_add_u32 v{vAV}, {8*SLOT + 8192}, v{vVOFF}
    """)
    for k in range(16): g(f"v_mov_b32 v{V0[0]+k}, v{vT+1}")
    for Or in OACC:
        for k in range(0, 16, 2): g(f"v_mov_b64 v[{Or+k}:{Or+k+1}], 0")
    g(f"""
    s_lshl_b32 s{sT1}, s{sHP}, 1
    s_add_u32 s{sT1}, s{sT1}, s{sB}
    s_lshl_b32 s{sDMA}, s{sT1}, 17
    s_lshl_b32 s{sT2}, s{sI}, 12
    s_add_u32 s{sDMA}, s{sDMA}, s{sT2}
    s_lshl_b32 s{sT2}, s{sTB}, 2
    s_add_u32 s{sT2}, s{sT2}, s{sI}
    s_lshl_b32 s{sT2}, s{sT2}, 5
    s_add_u32 s{sT2}, s{sT2}, s{sT1}
    s_lshl_b32 s{sOST}, s{sT2}, 10
    """)

def tile(g, U, ev, pos):
    t = U & 7
    p = U & 1
    cur, nxt = (S0, S1) if p == 0 else (S1, S0)
    p1, pq, p0 = pos
    Qn = QB if U + 1 < 64 else QA
    def run(key):
        for f in ev.get((U, key), []): f()
    for i in range(16):
        if i == p1:
            if U > 0: g(f"v_smfmac_f32_32x32x32_bf16 {r(OACC[(U-1) >> 6],16)}, {r(V1[1-p],4)}, {r(nxt+8,8)}, v{vIDX}")
            run('m1')
            g.wlg()
            if U < 127:
                g(f"s_mov_b64 exec, s[{sMASK}:{sMASK+1}]")
                g.ds(f"ds_read_b128 {r(V0[1-p],4)}, v{vAV} offset:{((t + 1) & 7) * 1024}", 'kv')
                g.ds(f"ds_read_b128 {r(V1[1-p],4)}, v{vAV} offset:{((t + 1) & 7) * 1024 + 512}", 'kv')
                g("s_mov_b64 exec, -1")
            if U < 126: g.ds(f"ds_read_b128 {r(KF[p],4)}, v{vAK} offset:{((t + 2) & 7) * 1024}", 'kv')
            run('gap')
        if i == pq:
            if U < 127: g(f"v_mfma_f32_32x32x16_bf16 {r(nxt,16)}, {r(KF[1-p],4)}, {r(Qn,4)}, {r(C,16)}")
            run('mq')
        if i == p0:
            g(f"v_smfmac_f32_32x32x32_bf16 {r(OACC[U >> 6],16)}, {r(V0[p],4)}, {r(cur,8)}, v{vIDX}")
            run('m0')
        run(i)
        g(f"v_exp_f32 v{cur+i}, v{cur+i}")
    if U == 127:
        g("s_nop 1")
        g(f"v_smfmac_f32_32x32x32_bf16 {r(OACC[1],16)}, {r(V1[p],4)}, {r(cur+8,8)}, v{vIDX}")

def epilogue_parts(g, task):
    O = OACC[task]
    lo, hi = struct.unpack('<I', struct.pack('<f', 2.0**g.opt.get('lo', -110)))[0], struct.unpack('<I', struct.pack('<f', 2.0**120))[0]
    def p1():
        g(f"v_mov_b32 v{vT}, v{O+8}\nv_add_f32 v{vT+2}, |v{O}|, |v{O+1}|")
        for k in range(2, 8): g(f"v_add_f32 v{vT+2}, v{vT+2}, |v{O+k}|")
        g(f"v_permlane32_swap_b32 v{vT}, v{O+8}")
        g(f"v_subrev_u32 v{vT+2}, {lo}, v{vT+2}\ns_mov_b32 s{sT1}, {hi - lo}")
    def p2():
        g(f"v_subrev_u32 v{vT+3}, {lo}, v{vT}\nv_max_u32 v{vT+2}, v{vT+2}, v{vT+3}\nv_cmp_le_u32 vcc, s{sT1}, v{vT+2}")
        if g.opt.get('force_fb'): g("s_mov_b64 vcc, -1")
        g(f"s_nop 0\ns_cbranch_vccnz L_fallback{task}\nL_fbret{task}:\nv_rcp_f32 v{vT}, v{vT}")
        if task == 0: g(f"v_sub_f32 v{vT+3}, 1.0, v{vG}")
    def p3():
        g(f"v_mul_f32 v{vT}, v{vT}, v{vT+3 if task == 0 else vG}")
        for k in range(0, 8, 2): g(f"v_pk_mul_f32 v[{O+k}:{O+k+1}], v[{O+k}:{O+k+1}], v[{vT}:{vT+1}] op_sel_hi:[1,0]")
        for k in range(4): g(f"v_cvt_pk_bf16_f32 v{vT+4+k}, v{O+2*k}, v{O+2*k+1}")
        if task == 1:
            for k in range(4): g(f"v_min_u32 v{vT+4+k}, -2, v{vT+4+k}")
        g(f"s_add_u32 s{sT1}, s{sOST}, {WS_O + (0 if task == 0 else 0x200000)}")
        g.vmop(f"buffer_store_dwordx4 {r(vT+4,4)}, v{vL16}, {sr(rWS)}, s{sT1} offen sc1", 'ost')
    return p1, p2, p3

def fallback(g, task):
    Q, O = (QB, QA)[task], OACC[task]
    S_, C_, K_, A0, A1 = FB_S, FB_C, FB_K, FB_V0, FB_V1
    g(f"L_fallback{task}:")
    if g.opt.get('fbcount'):
        g(f"v_mov_b32 v{vT}, 1\nv_mov_b32 v{vT+1}, 0\ns_mov_b64 exec, 1\nbuffer_atomic_add v{vT}, v{vT+1}, {sr(rDBG)}, 0 offen offset:128\ns_mov_b64 exec, -1")
    if task == 0: g(f"s_mov_b32 s{sFBBASE}, {WS_KVB}")
    else: g(f"s_lshl_b32 s{sT1}, s{sI}, 12\ns_sub_u32 s{sFBBASE}, s{sDMA}, s{sT1}")
    g(f"v_and_b32 v{vT}, 31, v1\nv_cmp_eq_u32 vcc, 16, v{vT}\nv_mov_b32 v{vT+1}, 0x3f803f80\ns_nop 1\nv_cndmask_b32 v{vT+1}, 0, v{vT+1}, vcc")
    for k in range(8): g(f"v_mov_b32 v{A0+k}, v{vT+1}")
    g(f"v_mov_b32 v{vT}, 0xff800000\ns_mov_b32 s{sFBT}, 0")
    def addr():
        g(f"s_lshr_b32 s{sT1}, s{sFBT}, 3\ns_lshl_b32 s{sT1}, s{sT1}, 14\ns_and_b32 s{sT2}, s{sFBT}, 7\ns_lshl_b32 s{sT2}, s{sT2}, 10\ns_add_u32 s{sT1}, s{sT1}, s{sT2}\ns_add_u32 s{sT1}, s{sT1}, s{sFBBASE}")
    g(f"L_fb1_{task}:"); addr()
    g(f"buffer_load_dwordx4 {r(K_,4)}, v{vL16}, {sr(rWS)}, s{sT1} offen sc1\ns_waitcnt vmcnt(0)")
    g(f"v_mfma_f32_32x32x16_bf16 {r(S_,16)}, {r(K_,4)}, {r(Q,4)}, 0\ns_nop 15")
    for k in range(0, 16, 2): g(f"v_max3_f32 v{vT}, v{vT}, v{S_+k}, v{S_+k+1}")
    g(f"s_add_u32 s{sFBT}, s{sFBT}, 1\ns_cmp_lt_u32 s{sFBT}, 64\ns_cbranch_scc1 L_fb1_{task}")
    g(f"v_mov_b32 v{vT+1}, v{vT}\ns_nop 1\n{SWAP}\ns_nop 1")
    g(fill_c(C_, 0.0))
    for k in range(0, 16, 2): g(f"v_mov_b64 v[{O+k}:{O+k+1}], 0")
    g(f"s_mov_b32 s{sFBT}, 0")
    g(f"L_fb2_{task}:"); addr()
    g(f"buffer_load_dwordx4 {r(K_,4)}, v{vL16}, {sr(rWS)}, s{sT1} offen sc1\ns_add_u32 s{sT1}, s{sT1}, 8192")
    g(f"s_mov_b64 exec, s[{sMASK}:{sMASK+1}]")
    g(f"buffer_load_dwordx4 {r(A0,4)}, v{vVOFF}, {sr(rWS)}, s{sT1} offen sc1\nbuffer_load_dwordx4 {r(A1,4)}, v{vVOFF}, {sr(rWS)}, s{sT1} offen offset:512 sc1")
    g("s_mov_b64 exec, -1\ns_waitcnt vmcnt(0)")
    g(f"v_mfma_f32_32x32x16_bf16 {r(S_,16)}, {r(K_,4)}, {r(Q,4)}, {r(C_,16)}\ns_nop 15")
    for k in range(16): g(f"v_exp_f32 v{S_+k}, v{S_+k}")
    g("s_nop 2")
    g(f"v_smfmac_f32_32x32x32_bf16 {r(O,16)}, {r(A0,4)}, {r(S_,8)}, v{vIDX}")
    g(f"v_smfmac_f32_32x32x32_bf16 {r(O,16)}, {r(A1,4)}, {r(S_+8,8)}, v{vIDX}")
    g(f"s_nop 15\ns_add_u32 s{sFBT}, s{sFBT}, 1\ns_cmp_lt_u32 s{sFBT}, 64\ns_cbranch_scc1 L_fb2_{task}")
    g(f"v_mov_b32 v{vT}, v{O+8}\nv_mov_b32 v{vT+1}, v{O+8}\ns_nop 1\n{SWAP}\ns_nop 1\ns_branch L_fbret{task}")

def tail_addr(g):
    g(f"""
    v_lshrrev_b32 v{vT}, 3, v1
    v_bfe_u32 v{vT+1}, v1, 2, 1
    v_bfe_u32 v{vT+2}, v1, 4, 1
    v_xor_b32 v{vT+1}, v{vT+1}, v{vT+2}
    v_lshlrev_b32 v{vT+1}, 6, v{vT+1}
    v_lshl_add_u32 v{vT+1}, v{vT}, 10, v{vT+1}
    v_and_b32 v{vT+3}, 3, v1
    v_lshl_add_u32 v{vDWO}, v{vT+3}, 4, v{vT+1}
    v_lshrrev_b32 v{vT}, 5, v1
    v_bfe_u32 v{vT+1}, v1, 2, 2
    v_lshl_add_u32 v{vT}, v{vT}, 2, v{vT+1}
    v_lshlrev_b32 v{vT}, 7, v{vT}
    v_bfe_u32 v{vT+1}, v1, 3, 1
    v_lshl_add_u32 v{vT}, v{vT+1}, 6, v{vT}
    v_lshl_add_u32 v{vT}, v{vT+2}, 5, v{vT}
    v_lshl_add_u32 v{vT}, v{vT+3}, 3, v{vT}
    s_lshl_b32 s{sT1}, s{sI}, 13
    s_add_u32 s{sT1}, s{sT1}, {LDS_WOB}
    s_lshr_b32 s{sT2}, s{sHP}, 3
    s_lshl_b32 s{sT2}, s{sT2}, 15
    s_add_u32 s{sT1}, s{sT1}, s{sT2}
    v_add_u32 v{vAT+2}, s{sT1}, v{vT}
    v_xor_b32 v{vAT+3}, 64, v{vAT+2}
    s_lshl_b32 s{sT2}, s{sT2}, 1
    s_sub_u32 s{sT1}, s{sT1}, s{sT2}
    s_add_u32 s{sT1}, s{sT1}, 32768
    v_add_u32 v{vAT}, s{sT1}, v{vT}
    v_xor_b32 v{vAT+1}, 64, v{vAT}
    s_mul_i32 s{sT1}, s{sW}, 6144
    v_add_u32 v{vRR}, s{sT1}, v{vL16}
    s_lshl_b32 s{sT1}, s{sTB}, 7
    s_lshr_b32 s{sT2}, s{sHP}, 3
    s_lshl_b32 s{sT2}, s{sT2}, 6
    s_add_u32 s{sT1}, s{sT1}, s{sT2}
    s_lshl_b32 s{sT2}, s{sB}, 5
    s_add_u32 s{sT1}, s{sT1}, s{sT2}
    v_and_b32 v{vT}, 31, v1
    v_add_u32 v{vT}, s{sT1}, v{vT}
    v_lshlrev_b32 v{vT}, 10, v{vT}
    v_lshrrev_b32 v{vT+1}, 5, v1
    v_lshl_add_u32 v{vT}, v{vT+1}, 4, v{vT}
    s_and_b32 s{sT2}, s{sHP}, 7
    s_lshl_b32 s{sT2}, s{sT2}, 7
    s_lshl_b32 s{sT1}, s{sI}, 5
    s_add_u32 s{sT2}, s{sT2}, s{sT1}
    v_add_u32 v{vOUTA}, s{sT2}, v{vT}
    """)

def of_loads(g, branch, tag, dst=None):
    dst = OF if dst is None else dst
    def setup():
        g(f"""
        s_lshl_b32 s{sT1}, s{sTB}, 2
        s_lshr_b32 s{sT2}, s{sHP}, 3
        s_lshl_b32 s{sT2}, s{sT2}, 1
        s_add_u32 s{sT1}, s{sT1}, s{sT2}
        s_add_u32 s{sT1}, s{sT1}, s{sB}
        s_lshl_b32 s{sT1}, s{sT1}, 15
        s_lshl_b32 s{sT2}, s{sI}, 12
        s_add_u32 s{sT1}, s{sT1}, s{sT2}
        s_add_u32 s{sT1}, s{sT1}, {WS_O + branch*0x200000}
        s_lshr_b32 s{sT2}, s{sHP}, 3
        s_lshl_b32 s{sT2}, s{sT2}, 14
        s_add_u32 s{sOF+1}, s{sT1}, s{sT2}
        s_sub_u32 s{sT1}, s{sT1}, s{sT2}
        s_add_u32 s{sOF}, s{sT1}, 16384
        """)
    def op(n): return lambda: g.vmop(f"buffer_load_dwordx4 {r(dst+4*n,4)}, v{vL16}, {sr(rWS)}, s{sOF + (n >> 2)} offen offset:{(n&3)*1024} sc1", f'{tag}{n}')
    return [setup] + [op(n) for n in range(8)]

def wfrag_reads(g, n, base, tag):
    for tc in range(2):
        for e in range(2):
            g.ds(f"ds_read_b64_tr_b16 {r(WF+8*n+4*tc+2*e,2)}, v{vAT+2*(n>>2)+tc} offset:{base+(n&3)*2048+e*1024}", f'{tag}{n}')

def tail(g):
    OA = PF
    p1, p2, p3 = epilogue_parts(g, 1)
    fa = of_loads(g, 1, 'OA', OA)
    oat = list(g.opt.get('oat', (8, 8, 8, 8, 9, 9, 10, 10)))
    for n in range(3): wfrag_reads(g, n, 0, 'w')
    p1(); g("s_nop 0"); p2(); fa[0](); p3()
    g.stamp('A')
    g.jitter(200)
    g.wvm('WoA1')
    g("s_barrier")
    g.stamp('T1')
    DA = LDS_WOA - LDS_WOB
    nload = 0
    for n in range(8):
        g.wlg(f'w{n}')
        for tc in range(2):
            c = "0" if n == 0 else r(ACC+16*tc, 16)
            g(f"v_mfma_f32_32x32x16_bf16 {r(ACC+16*tc,16)}, {r(WF+8*n+4*tc,4)}, {r(OF+4*n,4)}, {c}")
        if n + 3 < 8: wfrag_reads(g, n + 3, 0, 'w')
        else: wfrag_reads(g, n - 5, 0, 'x')
        if n in (1, 5):
            for k in range(2): g(f"v_add_u32 v{vAT + (n >> 2) * 2 + k}, {DA}, v{vAT + (n >> 2) * 2 + k}")
        for k in range(8):
            if oat[k] == n: fa[1 + k]()
    g.stamp('bp')
    for n in range(3, 8):
        g.wlg(f'x{n-3}')
        wfrag_reads(g, n, 0, 'x')
        for k in range(8):
            if oat[k] == n + 5: fa[1 + k]()
    for d in range(4):
        g(f"s_sub_u32 s{sT1}, {d + 3}, s{sI}\ns_and_b32 s{sT1}, s{sT1}, 3\ns_lshl_b32 s{sT1}, s{sT1}, 11\ns_mul_i32 s{sT2}, s{sB}, 24576\ns_add_u32 s{sT1}, s{sT1}, s{sT2}\ns_add_u32 s{sT1}, s{sT1}, {d * 6144}\nv_add_u32 v{vT+4+d}, s{sT1}, v{vL16}")
    g.wlg()
    g.stamp('poll')
    def check(q, bad):
        R = OA + 16 * q
        g(f"v_max3_u32 v{vT}, v{R}, v{R+1}, v{R+2}\nv_max3_u32 v{vT+1}, v{R+3}, v{R+4}, v{R+5}")
        for k in range(6, 16, 4):
            g(f"v_max3_u32 v{vT}, v{vT}, v{R+k}, v{R+k+1}")
            if k + 3 < 16: g(f"v_max3_u32 v{vT+1}, v{vT+1}, v{R+k+2}, v{R+k+3}")
        g(f"v_max_u32 v{vT}, v{vT}, v{vT+1}\nv_cmp_eq_u32 vcc, -1, v{vT}\ns_nop 0\ns_cbranch_vccnz {bad}")
        for n in range(4 * q, 4 * q + 4):
            for tc in range(2):
                g(f"v_mfma_f32_32x32x16_bf16 {r(ACC+16*tc,16)}, {r(WF+8*n+4*tc,4)}, {r(OA+4*n,4)}, {r(ACC+16*tc,16)}")
    g(f"s_mov_b32 s{sDS}, 0")
    for q in range(2):
        sk, bad = g.lab("L_oa"), g.lab("L_ob")
        g.wvm(f'OA{4*q+3}')
        check(q, bad)
        g(f"s_branch {sk}\n{bad}:\ns_bitset1_b32 s{sDS}, {q}\n{sk}:")
    g.stamp('pass1')
    g(f"L_oa_loop:\ns_cmp_eq_u32 s{sDS}, 0\ns_cbranch_scc1 L_oa_done")
    spin_check(g)
    for q in range(2):
        sk = g.lab("L_oc")
        g(f"s_bitcmp1_b32 s{sDS}, {q}\ns_cbranch_scc0 {sk}")
        for n in range(4 * q, 4 * q + 4): fa[1 + n]()
        g.vm = []
        g(f"{sk}:")
    g("s_waitcnt vmcnt(0)")
    for q in range(2):
        sk = g.lab("L_od")
        g(f"s_bitcmp1_b32 s{sDS}, {q}\ns_cbranch_scc0 {sk}")
        check(q, sk)
        g(f"s_bitset0_b32 s{sDS}, {q}\n{sk}:")
    g("s_branch L_oa_loop\nL_oa_done:")
    g.stamp('mm')
    g.jitter(201)
    g("s_barrier\ns_nop 8")
    def piece(d): return ACC + 16 * (d >> 1) + 8 * (d & 1)
    for d in range(4):
        sk = g.lab("L_rw")
        g(f"s_cmp_eq_u32 s{sI}, {d}\ns_cbranch_scc1 {sk}")
        g(f"ds_write_b128 v{vT+4+d}, {r(piece(d),4)}\nds_write_b128 v{vT+4+d}, {r(piece(d)+4,4)} offset:1024\n{sk}:")
    g("s_waitcnt lgkmcnt(0)\ns_barrier")
    g.stamp('red')
    for k in range(3):
        for e in range(2):
            g.ds(f"ds_read_b128 {r(16+8*k+4*e,4)}, v{vRR} offset:{k*2048+e*1024}", f'rr{k}')
    lj = g.lab("L_rj")
    for d in range(4):
        sk = g.lab("L_rs")
        if d < 3: g(f"s_cmp_lg_u32 s{sI}, {d}\ns_cbranch_scc1 {sk}")
        for k in range(0, 8, 2): g(f"v_mov_b64 v[{40+k}:{41+k}], v[{piece(d)+k}:{piece(d)+k+1}]")
        if d < 3: g(f"s_branch {lj}\n{sk}:")
    g(f"{lj}:")
    g.wlg('rr0')
    for k in range(0, 8, 2): g(f"v_pk_add_f32 v[{40+k}:{41+k}], v[{40+k}:{41+k}], v[{16+k}:{17+k}]")
    g.wlg('rr2')
    for k in range(0, 8, 2): g(f"v_pk_add_f32 v[{24+k}:{25+k}], v[{24+k}:{25+k}], v[{32+k}:{33+k}]")
    for k in range(0, 8, 2): g(f"v_pk_add_f32 v[{40+k}:{41+k}], v[{40+k}:{41+k}], v[{24+k}:{25+k}]")
    for k in range(4): g(f"v_cvt_pk_bf16_f32 v{16+k}, v{40+2*k}, v{41+2*k}")
    g("s_nop 1\nv_permlane32_swap_b32 v16, v18\nv_permlane32_swap_b32 v17, v19")
    g.vmop(f"buffer_store_dwordx4 v[16:19], v{vOUTA}, {sr(rOUT)}, 0 offen {g.opt.get('outsc', '')}", 'out')

def schedule(g):
    o = g.opt
    ev = {}
    def at(T, key, *fs): ev.setdefault((T, key), []).extend(fs)
    dpos = o.get('dpos', ((2, 6), (2, 13), (3, 6), (3, 13)))
    pp = o.get('pp', {(2, 'm1'): 3, (5, 'm0'): 2, (0, 'm0'): 1, (1, 'mq'): 0})
    def wave0(*fs):
        def f():
            sk = w0(g)
            for x in fs: x()
            g(f"{sk}:")
        return f
    def flag(base, hi, lo):
        return lambda: flag_store(g, f"s_lshl_b32 s{sT1}, s{hi}, 7\ns_lshl_b32 s{sT2}, s{lo}, 2\ns_add_u32 s{sT1}, s{sT1}, s{sT2}\ns_add_u32 s{sT1}, s{sT1}, {base}")
    def slot(gi): return slotB(gi) if gi < 8 else slotA(gi - 8)
    def vadd(reg, src, gi):
        d = ((slot(gi + 1) - slot(gi)) * SLOT) & 0xffffffff
        if gi != 7: return lambda: g(f"v_add_u32 v{reg}, {d}, v{src}")
        return lambda: g(f"s_lshl_b32 s{sT1}, s{sB}, 14\ns_add_u32 s{sT1}, s{sT1}, {d}\nv_add_u32 v{reg}, s{sT1}, v{src}")
    nt = o.get('m0t', 4)
    at(59, 0, vadd(vT + 3, vAK, 7))
    for k in range(nt):
        at(59, 'gap', lambda k=k: g.ds(f"ds_read_b128 {r(KTMP+4*k,4)}, v{vT+3} offset:{k*1024}", 'kv'))
        at(60 + k // 2, 7 if k % 2 == 0 else 13, lambda k=k: g(f"v_mfma_f32_32x32x16_bf16 {r(STMP[k],16)}, {r(KTMP+4*k,4)}, {r(QA,4)}, 0"))
    L = max_tree(STMP[:nt])
    if nt > 2:
        at(61, 6, lambda: g("\n".join(L[:8]))); at(62, 1, lambda: g("\n".join(L[8:16]))); at(62, 6, lambda: g("\n".join(L[16:])))
    else:
        at(61, 6, lambda: g("\n".join(L[:8]))); at(62, 6, lambda: g("\n".join(L[8:])))
    at(62, 8, lambda: g(SWAP))
    at(62, 12, lambda: g(fill_c(C, o.get('moff', MOFF))))
    e1, e2, e3 = epilogue_parts(g, 0)
    at(65, 0, e1); at(65, 1, e2); at(65, 6, e3, lambda: g.stamp('B'))
    fs = dma_B(g, 2, 0, 'G1')
    at(0, 6, fs[0], fs[1]); at(0, 13, fs[2]); at(1, 1, fs[3]); at(1, 6, fs[4])
    k0, k1, sent, gate = start_ops(g)
    at(4, 6, k0); at(5, 6, k1); at(6, 6, sent); at(7, 6, gate)
    for U in (3, 17, 30, 63, 70, 90, 111, 125): at(U, 9, lambda U=U: g.jitter(U))
    for gi in range(16):
        T0 = 8 * gi
        ppc = dict(pp)
        if gi == 15:
            ppc = {k: v for k, v in pp.items() if k[0] < 2}
            ppc.update(o.get('pplast', {(2, 'm1'): 3, (4, 'm0'): 2, (6, 'm0'): 1, (7, 'm0'): 0}))
        for (t, key), pr in ppc.items(): at(T0 + t, key, lambda pr=pr: g(f"s_setprio {pr}"))
        if gi < 15:
            at(T0 + 6, 0, vadd(vAK, vAK, gi))
            at(T0 + 7, 0, vadd(vAV, vAV, gi))
        wait = {1: 'G1', 2: 'kvst', 3: 'G3', 4: None, 7: 'A0', 8: 'A1', 9: 'A2', 10: 'ost', 11: 'A4', 12: 'A5', 13: 'A6', 14: 'WoB0', 15: 'WoB1'}
        if gi == 4: at(T0 + 1, 1, lambda: g.wvm(), wave0(lambda: poll_check(g)))
        if gi == 14: at(T0 + 1, 1, lambda: g.wvm('WoB0'), wave0(lambda: poll_check(g)))
        if gi in wait: at(T0 + 1, 'm0', lambda w=wait[gi]: g.wvm(w))
        at(T0 + 1, 'm0', lambda: g("s_barrier"))
        at(T0 + 1, 'm0', lambda gi=gi: g.stamp(f'g{gi}'))
        grp = {0: lambda: dma_B(g, 4, 2, 'G2'), 1: lambda: dma_B(g, 6, 4, 'G3'),
               4: lambda: dma_A(g, 0, 6, 'A0'), 5: lambda: dma_A(g, 1, 8, 'A1'), 6: lambda: dma_A(g, 2, 0, 'A2'), 7: lambda: dma_A(g, 3, 2, 'A3'),
               8: lambda: dma_A(g, 4, 4, 'A4'), 9: lambda: dma_A(g, 5, 6, 'A5'), 10: lambda: dma_A(g, 6, 8, 'A6'), 11: lambda: dma_A(g, 7, 0, 'A7'),
               12: lambda: dma_Wo(g, rWOB, 0, LDS_WOB, 'WoB0'), 13: lambda: dma_Wo(g, rWOB, 1, LDS_WOB, 'WoB1'),
               14: lambda: dma_Wo(g, rWOA, 0, LDS_WOA, 'WoA0'), 15: lambda: dma_Wo(g, rWOA, 1, LDS_WOA, 'WoA1')}
        if gi == 13: at(T0 + 2, 0, wave0(lambda: poll_issue(g, 3)))
        if gi in grp:
            fs = grp[gi]()
            at(T0 + dpos[0][0], dpos[0][1], fs[0])
            for (t, i), f in zip(dpos, fs[1:]): at(T0 + t, i, f)
        if gi == 2: at(T0 + 2, 6, wave0(flag(WS_F2, sHP, sTB)))
        if gi == 3:
            at(T0 + 4, 6, wave0(lambda: poll_issue(g, 2)))
        if gi == 10: at(T0 + 4, 6, wave0(flag(WS_F3, sTB, sHP)))
        if gi == 13 and o.get('wopf', 1):
            def wopf():
                g(f"s_and_b32 s{sT1}, s{sTB}, 3\ns_lshl_b32 s{sT1}, s{sT1}, 13\ns_add_u32 s{sT1}, s{sT1}, s{sDS}\ns_add_u32 s{sT1}, s{sT1}, 262144")
                g.vmop(f"buffer_load_dwordx4 {r(208,4)}, v{vDWO}, {sr(rWOA)}, s{sT1} offen", 'pf')
            at(T0 + 5, 6, wopf)
        if gi == 14:
            fs = of_loads(g, 0, 'OB')
            at(T0 + 4, 6, fs[0])
            for n, f in enumerate(fs[1:]): at(T0 + 4 + n // 2, 6 if n % 2 == 0 else 13, f)
    return ev

def slotB(c): return (8 + c) % 10
def slotA(c): return 2 * ((3 + c) % 5)

def build(**opt):
    g = G(**opt)
    setup(g)
    fork = (list(g.lg), list(g.vm)); nst0 = g.nst
    g(f"s_bitcmp1_b32 s{sHP}, 0\ns_cbranch_scc1 L_p1b")
    phase1(g, 0)
    end0 = (list(g.lg), list(g.vm))
    g("s_branch L_p1done\nL_p1b:")
    g.lg, g.vm = list(fork[0]), list(fork[1]); g.nst = nst0
    phase1(g, 1)
    assert end0 == (g.lg, g.vm), (end0, g.lg, g.vm)
    g("L_p1done:")
    g.stamp('p1')
    b_prologue(g)
    g.stamp('t0')
    ev = schedule(g)
    for U in range(128): tile(g, U, ev, opt.get('pos', (2, 4, 10)))
    tail(g)
    if opt.get('stamps'):
        g.stamp('end')
        g(f"s_lshl_b32 s{sT1}, s2, 3\ns_add_u32 s{sT1}, s{sT1}, s{sW}\ns_lshl_b32 s{sT1}, s{sT1}, 6\ns_add_u32 s{sT1}, s{sT1}, {WS_DBG}")
        g("s_waitcnt lgkmcnt(0)")
        for k in range(12): g(f"v_mov_b32 v{16+k}, s{STAMP_SLOTS[min(k, g.nst-1)]}")
        g(f"v_mov_b32 v30, 0\ns_mov_b64 exec, 1")
        for k in range(3): g(f"buffer_store_dwordx4 v[{16+4*k}:{19+4*k}], v30, {sr(rWS)}, s{sT1} offen offset:{16*k}")
    if opt.get('dbgst'):
        sk = w0(g)
        g("s_waitcnt vmcnt(0) lgkmcnt(0)")
        last = STAMP_SLOTS[g.nst - 1]
        g(f"v_mov_b32 v16, s{last}\ns_not_b32 s{sT1}, s{STAMP_SLOTS[0]}\nv_mov_b32 v17, s{sT1}\nv_mov_b32 v30, 0\ns_mov_b64 exec, 1")
        g(f"buffer_atomic_umax v16, v30, {sr(rDBG)}, 0 offen offset:4\nbuffer_atomic_umax v17, v30, {sr(rDBG)}, 0 offen offset:8")
        sk2 = g.lab("L_d2")
        g(f"s_cmp_lg_u32 s2, {opt['dbgst'] - 1}\ns_cbranch_scc1 {sk2}")
        for k in range(12): g(f"s_sub_u32 s{sT1}, s{STAMP_SLOTS[min(k, g.nst-1)]}, s{STAMP_SLOTS[0]}\nv_mov_b32 v{16+k}, s{sT1}")
        g(f"v_mov_b32 v16, s{STAMP_SLOTS[0]}")
        for k in range(3): g(f"buffer_store_dwordx4 v[{16+4*k}:{19+4*k}], v30, {sr(rDBG)}, 0 offen offset:{16+16*k}")
        g(f"{sk2}:\ns_mov_b64 exec, -1\n{sk}:")
    if opt.get('spinend'):
        base, idx, mult = opt['spinend']
        sk = w0(g); sk2 = g.lab("L_sp")
        g(f"s_cmp_lg_u32 s2, {opt.get('spinwg', 0)}\ns_cbranch_scc1 {sk}\ns_waitcnt vmcnt(0) lgkmcnt(0)")
        g(f"s_sub_u32 s{sT1}, s{STAMP_SLOTS[idx]}, s{STAMP_SLOTS[0]}\ns_mul_i32 s{sT1}, s{sT1}, {mult}\ns_add_u32 s{sT1}, s{sT1}, {base*100}")
        g(f"{sk2}:\ns_memrealtime s[{sPC}:{sPC+1}]\ns_waitcnt lgkmcnt(0)\ns_sub_u32 s{sT2}, s{sPC}, s{STAMP_SLOTS[0]}\ns_cmp_lt_u32 s{sT2}, s{sT1}\ns_cbranch_scc1 {sk2}")
        g(f"{sk}:")
    if opt.get('spinrel'):
        a_, b_, mult, shift = opt['spinrel']
        sk = w0(g); sk2 = g.lab("L_sq")
        g(f"s_cmp_lg_u32 s2, {opt.get('spinwg', 0)}\ns_cbranch_scc1 {sk}\ns_waitcnt vmcnt(0) lgkmcnt(0)")
        g(f"s_sub_u32 s{sT1}, s{STAMP_SLOTS[b_]}, s{STAMP_SLOTS[a_]}\ns_mul_i32 s{sT1}, s{sT1}, {mult}\ns_lshr_b32 s{sT1}, s{sT1}, {shift}")
        g(f"s_memrealtime s[{sSC}:{sSC+1}]\ns_waitcnt lgkmcnt(0)")
        g(f"{sk2}:\ns_memrealtime s[{sPC}:{sPC+1}]\ns_waitcnt lgkmcnt(0)\ns_sub_u32 s{sT2}, s{sPC}, s{sSC}\ns_cmp_lt_u32 s{sT2}, s{sT1}\ns_cbranch_scc1 {sk2}")
        g(f"{sk}:")
    if opt.get('spinconst'):
        sk = w0(g); sk2 = g.lab("L_sc")
        g(f"s_waitcnt vmcnt(0) lgkmcnt(0)\ns_memrealtime s[{sSC}:{sSC+1}]\ns_waitcnt lgkmcnt(0)")
        g(f"{sk2}:\ns_memrealtime s[{sPC}:{sPC+1}]\ns_waitcnt lgkmcnt(0)\ns_sub_u32 s{sT2}, s{sPC}, s{sSC}\ns_cmp_lt_u32 s{sT2}, {opt['spinconst']}\ns_cbranch_scc1 {sk2}")
        g(f"{sk}:")
    g("L_abort:\ns_endpgm")
    fallback(g, 0)
    fallback(g, 1)
    g("L_end:\ns_endpgm\nL_codeend:")
    hdr = open('gated_mix__mha_block__grouped_kv_mqa__prompt.s.ref').read().split("; Override launch")[0]
    out = hdr + "; One fused launch: projections, MQA and MHA attention, gated output projection.\n"
    out += "; @launch grid=(256,1,1) block=(512,1,1) lds=163840\n"
    out += f""".amdgcn_target "amdgcn-amd-amdhsa--gfx950"
.text
.globl {NAME}
.p2align 8
.type {NAME},@function
{NAME}:
{g.text()}.section .rodata,"a"
.p2align 6
.amdhsa_kernel {NAME}
  .amdhsa_next_free_vgpr 256
  .amdhsa_next_free_sgpr 102
  .amdhsa_accum_offset 256
  .amdhsa_group_segment_fixed_size 0
  .amdhsa_kernarg_size 96
  .amdhsa_user_sgpr_count 2
  .amdhsa_user_sgpr_kernarg_segment_ptr 1
  .amdhsa_system_sgpr_workgroup_id_x 1
.end_amdhsa_kernel
"""
    return out

if __name__ == "__main__":
    path = sys.argv[1] if len(sys.argv) > 1 else 'gated_mix__mha_block__grouped_kv_mqa__prompt.s'
    opt = {}
    for a in sys.argv[2:]:
        k, _, v = a.partition('=')
        opt[k] = eval(v) if v else True
    open(path, 'w').write(build(**opt))
```

```python
import sys, struct, copy
NAME = "gated_mix__mha_block__grouped_kv_mqa__prompt_kernel"

def f2h(x): return "0x%08x" % struct.unpack('<I', struct.pack('<f', x))[0]

WS_KVA  = 0x000000
WS_KVB  = 0x400000
WS_GATE = 0x420000
WS_F1   = 0x424000
WS_F2   = WS_F1 + 2048
WS_F3   = WS_F1 + 4096
WS_F4   = WS_F1 + 6144
WS_O    = 0x500000
WS_DBG  = 0x900000
WS_SIZE = 0x1000000

SLOT = 16384
LDS_WST = 65536
LDS_EW  = 8 * SLOT
LDS_ER  = 9 * SLOT
LDS_EG  = 9 * SLOT + 8192
LDS_EX  = 3 * SLOT
LDS_WOB = 2 * SLOT
LDS_WOA = 6 * SLOT

sW, sHP, sTB, sROT, sB = 3, 4, 5, 6, 7
rX, rWS_, rWKV, rGATE, rWS, rDBG, rOUT, rWOA, rWOB = 8, 12, 16, 20, 24, 28, 32, 36, 40
sMASK = 44
sI, sNONCE, sSPIN, sT0, sT1, sT2 = 46, 47, 48, 49, 50, 51
pX, pWQKV, pWOA, pBX, pWQ, pWK, pWV, pWOB, pGATE, pOUT, pDBG, pWS = 52, 54, 56, 58, 60, 62, 64, 66, 68, 70, 72, 74
sXO, sWO, sWSTEP, sW16, sMX, sMW, sKX, sKW = 76, 77, 78, 79, 80, 81, 82, 83
sOF = 76
sPC = 84
sFBBASE, sKV, sFBT, sDMA, sOST, sT3 = 86, 87, 88, 89, 90, 91
sKV1, sSC = 98, 100
sPOLL, sDS = 92, 93
sST = 94
vIDX, vAK, vAV, vG, vL16, vVOFF = 2, 3, 4, 5, 6, 7
vT = 8
S0, S1, C, QA, QB = 16, 32, 64, 80, 84
OACC = (112, 48)
STMP, KTMP = (128, 144, 160, 176), 192
STB, KTB = (32, 16, 128, 64), 232
FB_S, FB_C, FB_K, FB_V0, FB_V1 = 176, 160, 144, 148, 152
KF, V0, V1 = (88, 92), (96, 100), (104, 108)
OF = 112
ACC = 144
PF = 176
WF = 16
vAX = 240
vAW1, vAWQ, vDX0, vDX1, vDW, vKVST = 244, 245, 246, 247, 248, 249
vDWO, vRR, vOUTA = 224, 225, 226
vAT = 228
vFL, vNON, vDUMMY = 250, 251, 251
vPOLL = 252
QSCALE = 0.25 * 1.4426950408889634
MOFF = 102.0
SPIN = 1 << 20

STAMP_SLOTS = [94, 96, 52, 54, 58, 60, 62, 64, 68, 72, 74, 56]
class G:
    def __init__(s, **opt):
        s.L = []; s.lg = []; s.vm = []; s.opt = opt; s.nlab = 0; s.nst = 0; s.cold = []
    def __call__(s, txt):
        for line in txt.split("\n"):
            line = line.strip()
            if not line: continue
            s.L.append(line if (line.endswith(":") or line.startswith(".")) else "    " + line)
    def rare(s, test, branch, *fs):
        if not s.opt.get('ool', 1):
            sk = s.lab("L_sk")
            s(test); s(f"{'s_cbranch_scc0' if branch.endswith('1') else 's_cbranch_scc1'} {sk}")
            for f in fs: f()
            s(f"{sk}:"); return
        lo, lr = s.lab("L_rare"), s.lab("L_back")
        s(test); s(f"{branch} {lo}\n{lr}:")
        main, s.L = s.L, s.cold
        s(f"{lo}:")
        for f in fs: f()
        s(f"s_branch {lr}")
        s.L = main
    def wave0(s, *fs): s.rare(f"s_cmp_eq_u32 s{sW}, 0", "s_cbranch_scc1", *fs)
    def first(s, *fs): s.rare(f"s_or_b32 s{sT1}, s2, s{sW}", "s_cbranch_scc0", *fs)
    def lab(s, p="L"):
        s.nlab += 1; return f"{p}_{s.nlab}"
    def ds(s, txt, tag=None):
        s(txt); s.lg.append(tag); assert len(s.lg) <= 15, "lgkm overflow"
    def wlg(s, tag=None):
        if tag is None:
            s("s_waitcnt lgkmcnt(0)"); s.lg = []; return
        if tag not in s.lg: return
        i = len(s.lg) - 1 - s.lg[::-1].index(tag)
        n = len(s.lg) - 1 - i
        s(f"s_waitcnt lgkmcnt({n})"); s.lg = s.lg[i + 1:]
    def vmop(s, txt, tag=None):
        s(txt); s.vm.append(tag); assert len(s.vm) <= 63
    def wvm(s, tag=None):
        if tag is None:
            s("s_waitcnt vmcnt(0)"); s.vm = []; return
        if tag not in s.vm: return
        i = len(s.vm) - 1 - s.vm[::-1].index(tag)
        n = len(s.vm) - 1 - i
        s(f"s_waitcnt vmcnt({n})"); s.vm = s.vm[i + 1:]
    def srd(s, d, base, nbytes):
        s(f"s_mov_b32 s{d}, s{base}\ns_and_b32 s{d+1}, s{base+1}, 0xffff\ns_mov_b32 s{d+2}, {nbytes}\ns_mov_b32 s{d+3}, 0x00020000")
    def srd_const(s, d, nbytes): s(f"s_mov_b32 s{d+2}, {nbytes}\ns_mov_b32 s{d+3}, 0x00020000")
    def srd_base(s, d, base): s(f"s_mov_b64 s[{d}:{d+1}], s[{base}:{base+1}]")
    def stamp(s, name):
        if not s.opt.get('stamps'): return
        if name not in s.opt.get('at', ('setup', 'p1', 'bstart', 'B', 'A', 'poll', 'mm', 'end')): return
        ins = "s_memtime" if s.opt.get('stamps') == 2 else "s_memrealtime"
        slot = STAMP_SLOTS[s.nst]
        assert slot >= 94 or name not in ('entry', 'karg', 'eissue')
        s(f"{ins} s[{slot}:{slot+1}]")
        s.nst += 1
    def jitter(s, salt):
        j = s.opt.get('jitter')
        if not j: return
        lp, sk = s.lab("L_j"), s.lab("L_jk")
        if salt % 2: s(f"s_lshl_b32 s{sT2}, s2, 3\ns_add_u32 s{sT2}, s{sT2}, s{sW}")
        else: s(f"s_mov_b32 s{sT2}, s2")
        s(f"s_add_u32 s{sT2}, s{sT2}, {salt * 7919 + j * 104729}\ns_mul_i32 s{sT1}, s{sT2}, 0x9e3779b1\ns_lshr_b32 s{sT1}, s{sT1}, 27")
        s(f"{lp}:\ns_sub_u32 s{sT1}, s{sT1}, 1\ns_cbranch_scc1 {sk}\ns_sleep 8\ns_branch {lp}\n{sk}:")
    def text(s): return "\n".join(s.L) + "\n"

def r(a, n): return f"v[{a}:{a+n-1}]"
def sr(a, n=4): return f"s[{a}:{a+n-1}]"

def spin_check(g):
    g(f"s_sub_u32 s{sSPIN}, s{sSPIN}, 1\ns_cbranch_scc1 L_abort")

def setup(g):
    g(f"""
    s_cmp_ge_u32 s2, 256
    s_cbranch_scc1 L_end
    """)
    g.stamp('entry')
    mode = g.opt.get('pfm', 'v')
    pf = ''
    if mode == 's': pf = f"""
    s_lshl_b32 s{sT1}, s{sW}, 7
    s_and_b32 s{sT0}, s2, 0xf8
    s_lshl_b32 s{sT0}, s{sT0}, 7
    s_add_u32 s{sT0}, s{sT0}, 3072
    s_add_u32 s{sT0}, s{sT0}, s{sT1}
    s_min_u32 s{sT0}, s{sT0}, L_codeend-L_pc-4
    s_load_dword s{sFBT}, s[{sPC}:{sPC+1}], s{sT0}
    s_add_u32 s{sPC}, s{sPC}, s{sT1}
    s_addc_u32 s{sPC+1}, s{sPC+1}, 0
    s_load_dword s{sFBT}, s[{sPC}:{sPC+1}], 0
    s_load_dword s{sFBT}, s[{sPC}:{sPC+1}], 1024
    s_load_dword s{sFBT}, s[{sPC}:{sPC+1}], 2048
    """
    if mode == 'v':
        pf = f"""
    s_and_b32 s{sT0}, s2, 0xf8
    s_add_u32 s{sT0}, s{sT0}, 24
    v_lshlrev_b32 v{vT+2}, 3, v1
    v_mov_b32 v{vT+3}, s{sT0}
    v_cmp_eq_u32 vcc, 3, v1
    s_mov_b64 exec, 15
    s_nop 0
    v_cndmask_b32 v{vT+2}, v{vT+2}, v{vT+3}, vcc
    v_add_lshl_u32 v{vT+2}, v{vT+2}, v{vT+1}, 7
    v_min_u32 v{vT+2}, L_codeend-L_pc-4, v{vT+2}
    global_load_dword v{vDUMMY}, v{vT+2}, s[{sPC}:{sPC+1}]
    s_mov_b64 exec, -1
    """
        g.vm.append('pf')
    g(f"""
    s_load_dwordx16 s[52:67], s[0:1], 0
    s_load_dwordx8 s[68:75], s[0:1], 64
    v_lshrrev_b32 v{vT+1}, 6, v0
    v_and_b32 v1, 63, v0
    s_getpc_b64 s[{sPC}:{sPC+1}]
    L_pc:
    v_readfirstlane_b32 s{sW}, v{vT+1}
    {pf}
    s_bfe_u32 s{sTB}, s2, 0x20001
    s_bfe_u32 s{sT0}, s2, 0x20003
    s_lshl2_add_u32 s{sTB}, s{sTB}, s{sT0}
    s_and_b32 s{sHP}, s2, 1
    s_lshr_b32 s{sT0}, s2, 5
    s_lshl3_add_u32 s{sHP}, s{sHP}, s{sT0}
    s_lshl1_add_u32 s{sROT}, s{sTB}, s{sHP}
    s_and_b32 s{sROT}, s{sROT}, {g.opt.get('rotmask', 6)}
    s_lshr_b32 s{sB}, s{sW}, 2
    s_and_b32 s{sI}, s{sW}, 3
    v_lshlrev_b32 v{vL16}, 4, v1
    """)
    g(f"v_and_b32 v{vT+1}, 0x30, v1")
    g(f"""
    v_lshrrev_b32 v{vT+4}, 3, v1
    v_and_b32 v{vT+5}, 7, v1
    v_lshrrev_b32 v{vT+6}, 4, v1
    v_xor_b32 v{vT+5}, v{vT+5}, v{vT+6}
    v_lshlrev_b32 v{vT+4}, 10, v{vT+4}
    v_lshl_add_u32 v{vDX0}, v{vT+5}, 4, v{vT+4}
    v_xor_b32 v{vDX1}, 64, v{vDX0}
    v_add_u32 v{vDX1}, 0x2000, v{vDX1}
    """)
    g(f"s_lshl_b32 s{sMX}, s{sW}, 11\ns_lshl_b32 s{sDMA}, s{sTB}, 17")
    g(f"""
    s_lshr_b32 s{sT2}, s{sHP}, 1
    s_lshl_b32 s{sT2}, s{sT2}, 14
    s_add_u32 s{sDMA}, s{sDMA}, s{sT2}
    s_lshl_b32 s{sOST}, s{sW}, 7
    s_add_u32 s{sDMA}, s{sDMA}, s{sOST}
    """)
    for k in range(0, 8, 2): g(f"v_mov_b64 v[{40+k}:{41+k}], 0")
    for d, n in ((rX, 2097152), (rWKV, 16384), (rGATE, 1024), (rWS, WS_SIZE)): g.srd_const(d, n)
    g(f"s_add_u32 m0, s{sMX}, {LDS_EW}")
    g("s_waitcnt lgkmcnt(0)")
    g.stamp('karg')
    g.jitter(1)
    def early_loads():
        g(f"s_bitcmp1_b32 s{sHP}, 0\ns_cselect_b64 s[{rWKV}:{rWKV+1}], s[{pWV}:{pWV+1}], s[{pWK}:{pWK+1}]")
        g.srd_base(rGATE, pGATE); g.srd_base(rX, pX)
        g.vmop(f"buffer_load_dwordx4 v{vL16}, {sr(rWKV)}, s{sMX} offen lds", 'e')
        g.vmop(f"buffer_load_dwordx4 v{vL16}, {sr(rWKV)}, s{sMX} offen offset:1024 lds", 'e')
        g(f"s_mov_b32 exec_lo, 0x00010001\ns_mov_b32 exec_hi, 0x00010001")
        g.vmop(f"buffer_load_dwordx4 v[40:43], v{vT+1}, {sr(rGATE)}, s{sOST} offen", 'e')
        g.vmop(f"buffer_load_dwordx4 v[44:47], v{vT+1}, {sr(rGATE)}, s{sOST} offen offset:64", 'e')
        g("s_mov_b64 exec, -1")
        g(f"s_add_u32 m0, s{sMX}, {LDS_EX}\ns_nop 0")
        g.vmop(f"buffer_load_dwordx4 v{vDX0}, {sr(rX)}, s{sDMA} offen lds", 'e')
        g(f"s_add_u32 m0, s{sMX}, {LDS_EX + 1024}\ns_nop 0")
        g.vmop(f"buffer_load_dwordx4 v{vDX1}, {sr(rX)}, s{sDMA} offen lds", 'e')
    g.srd_base(rWS, pWS)
    nonce_scan(g)
    early_loads()
    g.stamp('eissue')
    g(f"""
    s_lshr_b32 s{sT0}, s{sW}, 1
    s_cmp_eq_u32 s{sT0}, 3
    s_movk_i32 s{sT2}, 3072
    s_cselect_b32 s{sT1}, 1024, s{sT2}
    s_cselect_b32 s{sT2}, 2, 0
    s_lshl_b32 s{sWSTEP}, s{sT1}, 6
    s_add_u32 s{sMW}, s{sMX}, {LDS_WST}
    s_cmp_lg_u32 s{sB}, 0
    s_cbranch_scc1 L_su_q
    v_bfe_u32 v{vT+4}, v1, 2, 1
    v_bfe_u32 v{vT+5}, v1, 4, 1
    v_xor_b32 v{vT+4}, v{vT+4}, v{vT+5}
    v_and_b32 v{vT+5}, 3, v1
    v_lshl_add_u32 v{vT+5}, v{vT+4}, 2, v{vT+5}
    v_lshrrev_b32 v{vT+4}, 3, v1
    s_movk_i32 s{sW16}, 24576
    s_and_b32 s{sT2}, s{sHP}, 1
    s_add_u32 s{sT2}, s{sT2}, 1
    s_lshl_b32 s{sT2}, s{sT2}, 10
    s_lshr_b32 s{sWO}, s{sHP}, 1
    s_lshl_b32 s{sWO}, s{sWO}, 7
    s_add_u32 s{sWO}, s{sWO}, s{sT2}
    s_mul_i32 s{sT3}, s{sW}, 49152
    s_branch L_su_j
    L_su_q:
    v_lshrrev_b32 v{vT+4}, 2, v1
    v_and_b32 v{vT+5}, 3, v1
    v_xor_b32 v{vT+5}, s{sT2}, v{vT+5}
    s_lshl_b32 s{sW16}, s{sT1}, 4
    s_lshl_b32 s{sWO}, s{sHP}, 6
    s_and_b32 s{sT2}, s{sW}, 1
    s_mul_i32 s{sT3}, s{sT2}, s{sW16}
    s_lshl_b32 s{sT3}, s{sT3}, 1
    L_su_j:
    s_add_u32 s{sWO}, s{sWO}, s{sT3}
    v_mul_u32_u24 v{vT+4}, s{sT1}, v{vT+4}
    v_lshl_add_u32 v{vDW}, v{vT+5}, 4, v{vT+4}
    s_lshl_b32 s{sXO}, s{sTB}, 17
    s_lshl_b32 s{sT2}, s{sW}, 14
    s_add_u32 s{sXO}, s{sXO}, s{sT2}
    s_lshl_b32 s{sKX}, s{sROT}, 7
    s_mul_i32 s{sKW}, s{sROT}, s{sWSTEP}
    """)
    g(f"s_cmp_eq_u32 s{sT0}, 3\ns_cselect_b64 s[{rWS_}:{rWS_+1}], s[{pWQ}:{pWQ+1}], s[{pWQKV}:{pWQKV+1}]")
    g(f"s_mov_b32 s{rWS_+2}, 1572864\ns_cselect_b32 s{rWS_+2}, 524288, s{rWS_+2}\ns_mov_b32 s{rWS_+3}, 0x00020000")
    g.srd_base(rDBG, pDBG); g.srd_const(rDBG, 256)
    g(f"s_mov_b32 s{sMASK}, 0x0000ffff\ns_mov_b32 s{sMASK+1}, 0x0000ffff\ns_mov_b32 s{sSPIN}, {SPIN}\ns_mov_b32 s{sNONCE}, 0\nv_mov_b32 v{vFL}, 0")
    if g.opt.get('spf', 0): scalar_prefetch(g)
    g("s_barrier")
    if g.opt.get('pre', 0): p1_addr(g)
    early_addr(g)
    g.stamp('addr')
    runall(p1_dma(g, 0))
    nonce_producer(g)
    g.stamp('setup')
    g.jitter(2)
    early_compute(g)
    g("s_barrier")
    g.stamp('early')
    runall(p1_dma(g, 1))
    early_reduce(g)
    if not g.opt.get('pre', 0): p1_addr(g)


def p1_dma(g, j):
    p = j & 3
    def f0():
        g(f"s_add_u32 m0, s{sMX}, {p*SLOT}\ns_add_u32 s{sDS}, s{sXO}, s{sKX}")
        g.vmop(f"buffer_load_dwordx4 v{vDX0}, {sr(rX)}, s{sDS} offen lds", f'c{j}')
    def f1():
        g(f"s_add_u32 m0, s{sMX}, {p*SLOT+1024}\ns_add_u32 s{sPOLL+0 if False else sT3}, s{sWO}, s{sKW}")
        g.vmop(f"buffer_load_dwordx4 v{vDX1}, {sr(rX)}, s{sDS} offen lds", f'c{j}')
    def f2():
        g(f"s_add_u32 m0, s{sMW}, {p*SLOT}\ns_add_u32 s{sDS}, s{sT3}, s{sW16}")
        g.vmop(f"buffer_load_dwordx4 v{vDW}, {sr(rWS_)}, s{sT3} offen lds", f'c{j}')
    def f3():
        g(f"s_add_u32 m0, s{sMW}, {p*SLOT+1024}\ns_add_u32 s{sKW}, s{sKW}, s{sWSTEP}")
        g.vmop(f"buffer_load_dwordx4 v{vDW}, {sr(rWS_)}, s{sDS} offen lds", f'c{j}')
        if j < 7:
            g(f"s_add_u32 s{sKX}, s{sKX}, 128\ns_and_b32 s{sKX}, s{sKX}, 1023\ns_cselect_b32 s{sKW}, s{sKW}, 0")
    return [f0, f1, f2, f3]

def scalar_prefetch(g):
    P = sPC
    def base(ptr, off): g(f"s_add_u32 s{P}, s{ptr}, s{off}\ns_addc_u32 s{P+1}, s{ptr+1}, 0")
    g(f"s_and_b32 s{sT1}, s{sHP}, 3\ns_lshl_b32 s{sT1}, s{sT1}, 3\ns_add_u32 s{sT1}, s{sT1}, s{sW}\ns_lshl_b32 s{sT1}, s{sT1}, 12\ns_lshl_b32 s{sT2}, s{sTB}, 17\ns_add_u32 s{sT1}, s{sT1}, s{sT2}\ns_add_u32 s{sT1}, s{sT1}, s{sKX}")
    base(pX, sT1)
    for j in range(4): g(f"s_load_dword s{sFBT}, s[{P}:{P+1}], {j*1024}")
    g(f"s_lshl_b32 s{sT1}, s{sROT}, 1\ns_and_b32 s{sT2}, s{sTB}, 1\ns_add_u32 s{sT1}, s{sT1}, s{sT2}\ns_lshl_b32 s{sT1}, s{sT1}, 3\ns_add_u32 s{sT1}, s{sT1}, s{sW}\ns_mul_i32 s{sT1}, s{sT1}, {4*3072}")
    g(f"s_lshr_b32 s{sT3}, s{sHP}, 1\ns_lshl_b32 s{sT3}, s{sT3}, 7\ns_add_u32 s{sT1}, s{sT1}, s{sT3}\ns_and_b32 s{sT2}, s{sHP}, 1\ns_add_u32 s{sT2}, s{sT2}, 1\ns_lshl_b32 s{sT2}, s{sT2}, 10\ns_add_u32 s{sT1}, s{sT1}, s{sT2}")
    base(pWQKV, sT1)
    for j in range(4): g(f"s_load_dword s{sFBT}, s[{P}:{P+1}], {j*3072}")
    g(f"s_lshl_b32 s{sT1}, s{sROT}, 1\ns_and_b32 s{sT2}, s{sHP}, 1\ns_add_u32 s{sT1}, s{sT1}, s{sT2}\ns_lshl_b32 s{sT1}, s{sT1}, 1\ns_and_b32 s{sT2}, s{sTB}, 1\ns_add_u32 s{sT1}, s{sT1}, s{sT2}\ns_lshl_b32 s{sT1}, s{sT1}, 3\ns_add_u32 s{sT1}, s{sT1}, s{sW}")
    g(f"s_mul_i32 s{sT2}, s{sT1}, {2*3072}\ns_add_u32 s{sT2}, s{sT2}, s{sT3}")
    base(pWQKV, sT2)
    for j in range(2): g(f"s_load_dword s{sFBT}, s[{P}:{P+1}], {j*3072}")
    g(f"s_lshl_b32 s{sT1}, s{sT1}, 11\ns_add_u32 s{sT1}, s{sT1}, s{sT3}")
    base(pWQ, sT1)
    for j in range(2): g(f"s_load_dword s{sFBT}, s[{P}:{P+1}], {j*1024}")

def nonce_scan(g): g.first(lambda: nonce_scan_(g))
def nonce_scan_(g):
    g(f"v_lshrrev_b32 v{vT+4}, 2, v1\nv_and_b32 v{vT+5}, 3, v1\nv_lshlrev_b32 v{vT+4}, 7, v{vT+4}\nv_lshl_add_u32 v{vT+4}, v{vT+5}, 4, v{vT+4}")
    g(f"s_mov_b32 s{sT1}, {WS_F1}")
    g(f"buffer_load_dwordx4 v[176:179], v{vT+4}, {sr(rWS)}, s{sT1} offen sc1")
    g(f"buffer_load_dwordx4 v[180:183], v{vT+4}, {sr(rWS)}, s{sT1} offen offset:2048 sc1")
    g(f"s_mov_b32 s{sT1}, {WS_F3}")
    g(f"buffer_load_dwordx4 v[184:187], v{vT+4}, {sr(rWS)}, s{sT1} offen sc1")

def nonce_producer(g): g.first(lambda: nonce_producer_(g))
def nonce_producer_(g):
    g("s_waitcnt vmcnt(10)")
    g(f"v_readfirstlane_b32 s{sT1}, v176")
    lp = g.lab("L_nl")
    g(f"{lp}:\ns_add_u32 s{sT1}, s{sT1}, 1\ns_cbranch_scc1 {lp}")
    g(f"s_mov_b64 s[{sPC}:{sPC+1}], 0")
    for k in range(12):
        g(f"v_cmp_eq_u32 vcc, s{sT1}, v{176+k}\ns_or_b64 s[{sPC}:{sPC+1}], s[{sPC}:{sPC+1}], vcc")
    g(f"s_cbranch_scc1 {lp}")
    g(f"v_mov_b32 v192, s{sT1}\nv_mov_b32 v193, 0\ns_mov_b64 exec, 1")
    g(f"buffer_store_dword v192, v193, {sr(rDBG)}, 0 offen sc1\ns_mov_b64 exec, -1")

def p1_addr(g):
    g(f"""
    v_and_b32 v{vT+2}, 31, v1
    v_lshrrev_b32 v{vT+3}, 5, v1
    v_bfe_u32 v{vT+4}, v1, 1, 3
    v_xor_b32 v{vT+4}, v{vT+4}, v{vT+3}
    v_lshlrev_b32 v{vT+4}, 4, v{vT+4}
    v_lshl_add_u32 v{vT+4}, v{vT+2}, 7, v{vT+4}
    s_lshl_b32 s{sT1}, s{sI}, 12
    v_add_u32 v{vAX}, s{sT1}, v{vT+4}
    v_xor_b32 v{vAX+1}, 32, v{vAX}
    v_xor_b32 v{vAX+2}, 64, v{vAX}
    v_xor_b32 v{vAX+3}, 0x60, v{vAX}
    v_bfe_u32 v{vT+4}, v1, 2, 2
    v_and_b32 v{vT+5}, 3, v1
    v_lshlrev_b32 v{vT+5}, 3, v{vT+5}
    v_lshl_add_u32 v{vT+5}, v{vT+4}, 6, v{vT+5}
    v_lshl_add_u32 v{vT+5}, v{vT+3}, 9, v{vT+5}
    v_bfe_u32 v{vT+6}, v1, 4, 1
    v_bfe_u32 v{vT+7}, v1, 3, 1
    v_xor_b32 v{vT+7}, s{sB}, v{vT+7}
    v_lshlrev_b32 v{vT+7}, 6, v{vT+7}
    v_lshl_add_u32 v{vT+7}, v{vT+4}, 7, v{vT+7}
    v_lshl_add_u32 v{vT+7}, v{vT+3}, 10, v{vT+7}
    v_lshl_add_u32 v{vT+7}, v{vT+6}, 5, v{vT+7}
    v_and_b32 v{vT+2}, 3, v1
    v_lshl_add_u32 v{vT+7}, v{vT+2}, 3, v{vT+7}
    v_add_u32 v{vAW1}, {LDS_WST}, v{vT+7}
    v_xor_b32 v{vT+4}, s{sB}, v{vT+6}
    v_lshl_add_u32 v{vT+5}, v{vT+4}, 5, v{vT+5}
    v_lshl_add_u32 v{vT+5}, v{vT+6}, 12, v{vT+5}
    v_add_u32 v{vAWQ}, {LDS_WST + 8192}, v{vT+5}
    """)

def early_addr(g):
    g(f"""
    v_lshrrev_b32 v{vT+4}, 4, v1
    v_bfe_u32 v{vT+5}, v1, 2, 2
    v_lshl_add_u32 v{vT+4}, v{vT+4}, 3, v{vT+5}
    v_and_b32 v{vT+5}, 3, v1
    v_lshlrev_b32 v{vT+5}, 3, v{vT+5}
    v_lshl_add_u32 v{vT+4}, v{vT+4}, 5, v{vT+5}
    s_add_u32 s{sT1}, s{sMX}, {LDS_EW}
    v_add_u32 v{vT+6}, s{sT1}, v{vT+4}
    s_lshl_b32 s{sT1}, s{sW}, 10
    s_add_u32 s{sT1}, s{sT1}, {LDS_ER}
    v_add_u32 v{vT+7}, s{sT1}, v{vL16}
    s_lshl_b32 s{sT1}, s{sW}, 8
    s_add_u32 s{sT1}, s{sT1}, {LDS_EG}
    v_lshlrev_b32 v{vT+5}, 2, v1
    v_add_u32 v{vT+5}, s{sT1}, v{vT+5}
    """)
    g(f"""
    v_and_b32 v{vT}, 15, v1
    v_lshrrev_b32 v{vT+1}, 4, v1
    v_bfe_u32 v{vT+2}, v1, 1, 3
    v_xor_b32 v{vT+1}, v{vT+1}, v{vT+2}
    v_lshlrev_b32 v{vT+1}, 4, v{vT+1}
    v_lshl_add_u32 v{vT}, v{vT}, 7, v{vT+1}
    s_add_u32 s{sT1}, s{sMX}, {LDS_EX}
    v_add_u32 v{vT}, s{sT1}, v{vT}
    v_xor_b32 v{vT+1}, 64, v{vT}
    """)

def early_compute(g):
    g.wvm('e')
    g.wlg()
    g.ds(f"ds_read_b128 v[16:19], v{vT}", 'ew')
    g.ds(f"ds_read_b128 v[20:23], v{vT+1}", 'ew')
    for s_ in range(2):
        for e in range(2):
            g.ds(f"ds_read_b64_tr_b16 v[{24+4*s_+2*e}:{25+4*s_+2*e}], v{vT+6} offset:{s_*1024+e*128}", 'ew')
    g.wlg('ew')
    lv, le = g.lab("L_ev"), g.lab("L_ee")
    g(f"s_bitcmp1_b32 s{sHP}, 0\ns_cbranch_scc1 {lv}")
    g("v_mfma_f32_16x16x32_bf16 v[32:35], v[24:27], v[16:19], 0")
    g("v_mfma_f32_16x16x32_bf16 v[36:39], v[40:43], v[16:19], 0")
    g("v_mfma_f32_16x16x32_bf16 v[32:35], v[28:31], v[20:23], v[32:35]")
    g("v_mfma_f32_16x16x32_bf16 v[36:39], v[44:47], v[20:23], v[36:39]")
    g(f"s_branch {le}\n{lv}:")
    g("v_mfma_f32_16x16x32_bf16 v[32:35], v[16:19], v[24:27], 0")
    g("v_mov_b32 v36, 0")
    g("v_mfma_f32_16x16x32_bf16 v[32:35], v[20:23], v[28:31], v[32:35]")
    g(f"{le}:\ns_nop 7")
    g.ds(f"ds_write_b128 v{vT+7}, v[32:35]", 'ep')
    g.ds(f"ds_write_b32 v{vT+5}, v36", 'ep')
    g.wlg()

def early_reduce(g): g.wave0(lambda: early_reduce_(g))
def early_reduce_(g):
    g(f"v_add_u32 v{vT+4}, {LDS_ER}, v{vL16}\nv_lshlrev_b32 v{vT+5}, 2, v1\nv_add_u32 v{vT+5}, {LDS_EG}, v{vT+5}")
    for k in range(8): g(f"ds_read_b128 v[{16+4*k}:{19+4*k}], v{vT+4} offset:{k*1024}")
    g("s_waitcnt lgkmcnt(0)")
    for k in range(8): g(f"ds_read_b32 v{64+k}, v{vT+5} offset:{k*256}")
    g(f"""
    s_lshr_b32 s{sT0}, s{sHP}, 1
    s_lshl_b32 s{sT1}, s{sTB}, 2
    s_lshr_b32 s{sT2}, s{sT0}, 1
    s_add_u32 s{sT1}, s{sT1}, s{sT2}
    s_lshr_b32 s{sT2}, s{sT1}, 3
    s_lshl_b32 s{sT2}, s{sT2}, 14
    s_and_b32 s{sT1}, s{sT1}, 7
    s_lshl_b32 s{sT1}, s{sT1}, 10
    s_add_u32 s{sT1}, s{sT1}, s{sT2}
    s_add_u32 s{sT1}, s{sT1}, {WS_KVB}
    s_and_b32 s{sT0}, s{sT0}, 1
    v_and_b32 v{vT}, 15, v1
    v_bfe_u32 v{vT+1}, v1, 4, 1
    v_lshrrev_b32 v{vT+2}, 5, v1
    v_lshlrev_b32 v{vT+2}, 3, v{vT+2}
    """)
    for k in range(1, 8):
        for q in range(4): g(f"v_add_f32 v{16+q}, v{16+q}, v{16+4*k+q}")
    g("v_cvt_pk_bf16_f32 v16, v16, v17\nv_cvt_pk_bf16_f32 v17, v18, v19")
    lv, le = g.lab("L_rv"), g.lab("L_re")
    g(f"s_bitcmp1_b32 s{sHP}, 0\ns_cbranch_scc1 {lv}")
    if True:
        g(f"""
        v_and_b32 v{vT+3}, 3, v{vT}
        v_bfe_u32 v{vT+6}, v{vT}, 2, 1
        v_lshl_add_u32 v{vT+3}, v{vT+6}, 3, v{vT+3}
        v_bfe_u32 v{vT+6}, v{vT}, 3, 1
        v_lshl_add_u32 v{vT+3}, v{vT+6}, 2, v{vT+3}
        v_lshl_add_u32 v{vT+3}, v{vT+1}, 5, v{vT+3}
        v_lshl_add_u32 v{vT+3}, v{vT+3}, 4, v{vT+2}
        s_lshl_b32 s{sT0}, s{sT0}, 8
        s_add_u32 s{sT1}, s{sT1}, s{sT0}
        buffer_store_dwordx2 v[16:17], v{vT+3}, {sr(rWS)}, s{sT1} offen sc1
        s_waitcnt lgkmcnt(0)
        """)
        for k in range(1, 8): g(f"v_add_f32 v64, v64, v{64+k}")
        g(f"""
        v_mul_f32 v64, {f2h(-1.4426950408889634)}, v64
        v_exp_f32 v64, v64
        s_lshr_b32 s{sT0}, s{sHP}, 1
        s_lshl_b32 s{sT0}, s{sT0}, 6
        v_add_f32 v64, 1.0, v64
        v_rcp_f32 v64, v64
        s_lshl_b32 s{sT1}, s{sTB}, 9
        s_add_u32 s{sT1}, s{sT1}, s{sT0}
        s_add_u32 s{sT1}, s{sT1}, {WS_GATE}
        v_lshlrev_b32 v{vT+3}, 2, v1
        s_mov_b64 exec, 0xffff
        buffer_store_dword v64, v{vT+3}, {sr(rWS)}, s{sT1} offen sc1
        s_mov_b64 exec, -1
        s_branch {le}
        {lv}:
        """)
        g(f"""
    v_lshl_add_u32 v{vT+3}, v{vT+1}, 4, v{vT}
    v_lshl_add_u32 v{vT+3}, v{vT+3}, 4, v{vT+2}
    s_lshl_b32 s{sT0}, s{sT0}, 9
    s_add_u32 s{sT1}, s{sT1}, s{sT0}
    s_add_u32 s{sT1}, s{sT1}, 8192
    buffer_store_dwordx2 v[16:17], v{vT+3}, {sr(rWS)}, s{sT1} offen sc1
    s_waitcnt lgkmcnt(0)
        """)
    g(f"{le}:")

def get_nonce(g):
    lp, ok = g.lab("L_gn"), g.lab("L_gk")
    g(f"{lp}:\nv_readfirstlane_b32 s{sNONCE}, v{vNON}\ns_nop 3\ns_cmp_lg_u32 s{sNONCE}, 0\ns_cbranch_scc1 {ok}")
    spin_check(g)
    g(f"v_mov_b32 v{vT+3}, 0\nbuffer_load_dword v{vNON}, v{vT+3}, {sr(rDBG)}, 0 offen sc1\ns_waitcnt vmcnt(0)\ns_branch {lp}\n{ok}:")

def flag_store(g, off_expr_setup):
    g(off_expr_setup)
    g(f"v_mov_b32 v{vT}, s{sNONCE}\nv_mov_b32 v{vT+1}, 0\ns_mov_b64 exec, 1")
    g(f"buffer_store_dword v{vT}, v{vT+1}, {sr(rWS)}, s{sT1} offen sc1\ns_mov_b64 exec, -1")

def poll_issue(g, kind):
    if kind == 1:
        g(f"v_lshrrev_b32 v{vT}, 2, v1\nv_and_b32 v{vT+1}, 3, v1\nv_lshlrev_b32 v{vT}, 7, v{vT}\nv_lshl_add_u32 v{vFL}, v{vT+1}, 4, v{vT}\ns_mov_b32 s{sPOLL}, {WS_F1}")
    elif kind == 2:
        g(f"v_and_b32 v{vT}, 3, v1\nv_bfe_u32 v{vT+1}, v1, 2, 1\nv_lshlrev_b32 v{vT}, 4, v{vT}\nv_lshl_add_u32 v{vFL}, v{vT+1}, 7, v{vT}\ns_and_b32 s{sPOLL}, s{sHP}, 14\ns_lshl_b32 s{sPOLL}, s{sPOLL}, 7\ns_add_u32 s{sPOLL}, s{sPOLL}, {WS_F2}")
    elif kind == 3:
        g(f"v_and_b32 v{vT}, 3, v1\nv_lshlrev_b32 v{vFL}, 4, v{vT}\ns_lshl_b32 s{sPOLL}, s{sTB}, 7\ns_add_u32 s{sPOLL}, s{sPOLL}, {WS_F3}")
    else:
        g(f"v_mov_b32 v{vFL}, 0\ns_lshl_b32 s{sPOLL}, s{sTB}, 2\ns_add_u32 s{sPOLL}, s{sPOLL}, s{sI}\ns_lshl_b32 s{sPOLL}, s{sPOLL}, 7\ns_add_u32 s{sPOLL}, s{sPOLL}, {WS_F4}")
    g(f"buffer_load_dwordx4 {r(vPOLL,4)}, v{vFL}, {sr(rWS)}, s{sPOLL} offen sc1")

def poll_check(g):
    lp, ok = g.lab("L_pl"), g.lab("L_pk")
    g(f"{lp}:")
    for k in range(4): g(f"v_xor_b32 v{vPOLL+k}, s{sNONCE}, v{vPOLL+k}")
    g(f"v_or_b32 v{vPOLL}, v{vPOLL}, v{vPOLL+1}\nv_or3_b32 v{vPOLL}, v{vPOLL}, v{vPOLL+2}, v{vPOLL+3}\nv_cmp_ne_u32 vcc, 0, v{vPOLL}\ns_nop 4\ns_cbranch_vccz {ok}")
    spin_check(g)
    g(f"buffer_load_dwordx4 {r(vPOLL,4)}, v{vFL}, {sr(rWS)}, s{sPOLL} offen sc1\ns_waitcnt vmcnt(0)\ns_branch {lp}\n{ok}:")

def w0(g):
    skip = g.lab("L_w0")
    g(f"s_cmp_lg_u32 s{sW}, 0\ns_cbranch_scc1 {skip}")
    return skip

def kv_dma(g, src_expr, slot, tag):
    def setup(): g(f"s_lshl_b32 s{sT2}, s{sW}, 12\ns_add_u32 m0, s{sT2}, {slot*SLOT}"); g(src_expr)
    def op(e): return lambda: g.vmop(f"buffer_load_dwordx4 v{vL16}, {sr(rWS)}, s{sDS} offen offset:{e*1024} sc1 lds", tag)
    return [setup] + [op(e) for e in range(4)]
def dma_B(g, c, slot, tag):
    return kv_dma(g, f"s_add_u32 s{sDS}, s{sT2}, {WS_KVB + c*SLOT}", slot, tag)
def dma_A(g, c, slot, tag):
    return kv_dma(g, f"s_add_u32 s{sDS}, s{sDMA}, {WS_KVA + c*SLOT}", slot, tag)
def dma_Wo(g, rs, grp, ldsbase, tag):
    def setup(): g(f"s_lshl_b32 s{sDS}, s{sW}, 15\ns_and_b32 s{sT1}, s{sHP}, 7\ns_lshl_b32 s{sT1}, s{sT1}, 7\ns_add_u32 s{sDS}, s{sDS}, s{sT1}")
    def op(e):
        def f():
            g(f"s_lshl_b32 s{sT2}, s{sW}, 12\ns_add_u32 m0, s{sT2}, {ldsbase + grp*32768 + e*1024}\ns_add_u32 s{sT1}, s{sDS}, {grp*262144 + e*8192}")
            g.vmop(f"buffer_load_dwordx4 v{vDWO}, {sr(rs)}, s{sT1} offen lds", tag)
        return f
    return [setup] + [op(e) for e in range(4)]
def runall(fs):
    for f in fs: f()

def phase1(g, b):
    T1, TQ = ACC, ACC + 16
    def XF(s_): return PF + 12 * s_
    def W1(s_): return PF + 12 * s_ + 4
    def WQ(s_): return PF + 12 * s_ + 8
    def reads(p, s_):
        if g.opt.get('noread'): return
        g.ds(f"ds_read_b128 {r(XF(s_),4)}, v{vAX+s_} offset:{p*SLOT}", f'f{s_}')
        for e in range(2): g.ds(f"ds_read_b64_tr_b16 {r(W1(s_)+2*e,2)}, v{vAW1} offset:{p*SLOT+s_*2048+e*512}", f'f{s_}')
        for e in range(2): g.ds(f"ds_read_b64_tr_b16 {r(WQ(s_)+2*e,2)}, v{vAWQ} offset:{p*SLOT+s_*1024+e*256}", f'f{s_}')
    def mf(j, s_, which='both'):
        g.wlg(f'f{s_}')
        if g.opt.get('nomf'): return
        c1 = "0" if (j == 0 and s_ == 0) else r(T1, 16)
        cq = "0" if (j == 0 and s_ == 0) else r(TQ, 16)
        if which != 'q':
            if b == 0: g(f"v_mfma_f32_32x32x16_bf16 {r(T1,16)}, {r(W1(s_),4)}, {r(XF(s_),4)}, {c1}")
            else:      g(f"v_mfma_f32_32x32x16_bf16 {r(T1,16)}, {r(XF(s_),4)}, {r(W1(s_),4)}, {c1}")
        if which != 't': g(f"v_mfma_f32_32x32x16_bf16 {r(TQ,16)}, {r(WQ(s_),4)}, {r(XF(s_),4)}, {cq}")
    f1chk = g.opt.get('f1chk', 6)
    def wait_c(j, extra0):
        if extra0 and f'c{j}' in g.vm:
            n = len(g.vm) - 1 - (len(g.vm) - 1 - g.vm[::-1].index(f'c{j}'))
            sk, dn = g.lab("L_wa"), g.lab("L_wb")
            g(f"s_cmp_eq_u32 s{sW}, 0\ns_cbranch_scc1 {sk}")
            g.wvm(f'c{j}')
            g(f"{sk}:\ns_waitcnt vmcnt({n + extra0})")
        else: g.wvm(f'c{j}')
    jf = g.opt.get('jflag', 2); pd3 = g.opt.get('pdist', 2) == 3
    for j in range(8):
        p = j & 3
        wait_c(j, {0: 1, 1: 2}.get(j, 0) if not (pd3 and j == 2) else 0)
        if j == jf:
            g.wave0(lambda: get_nonce(g), lambda: flag_store(g, f"s_lshl_b32 s{sT1}, s{sTB}, 7\ns_lshl_b32 s{sT2}, s{sHP}, 2\ns_add_u32 s{sT1}, s{sT1}, s{sT2}\ns_add_u32 s{sT1}, s{sT1}, {WS_F1}"))
        if j == f1chk:
            g.wave0(lambda: poll_check(g))
        g.wlg()
        g("s_barrier")
        g.stamp(f'b{j}')
        if j in (1, 4, 6): g.jitter(3 + j)
        pd = g.opt.get('pdist', 2)
        dm = []
        if j + pd <= 7 and not (pd == 3 and j == 0): dm = p1_dma(g, j + pd)
        if pd == 3 and j == 0: dm = p1_dma(g, 2) + p1_dma(g, 3)
        if j == f1chk: dm = dma_B(g, 0, 8, 'B01')
        if len(dm) == 5: dm = [lambda a=dm[0], c=dm[1]: (a(), c())] + dm[2:]
        if len(dm) == 8: dm = [lambda a=dm[2*k], c=dm[2*k+1]: (a(), c()) for k in range(4)]
        dp = g.opt.get('dmpos', (1, 2, 3, 4))
        def issue(k):
            for q in range(len(dm)):
                if dp[q] == k: dm[q]()
        if j == f1chk - 1:
            g.wave0(lambda: poll_issue(g, 1))
        if j == 0:
            g.wave0(lambda: g(f"v_mov_b32 v{vT+3}, 0\nbuffer_load_dword v{vNON}, v{vT+3}, {sr(rDBG)}, 0 offen sc1"))
        issue(-1)
        reads(p, 0); reads(p, 1)
        issue(0)
        if j > 0: mf(j - 1, 3)
        issue(1)
        reads(p, 2)
        mf(j, 0)
        issue(2)
        reads(p, 3)
        mf(j, 1)
        issue(3)
        if j == 7:
            issue(4); break
        mf(j, 2)
        issue(4)
        if j == 0: attn_consts(g)
        if j == 1: kv_store_addr(g)
        if j == 3:
            for d, p_, n in ((rOUT, pOUT, 2097152), (rWOA, pWOA, 524288), (rWOB, pWOB, 524288)): g.srd_base(d, p_); g.srd_const(d, n)
        if j == 4: tail_addr(g)
    g.wlg()
    g.wvm('B01')
    g("s_barrier")
    g.stamp('bstart')
    g.ds(f"ds_read_b128 {r(KF[0],4)}, v{vAK}", 'K0')
    g.ds(f"ds_read_b128 {r(KF[1],4)}, v{vAK} offset:1024", 'kv')
    g(f"s_mov_b64 exec, s[{sMASK}:{sMASK+1}]")
    g.ds(f"ds_read_b128 {r(V0[0],4)}, v{vAV}", 'kv')
    g.ds(f"ds_read_b128 {r(V1[0],4)}, v{vAV} offset:512", 'kv')
    g("s_mov_b64 exec, -1")
    mf(7, 2, 'q'); mf(7, 2, 't')
    for k in range(2, g.opt.get('m0t', 4)): g.ds(f"ds_read_b128 {r(KTB+4*(k-2),4)}, v{vAK} offset:{k*1024}", 'kv')
    mf(7, 3, 'q'); mf(7, 3, 't')

def kv_store_addr(g):
    lv, le = g.lab("L_ka"), g.lab("L_kb")
    g(f"""
    s_and_b32 s{sT1}, s{sHP}, 14
    s_add_u32 s{sT1}, s{sT1}, s{sB}
    s_lshl_b32 s{sT1}, s{sT1}, 18
    s_lshr_b32 s{sT2}, s{sTB}, 1
    s_lshl_b32 s{sT2}, s{sT2}, 14
    s_add_u32 s{sT1}, s{sT1}, s{sT2}
    s_and_b32 s{sT2}, s{sTB}, 1
    s_lshl_b32 s{sT2}, s{sT2}, 2
    s_add_u32 s{sT2}, s{sT2}, s{sI}
    s_lshl_b32 s{sT2}, s{sT2}, 10
    s_add_u32 s{sKV}, s{sT1}, s{sT2}
    s_mov_b32 s{sSC}, {f2h(QSCALE)}
    s_mov_b32 s{sSC+1}, {f2h(QSCALE)}
    s_bitcmp1_b32 s{sHP}, 0
    s_cbranch_scc1 {lv}
    v_and_b32 v{vT}, 0x33, v1
    v_bfe_u32 v{vT+1}, v1, 2, 1
    v_lshl_or_b32 v{vT}, v{vT+1}, 3, v{vT}
    v_bfe_u32 v{vT+1}, v1, 3, 1
    v_lshl_or_b32 v{vT}, v{vT+1}, 2, v{vT}
    v_lshlrev_b32 v{vKVST}, 4, v{vT}
    s_add_u32 s{sKV1}, s{sKV}, 131072
    s_branch {le}
    {lv}:
    v_bfe_u32 v{vT}, v1, 4, 1
    v_lshlrev_b32 v{vT}, 17, v{vT}
    v_lshrrev_b32 v{vT+1}, 5, v1
    v_and_b32 v{vT+2}, 15, v1
    v_lshl_add_u32 v{vT+1}, v{vT+1}, 4, v{vT+2}
    v_lshl_add_u32 v{vKVST}, v{vT+1}, 4, v{vT}
    s_add_u32 s{sKV}, s{sKV}, 8192
    s_add_u32 s{sKV1}, s{sKV}, 512
    {le}:
    """)

def max_tree(Ss):
    regs = [S + k for S in Ss for k in range(16)]
    L = [f"v_max3_f32 v{vT}, v{regs[0]}, v{regs[1]}, v{regs[2]}", f"v_max3_f32 v{vT+1}, v{regs[3]}, v{regs[4]}, v{regs[5]}"]
    rest, k = regs[6:], 0
    while len(rest) >= 2:
        L.append(f"v_max3_f32 v{vT+k}, v{vT+k}, v{rest[0]}, v{rest[1]}"); rest = rest[2:]; k ^= 1
    L += [f"v_max_f32 v{vT}, v{vT}, v{vT+1}", f"v_mov_b32 v{vT+1}, v{vT}"]
    return L
def fill_c(Cr, off):
    L = [f"v_max_f32 v{vT}, v{vT}, v{vT+1}", f"v_sub_f32 v{Cr}, {f2h(-off)}, v{vT}", f"v_sub_f32 v{Cr+1}, {f2h(-off)}, v{vT}"]
    L += [f"v_mov_b64 v[{Cr+k}:{Cr+k+1}], v[{Cr}:{Cr+1}]" for k in range(2, 16, 2)]
    return "\n".join(L)
SWAP = f"v_permlane32_swap_b32 v{vT}, v{vT+1}"

def b_prologue(g):
    T1, TQ = ACC, ACC + 16
    g(f"v_mov_b64 v[{vT+4}:{vT+5}], -1\nv_mov_b64 v[{vT+6}:{vT+7}], -1\ns_nop 8")
    for k in range(8, 16, 2): g(f"v_pk_mul_f32 v[{TQ+k}:{TQ+k+1}], v[{TQ+k}:{TQ+k+1}], s[{sSC}:{sSC+1}]")
    for k in range(4): g(f"v_cvt_pk_bf16_f32 v{QB+k}, v{TQ+8+2*k}, v{TQ+9+2*k}")
    g.wlg('K0'); g("s_nop 0")
    nt = g.opt.get('m0t', 4)
    if nt > 1: g.wlg()
    for k in range(nt): g(f"v_mfma_f32_32x32x16_bf16 {r(STB[k],16)}, {r((KF[0], KF[1], KTB, KTB+4)[k],4)}, {r(QB,4)}, 0")
    for k in range(8): g(f"v_cvt_pk_bf16_f32 v{PF+k}, v{T1+2*k}, v{T1+2*k+1}")
    for k in range(0, 8, 2): g(f"v_pk_mul_f32 v[{TQ+k}:{TQ+k+1}], v[{TQ+k}:{TQ+k+1}], s[{sSC}:{sSC+1}]")
    L = max_tree(STB[:nt])
    for k, x in enumerate(L):
        g(x)
    g("s_nop 1")
    g(SWAP)
    g("s_nop 0")
    g(fill_c(C, g.opt.get('moff', MOFF)))
    g("s_nop 1")
    g(f"v_mfma_f32_32x32x16_bf16 {r(S0,16)}, {r(KF[0],4)}, {r(QB,4)}, {r(C,16)}")
    for k in range(4): g(f"v_cvt_pk_bf16_f32 v{QA+k}, v{TQ+2*k}, v{TQ+2*k+1}")
    g("s_nop 7")

def start_ops(g):
    def kv(k): return lambda: g.vmop(f"buffer_store_dwordx4 {r(PF+4*k,4)}, v{vKVST}, {sr(rWS)}, s{(sKV, sKV1)[k]} offen sc1", 'kvst')
    def sent():
        g(f"s_add_u32 s{sT1}, s{sOST}, {WS_O + 0x200000}")
        g.vmop(f"buffer_store_dwordx4 {r(vT+4,4)}, v{vL16}, {sr(rWS)}, s{sT1} offen sc1", 'sent')
    def gate():
        g(f"v_and_b32 v{vT}, 31, v1\nv_lshlrev_b32 v{vT}, 2, v{vT}\ns_lshl_b32 s{sT1}, s{sTB}, 2\ns_add_u32 s{sT1}, s{sT1}, s{sI}\ns_lshl_b32 s{sT1}, s{sT1}, 7\ns_add_u32 s{sT1}, s{sT1}, {WS_GATE}")
        g.vmop(f"buffer_load_dword v{vG}, v{vT}, {sr(rWS)}, s{sT1} offen sc1", 'gate')
    return kv(0), kv(1), sent, gate

def attn_consts(g):
    g(f"""
    v_mov_b32 v{vIDX}, 0xdddddddd
    v_lshrrev_b32 v{vT}, 5, v1
    v_and_b32 v{vT+1}, 15, v1
    v_lshl_add_u32 v{vT}, v{vT}, 4, v{vT+1}
    v_lshlrev_b32 v{vVOFF}, 4, v{vT}
    v_and_b32 v{vT}, 31, v1
    v_cmp_eq_u32 vcc, 16, v{vT}
    v_mov_b32 v{vT+1}, 0x3f803f80
    v_add_u32 v{vAK}, {8*SLOT}, v{vL16}
    v_cndmask_b32 v{vT+1}, 0, v{vT+1}, vcc
    v_add_u32 v{vAV}, {8*SLOT + 8192}, v{vVOFF}
    """)
    for k in range(16): g(f"v_mov_b32 v{V0[0]+k}, v{vT+1}")
    for Or in OACC:
        for k in range(0, 16, 2): g(f"v_mov_b64 v[{Or+k}:{Or+k+1}], 0")
    g(f"""
    s_lshl_b32 s{sT1}, s{sHP}, 1
    s_add_u32 s{sT1}, s{sT1}, s{sB}
    s_lshl_b32 s{sDMA}, s{sT1}, 17
    s_lshl_b32 s{sT2}, s{sI}, 12
    s_add_u32 s{sDMA}, s{sDMA}, s{sT2}
    s_lshl_b32 s{sT2}, s{sTB}, 2
    s_add_u32 s{sT2}, s{sT2}, s{sI}
    s_lshl_b32 s{sT2}, s{sT2}, 5
    s_add_u32 s{sT2}, s{sT2}, s{sT1}
    s_lshl_b32 s{sOST}, s{sT2}, 10
    """)

def tile(g, U, ev, pos):
    t = U & 7
    p = U & 1
    cur, nxt = (S0, S1) if p == 0 else (S1, S0)
    p1, pq, p0 = pos
    Qn = QB if U + 1 < 64 else QA
    def run(key):
        for f in ev.get((U, key), []): f()
    for i in range(16):
        if i == p1:
            if U > 0: g(f"v_smfmac_f32_32x32x32_bf16 {r(OACC[(U-1) >> 6],16)}, {r(V1[1-p],4)}, {r(nxt+8,8)}, v{vIDX}")
            run('m1')
            for o_ in g.opt.get('gord', 'mw01rk'):
                if o_ == 'w': g.wlg()
                if o_ == 'm' and U < 127: g(f"s_mov_b64 exec, s[{sMASK}:{sMASK+1}]")
                if o_ == '0' and U < 127: g.ds(f"ds_read_b128 {r(V0[1-p],4)}, v{vAV} offset:{((t + 1) & 7) * 1024}", 'kv')
                if o_ == '1' and U < 127: g.ds(f"ds_read_b128 {r(V1[1-p],4)}, v{vAV} offset:{((t + 1) & 7) * 1024 + 512}", 'kv')
                if o_ == 'r' and U < 127: g("s_mov_b64 exec, -1")
                if o_ == 'k' and U < 126: g.ds(f"ds_read_b128 {r(KF[p],4)}, v{vAK} offset:{((t + 2) & 7) * 1024}", 'kv')
            run('gap')
        if i == pq:
            if U < 127: g(f"v_mfma_f32_32x32x16_bf16 {r(nxt,16)}, {r(KF[1-p],4)}, {r(Qn,4)}, {r(C,16)}")
            run('mq')
        if i == p0:
            g(f"v_smfmac_f32_32x32x32_bf16 {r(OACC[U >> 6],16)}, {r(V0[p],4)}, {r(cur,8)}, v{vIDX}")
            run('m0')
        run(i)
        g(f"v_exp_f32 v{cur+i}, v{cur+i}")
    if U == 127:
        g("s_nop 1")
        g(f"v_smfmac_f32_32x32x32_bf16 {r(OACC[1],16)}, {r(V1[p],4)}, {r(cur+8,8)}, v{vIDX}")

def epilogue_parts(g, task):
    O = OACC[task]
    lo, hi = struct.unpack('<I', struct.pack('<f', 2.0**g.opt.get('lo', -110)))[0], struct.unpack('<I', struct.pack('<f', 2.0**120))[0]
    def p1():
        g(f"v_mov_b32 v{vT}, v{O+8}\nv_add_f32 v{vT+2}, |v{O}|, |v{O+1}|")
        for k in range(2, 8): g(f"v_add_f32 v{vT+2}, v{vT+2}, |v{O+k}|")
        g(f"v_permlane32_swap_b32 v{vT}, v{O+8}")
        g(f"v_subrev_u32 v{vT+2}, {lo}, v{vT+2}\ns_mov_b32 s{sT1}, {hi - lo}")
    def p2():
        g(f"v_subrev_u32 v{vT+3}, {lo}, v{vT}\nv_max_u32 v{vT+2}, v{vT+2}, v{vT+3}\nv_cmp_le_u32 vcc, s{sT1}, v{vT+2}")
        if g.opt.get('force_fb'): g("s_mov_b64 vcc, -1")
        g(f"s_nop 0\ns_cbranch_vccnz L_fallback{task}\nL_fbret{task}:\nv_rcp_f32 v{vT}, v{vT}")
        if task == 0: g(f"v_sub_f32 v{vT+3}, 1.0, v{vG}")
    def p3():
        g(f"v_mul_f32 v{vT}, v{vT}, v{vT+3 if task == 0 else vG}")
        for k in range(0, 8, 2): g(f"v_pk_mul_f32 v[{O+k}:{O+k+1}], v[{O+k}:{O+k+1}], v[{vT}:{vT+1}] op_sel_hi:[1,0]")
        for k in range(4): g(f"v_cvt_pk_bf16_f32 v{vT+4+k}, v{O+2*k}, v{O+2*k+1}")
        if task == 1:
            for k in range(4): g(f"v_min_u32 v{vT+4+k}, -2, v{vT+4+k}")
        g(f"s_add_u32 s{sT1}, s{sOST}, {WS_O + (0 if task == 0 else 0x200000)}")
        g.vmop(f"buffer_store_dwordx4 {r(vT+4,4)}, v{vL16}, {sr(rWS)}, s{sT1} offen sc1", 'ost')
    return p1, p2, p3

def fallback(g, task):
    Q, O = (QB, QA)[task], OACC[task]
    S_, C_, K_, A0, A1 = FB_S, FB_C, FB_K, FB_V0, FB_V1
    g(f"L_fallback{task}:")
    if g.opt.get('fbcount'):
        g(f"v_mov_b32 v{vT}, 1\nv_mov_b32 v{vT+1}, 0\ns_mov_b64 exec, 1\nbuffer_atomic_add v{vT}, v{vT+1}, {sr(rDBG)}, 0 offen offset:128\ns_mov_b64 exec, -1")
    if task == 0: g(f"s_mov_b32 s{sFBBASE}, {WS_KVB}")
    else: g(f"s_lshl_b32 s{sT1}, s{sI}, 12\ns_sub_u32 s{sFBBASE}, s{sDMA}, s{sT1}")
    g(f"v_and_b32 v{vT}, 31, v1\nv_cmp_eq_u32 vcc, 16, v{vT}\nv_mov_b32 v{vT+1}, 0x3f803f80\ns_nop 1\nv_cndmask_b32 v{vT+1}, 0, v{vT+1}, vcc")
    for k in range(8): g(f"v_mov_b32 v{A0+k}, v{vT+1}")
    g(f"v_mov_b32 v{vT}, 0xff800000\ns_mov_b32 s{sFBT}, 0")
    def addr():
        g(f"s_lshr_b32 s{sT1}, s{sFBT}, 3\ns_lshl_b32 s{sT1}, s{sT1}, 14\ns_and_b32 s{sT2}, s{sFBT}, 7\ns_lshl_b32 s{sT2}, s{sT2}, 10\ns_add_u32 s{sT1}, s{sT1}, s{sT2}\ns_add_u32 s{sT1}, s{sT1}, s{sFBBASE}")
    g(f"L_fb1_{task}:"); addr()
    g(f"buffer_load_dwordx4 {r(K_,4)}, v{vL16}, {sr(rWS)}, s{sT1} offen sc1\ns_waitcnt vmcnt(0)")
    g(f"v_mfma_f32_32x32x16_bf16 {r(S_,16)}, {r(K_,4)}, {r(Q,4)}, 0\ns_nop 15")
    for k in range(0, 16, 2): g(f"v_max3_f32 v{vT}, v{vT}, v{S_+k}, v{S_+k+1}")
    g(f"s_add_u32 s{sFBT}, s{sFBT}, 1\ns_cmp_lt_u32 s{sFBT}, 64\ns_cbranch_scc1 L_fb1_{task}")
    g(f"v_mov_b32 v{vT+1}, v{vT}\ns_nop 1\n{SWAP}\ns_nop 1")
    g(fill_c(C_, 0.0))
    for k in range(0, 16, 2): g(f"v_mov_b64 v[{O+k}:{O+k+1}], 0")
    g(f"s_mov_b32 s{sFBT}, 0")
    g(f"L_fb2_{task}:"); addr()
    g(f"buffer_load_dwordx4 {r(K_,4)}, v{vL16}, {sr(rWS)}, s{sT1} offen sc1\ns_add_u32 s{sT1}, s{sT1}, 8192")
    g(f"s_mov_b64 exec, s[{sMASK}:{sMASK+1}]")
    g(f"buffer_load_dwordx4 {r(A0,4)}, v{vVOFF}, {sr(rWS)}, s{sT1} offen sc1\nbuffer_load_dwordx4 {r(A1,4)}, v{vVOFF}, {sr(rWS)}, s{sT1} offen offset:512 sc1")
    g("s_mov_b64 exec, -1\ns_waitcnt vmcnt(0)")
    g(f"v_mfma_f32_32x32x16_bf16 {r(S_,16)}, {r(K_,4)}, {r(Q,4)}, {r(C_,16)}\ns_nop 15")
    for k in range(16): g(f"v_exp_f32 v{S_+k}, v{S_+k}")
    g("s_nop 2")
    g(f"v_smfmac_f32_32x32x32_bf16 {r(O,16)}, {r(A0,4)}, {r(S_,8)}, v{vIDX}")
    g(f"v_smfmac_f32_32x32x32_bf16 {r(O,16)}, {r(A1,4)}, {r(S_+8,8)}, v{vIDX}")
    g(f"s_nop 15\ns_add_u32 s{sFBT}, s{sFBT}, 1\ns_cmp_lt_u32 s{sFBT}, 64\ns_cbranch_scc1 L_fb2_{task}")
    g(f"v_mov_b32 v{vT}, v{O+8}\nv_mov_b32 v{vT+1}, v{O+8}\ns_nop 1\n{SWAP}\ns_nop 1\ns_branch L_fbret{task}")

def tail_addr(g):
    g(f"""
    v_lshrrev_b32 v{vT}, 3, v1
    v_bfe_u32 v{vT+1}, v1, 2, 1
    v_bfe_u32 v{vT+2}, v1, 4, 1
    v_xor_b32 v{vT+1}, v{vT+1}, v{vT+2}
    v_lshlrev_b32 v{vT+1}, 6, v{vT+1}
    v_lshl_add_u32 v{vT+1}, v{vT}, 10, v{vT+1}
    v_and_b32 v{vT+3}, 3, v1
    v_lshl_add_u32 v{vDWO}, v{vT+3}, 4, v{vT+1}
    v_lshrrev_b32 v{vT}, 5, v1
    v_bfe_u32 v{vT+1}, v1, 2, 2
    v_lshl_add_u32 v{vT}, v{vT}, 2, v{vT+1}
    v_lshlrev_b32 v{vT}, 7, v{vT}
    v_bfe_u32 v{vT+1}, v1, 3, 1
    v_lshl_add_u32 v{vT}, v{vT+1}, 6, v{vT}
    v_lshl_add_u32 v{vT}, v{vT+2}, 5, v{vT}
    v_lshl_add_u32 v{vT}, v{vT+3}, 3, v{vT}
    s_lshl_b32 s{sT1}, s{sI}, 13
    s_add_u32 s{sT1}, s{sT1}, {LDS_WOB}
    s_lshr_b32 s{sT2}, s{sHP}, 3
    s_lshl_b32 s{sT2}, s{sT2}, 15
    s_add_u32 s{sT1}, s{sT1}, s{sT2}
    v_add_u32 v{vAT+2}, s{sT1}, v{vT}
    v_xor_b32 v{vAT+3}, 64, v{vAT+2}
    s_lshl_b32 s{sT2}, s{sT2}, 1
    s_sub_u32 s{sT1}, s{sT1}, s{sT2}
    s_add_u32 s{sT1}, s{sT1}, 32768
    v_add_u32 v{vAT}, s{sT1}, v{vT}
    v_xor_b32 v{vAT+1}, 64, v{vAT}
    s_mul_i32 s{sT1}, s{sW}, 6144
    v_add_u32 v{vRR}, s{sT1}, v{vL16}
    s_lshl_b32 s{sT1}, s{sTB}, 7
    s_lshr_b32 s{sT2}, s{sHP}, 3
    s_lshl_b32 s{sT2}, s{sT2}, 6
    s_add_u32 s{sT1}, s{sT1}, s{sT2}
    s_lshl_b32 s{sT2}, s{sB}, 5
    s_add_u32 s{sT1}, s{sT1}, s{sT2}
    v_and_b32 v{vT}, 31, v1
    v_add_u32 v{vT}, s{sT1}, v{vT}
    v_lshlrev_b32 v{vT}, 10, v{vT}
    v_lshrrev_b32 v{vT+1}, 5, v1
    v_lshl_add_u32 v{vT}, v{vT+1}, 4, v{vT}
    s_and_b32 s{sT2}, s{sHP}, 7
    s_lshl_b32 s{sT2}, s{sT2}, 7
    s_lshl_b32 s{sT1}, s{sI}, 5
    s_add_u32 s{sT2}, s{sT2}, s{sT1}
    v_add_u32 v{vOUTA}, s{sT2}, v{vT}
    """)

def of_loads(g, branch, tag, dst=None):
    dst = OF if dst is None else dst
    def setup():
        g(f"""
        s_lshl_b32 s{sT1}, s{sTB}, 2
        s_lshr_b32 s{sT2}, s{sHP}, 3
        s_lshl_b32 s{sT2}, s{sT2}, 1
        s_add_u32 s{sT1}, s{sT1}, s{sT2}
        s_add_u32 s{sT1}, s{sT1}, s{sB}
        s_lshl_b32 s{sT1}, s{sT1}, 15
        s_lshl_b32 s{sT2}, s{sI}, 12
        s_add_u32 s{sT1}, s{sT1}, s{sT2}
        s_add_u32 s{sT1}, s{sT1}, {WS_O + branch*0x200000}
        s_lshr_b32 s{sT2}, s{sHP}, 3
        s_lshl_b32 s{sT2}, s{sT2}, 14
        s_add_u32 s{sOF+1}, s{sT1}, s{sT2}
        s_sub_u32 s{sT1}, s{sT1}, s{sT2}
        s_add_u32 s{sOF}, s{sT1}, 16384
        """)
    def op(n): return lambda: g.vmop(f"buffer_load_dwordx4 {r(dst+4*n,4)}, v{vL16}, {sr(rWS)}, s{sOF + (n >> 2)} offen offset:{(n&3)*1024} sc1", f'{tag}{n}')
    return [setup] + [op(n) for n in range(8)]

def wfrag_reads(g, n, base, tag):
    for tc in range(2):
        for e in range(2):
            g.ds(f"ds_read_b64_tr_b16 {r(WF+8*n+4*tc+2*e,2)}, v{vAT+2*(n>>2)+tc} offset:{base+(n&3)*2048+e*1024}", f'{tag}{n}')

def tail(g):
    OA = PF
    p1, p2, p3 = epilogue_parts(g, 1)
    fa = of_loads(g, 1, 'OA', OA)
    oat = list(g.opt.get('oat', (8, 8, 8, 8, 9, 9, 10, 10)))
    for n in range(3): wfrag_reads(g, n, 0, 'w')
    p1(); g("s_nop 0"); p2(); fa[0](); p3()
    g.stamp('A')
    g.jitter(200)
    g.wvm('WoA1')
    g("s_barrier")
    g.stamp('T1')
    DA = LDS_WOA - LDS_WOB
    nload = 0
    for n in range(8):
        g.wlg(f'w{n}')
        for tc in range(2):
            c = "0" if n == 0 else r(ACC+16*tc, 16)
            g(f"v_mfma_f32_32x32x16_bf16 {r(ACC+16*tc,16)}, {r(WF+8*n+4*tc,4)}, {r(OF+4*n,4)}, {c}")
        if n + 3 < 8: wfrag_reads(g, n + 3, 0, 'w')
        else: wfrag_reads(g, n - 5, 0, 'x')
        if n in (1, 5):
            for k in range(2): g(f"v_add_u32 v{vAT + (n >> 2) * 2 + k}, {DA}, v{vAT + (n >> 2) * 2 + k}")
        for k in range(8):
            if oat[k] == n: fa[1 + k]()
    g.stamp('bp')
    for n in range(3, 8):
        g.wlg(f'x{n-3}')
        wfrag_reads(g, n, 0, 'x')
        for k in range(8):
            if oat[k] == n + 5: fa[1 + k]()
    for d in range(4):
        g(f"s_sub_u32 s{sT1}, {d + 3}, s{sI}\ns_and_b32 s{sT1}, s{sT1}, 3\ns_lshl_b32 s{sT1}, s{sT1}, 11\ns_mul_i32 s{sT2}, s{sB}, 24576\ns_add_u32 s{sT1}, s{sT1}, s{sT2}\ns_add_u32 s{sT1}, s{sT1}, {d * 6144}\nv_add_u32 v{vT+4+d}, s{sT1}, v{vL16}")
    g.wlg()
    if g.opt.get('t2early', 1): g("s_barrier")
    g.stamp('poll')
    def check(q, bad):
        R = OA + 16 * q
        g(f"v_max3_u32 v{vT}, v{R}, v{R+1}, v{R+2}\nv_max3_u32 v{vT+1}, v{R+3}, v{R+4}, v{R+5}")
        for k in range(6, 16, 4):
            g(f"v_max3_u32 v{vT}, v{vT}, v{R+k}, v{R+k+1}")
            if k + 3 < 16: g(f"v_max3_u32 v{vT+1}, v{vT+1}, v{R+k+2}, v{R+k+3}")
        g(f"v_max_u32 v{vT}, v{vT}, v{vT+1}\nv_cmp_eq_u32 vcc, -1, v{vT}\ns_nop 0\ns_cbranch_vccnz {bad}")
        for tc in range(2):
            for n in range(4 * q, 4 * q + 4):
                g(f"v_mfma_f32_32x32x16_bf16 {r(ACC+16*tc,16)}, {r(WF+8*n+4*tc,4)}, {r(OA+4*n,4)}, {r(ACC+16*tc,16)}")
    g(f"s_mov_b32 s{sDS}, 0")
    for q in range(2):
        sk, bad = g.lab("L_oa"), g.lab("L_ob")
        g.wvm(f'OA{4*q+3}')
        check(q, bad)
        g(f"s_branch {sk}\n{bad}:\ns_bitset1_b32 s{sDS}, {q}\n{sk}:")
    g.stamp('pass1')
    g(f"L_oa_loop:\ns_cmp_eq_u32 s{sDS}, 0\ns_cbranch_scc1 L_oa_done")
    spin_check(g)
    for q in range(2):
        sk = g.lab("L_oc")
        g(f"s_bitcmp1_b32 s{sDS}, {q}\ns_cbranch_scc0 {sk}")
        for n in range(4 * q, 4 * q + 4): fa[1 + n]()
        g.vm = []
        g(f"{sk}:")
    g("s_waitcnt vmcnt(0)")
    for q in range(2):
        sk = g.lab("L_od")
        g(f"s_bitcmp1_b32 s{sDS}, {q}\ns_cbranch_scc0 {sk}")
        check(q, sk)
        g(f"s_bitset0_b32 s{sDS}, {q}\n{sk}:")
    g("s_branch L_oa_loop\nL_oa_done:")
    g.stamp('mm')
    g.jitter(201)
    if not g.opt.get('t2early', 1): g("s_barrier")
    g("s_nop 3")
    def piece(d): return ACC + 16 * (d >> 1) + 8 * (d & 1)
    for d in range(4):
        sk = g.lab("L_rw")
        if d == 2: g("s_nop 6")
        g(f"s_cmp_eq_u32 s{sI}, {d}\ns_cbranch_scc1 {sk}")
        g(f"ds_write_b128 v{vT+4+d}, {r(piece(d),4)}\nds_write_b128 v{vT+4+d}, {r(piece(d)+4,4)} offset:1024\n{sk}:")
    lj = g.lab("L_rj")
    for d in range(4):
        sk = g.lab("L_rs")
        if d < 3: g(f"s_cmp_lg_u32 s{sI}, {d}\ns_cbranch_scc1 {sk}")
        for k in range(0, 8, 2): g(f"v_mov_b64 v[{40+k}:{41+k}], v[{piece(d)+k}:{piece(d)+k+1}]")
        if d < 3: g(f"s_branch {lj}\n{sk}:")
    g(f"{lj}:")
    g("s_waitcnt lgkmcnt(0)\ns_barrier")
    g.stamp('red')
    for k in range(3):
        for e in range(2):
            g.ds(f"ds_read_b128 {r(16+8*k+4*e,4)}, v{vRR} offset:{k*2048+e*1024}", f'rr{k}')
    g.wlg('rr0')
    for k in range(0, 8, 2): g(f"v_pk_add_f32 v[{40+k}:{41+k}], v[{40+k}:{41+k}], v[{16+k}:{17+k}]")
    g.wlg('rr2')
    for k in range(0, 8, 2): g(f"v_pk_add_f32 v[{24+k}:{25+k}], v[{24+k}:{25+k}], v[{32+k}:{33+k}]")
    for k in range(0, 8, 2): g(f"v_pk_add_f32 v[{40+k}:{41+k}], v[{40+k}:{41+k}], v[{24+k}:{25+k}]")
    for k in range(4): g(f"v_cvt_pk_bf16_f32 v{16+k}, v{40+2*k}, v{41+2*k}")
    g("s_nop 1\nv_permlane32_swap_b32 v16, v18\nv_permlane32_swap_b32 v17, v19")
    g.vmop(f"buffer_store_dwordx4 v[16:19], v{vOUTA}, {sr(rOUT)}, 0 offen {g.opt.get('outsc', '')}", 'out')

def schedule(g):
    o = g.opt
    ev = {}
    def at(T, key, *fs): ev.setdefault((T, key), []).extend(fs)
    dpos = o.get('dpos', ((2, 'm0'), (3, 'm0'), (4, 'm0'), (5, 'm0')))
    pp = o.get('pp', {(2, 'mq'): 3, (5, 'm0'): 2, (0, 'm0'): 1, (1, 'mq'): 0})
    def wave0(*fs): return lambda: g.wave0(*fs)
    def flag(base, hi, lo):
        return lambda: flag_store(g, f"s_lshl_b32 s{sT1}, s{hi}, 7\ns_lshl_b32 s{sT2}, s{lo}, 2\ns_add_u32 s{sT1}, s{sT1}, s{sT2}\ns_add_u32 s{sT1}, s{sT1}, {base}")
    def slot(gi): return slotB(gi) if gi < 8 else slotA(gi - 8)
    def vadd(reg, src, gi):
        d = ((slot(gi + 1) - slot(gi)) * SLOT) & 0xffffffff
        if gi != 7: return lambda: g(f"v_add_u32 v{reg}, {d}, v{src}")
        return lambda: g(f"s_lshl_b32 s{sT1}, s{sB}, 14\ns_add_u32 s{sT1}, s{sT1}, {d}\nv_add_u32 v{reg}, s{sT1}, v{src}")
    nt = o.get('m0t', 4)
    at(59, 0, vadd(vT + 3, vAK, 7))
    for k in range(nt):
        at(59, 'gap', lambda k=k: g.ds(f"ds_read_b128 {r(KTMP+4*k,4)}, v{vT+3} offset:{k*1024}", 'kv'))
        at(60 + k // 2, 7 if k % 2 == 0 else 13, lambda k=k: g(f"v_mfma_f32_32x32x16_bf16 {r(STMP[k],16)}, {r(KTMP+4*k,4)}, {r(QA,4)}, 0"))
    L = max_tree(STMP[:nt])
    if nt > 2:
        at(61, 6, lambda: g("\n".join(L[:8]))); at(62, 1, lambda: g("\n".join(L[8:16]))); at(62, 6, lambda: g("\n".join(L[16:])))
    else:
        at(61, 6, lambda: g("\n".join(L[:8]))); at(62, 6, lambda: g("\n".join(L[8:])))
    at(62, 8, lambda: g(SWAP))
    at(62, 12, lambda: g(fill_c(C, o.get('moff', MOFF))))
    e1, e2, e3 = epilogue_parts(g, 0)
    at(65, 0, e1); at(65, 1, e2); at(65, 6, e3, lambda: g.stamp('B'))
    fs = dma_B(g, 2, 0, 'G1')
    at(0, 6, fs[0], fs[1]); at(0, 13, fs[2]); at(1, 1, fs[3]); at(1, 6, fs[4])
    k0, k1, sent, gate = start_ops(g)
    at(4, 6, k0); at(5, 6, k1); at(6, 6, sent); at(7, 6, gate)
    for U in (3, 17, 30, 63, 70, 90, 111, 125): at(U, 9, lambda U=U: g.jitter(U))
    for gi in range(16):
        T0 = 8 * gi
        ppc = dict(pp)
        if gi == 15:
            ppc = {k: v for k, v in pp.items() if k[0] < 2}
            ppc.update(o.get('pplast', {(2, 'm1'): 3, (3, 'm0'): 2, (5, 'm0'): 1, (7, 'm1'): 0}))
        for (t, key), pr in ppc.items(): at(T0 + t, key, lambda pr=pr: g(f"s_setprio {pr}"))
        if gi < 15:
            at(T0 + 6, 0, vadd(vAK, vAK, gi))
            at(T0 + 7, 0, vadd(vAV, vAV, gi))
        wait = {1: 'G1', 2: 'kvst', 3: 'G3', 4: None, 7: 'A0', 8: 'A1', 9: 'A2', 10: 'ost', 11: 'A4', 12: 'A5', 13: 'A6', 14: 'WoB0', 15: 'WoB1'}
        if gi == 4: at(T0 + 1, 1, lambda: g.wvm(), wave0(lambda: poll_check(g)))
        if gi == 14: at(T0 + 1, 1, lambda: g.wvm('WoB0'), wave0(lambda: poll_check(g)))
        if gi in wait: at(T0 + 1, 'm0', lambda w=wait[gi]: g.wvm(w))
        at(T0 + 1, 'm0', lambda: g("s_barrier"))
        at(T0 + 1, 'm0', lambda gi=gi: g.stamp(f'g{gi}'))
        grp = {0: lambda: dma_B(g, 4, 2, 'G2'), 1: lambda: dma_B(g, 6, 4, 'G3'),
               4: lambda: dma_A(g, 0, 6, 'A0'), 5: lambda: dma_A(g, 1, 8, 'A1'), 6: lambda: dma_A(g, 2, 0, 'A2'), 7: lambda: dma_A(g, 3, 2, 'A3'),
               8: lambda: dma_A(g, 4, 4, 'A4'), 9: lambda: dma_A(g, 5, 6, 'A5'), 10: lambda: dma_A(g, 6, 8, 'A6'), 11: lambda: dma_A(g, 7, 0, 'A7'),
               12: lambda: dma_Wo(g, rWOB, 0, LDS_WOB, 'WoB0'), 13: lambda: dma_Wo(g, rWOB, 1, LDS_WOB, 'WoB1'),
               14: lambda: dma_Wo(g, rWOA, 0, LDS_WOA, 'WoA0'), 15: lambda: dma_Wo(g, rWOA, 1, LDS_WOA, 'WoA1')}
        if gi == 13: at(T0 + 2, 0, wave0(lambda: poll_issue(g, 3)))
        if gi in grp:
            fs = grp[gi]()
            at(T0 + dpos[0][0], dpos[0][1], fs[0])
            for (t, i), f in zip(dpos, fs[1:]): at(T0 + t, i, f)
        if gi == 2: at(T0 + 2, 6, wave0(flag(WS_F2, sHP, sTB)))
        if gi == 3:
            at(T0 + 4, 6, wave0(lambda: poll_issue(g, 2)))
        if gi == 10: at(T0 + 4, 6, wave0(flag(WS_F3, sTB, sHP)))
        if gi == 13 and o.get('wopf', 1):
            def wopf():
                g(f"s_and_b32 s{sT1}, s{sTB}, 3\ns_lshl_b32 s{sT1}, s{sT1}, 13\ns_add_u32 s{sT1}, s{sT1}, s{sDS}\ns_add_u32 s{sT1}, s{sT1}, 262144")
                g.vmop(f"buffer_load_dwordx4 {r(208,4)}, v{vDWO}, {sr(rWOA)}, s{sT1} offen", 'pf')
            at(T0 + 5, 6, wopf)
        if gi == 14:
            fs = of_loads(g, 0, 'OB')
            at(T0 + 4, 6, fs[0])
            for n, f in enumerate(fs[1:]): at(T0 + 4 + n // 2, 6 if n % 2 == 0 else 13, f)
    return ev

def slotB(c): return (8 + c) % 10
def slotA(c): return 2 * ((3 + c) % 5)

def build(**opt):
    g = G(**opt)
    setup(g)
    fork = (list(g.lg), list(g.vm)); nst0 = g.nst
    g(f"s_bitcmp1_b32 s{sHP}, 0\ns_cbranch_scc1 L_p1b")
    phase1(g, 0)
    end0 = (list(g.lg), list(g.vm))
    g("s_branch L_p1done\nL_p1b:")
    g.lg, g.vm = list(fork[0]), list(fork[1]); g.nst = nst0
    phase1(g, 1)
    assert end0 == (g.lg, g.vm), (end0, g.lg, g.vm)
    g("L_p1done:")
    g.stamp('p1')
    b_prologue(g)
    g.stamp('t0')
    ev = schedule(g)
    for U in range(128): tile(g, U, ev, opt.get('pos', (2, 5, 10)))
    tail(g)
    if opt.get('stamps'):
        g.stamp('end')
        g(f"s_lshl_b32 s{sT1}, s2, 3\ns_add_u32 s{sT1}, s{sT1}, s{sW}\ns_lshl_b32 s{sT1}, s{sT1}, 6\ns_add_u32 s{sT1}, s{sT1}, {WS_DBG}")
        g("s_waitcnt lgkmcnt(0)")
        for k in range(12): g(f"v_mov_b32 v{16+k}, s{STAMP_SLOTS[min(k, g.nst-1)]}")
        g(f"v_mov_b32 v30, 0\ns_mov_b64 exec, 1")
        for k in range(3): g(f"buffer_store_dwordx4 v[{16+4*k}:{19+4*k}], v30, {sr(rWS)}, s{sT1} offen offset:{16*k}")
    if opt.get('dbgst'):
        sk = w0(g)
        g("s_waitcnt vmcnt(0) lgkmcnt(0)")
        last = STAMP_SLOTS[g.nst - 1]
        g(f"v_mov_b32 v16, s{last}\ns_not_b32 s{sT1}, s{STAMP_SLOTS[0]}\nv_mov_b32 v17, s{sT1}\nv_mov_b32 v30, 0\ns_mov_b64 exec, 1")
        g(f"buffer_atomic_umax v16, v30, {sr(rDBG)}, 0 offen offset:4\nbuffer_atomic_umax v17, v30, {sr(rDBG)}, 0 offen offset:8")
        sk2 = g.lab("L_d2")
        g(f"s_cmp_lg_u32 s2, {opt['dbgst'] - 1}\ns_cbranch_scc1 {sk2}")
        for k in range(12): g(f"s_sub_u32 s{sT1}, s{STAMP_SLOTS[min(k, g.nst-1)]}, s{STAMP_SLOTS[0]}\nv_mov_b32 v{16+k}, s{sT1}")
        g(f"v_mov_b32 v16, s{STAMP_SLOTS[0]}")
        for k in range(3): g(f"buffer_store_dwordx4 v[{16+4*k}:{19+4*k}], v30, {sr(rDBG)}, 0 offen offset:{16+16*k}")
        g(f"{sk2}:\ns_mov_b64 exec, -1\n{sk}:")
    if opt.get('spinend'):
        base, idx, mult = opt['spinend']
        sk = w0(g); sk2 = g.lab("L_sp")
        g(f"s_cmp_lg_u32 s2, {opt.get('spinwg', 0)}\ns_cbranch_scc1 {sk}\ns_waitcnt vmcnt(0) lgkmcnt(0)")
        g(f"s_sub_u32 s{sT1}, s{STAMP_SLOTS[idx]}, s{STAMP_SLOTS[0]}\ns_mul_i32 s{sT1}, s{sT1}, {mult}\ns_add_u32 s{sT1}, s{sT1}, {base*100}")
        g(f"{sk2}:\ns_memrealtime s[{sPC}:{sPC+1}]\ns_waitcnt lgkmcnt(0)\ns_sub_u32 s{sT2}, s{sPC}, s{STAMP_SLOTS[0]}\ns_cmp_lt_u32 s{sT2}, s{sT1}\ns_cbranch_scc1 {sk2}")
        g(f"{sk}:")
    if opt.get('spinrel'):
        a_, b_, mult, shift = opt['spinrel']
        sk = w0(g); sk2 = g.lab("L_sq")
        g(f"s_cmp_lg_u32 s2, {opt.get('spinwg', 0)}\ns_cbranch_scc1 {sk}\ns_waitcnt vmcnt(0) lgkmcnt(0)")
        g(f"s_sub_u32 s{sT1}, s{STAMP_SLOTS[b_]}, s{STAMP_SLOTS[a_]}\ns_mul_i32 s{sT1}, s{sT1}, {mult}\ns_lshr_b32 s{sT1}, s{sT1}, {shift}")
        g(f"s_memrealtime s[{sSC}:{sSC+1}]\ns_waitcnt lgkmcnt(0)")
        g(f"{sk2}:\ns_memrealtime s[{sPC}:{sPC+1}]\ns_waitcnt lgkmcnt(0)\ns_sub_u32 s{sT2}, s{sPC}, s{sSC}\ns_cmp_lt_u32 s{sT2}, s{sT1}\ns_cbranch_scc1 {sk2}")
        g(f"{sk}:")
    if opt.get('spinconst'):
        sk = w0(g); sk2 = g.lab("L_sc")
        g(f"s_waitcnt vmcnt(0) lgkmcnt(0)\ns_memrealtime s[{sSC}:{sSC+1}]\ns_waitcnt lgkmcnt(0)")
        g(f"{sk2}:\ns_memrealtime s[{sPC}:{sPC+1}]\ns_waitcnt lgkmcnt(0)\ns_sub_u32 s{sT2}, s{sPC}, s{sSC}\ns_cmp_lt_u32 s{sT2}, {opt['spinconst']}\ns_cbranch_scc1 {sk2}")
        g(f"{sk}:")
    g("L_abort:\ns_endpgm")
    g.L += g.cold
    fallback(g, 0)
    fallback(g, 1)
    g("L_end:\ns_endpgm\nL_codeend:")
    hdr = open('gated_mix__mha_block__grouped_kv_mqa__prompt.s.ref').read().split("; Override launch")[0]
    out = hdr + "; One fused launch: projections, MQA and MHA attention, gated output projection.\n"
    out += "; @launch grid=(256,1,1) block=(512,1,1) lds=163840\n"
    out += f""".amdgcn_target "amdgcn-amd-amdhsa--gfx950"
.text
.globl {NAME}
.p2align 8
.type {NAME},@function
{NAME}:
{g.text()}.section .rodata,"a"
.p2align 6
.amdhsa_kernel {NAME}
  .amdhsa_next_free_vgpr 256
  .amdhsa_next_free_sgpr 102
  .amdhsa_accum_offset 256
  .amdhsa_group_segment_fixed_size 0
  .amdhsa_kernarg_size 96
  .amdhsa_user_sgpr_count 2
  .amdhsa_user_sgpr_kernarg_segment_ptr 1
  .amdhsa_system_sgpr_workgroup_id_x 1
.end_amdhsa_kernel
"""
    return out

if __name__ == "__main__":
    path = sys.argv[1] if len(sys.argv) > 1 else 'gated_mix__mha_block__grouped_kv_mqa__prompt.s'
    opt = {}
    for a in sys.argv[2:]:
        k, _, v = a.partition('=')
        opt[k] = eval(v) if v else True
    open(path, 'w').write(build(**opt))
```

```python
import sys, struct, copy
NAME = "gated_mix__mha_block__grouped_kv_mqa__prompt_kernel"

def f2h(x): return "0x%08x" % struct.unpack('<I', struct.pack('<f', x))[0]

WS_KVA  = 0x000000
WS_KVB  = 0x400000
WS_GATE = 0x420000
WS_F1   = 0x424000
WS_F2   = WS_F1 + 2048
WS_F3   = WS_F1 + 4096
WS_F4   = WS_F1 + 6144
WS_O    = 0x500000
WS_DBG  = 0x900000
WS_SIZE = 0x1000000

SLOT = 16384
LDS_WST = 65536
LDS_EW  = 8 * SLOT
LDS_ER  = 9 * SLOT
LDS_EG  = 9 * SLOT + 8192
LDS_EX  = 3 * SLOT
LDS_WOB = 2 * SLOT
LDS_WOA = 6 * SLOT

sW, sHP, sTB, sROT, sB = 3, 4, 5, 6, 7
rX, rWS_, rWKV, rGATE, rWS, rDBG, rOUT, rWOA, rWOB = 8, 12, 16, 20, 24, 28, 32, 36, 40
sMASK = 44
sI, sNONCE, sSPIN, sT0, sT1, sT2 = 46, 47, 48, 49, 50, 51
pX, pWQKV, pWOA, pBX, pWQ, pWK, pWV, pWOB, pGATE, pOUT, pDBG, pWS = 52, 54, 56, 58, 60, 62, 64, 66, 68, 70, 72, 74
sXO, sWO, sWSTEP, sW16, sMX, sMW, sKX, sKW = 76, 77, 78, 79, 80, 81, 82, 83
sOF = 76
sPC = 84
sFBBASE, sKV, sFBT, sDMA, sOST, sT3 = 86, 87, 88, 89, 90, 91
sKV1, sSC = 98, 100
sPOLL, sDS = 92, 93
sST = 94
vIDX, vAK, vAV, vG, vL16, vVOFF = 2, 3, 4, 5, 6, 7
vT = 8
S0, S1, C, QA, QB = 16, 32, 64, 80, 84
OACC = (112, 48)
STMP, KTMP = (128, 144, 160, 176), 192
STB, KTB = (32, 16, 128, 64), 232
FB_S, FB_C, FB_K, FB_V0, FB_V1 = 176, 160, 144, 148, 152
KF, V0, V1 = (88, 92), (96, 100), (104, 108)
OF = 112
ACC = 144
PF = 176
WF = 16
vAX = 240
vAW1, vAWQ, vDX0, vDX1, vDW, vKVST = 244, 245, 246, 247, 248, 249
vDWO, vRR, vOUTA = 224, 225, 226
vAT = 228
vFL, vNON, vDUMMY = 250, 251, 251
vPOLL = 252
QSCALE = 0.25 * 1.4426950408889634
MOFF = 102.0
SPIN = 1 << 20

STAMP_SLOTS = [94, 96, 52, 54, 58, 60, 62, 64, 68, 72, 74, 56]
class G:
    def __init__(s, **opt):
        s.L = []; s.lg = []; s.vm = []; s.opt = opt; s.nlab = 0; s.nst = 0; s.cold = []
    def __call__(s, txt):
        for line in txt.split("\n"):
            line = line.strip()
            if not line: continue
            s.L.append(line if (line.endswith(":") or line.startswith(".")) else "    " + line)
    def rare(s, test, branch, *fs):
        if not s.opt.get('ool', 1):
            sk = s.lab("L_sk")
            s(test); s(f"{'s_cbranch_scc0' if branch.endswith('1') else 's_cbranch_scc1'} {sk}")
            for f in fs: f()
            s(f"{sk}:"); return
        lo, lr = s.lab("L_rare"), s.lab("L_back")
        s(test); s(f"{branch} {lo}\n{lr}:")
        main, s.L = s.L, s.cold
        s(f"{lo}:")
        for f in fs: f()
        s(f"s_branch {lr}")
        s.L = main
    def wave0(s, *fs): s.rare(f"s_cmp_eq_u32 s{sW}, 0", "s_cbranch_scc1", *fs)
    def first(s, *fs): s.rare(f"s_or_b32 s{sT1}, s2, s{sW}", "s_cbranch_scc0", *fs)
    def lab(s, p="L"):
        s.nlab += 1; return f"{p}_{s.nlab}"
    def ds(s, txt, tag=None):
        s(txt); s.lg.append(tag); assert len(s.lg) <= 15, "lgkm overflow"
    def wlg(s, tag=None):
        if tag is None:
            s("s_waitcnt lgkmcnt(0)"); s.lg = []; return
        if tag not in s.lg: return
        i = len(s.lg) - 1 - s.lg[::-1].index(tag)
        n = len(s.lg) - 1 - i
        s(f"s_waitcnt lgkmcnt({n})"); s.lg = s.lg[i + 1:]
    def vmop(s, txt, tag=None):
        s(txt); s.vm.append(tag); assert len(s.vm) <= 63
    def wvm(s, tag=None):
        if tag is None:
            s("s_waitcnt vmcnt(0)"); s.vm = []; return
        if tag not in s.vm: return
        i = len(s.vm) - 1 - s.vm[::-1].index(tag)
        n = len(s.vm) - 1 - i
        s(f"s_waitcnt vmcnt({n})"); s.vm = s.vm[i + 1:]
    def srd(s, d, base, nbytes):
        s(f"s_mov_b32 s{d}, s{base}\ns_and_b32 s{d+1}, s{base+1}, 0xffff\ns_mov_b32 s{d+2}, {nbytes}\ns_mov_b32 s{d+3}, 0x00020000")
    def srd_const(s, d, nbytes): s(f"s_mov_b32 s{d+2}, {nbytes}\ns_mov_b32 s{d+3}, 0x00020000")
    def srd_base(s, d, base): s(f"s_mov_b64 s[{d}:{d+1}], s[{base}:{base+1}]")
    def stamp(s, name):
        if not s.opt.get('stamps'): return
        if name not in s.opt.get('at', ('setup', 'p1', 'bstart', 'B', 'A', 'poll', 'mm', 'end')): return
        ins = "s_memtime" if s.opt.get('stamps') == 2 else "s_memrealtime"
        slot = STAMP_SLOTS[s.nst]
        assert slot >= 94 or name not in ('entry', 'karg', 'eissue')
        s(f"{ins} s[{slot}:{slot+1}]")
        s.nst += 1
    def jitter(s, salt):
        j = s.opt.get('jitter')
        if not j: return
        lp, sk = s.lab("L_j"), s.lab("L_jk")
        if salt % 2: s(f"s_lshl_b32 s{sT2}, s2, 3\ns_add_u32 s{sT2}, s{sT2}, s{sW}")
        else: s(f"s_mov_b32 s{sT2}, s2")
        s(f"s_add_u32 s{sT2}, s{sT2}, {salt * 7919 + j * 104729}\ns_mul_i32 s{sT1}, s{sT2}, 0x9e3779b1\ns_lshr_b32 s{sT1}, s{sT1}, 27")
        s(f"{lp}:\ns_sub_u32 s{sT1}, s{sT1}, 1\ns_cbranch_scc1 {sk}\ns_sleep 8\ns_branch {lp}\n{sk}:")
    def text(s): return "\n".join(s.L) + "\n"

def r(a, n): return f"v[{a}:{a+n-1}]"
def sr(a, n=4): return f"s[{a}:{a+n-1}]"

def spin_check(g):
    g(f"s_sub_u32 s{sSPIN}, s{sSPIN}, 1\ns_cbranch_scc1 L_abort")

def setup(g):
    g(f"""
    s_cmp_ge_u32 s2, 256
    s_cbranch_scc1 L_end
    """)
    g.stamp('entry')
    mode = g.opt.get('pfm', 'v')
    pf = ''
    if mode == 's': pf = f"""
    s_lshl_b32 s{sT1}, s{sW}, 7
    s_and_b32 s{sT0}, s2, 0xf8
    s_lshl_b32 s{sT0}, s{sT0}, 7
    s_add_u32 s{sT0}, s{sT0}, 3072
    s_add_u32 s{sT0}, s{sT0}, s{sT1}
    s_min_u32 s{sT0}, s{sT0}, L_codeend-L_pc-4
    s_load_dword s{sFBT}, s[{sPC}:{sPC+1}], s{sT0}
    s_add_u32 s{sPC}, s{sPC}, s{sT1}
    s_addc_u32 s{sPC+1}, s{sPC+1}, 0
    s_load_dword s{sFBT}, s[{sPC}:{sPC+1}], 0
    s_load_dword s{sFBT}, s[{sPC}:{sPC+1}], 1024
    s_load_dword s{sFBT}, s[{sPC}:{sPC+1}], 2048
    """
    if mode == 'v':
        pf = f"""
    s_and_b32 s{sT0}, s2, 0xf8
    s_add_u32 s{sT0}, s{sT0}, 24
    v_lshlrev_b32 v{vT+2}, 3, v1
    v_mov_b32 v{vT+3}, s{sT0}
    v_cmp_eq_u32 vcc, 3, v1
    s_mov_b64 exec, 15
    s_nop 0
    v_cndmask_b32 v{vT+2}, v{vT+2}, v{vT+3}, vcc
    v_add_lshl_u32 v{vT+2}, v{vT+2}, v{vT+1}, 7
    v_min_u32 v{vT+2}, L_codeend-L_pc-4, v{vT+2}
    global_load_dword v{vDUMMY}, v{vT+2}, s[{sPC}:{sPC+1}]
    s_mov_b64 exec, -1
    """
        g.vm.append('pf')
    g(f"""
    s_load_dwordx16 s[52:67], s[0:1], 0
    s_load_dwordx8 s[68:75], s[0:1], 64
    v_lshrrev_b32 v{vT+1}, 6, v0
    v_and_b32 v1, 63, v0
    s_getpc_b64 s[{sPC}:{sPC+1}]
    L_pc:
    v_readfirstlane_b32 s{sW}, v{vT+1}
    {pf}
    s_bfe_u32 s{sTB}, s2, 0x20001
    s_bfe_u32 s{sT0}, s2, 0x20003
    s_lshl2_add_u32 s{sTB}, s{sTB}, s{sT0}
    s_and_b32 s{sHP}, s2, 1
    s_lshr_b32 s{sT0}, s2, 5
    s_lshl3_add_u32 s{sHP}, s{sHP}, s{sT0}
    s_lshl1_add_u32 s{sROT}, s{sTB}, s{sHP}
    s_and_b32 s{sROT}, s{sROT}, {g.opt.get('rotmask', 6)}
    s_lshr_b32 s{sB}, s{sW}, 2
    s_and_b32 s{sI}, s{sW}, 3
    v_lshlrev_b32 v{vL16}, 4, v1
    """)
    g(f"v_and_b32 v{vT+1}, 0x30, v1")
    g(f"""
    v_lshrrev_b32 v{vT+4}, 3, v1
    v_and_b32 v{vT+5}, 7, v1
    v_lshrrev_b32 v{vT+6}, 4, v1
    v_xor_b32 v{vT+5}, v{vT+5}, v{vT+6}
    v_lshlrev_b32 v{vT+4}, 10, v{vT+4}
    v_lshl_add_u32 v{vDX0}, v{vT+5}, 4, v{vT+4}
    v_xor_b32 v{vDX1}, 64, v{vDX0}
    v_add_u32 v{vDX1}, 0x2000, v{vDX1}
    """)
    g(f"s_lshl_b32 s{sMX}, s{sW}, 11\ns_lshl_b32 s{sDMA}, s{sTB}, 17")
    g(f"""
    s_lshr_b32 s{sT2}, s{sHP}, 1
    s_lshl_b32 s{sT2}, s{sT2}, 14
    s_add_u32 s{sDMA}, s{sDMA}, s{sT2}
    s_lshl_b32 s{sOST}, s{sW}, 7
    s_add_u32 s{sDMA}, s{sDMA}, s{sOST}
    """)
    for k in range(0, 8, 2): g(f"v_mov_b64 v[{40+k}:{41+k}], 0")
    for d, n in ((rX, 2097152), (rWKV, 16384), (rGATE, 1024), (rWS, WS_SIZE)): g.srd_const(d, n)
    g(f"s_add_u32 m0, s{sMX}, {LDS_EW}")
    g("s_waitcnt lgkmcnt(0)")
    g.stamp('karg')
    g.jitter(1)
    def early_loads():
        g(f"s_bitcmp1_b32 s{sHP}, 0\ns_cselect_b64 s[{rWKV}:{rWKV+1}], s[{pWV}:{pWV+1}], s[{pWK}:{pWK+1}]")
        g.srd_base(rGATE, pGATE); g.srd_base(rX, pX)
        g.vmop(f"buffer_load_dwordx4 v{vL16}, {sr(rWKV)}, s{sMX} offen lds", 'e')
        g.vmop(f"buffer_load_dwordx4 v{vL16}, {sr(rWKV)}, s{sMX} offen offset:1024 lds", 'e')
        g(f"s_mov_b32 exec_lo, 0x00010001\ns_mov_b32 exec_hi, 0x00010001")
        g.vmop(f"buffer_load_dwordx4 v[40:43], v{vT+1}, {sr(rGATE)}, s{sOST} offen", 'e')
        g.vmop(f"buffer_load_dwordx4 v[44:47], v{vT+1}, {sr(rGATE)}, s{sOST} offen offset:64", 'e')
        g("s_mov_b64 exec, -1")
        g(f"s_add_u32 m0, s{sMX}, {LDS_EX}\ns_nop 0")
        g.vmop(f"buffer_load_dwordx4 v{vDX0}, {sr(rX)}, s{sDMA} offen lds", 'e')
        g(f"s_add_u32 m0, s{sMX}, {LDS_EX + 1024}\ns_nop 0")
        g.vmop(f"buffer_load_dwordx4 v{vDX1}, {sr(rX)}, s{sDMA} offen lds", 'e')
    g.srd_base(rWS, pWS)
    nonce_scan(g)
    if g.opt.get('elate'): g.srd_base(rX, pX); g.vm.append('scan')
    else: g.vm.append('scan'); early_loads()
    g.stamp('eissue')
    g(f"""
    s_lshr_b32 s{sT0}, s{sW}, 1
    s_cmp_eq_u32 s{sT0}, 3
    s_movk_i32 s{sT2}, 3072
    s_cselect_b32 s{sT1}, 1024, s{sT2}
    s_cselect_b32 s{sT2}, 2, 0
    s_lshl_b32 s{sWSTEP}, s{sT1}, 6
    s_add_u32 s{sMW}, s{sMX}, {LDS_WST}
    s_cmp_lg_u32 s{sB}, 0
    s_cbranch_scc1 L_su_q
    v_bfe_u32 v{vT+4}, v1, 2, 1
    v_bfe_u32 v{vT+5}, v1, 4, 1
    v_xor_b32 v{vT+4}, v{vT+4}, v{vT+5}
    v_and_b32 v{vT+5}, 3, v1
    v_lshl_add_u32 v{vT+5}, v{vT+4}, 2, v{vT+5}
    v_lshrrev_b32 v{vT+4}, 3, v1
    s_movk_i32 s{sW16}, 24576
    s_and_b32 s{sT2}, s{sHP}, 1
    s_add_u32 s{sT2}, s{sT2}, 1
    s_lshl_b32 s{sT2}, s{sT2}, 10
    s_lshr_b32 s{sWO}, s{sHP}, 1
    s_lshl_b32 s{sWO}, s{sWO}, 7
    s_add_u32 s{sWO}, s{sWO}, s{sT2}
    s_mul_i32 s{sT3}, s{sW}, 49152
    s_branch L_su_j
    L_su_q:
    v_lshrrev_b32 v{vT+4}, 2, v1
    v_and_b32 v{vT+5}, 3, v1
    v_xor_b32 v{vT+5}, s{sT2}, v{vT+5}
    s_lshl_b32 s{sW16}, s{sT1}, 4
    s_lshl_b32 s{sWO}, s{sHP}, 6
    s_and_b32 s{sT2}, s{sW}, 1
    s_mul_i32 s{sT3}, s{sT2}, s{sW16}
    s_lshl_b32 s{sT3}, s{sT3}, 1
    L_su_j:
    s_add_u32 s{sWO}, s{sWO}, s{sT3}
    v_mul_u32_u24 v{vT+4}, s{sT1}, v{vT+4}
    v_lshl_add_u32 v{vDW}, v{vT+5}, 4, v{vT+4}
    s_lshl_b32 s{sXO}, s{sTB}, 17
    s_lshl_b32 s{sT2}, s{sW}, 14
    s_add_u32 s{sXO}, s{sXO}, s{sT2}
    s_lshl_b32 s{sKX}, s{sROT}, 7
    s_mul_i32 s{sKW}, s{sROT}, s{sWSTEP}
    """)
    g(f"s_cmp_eq_u32 s{sT0}, 3\ns_cselect_b64 s[{rWS_}:{rWS_+1}], s[{pWQ}:{pWQ+1}], s[{pWQKV}:{pWQKV+1}]")
    g(f"s_mov_b32 s{rWS_+2}, 1572864\ns_cselect_b32 s{rWS_+2}, 524288, s{rWS_+2}\ns_mov_b32 s{rWS_+3}, 0x00020000")
    g.srd_base(rDBG, pDBG); g.srd_const(rDBG, 256)
    g(f"s_mov_b32 s{sMASK}, 0x0000ffff\ns_mov_b32 s{sMASK+1}, 0x0000ffff\ns_mov_b32 s{sSPIN}, {SPIN}\ns_mov_b32 s{sNONCE}, 0\nv_mov_b32 v{vFL}, 0")
    npf = g.opt.get('l2pf', 0)
    if npf:
        l2pf_setup(g)
        for k in range(npf): l2pf(g)
    if g.opt.get('elate'): early_loads()
    if g.opt.get('spf', 0): scalar_prefetch(g)
    g("s_barrier")
    if g.opt.get('pre', 0): p1_addr(g)
    early_addr(g)
    g.stamp('addr')
    runall(p1_dma(g, 0))
    nonce_producer(g)
    g.vm.remove('scan')
    g.stamp('setup')
    g.jitter(2)
    early_compute(g)
    g("s_barrier")
    g.stamp('early')
    if g.opt.get('cearly', 2):
        early_reduce(g)
        p1_addr(g); attn_consts(g); kv_store_addr(g)
        for d, p_, n in ((rOUT, pOUT, 2097152), (rWOA, pWOA, 524288), (rWOB, pWOB, 524288)): g.srd_base(d, p_); g.srd_const(d, n)
        if g.opt.get('cearly', 2) == 1: tail_addr(g)
        runall(p1_dma(g, 1))
    else:
        runall(p1_dma(g, 1))
        early_reduce(g)
        p1_addr(g)


vPFW, vPFX, vPFD = 232, 233, 234
sPFW, sPFX = 86, 88
def l2pf_setup(g):
    lq, lj = g.lab("L_pq"), g.lab("L_pj")
    g(f"""
    v_mul_u32_u24 v{vPFW}, s{sT1}, v1
    v_lshlrev_b32 v{vPFX}, 10, v1
    s_and_b32 s{sT2}, s{sTB}, 3
    s_lshr_b32 s{sPFX}, s{sHP}, 1
    s_lshl_b32 s{sPFX}, s{sPFX}, 7
    s_cmp_lg_u32 s{sB}, 0
    s_cbranch_scc1 {lq}
    s_lshl2_add_u32 s{sT2}, s{sT2}, s{sW}
    s_and_b32 s{sT3}, s{sHP}, 1
    s_add_u32 s{sT3}, s{sT3}, 1
    s_lshl_b32 s{sT3}, s{sT3}, 10
    s_add_u32 s{sPFX}, s{sPFX}, s{sT3}
    s_branch {lj}
    {lq}:
    s_and_b32 s{sT3}, s{sHP}, 1
    s_lshl2_add_u32 s{sT2}, s{sT3}, s{sT2}
    s_and_b32 s{sT3}, s{sW}, 1
    s_lshl1_add_u32 s{sT2}, s{sT2}, s{sT3}
    {lj}:
    s_lshl_b32 s{sT2}, s{sT2}, 2
    s_mul_i32 s{sT2}, s{sT2}, s{sT1}
    s_add_u32 s{sPFW}, s{sPFX}, s{sT2}
    s_and_b32 s{sT2}, s{sHP}, 7
    s_lshl3_add_u32 s{sT2}, s{sT2}, s{sW}
    s_lshl_b32 s{sT2}, s{sT2}, 11
    s_lshl_b32 s{sPFX}, s{sTB}, 17
    s_add_u32 s{sPFX}, s{sPFX}, s{sT2}
    """)
def l2pf(g):
    g("s_mov_b64 exec, 15")
    g.vmop(f"buffer_load_dword v{vPFD}, v{vPFW}, {sr(rWS_)}, s{sPFW} offen", 'pf')
    g("s_mov_b64 exec, 3")
    g.vmop(f"buffer_load_dword v{vPFD}, v{vPFX}, {sr(rX)}, s{sPFX} offen", 'pf')
    g(f"s_mov_b64 exec, -1\ns_add_u32 s{sPFW}, s{sPFW}, s{sWSTEP}\ns_add_u32 s{sPFX}, s{sPFX}, 128")

def p1_dma(g, j):
    p = j & 3
    def f0():
        g(f"s_add_u32 m0, s{sMX}, {p*SLOT}\ns_add_u32 s{sDS}, s{sXO}, s{sKX}")
        g.vmop(f"buffer_load_dwordx4 v{vDX0}, {sr(rX)}, s{sDS} offen lds", f'c{j}')
    def f1():
        g(f"s_add_u32 m0, s{sMX}, {p*SLOT+1024}\ns_add_u32 s{sPOLL+0 if False else sT3}, s{sWO}, s{sKW}")
        g.vmop(f"buffer_load_dwordx4 v{vDX1}, {sr(rX)}, s{sDS} offen lds", f'c{j}')
    def f2():
        g(f"s_add_u32 m0, s{sMW}, {p*SLOT}\ns_add_u32 s{sDS}, s{sT3}, s{sW16}")
        g.vmop(f"buffer_load_dwordx4 v{vDW}, {sr(rWS_)}, s{sT3} offen lds", f'c{j}')
    def f3():
        g(f"s_add_u32 m0, s{sMW}, {p*SLOT+1024}\ns_add_u32 s{sKW}, s{sKW}, s{sWSTEP}")
        g.vmop(f"buffer_load_dwordx4 v{vDW}, {sr(rWS_)}, s{sDS} offen lds", f'c{j}')
        if j < 7:
            g(f"s_add_u32 s{sKX}, s{sKX}, 128\ns_and_b32 s{sKX}, s{sKX}, 1023\ns_cselect_b32 s{sKW}, s{sKW}, 0")
    return [f0, f1, f2, f3]

def scalar_prefetch(g):
    P = sPC
    def base(ptr, off): g(f"s_add_u32 s{P}, s{ptr}, s{off}\ns_addc_u32 s{P+1}, s{ptr+1}, 0")
    g(f"s_and_b32 s{sT1}, s{sHP}, 3\ns_lshl_b32 s{sT1}, s{sT1}, 3\ns_add_u32 s{sT1}, s{sT1}, s{sW}\ns_lshl_b32 s{sT1}, s{sT1}, 12\ns_lshl_b32 s{sT2}, s{sTB}, 17\ns_add_u32 s{sT1}, s{sT1}, s{sT2}\ns_add_u32 s{sT1}, s{sT1}, s{sKX}")
    base(pX, sT1)
    for j in range(4): g(f"s_load_dword s{sFBT}, s[{P}:{P+1}], {j*1024}")
    g(f"s_lshl_b32 s{sT1}, s{sROT}, 1\ns_and_b32 s{sT2}, s{sTB}, 1\ns_add_u32 s{sT1}, s{sT1}, s{sT2}\ns_lshl_b32 s{sT1}, s{sT1}, 3\ns_add_u32 s{sT1}, s{sT1}, s{sW}\ns_mul_i32 s{sT1}, s{sT1}, {4*3072}")
    g(f"s_lshr_b32 s{sT3}, s{sHP}, 1\ns_lshl_b32 s{sT3}, s{sT3}, 7\ns_add_u32 s{sT1}, s{sT1}, s{sT3}\ns_and_b32 s{sT2}, s{sHP}, 1\ns_add_u32 s{sT2}, s{sT2}, 1\ns_lshl_b32 s{sT2}, s{sT2}, 10\ns_add_u32 s{sT1}, s{sT1}, s{sT2}")
    base(pWQKV, sT1)
    for j in range(4): g(f"s_load_dword s{sFBT}, s[{P}:{P+1}], {j*3072}")
    g(f"s_lshl_b32 s{sT1}, s{sROT}, 1\ns_and_b32 s{sT2}, s{sHP}, 1\ns_add_u32 s{sT1}, s{sT1}, s{sT2}\ns_lshl_b32 s{sT1}, s{sT1}, 1\ns_and_b32 s{sT2}, s{sTB}, 1\ns_add_u32 s{sT1}, s{sT1}, s{sT2}\ns_lshl_b32 s{sT1}, s{sT1}, 3\ns_add_u32 s{sT1}, s{sT1}, s{sW}")
    g(f"s_mul_i32 s{sT2}, s{sT1}, {2*3072}\ns_add_u32 s{sT2}, s{sT2}, s{sT3}")
    base(pWQKV, sT2)
    for j in range(2): g(f"s_load_dword s{sFBT}, s[{P}:{P+1}], {j*3072}")
    g(f"s_lshl_b32 s{sT1}, s{sT1}, 11\ns_add_u32 s{sT1}, s{sT1}, s{sT3}")
    base(pWQ, sT1)
    for j in range(2): g(f"s_load_dword s{sFBT}, s[{P}:{P+1}], {j*1024}")

def nonce_scan(g): g.first(lambda: nonce_scan_(g))
def nonce_scan_(g):
    g(f"v_lshrrev_b32 v{vT+4}, 2, v1\nv_and_b32 v{vT+5}, 3, v1\nv_lshlrev_b32 v{vT+4}, 7, v{vT+4}\nv_lshl_add_u32 v{vT+4}, v{vT+5}, 4, v{vT+4}")
    g(f"s_mov_b32 s{sT1}, {WS_F1}")
    g(f"buffer_load_dwordx4 v[176:179], v{vT+4}, {sr(rWS)}, s{sT1} offen sc1")
    g(f"buffer_load_dwordx4 v[180:183], v{vT+4}, {sr(rWS)}, s{sT1} offen offset:2048 sc1")
    g(f"s_mov_b32 s{sT1}, {WS_F3}")
    g(f"buffer_load_dwordx4 v[184:187], v{vT+4}, {sr(rWS)}, s{sT1} offen sc1")

def nonce_producer(g): g.first(lambda: nonce_producer_(g))
def nonce_producer_(g):
    g(f"s_waitcnt vmcnt({len(g.vm) - 1 - g.vm.index('scan')})")
    g(f"v_readfirstlane_b32 s{sT1}, v176")
    lp = g.lab("L_nl")
    g(f"{lp}:\ns_add_u32 s{sT1}, s{sT1}, 1\ns_cbranch_scc1 {lp}")
    g(f"s_mov_b64 s[{sPC}:{sPC+1}], 0")
    for k in range(12):
        g(f"v_cmp_eq_u32 vcc, s{sT1}, v{176+k}\ns_or_b64 s[{sPC}:{sPC+1}], s[{sPC}:{sPC+1}], vcc")
    g(f"s_cbranch_scc1 {lp}")
    g(f"v_mov_b32 v192, s{sT1}\nv_mov_b32 v193, 0\ns_mov_b64 exec, 1")
    g(f"buffer_store_dword v192, v193, {sr(rDBG)}, 0 offen sc1\ns_mov_b64 exec, -1")

def p1_addr(g):
    g(f"""
    v_and_b32 v{vT+2}, 31, v1
    v_lshrrev_b32 v{vT+3}, 5, v1
    v_bfe_u32 v{vT+4}, v1, 1, 3
    v_xor_b32 v{vT+4}, v{vT+4}, v{vT+3}
    v_lshlrev_b32 v{vT+4}, 4, v{vT+4}
    v_lshl_add_u32 v{vT+4}, v{vT+2}, 7, v{vT+4}
    s_lshl_b32 s{sT1}, s{sI}, 12
    v_add_u32 v{vAX}, s{sT1}, v{vT+4}
    v_xor_b32 v{vAX+1}, 32, v{vAX}
    v_xor_b32 v{vAX+2}, 64, v{vAX}
    v_xor_b32 v{vAX+3}, 0x60, v{vAX}
    v_bfe_u32 v{vT+4}, v1, 2, 2
    v_and_b32 v{vT+5}, 3, v1
    v_lshlrev_b32 v{vT+5}, 3, v{vT+5}
    v_lshl_add_u32 v{vT+5}, v{vT+4}, 6, v{vT+5}
    v_lshl_add_u32 v{vT+5}, v{vT+3}, 9, v{vT+5}
    v_bfe_u32 v{vT+6}, v1, 4, 1
    v_bfe_u32 v{vT+7}, v1, 3, 1
    v_xor_b32 v{vT+7}, s{sB}, v{vT+7}
    v_lshlrev_b32 v{vT+7}, 6, v{vT+7}
    v_lshl_add_u32 v{vT+7}, v{vT+4}, 7, v{vT+7}
    v_lshl_add_u32 v{vT+7}, v{vT+3}, 10, v{vT+7}
    v_lshl_add_u32 v{vT+7}, v{vT+6}, 5, v{vT+7}
    v_and_b32 v{vT+2}, 3, v1
    v_lshl_add_u32 v{vT+7}, v{vT+2}, 3, v{vT+7}
    v_add_u32 v{vAW1}, {LDS_WST}, v{vT+7}
    v_xor_b32 v{vT+4}, s{sB}, v{vT+6}
    v_lshl_add_u32 v{vT+5}, v{vT+4}, 5, v{vT+5}
    v_lshl_add_u32 v{vT+5}, v{vT+6}, 12, v{vT+5}
    v_add_u32 v{vAWQ}, {LDS_WST + 8192}, v{vT+5}
    """)

def early_addr(g):
    g(f"""
    v_lshrrev_b32 v{vT+4}, 4, v1
    v_bfe_u32 v{vT+5}, v1, 2, 2
    v_lshl_add_u32 v{vT+4}, v{vT+4}, 3, v{vT+5}
    v_and_b32 v{vT+5}, 3, v1
    v_lshlrev_b32 v{vT+5}, 3, v{vT+5}
    v_lshl_add_u32 v{vT+4}, v{vT+4}, 5, v{vT+5}
    s_add_u32 s{sT1}, s{sMX}, {LDS_EW}
    v_add_u32 v{vT+6}, s{sT1}, v{vT+4}
    s_lshl_b32 s{sT1}, s{sW}, 10
    s_add_u32 s{sT1}, s{sT1}, {LDS_ER}
    v_add_u32 v{vT+7}, s{sT1}, v{vL16}
    s_lshl_b32 s{sT1}, s{sW}, 8
    s_add_u32 s{sT1}, s{sT1}, {LDS_EG}
    v_lshlrev_b32 v{vT+5}, 2, v1
    v_add_u32 v{vT+5}, s{sT1}, v{vT+5}
    """)
    g(f"""
    v_and_b32 v{vT}, 15, v1
    v_lshrrev_b32 v{vT+1}, 4, v1
    v_bfe_u32 v{vT+2}, v1, 1, 3
    v_xor_b32 v{vT+1}, v{vT+1}, v{vT+2}
    v_lshlrev_b32 v{vT+1}, 4, v{vT+1}
    v_lshl_add_u32 v{vT}, v{vT}, 7, v{vT+1}
    s_add_u32 s{sT1}, s{sMX}, {LDS_EX}
    v_add_u32 v{vT}, s{sT1}, v{vT}
    v_xor_b32 v{vT+1}, 64, v{vT}
    """)

def early_compute(g):
    g.wvm('e')
    g.wlg()
    g.ds(f"ds_read_b128 v[16:19], v{vT}", 'ew')
    g.ds(f"ds_read_b128 v[20:23], v{vT+1}", 'ew')
    for s_ in range(2):
        for e in range(2):
            g.ds(f"ds_read_b64_tr_b16 v[{24+4*s_+2*e}:{25+4*s_+2*e}], v{vT+6} offset:{s_*1024+e*128}", 'ew')
    g.wlg('ew')
    lv, le = g.lab("L_ev"), g.lab("L_ee")
    g(f"s_bitcmp1_b32 s{sHP}, 0\ns_cbranch_scc1 {lv}")
    g("v_mfma_f32_16x16x32_bf16 v[32:35], v[24:27], v[16:19], 0")
    g("v_mfma_f32_16x16x32_bf16 v[36:39], v[40:43], v[16:19], 0")
    g("v_mfma_f32_16x16x32_bf16 v[32:35], v[28:31], v[20:23], v[32:35]")
    g("v_mfma_f32_16x16x32_bf16 v[36:39], v[44:47], v[20:23], v[36:39]")
    g(f"s_branch {le}\n{lv}:")
    g("v_mfma_f32_16x16x32_bf16 v[32:35], v[16:19], v[24:27], 0")
    g("v_mov_b32 v36, 0")
    g("v_mfma_f32_16x16x32_bf16 v[32:35], v[20:23], v[28:31], v[32:35]")
    g(f"{le}:\ns_nop 7")
    g.ds(f"ds_write_b128 v{vT+7}, v[32:35]", 'ep')
    g.ds(f"ds_write_b32 v{vT+5}, v36", 'ep')
    g.wlg()

def early_reduce(g): g.wave0(lambda: early_reduce_(g))
def early_reduce_(g):
    g(f"v_add_u32 v{vT+4}, {LDS_ER}, v{vL16}\nv_lshlrev_b32 v{vT+5}, 2, v1\nv_add_u32 v{vT+5}, {LDS_EG}, v{vT+5}")
    for k in range(8): g(f"ds_read_b128 v[{16+4*k}:{19+4*k}], v{vT+4} offset:{k*1024}")
    g("s_waitcnt lgkmcnt(0)")
    for k in range(8): g(f"ds_read_b32 v{64+k}, v{vT+5} offset:{k*256}")
    g(f"""
    s_lshr_b32 s{sT0}, s{sHP}, 1
    s_lshl_b32 s{sT1}, s{sTB}, 2
    s_lshr_b32 s{sT2}, s{sT0}, 1
    s_add_u32 s{sT1}, s{sT1}, s{sT2}
    s_lshr_b32 s{sT2}, s{sT1}, 3
    s_lshl_b32 s{sT2}, s{sT2}, 14
    s_and_b32 s{sT1}, s{sT1}, 7
    s_lshl_b32 s{sT1}, s{sT1}, 10
    s_add_u32 s{sT1}, s{sT1}, s{sT2}
    s_add_u32 s{sT1}, s{sT1}, {WS_KVB}
    s_and_b32 s{sT0}, s{sT0}, 1
    v_and_b32 v{vT}, 15, v1
    v_bfe_u32 v{vT+1}, v1, 4, 1
    v_lshrrev_b32 v{vT+2}, 5, v1
    v_lshlrev_b32 v{vT+2}, 3, v{vT+2}
    """)
    for k in range(1, 8):
        for q in range(4): g(f"v_add_f32 v{16+q}, v{16+q}, v{16+4*k+q}")
    g("v_cvt_pk_bf16_f32 v16, v16, v17\nv_cvt_pk_bf16_f32 v17, v18, v19")
    lv, le = g.lab("L_rv"), g.lab("L_re")
    g(f"s_bitcmp1_b32 s{sHP}, 0\ns_cbranch_scc1 {lv}")
    if True:
        g(f"""
        v_and_b32 v{vT+3}, 3, v{vT}
        v_bfe_u32 v{vT+6}, v{vT}, 2, 1
        v_lshl_add_u32 v{vT+3}, v{vT+6}, 3, v{vT+3}
        v_bfe_u32 v{vT+6}, v{vT}, 3, 1
        v_lshl_add_u32 v{vT+3}, v{vT+6}, 2, v{vT+3}
        v_lshl_add_u32 v{vT+3}, v{vT+1}, 5, v{vT+3}
        v_lshl_add_u32 v{vT+3}, v{vT+3}, 4, v{vT+2}
        s_lshl_b32 s{sT0}, s{sT0}, 8
        s_add_u32 s{sT1}, s{sT1}, s{sT0}
        buffer_store_dwordx2 v[16:17], v{vT+3}, {sr(rWS)}, s{sT1} offen sc1
        s_waitcnt lgkmcnt(0)
        """)
        for k in range(1, 8): g(f"v_add_f32 v64, v64, v{64+k}")
        g(f"""
        v_mul_f32 v64, {f2h(-1.4426950408889634)}, v64
        v_exp_f32 v64, v64
        s_lshr_b32 s{sT0}, s{sHP}, 1
        s_lshl_b32 s{sT0}, s{sT0}, 6
        v_add_f32 v64, 1.0, v64
        v_rcp_f32 v64, v64
        s_lshl_b32 s{sT1}, s{sTB}, 9
        s_add_u32 s{sT1}, s{sT1}, s{sT0}
        s_add_u32 s{sT1}, s{sT1}, {WS_GATE}
        v_lshlrev_b32 v{vT+3}, 2, v1
        s_mov_b64 exec, 0xffff
        buffer_store_dword v64, v{vT+3}, {sr(rWS)}, s{sT1} offen sc1
        s_mov_b64 exec, -1
        s_branch {le}
        {lv}:
        """)
        g(f"""
    v_lshl_add_u32 v{vT+3}, v{vT+1}, 4, v{vT}
    v_lshl_add_u32 v{vT+3}, v{vT+3}, 4, v{vT+2}
    s_lshl_b32 s{sT0}, s{sT0}, 9
    s_add_u32 s{sT1}, s{sT1}, s{sT0}
    s_add_u32 s{sT1}, s{sT1}, 8192
    buffer_store_dwordx2 v[16:17], v{vT+3}, {sr(rWS)}, s{sT1} offen sc1
    s_waitcnt lgkmcnt(0)
        """)
    g(f"{le}:")

def get_nonce(g):
    lp, ok = g.lab("L_gn"), g.lab("L_gk")
    g(f"{lp}:\nv_readfirstlane_b32 s{sNONCE}, v{vNON}\ns_nop 3\ns_cmp_lg_u32 s{sNONCE}, 0\ns_cbranch_scc1 {ok}")
    spin_check(g)
    g(f"v_mov_b32 v{vT+3}, 0\nbuffer_load_dword v{vNON}, v{vT+3}, {sr(rDBG)}, 0 offen sc1\ns_waitcnt vmcnt(0)\ns_branch {lp}\n{ok}:")

def flag_store(g, off_expr_setup):
    g(off_expr_setup)
    g(f"v_mov_b32 v{vT}, s{sNONCE}\nv_mov_b32 v{vT+1}, 0\ns_mov_b64 exec, 1")
    g(f"buffer_store_dword v{vT}, v{vT+1}, {sr(rWS)}, s{sT1} offen sc1\ns_mov_b64 exec, -1")

def poll_issue(g, kind):
    if kind == 1:
        g(f"v_lshrrev_b32 v{vT}, 2, v1\nv_and_b32 v{vT+1}, 3, v1\nv_lshlrev_b32 v{vT}, 7, v{vT}\nv_lshl_add_u32 v{vFL}, v{vT+1}, 4, v{vT}\ns_mov_b32 s{sPOLL}, {WS_F1}")
    elif kind == 2:
        g(f"v_and_b32 v{vT}, 3, v1\nv_bfe_u32 v{vT+1}, v1, 2, 1\nv_lshlrev_b32 v{vT}, 4, v{vT}\nv_lshl_add_u32 v{vFL}, v{vT+1}, 7, v{vT}\ns_and_b32 s{sPOLL}, s{sHP}, 14\ns_lshl_b32 s{sPOLL}, s{sPOLL}, 7\ns_add_u32 s{sPOLL}, s{sPOLL}, {WS_F2}")
    elif kind == 3:
        g(f"v_and_b32 v{vT}, 3, v1\nv_lshlrev_b32 v{vFL}, 4, v{vT}\ns_lshl_b32 s{sPOLL}, s{sTB}, 7\ns_add_u32 s{sPOLL}, s{sPOLL}, {WS_F3}")
    else:
        g(f"v_mov_b32 v{vFL}, 0\ns_lshl_b32 s{sPOLL}, s{sTB}, 2\ns_add_u32 s{sPOLL}, s{sPOLL}, s{sI}\ns_lshl_b32 s{sPOLL}, s{sPOLL}, 7\ns_add_u32 s{sPOLL}, s{sPOLL}, {WS_F4}")
    g(f"buffer_load_dwordx4 {r(vPOLL,4)}, v{vFL}, {sr(rWS)}, s{sPOLL} offen sc1")

def poll_check(g):
    lp, ok = g.lab("L_pl"), g.lab("L_pk")
    g(f"{lp}:")
    for k in range(4): g(f"v_xor_b32 v{vPOLL+k}, s{sNONCE}, v{vPOLL+k}")
    g(f"v_or_b32 v{vPOLL}, v{vPOLL}, v{vPOLL+1}\nv_or3_b32 v{vPOLL}, v{vPOLL}, v{vPOLL+2}, v{vPOLL+3}\nv_cmp_ne_u32 vcc, 0, v{vPOLL}\ns_nop 4\ns_cbranch_vccz {ok}")
    spin_check(g)
    g(f"buffer_load_dwordx4 {r(vPOLL,4)}, v{vFL}, {sr(rWS)}, s{sPOLL} offen sc1\ns_waitcnt vmcnt(0)\ns_branch {lp}\n{ok}:")

def w0(g):
    skip = g.lab("L_w0")
    g(f"s_cmp_lg_u32 s{sW}, 0\ns_cbranch_scc1 {skip}")
    return skip

def kv_dma(g, src_expr, slot, tag):
    def setup(): g(f"s_lshl_b32 s{sT2}, s{sW}, 12\ns_add_u32 m0, s{sT2}, {slot*SLOT}"); g(src_expr)
    def op(e): return lambda: g.vmop(f"buffer_load_dwordx4 v{vL16}, {sr(rWS)}, s{sDS} offen offset:{e*1024} sc1 lds", tag)
    return [setup] + [op(e) for e in range(4)]
def dma_B(g, c, slot, tag):
    return kv_dma(g, f"s_add_u32 s{sDS}, s{sT2}, {WS_KVB + c*SLOT}", slot, tag)
def dma_A(g, c, slot, tag):
    return kv_dma(g, f"s_add_u32 s{sDS}, s{sDMA}, {WS_KVA + c*SLOT}", slot, tag)
def dma_Wo(g, rs, grp, ldsbase, tag):
    def setup(): g(f"s_lshl_b32 s{sDS}, s{sW}, 15\ns_and_b32 s{sT1}, s{sHP}, 7\ns_lshl_b32 s{sT1}, s{sT1}, 7\ns_add_u32 s{sDS}, s{sDS}, s{sT1}")
    def op(e):
        def f():
            g(f"s_lshl_b32 s{sT2}, s{sW}, 12\ns_add_u32 m0, s{sT2}, {ldsbase + grp*32768 + e*1024}\ns_add_u32 s{sT1}, s{sDS}, {grp*262144 + e*8192}")
            g.vmop(f"buffer_load_dwordx4 v{vDWO}, {sr(rs)}, s{sT1} offen lds", tag)
        return f
    return [setup] + [op(e) for e in range(4)]
def runall(fs):
    for f in fs: f()

def phase1(g, b):
    T1, TQ = ACC, ACC + 16
    def XF(s_): return PF + 12 * s_
    def W1(s_): return PF + 12 * s_ + 4
    def WQ(s_): return PF + 12 * s_ + 8
    def reads(p, s_):
        if g.opt.get('noread'): return
        g.ds(f"ds_read_b128 {r(XF(s_),4)}, v{vAX+s_} offset:{p*SLOT}", f'f{s_}')
        for e in range(2): g.ds(f"ds_read_b64_tr_b16 {r(W1(s_)+2*e,2)}, v{vAW1} offset:{p*SLOT+s_*2048+e*512}", f'f{s_}')
        for e in range(2): g.ds(f"ds_read_b64_tr_b16 {r(WQ(s_)+2*e,2)}, v{vAWQ} offset:{p*SLOT+s_*1024+e*256}", f'f{s_}')
    def mf(j, s_, which='both'):
        g.wlg(f'f{s_}')
        if g.opt.get('nomf'): return
        c1 = "0" if (j == 0 and s_ == 0) else r(T1, 16)
        cq = "0" if (j == 0 and s_ == 0) else r(TQ, 16)
        if which != 'q':
            if b == 0: g(f"v_mfma_f32_32x32x16_bf16 {r(T1,16)}, {r(W1(s_),4)}, {r(XF(s_),4)}, {c1}")
            else:      g(f"v_mfma_f32_32x32x16_bf16 {r(T1,16)}, {r(XF(s_),4)}, {r(W1(s_),4)}, {c1}")
        if which != 't': g(f"v_mfma_f32_32x32x16_bf16 {r(TQ,16)}, {r(WQ(s_),4)}, {r(XF(s_),4)}, {cq}")
    f1chk = g.opt.get('f1chk', 6)
    def wait_c(j, extra0):
        if extra0 and f'c{j}' in g.vm:
            n = len(g.vm) - 1 - (len(g.vm) - 1 - g.vm[::-1].index(f'c{j}'))
            sk, dn = g.lab("L_wa"), g.lab("L_wb")
            g(f"s_cmp_eq_u32 s{sW}, 0\ns_cbranch_scc1 {sk}")
            g.wvm(f'c{j}')
            g(f"{sk}:\ns_waitcnt vmcnt({n + extra0})")
        else: g.wvm(f'c{j}')
    jf = g.opt.get('jflag', 2); pd3 = g.opt.get('pdist', 2) == 3
    for j in range(8):
        p = j & 3
        wait_c(j, {0: 1, 1: 1 if g.opt.get('cearly', 2) else 2}.get(j, 0))
        if j == jf:
            g.wave0(lambda: get_nonce(g), lambda: flag_store(g, f"s_lshl_b32 s{sT1}, s{sTB}, 7\ns_lshl_b32 s{sT2}, s{sHP}, 2\ns_add_u32 s{sT1}, s{sT1}, s{sT2}\ns_add_u32 s{sT1}, s{sT1}, {WS_F1}"))
        if j == f1chk:
            g.wave0(lambda: poll_check(g))
        g.wlg()
        g("s_barrier")
        g.stamp(f'b{j}')
        if j in (1, 4, 6): g.jitter(3 + j)
        pd = g.opt.get('pdist', 2)
        dm = []
        if j + pd <= 7 and not (pd == 3 and j == 0): dm = p1_dma(g, j + pd)
        if pd == 3 and j == 0: dm = p1_dma(g, 2) + p1_dma(g, 3)
        if j == f1chk: dm = dma_B(g, 0, 8, 'B01')
        if len(dm) == 5: dm = [lambda a=dm[0], c=dm[1]: (a(), c())] + dm[2:]
        if len(dm) == 8: dm = [lambda a=dm[2*k], c=dm[2*k+1]: (a(), c()) for k in range(4)]
        dp = g.opt.get('dmpos', (1, 2, 3, 4))
        def issue(k):
            for q in range(len(dm)):
                if dp[q] == k: dm[q]()
        if j == f1chk - 1:
            g.wave0(lambda: poll_issue(g, 1))
        if j == 0:
            g.wave0(lambda: g(f"v_mov_b32 v{vT+3}, 0\nbuffer_load_dword v{vNON}, v{vT+3}, {sr(rDBG)}, 0 offen sc1"))
        npf = g.opt.get('l2pf', 0)
        if npf and j + npf <= 7: l2pf(g)
        issue(-1)
        reads(p, 0); reads(p, 1)
        issue(0)
        if j > 0: mf(j - 1, 3)
        issue(1)
        reads(p, 2)
        mf(j, 0)
        issue(2)
        reads(p, 3)
        mf(j, 1)
        issue(3)
        if j == 7:
            issue(4); break
        mf(j, 2)
        issue(4)
        cp = g.opt.get('calcpos', {0: (0, 0, 1, 1), 1: (9, 9, 9, 9), 2: (9, 9, 9, 0)}[g.opt.get('cearly', 2)])
        if j == cp[0]: attn_consts(g)
        if j == cp[1]: kv_store_addr(g)
        if j == cp[2]:
            for d, p_, n in ((rOUT, pOUT, 2097152), (rWOA, pWOA, 524288), (rWOB, pWOB, 524288)): g.srd_base(d, p_); g.srd_const(d, n)
        if j == cp[3]: tail_addr(g)
    g.wlg()
    g.wvm('B01')
    g("s_barrier")
    g.stamp('bstart')
    g.ds(f"ds_read_b128 {r(KF[0],4)}, v{vAK}", 'K0')
    g.ds(f"ds_read_b128 {r(KF[1],4)}, v{vAK} offset:1024", 'kv')
    g(f"s_mov_b64 exec, s[{sMASK}:{sMASK+1}]")
    g.ds(f"ds_read_b128 {r(V0[0],4)}, v{vAV}", 'kv')
    g.ds(f"ds_read_b128 {r(V1[0],4)}, v{vAV} offset:512", 'kv')
    g("s_mov_b64 exec, -1")
    mf(7, 2, 'q'); mf(7, 2, 't')
    for k in range(2, g.opt.get('m0t', 4)): g.ds(f"ds_read_b128 {r(KTB+4*(k-2),4)}, v{vAK} offset:{k*1024}", 'kv')
    mf(7, 3, 'q'); mf(7, 3, 't')

def kv_store_addr(g):
    lv, le = g.lab("L_ka"), g.lab("L_kb")
    g(f"""
    s_and_b32 s{sT1}, s{sHP}, 14
    s_add_u32 s{sT1}, s{sT1}, s{sB}
    s_lshl_b32 s{sT1}, s{sT1}, 18
    s_lshr_b32 s{sT2}, s{sTB}, 1
    s_lshl_b32 s{sT2}, s{sT2}, 14
    s_add_u32 s{sT1}, s{sT1}, s{sT2}
    s_and_b32 s{sT2}, s{sTB}, 1
    s_lshl_b32 s{sT2}, s{sT2}, 2
    s_add_u32 s{sT2}, s{sT2}, s{sI}
    s_lshl_b32 s{sT2}, s{sT2}, 10
    s_add_u32 s{sKV}, s{sT1}, s{sT2}
    s_mov_b32 s{sSC}, {f2h(QSCALE)}
    s_mov_b32 s{sSC+1}, {f2h(QSCALE)}
    s_bitcmp1_b32 s{sHP}, 0
    s_cbranch_scc1 {lv}
    v_and_b32 v{vT}, 0x33, v1
    v_bfe_u32 v{vT+1}, v1, 2, 1
    v_lshl_or_b32 v{vT}, v{vT+1}, 3, v{vT}
    v_bfe_u32 v{vT+1}, v1, 3, 1
    v_lshl_or_b32 v{vT}, v{vT+1}, 2, v{vT}
    v_lshlrev_b32 v{vKVST}, 4, v{vT}
    s_add_u32 s{sKV1}, s{sKV}, 131072
    s_branch {le}
    {lv}:
    v_bfe_u32 v{vT}, v1, 4, 1
    v_lshlrev_b32 v{vT}, 17, v{vT}
    v_lshrrev_b32 v{vT+1}, 5, v1
    v_and_b32 v{vT+2}, 15, v1
    v_lshl_add_u32 v{vT+1}, v{vT+1}, 4, v{vT+2}
    v_lshl_add_u32 v{vKVST}, v{vT+1}, 4, v{vT}
    s_add_u32 s{sKV}, s{sKV}, 8192
    s_add_u32 s{sKV1}, s{sKV}, 512
    {le}:
    """)

def max_tree(Ss):
    regs = [S + k for S in Ss for k in range(16)]
    L = [f"v_max3_f32 v{vT}, v{regs[0]}, v{regs[1]}, v{regs[2]}", f"v_max3_f32 v{vT+1}, v{regs[3]}, v{regs[4]}, v{regs[5]}"]
    rest, k = regs[6:], 0
    while len(rest) >= 2:
        L.append(f"v_max3_f32 v{vT+k}, v{vT+k}, v{rest[0]}, v{rest[1]}"); rest = rest[2:]; k ^= 1
    L += [f"v_max_f32 v{vT}, v{vT}, v{vT+1}", f"v_mov_b32 v{vT+1}, v{vT}"]
    return L
def fill_c(Cr, off):
    L = [f"v_max_f32 v{vT}, v{vT}, v{vT+1}", f"v_sub_f32 v{Cr}, {f2h(-off)}, v{vT}", f"v_sub_f32 v{Cr+1}, {f2h(-off)}, v{vT}"]
    L += [f"v_mov_b64 v[{Cr+k}:{Cr+k+1}], v[{Cr}:{Cr+1}]" for k in range(2, 16, 2)]
    return "\n".join(L)
SWAP = f"v_permlane32_swap_b32 v{vT}, v{vT+1}"

def b_prologue(g):
    T1, TQ = ACC, ACC + 16
    g(f"v_mov_b64 v[{vT+4}:{vT+5}], -1\nv_mov_b64 v[{vT+6}:{vT+7}], -1\ns_nop 8")
    for k in range(8, 16, 2): g(f"v_pk_mul_f32 v[{TQ+k}:{TQ+k+1}], v[{TQ+k}:{TQ+k+1}], s[{sSC}:{sSC+1}]")
    for k in range(4): g(f"v_cvt_pk_bf16_f32 v{QB+k}, v{TQ+8+2*k}, v{TQ+9+2*k}")
    g.wlg('K0'); g("s_nop 0")
    nt = g.opt.get('m0t', 4)
    if nt > 1: g.wlg()
    for k in range(nt): g(f"v_mfma_f32_32x32x16_bf16 {r(STB[k],16)}, {r((KF[0], KF[1], KTB, KTB+4)[k],4)}, {r(QB,4)}, 0")
    for k in range(8): g(f"v_cvt_pk_bf16_f32 v{PF+k}, v{T1+2*k}, v{T1+2*k+1}")
    for k in range(0, 8, 2): g(f"v_pk_mul_f32 v[{TQ+k}:{TQ+k+1}], v[{TQ+k}:{TQ+k+1}], s[{sSC}:{sSC+1}]")
    L = max_tree(STB[:nt])
    for k, x in enumerate(L):
        g(x)
    g("s_nop 1")
    g(SWAP)
    g("s_nop 0")
    g(fill_c(C, g.opt.get('moff', MOFF)))
    g("s_nop 1")
    g(f"v_mfma_f32_32x32x16_bf16 {r(S0,16)}, {r(KF[0],4)}, {r(QB,4)}, {r(C,16)}")
    for k in range(4): g(f"v_cvt_pk_bf16_f32 v{QA+k}, v{TQ+2*k}, v{TQ+2*k+1}")
    g("s_nop 7")

def start_ops(g):
    def kv(k): return lambda: g.vmop(f"buffer_store_dwordx4 {r(PF+4*k,4)}, v{vKVST}, {sr(rWS)}, s{(sKV, sKV1)[k]} offen sc1", 'kvst')
    def sent():
        g(f"s_add_u32 s{sT1}, s{sOST}, {WS_O + 0x200000}")
        g.vmop(f"buffer_store_dwordx4 {r(vT+4,4)}, v{vL16}, {sr(rWS)}, s{sT1} offen sc1", 'sent')
    def gate():
        g(f"v_and_b32 v{vT}, 31, v1\nv_lshlrev_b32 v{vT}, 2, v{vT}\ns_lshl_b32 s{sT1}, s{sTB}, 2\ns_add_u32 s{sT1}, s{sT1}, s{sI}\ns_lshl_b32 s{sT1}, s{sT1}, 7\ns_add_u32 s{sT1}, s{sT1}, {WS_GATE}")
        g.vmop(f"buffer_load_dword v{vG}, v{vT}, {sr(rWS)}, s{sT1} offen sc1", 'gate')
    return kv(0), kv(1), sent, gate

def attn_consts(g):
    g(f"""
    v_mov_b32 v{vIDX}, 0xdddddddd
    v_lshrrev_b32 v{vT}, 5, v1
    v_and_b32 v{vT+1}, 15, v1
    v_lshl_add_u32 v{vT}, v{vT}, 4, v{vT+1}
    v_lshlrev_b32 v{vVOFF}, 4, v{vT}
    v_and_b32 v{vT}, 31, v1
    v_cmp_eq_u32 vcc, 16, v{vT}
    v_mov_b32 v{vT+1}, 0x3f803f80
    v_add_u32 v{vAK}, {8*SLOT}, v{vL16}
    v_cndmask_b32 v{vT+1}, 0, v{vT+1}, vcc
    v_add_u32 v{vAV}, {8*SLOT + 8192}, v{vVOFF}
    """)
    for k in range(16): g(f"v_mov_b32 v{V0[0]+k}, v{vT+1}")
    for Or in OACC:
        for k in range(0, 16, 2): g(f"v_mov_b64 v[{Or+k}:{Or+k+1}], 0")
    g(f"""
    s_lshl_b32 s{sT1}, s{sHP}, 1
    s_add_u32 s{sT1}, s{sT1}, s{sB}
    s_lshl_b32 s{sDMA}, s{sT1}, 17
    s_lshl_b32 s{sT2}, s{sI}, 12
    s_add_u32 s{sDMA}, s{sDMA}, s{sT2}
    s_lshl_b32 s{sT2}, s{sTB}, 2
    s_add_u32 s{sT2}, s{sT2}, s{sI}
    s_lshl_b32 s{sT2}, s{sT2}, 5
    s_add_u32 s{sT2}, s{sT2}, s{sT1}
    s_lshl_b32 s{sOST}, s{sT2}, 10
    """)

def tile(g, U, ev, pos):
    t = U & 7
    p = U & 1
    cur, nxt = (S0, S1) if p == 0 else (S1, S0)
    p1, pq, p0 = pos
    Qn = QB if U + 1 < 64 else QA
    def run(key):
        for f in ev.get((U, key), []): f()
    for i in range(16):
        if i == p1:
            if U > 0: g(f"v_smfmac_f32_32x32x32_bf16 {r(OACC[(U-1) >> 6],16)}, {r(V1[1-p],4)}, {r(nxt+8,8)}, v{vIDX}")
            run('m1')
            for o_ in g.opt.get('gord', 'mw01rk'):
                if o_ == 'w': g.wlg()
                if o_ == 'm' and U < 127: g(f"s_mov_b64 exec, s[{sMASK}:{sMASK+1}]")
                if o_ == '0' and U < 127: g.ds(f"ds_read_b128 {r(V0[1-p],4)}, v{vAV} offset:{((t + 1) & 7) * 1024}", 'kv')
                if o_ == '1' and U < 127: g.ds(f"ds_read_b128 {r(V1[1-p],4)}, v{vAV} offset:{((t + 1) & 7) * 1024 + 512}", 'kv')
                if o_ == 'r' and U < 127: g("s_mov_b64 exec, -1")
                if o_ == 'k' and U < 126: g.ds(f"ds_read_b128 {r(KF[p],4)}, v{vAK} offset:{((t + 2) & 7) * 1024}", 'kv')
            run('gap')
        if i == pq:
            if U < 127: g(f"v_mfma_f32_32x32x16_bf16 {r(nxt,16)}, {r(KF[1-p],4)}, {r(Qn,4)}, {r(C,16)}")
            run('mq')
        if i == p0:
            g(f"v_smfmac_f32_32x32x32_bf16 {r(OACC[U >> 6],16)}, {r(V0[p],4)}, {r(cur,8)}, v{vIDX}")
            run('m0')
        run(i)
        g(f"v_exp_f32 v{cur+i}, v{cur+i}")
    if U == 127:
        g("s_nop 1")
        g(f"v_smfmac_f32_32x32x32_bf16 {r(OACC[1],16)}, {r(V1[p],4)}, {r(cur+8,8)}, v{vIDX}")

def epilogue_parts(g, task):
    O = OACC[task]
    lo, hi = struct.unpack('<I', struct.pack('<f', 2.0**g.opt.get('lo', -110)))[0], struct.unpack('<I', struct.pack('<f', 2.0**120))[0]
    def p1():
        g(f"v_mov_b32 v{vT}, v{O+8}\nv_add_f32 v{vT+2}, |v{O}|, |v{O+1}|")
        for k in range(2, 8): g(f"v_add_f32 v{vT+2}, v{vT+2}, |v{O+k}|")
        g(f"v_permlane32_swap_b32 v{vT}, v{O+8}")
        g(f"v_subrev_u32 v{vT+2}, {lo}, v{vT+2}\ns_mov_b32 s{sT1}, {hi - lo}")
    def p2():
        g(f"v_subrev_u32 v{vT+3}, {lo}, v{vT}\nv_max_u32 v{vT+2}, v{vT+2}, v{vT+3}\nv_cmp_le_u32 vcc, s{sT1}, v{vT+2}")
        if g.opt.get('force_fb'): g("s_mov_b64 vcc, -1")
        g(f"s_nop 0\ns_cbranch_vccnz L_fallback{task}\nL_fbret{task}:\nv_rcp_f32 v{vT}, v{vT}")
        if task == 0: g(f"v_sub_f32 v{vT+3}, 1.0, v{vG}")
    def p3():
        g(f"v_mul_f32 v{vT}, v{vT}, v{vT+3 if task == 0 else vG}")
        for k in range(0, 8, 2): g(f"v_pk_mul_f32 v[{O+k}:{O+k+1}], v[{O+k}:{O+k+1}], v[{vT}:{vT+1}] op_sel_hi:[1,0]")
        for k in range(4): g(f"v_cvt_pk_bf16_f32 v{vT+4+k}, v{O+2*k}, v{O+2*k+1}")
        if task == 1:
            for k in range(4): g(f"v_min_u32 v{vT+4+k}, -2, v{vT+4+k}")
        g(f"s_add_u32 s{sT1}, s{sOST}, {WS_O + (0 if task == 0 else 0x200000)}")
        g.vmop(f"buffer_store_dwordx4 {r(vT+4,4)}, v{vL16}, {sr(rWS)}, s{sT1} offen sc1", 'ost')
    return p1, p2, p3

def fallback(g, task):
    Q, O = (QB, QA)[task], OACC[task]
    S_, C_, K_, A0, A1 = FB_S, FB_C, FB_K, FB_V0, FB_V1
    g(f"L_fallback{task}:")
    if g.opt.get('fbcount'):
        g(f"v_mov_b32 v{vT}, 1\nv_mov_b32 v{vT+1}, 0\ns_mov_b64 exec, 1\nbuffer_atomic_add v{vT}, v{vT+1}, {sr(rDBG)}, 0 offen offset:128\ns_mov_b64 exec, -1")
    if task == 0: g(f"s_mov_b32 s{sFBBASE}, {WS_KVB}")
    else: g(f"s_lshl_b32 s{sT1}, s{sI}, 12\ns_sub_u32 s{sFBBASE}, s{sDMA}, s{sT1}")
    g(f"v_and_b32 v{vT}, 31, v1\nv_cmp_eq_u32 vcc, 16, v{vT}\nv_mov_b32 v{vT+1}, 0x3f803f80\ns_nop 1\nv_cndmask_b32 v{vT+1}, 0, v{vT+1}, vcc")
    for k in range(8): g(f"v_mov_b32 v{A0+k}, v{vT+1}")
    g(f"v_mov_b32 v{vT}, 0xff800000\ns_mov_b32 s{sFBT}, 0")
    def addr():
        g(f"s_lshr_b32 s{sT1}, s{sFBT}, 3\ns_lshl_b32 s{sT1}, s{sT1}, 14\ns_and_b32 s{sT2}, s{sFBT}, 7\ns_lshl_b32 s{sT2}, s{sT2}, 10\ns_add_u32 s{sT1}, s{sT1}, s{sT2}\ns_add_u32 s{sT1}, s{sT1}, s{sFBBASE}")
    g(f"L_fb1_{task}:"); addr()
    g(f"buffer_load_dwordx4 {r(K_,4)}, v{vL16}, {sr(rWS)}, s{sT1} offen sc1\ns_waitcnt vmcnt(0)")
    g(f"v_mfma_f32_32x32x16_bf16 {r(S_,16)}, {r(K_,4)}, {r(Q,4)}, 0\ns_nop 15")
    for k in range(0, 16, 2): g(f"v_max3_f32 v{vT}, v{vT}, v{S_+k}, v{S_+k+1}")
    g(f"s_add_u32 s{sFBT}, s{sFBT}, 1\ns_cmp_lt_u32 s{sFBT}, 64\ns_cbranch_scc1 L_fb1_{task}")
    g(f"v_mov_b32 v{vT+1}, v{vT}\ns_nop 1\n{SWAP}\ns_nop 1")
    g(fill_c(C_, 0.0))
    for k in range(0, 16, 2): g(f"v_mov_b64 v[{O+k}:{O+k+1}], 0")
    g(f"s_mov_b32 s{sFBT}, 0")
    g(f"L_fb2_{task}:"); addr()
    g(f"buffer_load_dwordx4 {r(K_,4)}, v{vL16}, {sr(rWS)}, s{sT1} offen sc1\ns_add_u32 s{sT1}, s{sT1}, 8192")
    g(f"s_mov_b64 exec, s[{sMASK}:{sMASK+1}]")
    g(f"buffer_load_dwordx4 {r(A0,4)}, v{vVOFF}, {sr(rWS)}, s{sT1} offen sc1\nbuffer_load_dwordx4 {r(A1,4)}, v{vVOFF}, {sr(rWS)}, s{sT1} offen offset:512 sc1")
    g("s_mov_b64 exec, -1\ns_waitcnt vmcnt(0)")
    g(f"v_mfma_f32_32x32x16_bf16 {r(S_,16)}, {r(K_,4)}, {r(Q,4)}, {r(C_,16)}\ns_nop 15")
    for k in range(16): g(f"v_exp_f32 v{S_+k}, v{S_+k}")
    g("s_nop 2")
    g(f"v_smfmac_f32_32x32x32_bf16 {r(O,16)}, {r(A0,4)}, {r(S_,8)}, v{vIDX}")
    g(f"v_smfmac_f32_32x32x32_bf16 {r(O,16)}, {r(A1,4)}, {r(S_+8,8)}, v{vIDX}")
    g(f"s_nop 15\ns_add_u32 s{sFBT}, s{sFBT}, 1\ns_cmp_lt_u32 s{sFBT}, 64\ns_cbranch_scc1 L_fb2_{task}")
    g(f"v_mov_b32 v{vT}, v{O+8}\nv_mov_b32 v{vT+1}, v{O+8}\ns_nop 1\n{SWAP}\ns_nop 1\ns_branch L_fbret{task}")

def tail_addr(g):
    g(f"""
    v_lshrrev_b32 v{vT}, 3, v1
    v_bfe_u32 v{vT+1}, v1, 2, 1
    v_bfe_u32 v{vT+2}, v1, 4, 1
    v_xor_b32 v{vT+1}, v{vT+1}, v{vT+2}
    v_lshlrev_b32 v{vT+1}, 6, v{vT+1}
    v_lshl_add_u32 v{vT+1}, v{vT}, 10, v{vT+1}
    v_and_b32 v{vT+3}, 3, v1
    v_lshl_add_u32 v{vDWO}, v{vT+3}, 4, v{vT+1}
    v_lshrrev_b32 v{vT}, 5, v1
    v_bfe_u32 v{vT+1}, v1, 2, 2
    v_lshl_add_u32 v{vT}, v{vT}, 2, v{vT+1}
    v_lshlrev_b32 v{vT}, 7, v{vT}
    v_bfe_u32 v{vT+1}, v1, 3, 1
    v_lshl_add_u32 v{vT}, v{vT+1}, 6, v{vT}
    v_lshl_add_u32 v{vT}, v{vT+2}, 5, v{vT}
    v_lshl_add_u32 v{vT}, v{vT+3}, 3, v{vT}
    s_lshl_b32 s{sT1}, s{sI}, 13
    s_add_u32 s{sT1}, s{sT1}, {LDS_WOB}
    s_lshr_b32 s{sT2}, s{sHP}, 3
    s_lshl_b32 s{sT2}, s{sT2}, 15
    s_add_u32 s{sT1}, s{sT1}, s{sT2}
    v_add_u32 v{vAT+2}, s{sT1}, v{vT}
    v_xor_b32 v{vAT+3}, 64, v{vAT+2}
    s_lshl_b32 s{sT2}, s{sT2}, 1
    s_sub_u32 s{sT1}, s{sT1}, s{sT2}
    s_add_u32 s{sT1}, s{sT1}, 32768
    v_add_u32 v{vAT}, s{sT1}, v{vT}
    v_xor_b32 v{vAT+1}, 64, v{vAT}
    s_mul_i32 s{sT1}, s{sW}, 6144
    v_add_u32 v{vRR}, s{sT1}, v{vL16}
    s_lshl_b32 s{sT1}, s{sTB}, 7
    s_lshr_b32 s{sT2}, s{sHP}, 3
    s_lshl_b32 s{sT2}, s{sT2}, 6
    s_add_u32 s{sT1}, s{sT1}, s{sT2}
    s_lshl_b32 s{sT2}, s{sB}, 5
    s_add_u32 s{sT1}, s{sT1}, s{sT2}
    v_and_b32 v{vT}, 31, v1
    v_add_u32 v{vT}, s{sT1}, v{vT}
    v_lshlrev_b32 v{vT}, 10, v{vT}
    v_lshrrev_b32 v{vT+1}, 5, v1
    v_lshl_add_u32 v{vT}, v{vT+1}, 4, v{vT}
    s_and_b32 s{sT2}, s{sHP}, 7
    s_lshl_b32 s{sT2}, s{sT2}, 7
    s_lshl_b32 s{sT1}, s{sI}, 5
    s_add_u32 s{sT2}, s{sT2}, s{sT1}
    v_add_u32 v{vOUTA}, s{sT2}, v{vT}
    """)

def of_loads(g, branch, tag, dst=None):
    dst = OF if dst is None else dst
    def setup():
        g(f"""
        s_lshl_b32 s{sT1}, s{sTB}, 2
        s_lshr_b32 s{sT2}, s{sHP}, 3
        s_lshl_b32 s{sT2}, s{sT2}, 1
        s_add_u32 s{sT1}, s{sT1}, s{sT2}
        s_add_u32 s{sT1}, s{sT1}, s{sB}
        s_lshl_b32 s{sT1}, s{sT1}, 15
        s_lshl_b32 s{sT2}, s{sI}, 12
        s_add_u32 s{sT1}, s{sT1}, s{sT2}
        s_add_u32 s{sT1}, s{sT1}, {WS_O + branch*0x200000}
        s_lshr_b32 s{sT2}, s{sHP}, 3
        s_lshl_b32 s{sT2}, s{sT2}, 14
        s_add_u32 s{sOF+1}, s{sT1}, s{sT2}
        s_sub_u32 s{sT1}, s{sT1}, s{sT2}
        s_add_u32 s{sOF}, s{sT1}, 16384
        """)
    def op(n): return lambda: g.vmop(f"buffer_load_dwordx4 {r(dst+4*n,4)}, v{vL16}, {sr(rWS)}, s{sOF + (n >> 2)} offen offset:{(n&3)*1024} sc1", f'{tag}{n}')
    return [setup] + [op(n) for n in range(8)]

def wfrag_reads(g, n, base, tag):
    for tc in range(2):
        for e in range(2):
            g.ds(f"ds_read_b64_tr_b16 {r(WF+8*n+4*tc+2*e,2)}, v{vAT+2*(n>>2)+tc} offset:{base+(n&3)*2048+e*1024}", f'{tag}{n}')

def tail(g):
    OA = PF
    p1, p2, p3 = epilogue_parts(g, 1)
    fa = of_loads(g, 1, 'OA', OA)
    oat = list(g.opt.get('oat', (8, 8, 8, 8, 9, 9, 10, 10)))
    for n in range(3): wfrag_reads(g, n, 0, 'w')
    p1(); g("s_nop 0"); p2(); fa[0](); p3()
    g.stamp('A')
    g.jitter(200)
    t1at = g.opt.get('t1at', 0)
    g.wvm('OB7')
    if t1at == 0:
        g.wvm('WoA1'); g("s_barrier")
    g.stamp('T1')
    DA = LDS_WOA - LDS_WOB
    nload = 0
    for n in range(8):
        g.wlg(f'w{n}')
        for tc in range(2):
            c = "0" if n == 0 else r(ACC+16*tc, 16)
            g(f"v_mfma_f32_32x32x16_bf16 {r(ACC+16*tc,16)}, {r(WF+8*n+4*tc,4)}, {r(OF+4*n,4)}, {c}")
        if n == t1at and n > 0:
            g.wvm('WoA1'); g("s_barrier")
        if n + 3 < 8: wfrag_reads(g, n + 3, 0, 'w')
        else: wfrag_reads(g, n - 5, 0, 'x')
        if n in (1, 5):
            for k in range(2): g(f"v_add_u32 v{vAT + (n >> 2) * 2 + k}, {DA}, v{vAT + (n >> 2) * 2 + k}")
        for k in range(8):
            if oat[k] == n: fa[1 + k]()
    g.stamp('bp')
    for n in range(3, 8):
        g.wlg(f'x{n-3}')
        wfrag_reads(g, n, 0, 'x')
        for k in range(8):
            if oat[k] == n + 5: fa[1 + k]()
    for d in range(4):
        g(f"s_sub_u32 s{sT1}, {d + 3}, s{sI}\ns_and_b32 s{sT1}, s{sT1}, 3\ns_lshl_b32 s{sT1}, s{sT1}, 11\ns_mul_i32 s{sT2}, s{sB}, 24576\ns_add_u32 s{sT1}, s{sT1}, s{sT2}\ns_add_u32 s{sT1}, s{sT1}, {d * 6144}\nv_add_u32 v{vT+4+d}, s{sT1}, v{vL16}")
    g.wlg()
    if g.opt.get('t2early', 1): g("s_barrier")
    g.stamp('poll')
    def check(q, bad):
        R = OA + 16 * q
        g(f"v_max3_u32 v{vT}, v{R}, v{R+1}, v{R+2}\nv_max3_u32 v{vT+1}, v{R+3}, v{R+4}, v{R+5}")
        for k in range(6, 16, 4):
            g(f"v_max3_u32 v{vT}, v{vT}, v{R+k}, v{R+k+1}")
            if k + 3 < 16: g(f"v_max3_u32 v{vT+1}, v{vT+1}, v{R+k+2}, v{R+k+3}")
        g(f"v_max_u32 v{vT}, v{vT}, v{vT+1}\nv_cmp_eq_u32 vcc, -1, v{vT}\ns_nop 0\ns_cbranch_vccnz {bad}")
        for tc in range(2):
            for n in range(4 * q, 4 * q + 4):
                g(f"v_mfma_f32_32x32x16_bf16 {r(ACC+16*tc,16)}, {r(WF+8*n+4*tc,4)}, {r(OA+4*n,4)}, {r(ACC+16*tc,16)}")
    g(f"s_mov_b32 s{sDS}, 0")
    for q in range(2):
        sk, bad = g.lab("L_oa"), g.lab("L_ob")
        g.wvm(f'OA{4*q+3}')
        check(q, bad)
        g(f"s_branch {sk}\n{bad}:\ns_bitset1_b32 s{sDS}, {q}\n{sk}:")
    g.stamp('pass1')
    g(f"L_oa_loop:\ns_cmp_eq_u32 s{sDS}, 0\ns_cbranch_scc1 L_oa_done")
    spin_check(g)
    for q in range(2):
        sk = g.lab("L_oc")
        g(f"s_bitcmp1_b32 s{sDS}, {q}\ns_cbranch_scc0 {sk}")
        for n in range(4 * q, 4 * q + 4): fa[1 + n]()
        g.vm = []
        g(f"{sk}:")
    g("s_waitcnt vmcnt(0)")
    for q in range(2):
        sk = g.lab("L_od")
        g(f"s_bitcmp1_b32 s{sDS}, {q}\ns_cbranch_scc0 {sk}")
        check(q, sk)
        g(f"s_bitset0_b32 s{sDS}, {q}\n{sk}:")
    g("s_branch L_oa_loop\nL_oa_done:")
    g.stamp('mm')
    g.jitter(201)
    if not g.opt.get('t2early', 1): g("s_barrier")
    g("s_nop 3")
    def piece(d): return ACC + 16 * (d >> 1) + 8 * (d & 1)
    for d in range(4):
        sk = g.lab("L_rw")
        if d == 2: g("s_nop 6")
        g(f"s_cmp_eq_u32 s{sI}, {d}\ns_cbranch_scc1 {sk}")
        g(f"ds_write_b128 v{vT+4+d}, {r(piece(d),4)}\nds_write_b128 v{vT+4+d}, {r(piece(d)+4,4)} offset:1024\n{sk}:")
    lj = g.lab("L_rj")
    for d in range(4):
        sk = g.lab("L_rs")
        if d < 3: g(f"s_cmp_lg_u32 s{sI}, {d}\ns_cbranch_scc1 {sk}")
        for k in range(0, 8, 2): g(f"v_mov_b64 v[{40+k}:{41+k}], v[{piece(d)+k}:{piece(d)+k+1}]")
        if d < 3: g(f"s_branch {lj}\n{sk}:")
    g(f"{lj}:")
    g("s_waitcnt lgkmcnt(0)\ns_barrier")
    g.stamp('red')
    for k in range(3):
        for e in range(2):
            g.ds(f"ds_read_b128 {r(16+8*k+4*e,4)}, v{vRR} offset:{k*2048+e*1024}", f'rr{k}')
    g.wlg('rr0')
    for k in range(0, 8, 2): g(f"v_pk_add_f32 v[{40+k}:{41+k}], v[{40+k}:{41+k}], v[{16+k}:{17+k}]")
    g.wlg('rr2')
    for k in range(0, 8, 2): g(f"v_pk_add_f32 v[{24+k}:{25+k}], v[{24+k}:{25+k}], v[{32+k}:{33+k}]")
    for k in range(0, 8, 2): g(f"v_pk_add_f32 v[{40+k}:{41+k}], v[{40+k}:{41+k}], v[{24+k}:{25+k}]")
    for k in range(4): g(f"v_cvt_pk_bf16_f32 v{16+k}, v{40+2*k}, v{41+2*k}")
    g("s_nop 1\nv_permlane32_swap_b32 v16, v18\nv_permlane32_swap_b32 v17, v19")
    g.vmop(f"buffer_store_dwordx4 v[16:19], v{vOUTA}, {sr(rOUT)}, 0 offen {g.opt.get('outsc', '')}", 'out')

def schedule(g):
    o = g.opt
    ev = {}
    def at(T, key, *fs): ev.setdefault((T, key), []).extend(fs)
    dpos = o.get('dpos', ((2, 'm0'), (3, 'm0'), (4, 'm0'), (5, 'm0')))
    pp = o.get('pp', {(2, 'mq'): 3, (5, 'm0'): 2, (0, 'm0'): 1, (1, 'mq'): 0})
    def wave0(*fs): return lambda: g.wave0(*fs)
    def flag(base, hi, lo):
        return lambda: flag_store(g, f"s_lshl_b32 s{sT1}, s{hi}, 7\ns_lshl_b32 s{sT2}, s{lo}, 2\ns_add_u32 s{sT1}, s{sT1}, s{sT2}\ns_add_u32 s{sT1}, s{sT1}, {base}")
    def slot(gi): return slotB(gi) if gi < 8 else slotA(gi - 8)
    def vadd(reg, src, gi):
        d = ((slot(gi + 1) - slot(gi)) * SLOT) & 0xffffffff
        if gi != 7: return lambda: g(f"v_add_u32 v{reg}, {d}, v{src}")
        return lambda: g(f"s_lshl_b32 s{sT1}, s{sB}, 14\ns_add_u32 s{sT1}, s{sT1}, {d}\nv_add_u32 v{reg}, s{sT1}, v{src}")
    nt = o.get('m0t', 4)
    at(59, 0, vadd(vT + 3, vAK, 7))
    for k in range(nt):
        at(59, 'gap', lambda k=k: g.ds(f"ds_read_b128 {r(KTMP+4*k,4)}, v{vT+3} offset:{k*1024}", 'kv'))
        at(60 + k // 2, 7 if k % 2 == 0 else 13, lambda k=k: g(f"v_mfma_f32_32x32x16_bf16 {r(STMP[k],16)}, {r(KTMP+4*k,4)}, {r(QA,4)}, 0"))
    L = max_tree(STMP[:nt])
    if nt > 2:
        at(61, 6, lambda: g("\n".join(L[:8]))); at(62, 1, lambda: g("\n".join(L[8:16]))); at(62, 6, lambda: g("\n".join(L[16:])))
    else:
        at(61, 6, lambda: g("\n".join(L[:8]))); at(62, 6, lambda: g("\n".join(L[8:])))
    at(62, 8, lambda: g(SWAP))
    at(62, 12, lambda: g(fill_c(C, o.get('moff', MOFF))))
    e1, e2, e3 = epilogue_parts(g, 0)
    at(65, 0, e1); at(65, 1, e2); at(65, 6, e3, lambda: g.stamp('B'))
    fs = dma_B(g, 2, 0, 'G1')
    at(0, 6, fs[0], fs[1]); at(0, 13, fs[2]); at(1, 1, fs[3]); at(1, 6, fs[4])
    k0, k1, sent, gate = start_ops(g)
    at(4, 6, k0); at(5, 6, k1); at(6, 6, sent); at(7, 6, gate)
    for U in (3, 17, 30, 63, 70, 90, 111, 125): at(U, 9, lambda U=U: g.jitter(U))
    for gi in range(16):
        T0 = 8 * gi
        ppc = dict(pp)
        if gi == 15:
            ppc = {k: v for k, v in pp.items() if k[0] < 2}
            ppc.update(o.get('pplast', {(2, 'm1'): 3, (3, 'm0'): 2, (5, 'm0'): 1, (7, 'm1'): 0}))
        for (t, key), pr in ppc.items(): at(T0 + t, key, lambda pr=pr: g(f"s_setprio {pr}"))
        if gi < 15:
            at(T0 + 6, 0, vadd(vAK, vAK, gi))
            at(T0 + 7, 0, vadd(vAV, vAV, gi))
        wait = {1: 'G1', 2: 'kvst', 3: 'G3', 4: None, 7: 'A0', 8: 'A1', 9: 'A2', 10: 'ost', 11: 'A4', 12: 'A5', 13: 'A6', 14: 'WoB0', 15: 'WoB1'}
        if gi == 4: at(T0 + 1, 1, lambda: g.wvm(), wave0(lambda: poll_check(g)))
        if gi == 14: at(T0 + 1, 1, lambda: g.wvm('WoB0'), wave0(lambda: poll_check(g)))
        if gi in wait: at(T0 + 1, 'm0', lambda w=wait[gi]: g.wvm(w))
        if gi not in o.get('nobar', ()): at(T0 + 1, 'm0', lambda: g("s_barrier"))
        at(T0 + 1, 'm0', lambda gi=gi: g.stamp(f'g{gi}'))
        grp = {0: lambda: dma_B(g, 4, 2, 'G2'), 1: lambda: dma_B(g, 6, 4, 'G3'),
               4: lambda: dma_A(g, 0, 6, 'A0'), 5: lambda: dma_A(g, 1, 8, 'A1'), 6: lambda: dma_A(g, 2, 0, 'A2'), 7: lambda: dma_A(g, 3, 2, 'A3'),
               8: lambda: dma_A(g, 4, 4, 'A4'), 9: lambda: dma_A(g, 5, 6, 'A5'), 10: lambda: dma_A(g, 6, 8, 'A6'), 11: lambda: dma_A(g, 7, 0, 'A7'),
               12: lambda: dma_Wo(g, rWOB, 0, LDS_WOB, 'WoB0'), 13: lambda: dma_Wo(g, rWOB, 1, LDS_WOB, 'WoB1'),
               14: lambda: dma_Wo(g, rWOA, 0, LDS_WOA, 'WoA0'), 15: lambda: dma_Wo(g, rWOA, 1, LDS_WOA, 'WoA1')}
        if gi == 13: at(T0 + 2, 0, wave0(lambda: poll_issue(g, 3)))
        if gi in grp:
            fs = grp[gi]()
            at(T0 + dpos[0][0], dpos[0][1], fs[0])
            for (t, i), f in zip(dpos, fs[1:]): at(T0 + t, i, f)
        if gi == 2: at(T0 + 2, 6, wave0(flag(WS_F2, sHP, sTB)))
        if gi == 3:
            at(T0 + 4, 6, wave0(lambda: poll_issue(g, 2)))
        if gi == 10: at(T0 + 4, 6, wave0(flag(WS_F3, sTB, sHP)))
        if gi == 13 and o.get('wopf', 1):
            def wopf():
                g(f"s_and_b32 s{sT1}, s{sTB}, 3\ns_lshl_b32 s{sT1}, s{sT1}, 13\ns_add_u32 s{sT1}, s{sT1}, s{sDS}\ns_add_u32 s{sT1}, s{sT1}, 262144")
                g.vmop(f"buffer_load_dwordx4 {r(208,4)}, v{vDWO}, {sr(rWOA)}, s{sT1} offen", 'pf')
            at(T0 + 5, 6, wopf)
        if gi == 14:
            fs = of_loads(g, 0, 'OB')
            at(T0 + 4, 6, fs[0])
            for n, f in enumerate(fs[1:]): at(T0 + 4 + n // 2, 6 if n % 2 == 0 else 13, f)
    return ev

def slotB(c): return (8 + c) % 10
def slotA(c): return 2 * ((3 + c) % 5)

def build(**opt):
    g = G(**opt)
    setup(g)
    fork = (list(g.lg), list(g.vm)); nst0 = g.nst
    g(f"s_bitcmp1_b32 s{sHP}, 0\ns_cbranch_scc1 L_p1b")
    phase1(g, 0)
    end0 = (list(g.lg), list(g.vm))
    g("s_branch L_p1done\nL_p1b:")
    g.lg, g.vm = list(fork[0]), list(fork[1]); g.nst = nst0
    phase1(g, 1)
    assert end0 == (g.lg, g.vm), (end0, g.lg, g.vm)
    g("L_p1done:")
    g.stamp('p1')
    b_prologue(g)
    g.stamp('t0')
    ev = schedule(g)
    for U in range(128): tile(g, U, ev, opt.get('pos', (2, 5, 10)))
    tail(g)
    if opt.get('stamps'):
        g.stamp('end')
        g(f"s_lshl_b32 s{sT1}, s2, 3\ns_add_u32 s{sT1}, s{sT1}, s{sW}\ns_lshl_b32 s{sT1}, s{sT1}, 6\ns_add_u32 s{sT1}, s{sT1}, {WS_DBG}")
        g("s_waitcnt lgkmcnt(0)")
        for k in range(12): g(f"v_mov_b32 v{16+k}, s{STAMP_SLOTS[min(k, g.nst-1)]}")
        g(f"v_mov_b32 v30, 0\ns_mov_b64 exec, 1")
        for k in range(3): g(f"buffer_store_dwordx4 v[{16+4*k}:{19+4*k}], v30, {sr(rWS)}, s{sT1} offen offset:{16*k}")
    if opt.get('dbgst'):
        sk = w0(g)
        g("s_waitcnt vmcnt(0) lgkmcnt(0)")
        last = STAMP_SLOTS[g.nst - 1]
        g(f"v_mov_b32 v16, s{last}\ns_not_b32 s{sT1}, s{STAMP_SLOTS[0]}\nv_mov_b32 v17, s{sT1}\nv_mov_b32 v30, 0\ns_mov_b64 exec, 1")
        g(f"buffer_atomic_umax v16, v30, {sr(rDBG)}, 0 offen offset:4\nbuffer_atomic_umax v17, v30, {sr(rDBG)}, 0 offen offset:8")
        sk2 = g.lab("L_d2")
        g(f"s_cmp_lg_u32 s2, {opt['dbgst'] - 1}\ns_cbranch_scc1 {sk2}")
        for k in range(12): g(f"s_sub_u32 s{sT1}, s{STAMP_SLOTS[min(k, g.nst-1)]}, s{STAMP_SLOTS[0]}\nv_mov_b32 v{16+k}, s{sT1}")
        g(f"v_mov_b32 v16, s{STAMP_SLOTS[0]}")
        for k in range(3): g(f"buffer_store_dwordx4 v[{16+4*k}:{19+4*k}], v30, {sr(rDBG)}, 0 offen offset:{16+16*k}")
        g(f"{sk2}:\ns_mov_b64 exec, -1\n{sk}:")
    if opt.get('spinend'):
        base, idx, mult = opt['spinend']
        sk = w0(g); sk2 = g.lab("L_sp")
        g(f"s_cmp_lg_u32 s2, {opt.get('spinwg', 0)}\ns_cbranch_scc1 {sk}\ns_waitcnt vmcnt(0) lgkmcnt(0)")
        g(f"s_sub_u32 s{sT1}, s{STAMP_SLOTS[idx]}, s{STAMP_SLOTS[0]}\ns_mul_i32 s{sT1}, s{sT1}, {mult}\ns_add_u32 s{sT1}, s{sT1}, {base*100}")
        g(f"{sk2}:\ns_memrealtime s[{sPC}:{sPC+1}]\ns_waitcnt lgkmcnt(0)\ns_sub_u32 s{sT2}, s{sPC}, s{STAMP_SLOTS[0]}\ns_cmp_lt_u32 s{sT2}, s{sT1}\ns_cbranch_scc1 {sk2}")
        g(f"{sk}:")
    if opt.get('spinrel'):
        a_, b_, mult, shift = opt['spinrel']
        sk = w0(g); sk2 = g.lab("L_sq")
        g(f"s_cmp_lg_u32 s2, {opt.get('spinwg', 0)}\ns_cbranch_scc1 {sk}\ns_waitcnt vmcnt(0) lgkmcnt(0)")
        g(f"s_sub_u32 s{sT1}, s{STAMP_SLOTS[b_]}, s{STAMP_SLOTS[a_]}\ns_mul_i32 s{sT1}, s{sT1}, {mult}\ns_lshr_b32 s{sT1}, s{sT1}, {shift}")
        g(f"s_memrealtime s[{sSC}:{sSC+1}]\ns_waitcnt lgkmcnt(0)")
        g(f"{sk2}:\ns_memrealtime s[{sPC}:{sPC+1}]\ns_waitcnt lgkmcnt(0)\ns_sub_u32 s{sT2}, s{sPC}, s{sSC}\ns_cmp_lt_u32 s{sT2}, s{sT1}\ns_cbranch_scc1 {sk2}")
        g(f"{sk}:")
    if opt.get('spinconst'):
        sk = w0(g); sk2 = g.lab("L_sc")
        g(f"s_waitcnt vmcnt(0) lgkmcnt(0)\ns_memrealtime s[{sSC}:{sSC+1}]\ns_waitcnt lgkmcnt(0)")
        g(f"{sk2}:\ns_memrealtime s[{sPC}:{sPC+1}]\ns_waitcnt lgkmcnt(0)\ns_sub_u32 s{sT2}, s{sPC}, s{sSC}\ns_cmp_lt_u32 s{sT2}, {opt['spinconst']}\ns_cbranch_scc1 {sk2}")
        g(f"{sk}:")
    g("L_abort:\ns_endpgm")
    g.L += g.cold
    fallback(g, 0)
    fallback(g, 1)
    g("L_end:\ns_endpgm\nL_codeend:")
    hdr = open('gated_mix__mha_block__grouped_kv_mqa__prompt.s.ref').read().split("; Override launch")[0]
    out = hdr + "; One fused launch: projections, MQA and MHA attention, gated output projection.\n"
    out += "; @launch grid=(256,1,1) block=(512,1,1) lds=163840\n"
    out += f""".amdgcn_target "amdgcn-amd-amdhsa--gfx950"
.text
.globl {NAME}
.p2align 8
.type {NAME},@function
{NAME}:
{g.text()}.section .rodata,"a"
.p2align 6
.amdhsa_kernel {NAME}
  .amdhsa_next_free_vgpr 256
  .amdhsa_next_free_sgpr 102
  .amdhsa_accum_offset 256
  .amdhsa_group_segment_fixed_size 0
  .amdhsa_kernarg_size 96
  .amdhsa_user_sgpr_count 2
  .amdhsa_user_sgpr_kernarg_segment_ptr 1
  .amdhsa_system_sgpr_workgroup_id_x 1
.end_amdhsa_kernel
"""
    return out

if __name__ == "__main__":
    path = sys.argv[1] if len(sys.argv) > 1 else 'gated_mix__mha_block__grouped_kv_mqa__prompt.s'
    opt = {}
    for a in sys.argv[2:]:
        k, _, v = a.partition('=')
        opt[k] = eval(v) if v else True
    open(path, 'w').write(build(**opt))
```

```python
import sys, struct, copy
NAME = "gated_mix__mha_block__grouped_kv_mqa__prompt_kernel"

def f2h(x): return "0x%08x" % struct.unpack('<I', struct.pack('<f', x))[0]

WS_KVA  = 0x000000
WS_KVB  = 0x400000
WS_GATE = 0x420000
WS_F1   = 0x424000
WS_F2   = WS_F1 + 2048
WS_F3   = WS_F1 + 4096
WS_F4   = WS_F1 + 6144
WS_O    = 0x500000
WS_DBG  = 0x900000
WS_SIZE = 0x1000000

SLOT = 16384
LDS_WST = 65536
LDS_EW  = 8 * SLOT
LDS_ER  = 9 * SLOT
LDS_EG  = 9 * SLOT + 8192
LDS_EX  = 3 * SLOT
LDS_WOB = 2 * SLOT
LDS_WOA = 6 * SLOT

sW, sHP, sTB, sROT, sB = 3, 4, 5, 6, 7
rX, rWS_, rWKV, rGATE, rWS, rDBG, rOUT, rWOA, rWOB = 8, 12, 16, 20, 24, 28, 32, 36, 40
sMASK = 44
sI, sNONCE, sSPIN, sT0, sT1, sT2 = 46, 47, 48, 49, 50, 51
pX, pWQKV, pWOA, pBX, pWQ, pWK, pWV, pWOB, pGATE, pOUT, pDBG, pWS = 52, 54, 56, 58, 60, 62, 64, 66, 68, 70, 72, 74
sXO, sWO, sWSTEP, sW16, sMX, sMW, sKX, sKW = 76, 77, 78, 79, 80, 81, 82, 83
sOF = 76
sPC = 84
sFBBASE, sKV, sFBT, sDMA, sOST, sT3 = 86, 87, 88, 89, 90, 91
sKV1, sSC = 98, 100
sPOLL, sDS = 92, 93
sST = 94
vIDX, vAK, vAV, vG, vL16, vVOFF = 2, 3, 4, 5, 6, 7
vT = 8
S0, S1, C, QA, QB = 16, 32, 64, 80, 84
OACC = (112, 48)
STMP, KTMP = (128, 144, 160, 176), 192
STB, KTB = (32, 16, 128, 64), 232
FB_S, FB_C, FB_K, FB_V0, FB_V1 = 176, 160, 144, 148, 152
KF, V0, V1 = (88, 92), (96, 100), (104, 108)
OF = 112
ACC = 144
PF = 176
WF = 16
vAX = 240
vAW1, vAWQ, vDX0, vDX1, vDW, vKVST = 244, 245, 246, 247, 248, 249
vDWO, vRR, vOUTA = 224, 225, 226
vAT = 228
vFL, vNON, vDUMMY = 250, 251, 251
vPOLL = 252
QSCALE = 0.25 * 1.4426950408889634
MOFF = 102.0
SPIN = 1 << 20

STAMP_SLOTS = [94, 96, 52, 54, 58, 60, 62, 64, 68, 72, 74, 56]
class G:
    def __init__(s, **opt):
        s.L = []; s.lg = []; s.vm = []; s.opt = opt; s.nlab = 0; s.nst = 0; s.cold = []
    def __call__(s, txt):
        for line in txt.split("\n"):
            line = line.strip()
            if not line: continue
            s.L.append(line if (line.endswith(":") or line.startswith(".")) else "    " + line)
    def rare(s, test, branch, *fs):
        if not s.opt.get('ool', 1):
            sk = s.lab("L_sk")
            s(test); s(f"{'s_cbranch_scc0' if branch.endswith('1') else 's_cbranch_scc1'} {sk}")
            for f in fs: f()
            s(f"{sk}:"); return
        lo, lr = s.lab("L_rare"), s.lab("L_back")
        s(test); s(f"{branch} {lo}\n{lr}:")
        main, s.L = s.L, s.cold
        s(f"{lo}:")
        for f in fs: f()
        s(f"s_branch {lr}")
        s.L = main
    def wave0(s, *fs): s.rare(f"s_cmp_eq_u32 s{sW}, 0", "s_cbranch_scc1", *fs)
    def first(s, *fs): s.rare(f"s_or_b32 s{sT1}, s2, s{sW}", "s_cbranch_scc0", *fs)
    def lab(s, p="L"):
        s.nlab += 1; return f"{p}_{s.nlab}"
    def ds(s, txt, tag=None):
        s(txt); s.lg.append(tag); assert len(s.lg) <= 15, "lgkm overflow"
    def wlg(s, tag=None):
        if tag is None:
            s("s_waitcnt lgkmcnt(0)"); s.lg = []; return
        if tag not in s.lg: return
        i = len(s.lg) - 1 - s.lg[::-1].index(tag)
        n = len(s.lg) - 1 - i
        s(f"s_waitcnt lgkmcnt({n})"); s.lg = s.lg[i + 1:]
    def vmop(s, txt, tag=None):
        s(txt); s.vm.append(tag); assert len(s.vm) <= 63
    def wvm(s, tag=None):
        if tag is None:
            s("s_waitcnt vmcnt(0)"); s.vm = []; return
        if tag not in s.vm: return
        i = len(s.vm) - 1 - s.vm[::-1].index(tag)
        n = len(s.vm) - 1 - i
        s(f"s_waitcnt vmcnt({n})"); s.vm = s.vm[i + 1:]
    def srd(s, d, base, nbytes):
        s(f"s_mov_b32 s{d}, s{base}\ns_and_b32 s{d+1}, s{base+1}, 0xffff\ns_mov_b32 s{d+2}, {nbytes}\ns_mov_b32 s{d+3}, 0x00020000")
    def srd_const(s, d, nbytes): s(f"s_mov_b32 s{d+2}, {nbytes}\ns_mov_b32 s{d+3}, 0x00020000")
    def srd_base(s, d, base): s(f"s_mov_b64 s[{d}:{d+1}], s[{base}:{base+1}]")
    def stamp(s, name):
        if not s.opt.get('stamps'): return
        if name not in s.opt.get('at', ('setup', 'p1', 'bstart', 'B', 'A', 'poll', 'mm', 'end')): return
        ins = "s_memtime" if s.opt.get('stamps') == 2 else "s_memrealtime"
        slot = STAMP_SLOTS[s.nst]
        assert slot >= 94 or name not in ('entry', 'karg', 'eissue')
        s(f"{ins} s[{slot}:{slot+1}]")
        s.nst += 1
    def jitter(s, salt):
        j = s.opt.get('jitter')
        if not j: return
        lp, sk = s.lab("L_j"), s.lab("L_jk")
        if salt % 2: s(f"s_lshl_b32 s{sT2}, s2, 3\ns_add_u32 s{sT2}, s{sT2}, s{sW}")
        else: s(f"s_mov_b32 s{sT2}, s2")
        s(f"s_add_u32 s{sT2}, s{sT2}, {salt * 7919 + j * 104729}\ns_mul_i32 s{sT1}, s{sT2}, 0x9e3779b1\ns_lshr_b32 s{sT1}, s{sT1}, 27")
        s(f"{lp}:\ns_sub_u32 s{sT1}, s{sT1}, 1\ns_cbranch_scc1 {sk}\ns_sleep 8\ns_branch {lp}\n{sk}:")
    def text(s): return "\n".join(s.L) + "\n"

def r(a, n): return f"v[{a}:{a+n-1}]"
def sr(a, n=4): return f"s[{a}:{a+n-1}]"

def spin_check(g):
    g(f"s_sub_u32 s{sSPIN}, s{sSPIN}, 1\ns_cbranch_scc1 L_abort")

def setup(g):
    g(f"""
    s_cmp_ge_u32 s2, 256
    s_cbranch_scc1 L_end
    """)
    g.stamp('entry')
    mode = g.opt.get('pfm', 'v')
    pf = ''
    if mode == 's': pf = f"""
    s_lshl_b32 s{sT1}, s{sW}, 7
    s_and_b32 s{sT0}, s2, 0xf8
    s_lshl_b32 s{sT0}, s{sT0}, 7
    s_add_u32 s{sT0}, s{sT0}, 3072
    s_add_u32 s{sT0}, s{sT0}, s{sT1}
    s_min_u32 s{sT0}, s{sT0}, L_codeend-L_pc-4
    s_load_dword s{sFBT}, s[{sPC}:{sPC+1}], s{sT0}
    s_add_u32 s{sPC}, s{sPC}, s{sT1}
    s_addc_u32 s{sPC+1}, s{sPC+1}, 0
    s_load_dword s{sFBT}, s[{sPC}:{sPC+1}], 0
    s_load_dword s{sFBT}, s[{sPC}:{sPC+1}], 1024
    s_load_dword s{sFBT}, s[{sPC}:{sPC+1}], 2048
    """
    if mode == 'v':
        pf = f"""
    s_and_b32 s{sT0}, s2, 0xf8
    s_add_u32 s{sT0}, s{sT0}, 24
    v_lshlrev_b32 v{vT+2}, 3, v1
    v_mov_b32 v{vT+3}, s{sT0}
    v_cmp_eq_u32 vcc, 3, v1
    s_mov_b64 exec, 15
    s_nop 0
    v_cndmask_b32 v{vT+2}, v{vT+2}, v{vT+3}, vcc
    v_add_lshl_u32 v{vT+2}, v{vT+2}, v{vT+1}, 7
    v_min_u32 v{vT+2}, L_codeend-L_pc-4, v{vT+2}
    global_load_dword v{vDUMMY}, v{vT+2}, s[{sPC}:{sPC+1}]
    s_mov_b64 exec, -1
    """
        g.vm.append('pf')
    if mode == 'w':
        pf = f"""
    s_bitcmp1_b32 s2, 5
    s_mov_b32 s{sT0}, L_p1a-L_pc-2048
    s_cselect_b32 s{sT0}, L_p1b-L_pc-2048, s{sT0}
    v_lshlrev_b32 v{vT+2}, 10, v1
    v_add_u32 v{vT+2}, s{sT0}, v{vT+2}
    s_lshr_b32 s{sT0}, s2, 3
    s_lshl_b32 s{sT0}, s{sT0}, 10
    s_add_u32 s{sT0}, s{sT0}, L_p1done-L_pc
    v_writelane_b32 v{vT+2}, 0, 0
    s_movk_i32 s{sT1}, 1024
    v_writelane_b32 v{vT+2}, s{sT1}, 1
    s_mov_b32 s{sT1}, L_rare0-L_pc
    v_writelane_b32 v{vT+2}, s{sT1}, 6
    v_writelane_b32 v{vT+2}, s{sT0}, 7
    s_mov_b64 exec, 255
    v_lshl_add_u32 v{vT+2}, v{vT+1}, 7, v{vT+2}
    v_min_u32 v{vT+2}, L_codeend-L_pc-4, v{vT+2}
    global_load_dword v{vDUMMY}, v{vT+2}, s[{sPC}:{sPC+1}]
    s_mov_b64 exec, -1
    """
        g.vm.append('pf')
    g(f"""
    s_load_dwordx16 s[52:67], s[0:1], 0
    s_load_dwordx8 s[68:75], s[0:1], 64
    v_lshrrev_b32 v{vT+1}, 6, v0
    v_and_b32 v1, 63, v0
    s_getpc_b64 s[{sPC}:{sPC+1}]
    L_pc:
    v_readfirstlane_b32 s{sW}, v{vT+1}
    {pf}
    s_bfe_u32 s{sTB}, s2, 0x20001
    s_bfe_u32 s{sT0}, s2, 0x20003
    s_lshl2_add_u32 s{sTB}, s{sTB}, s{sT0}
    s_and_b32 s{sHP}, s2, 1
    s_lshr_b32 s{sT0}, s2, 5
    s_lshl3_add_u32 s{sHP}, s{sHP}, s{sT0}
    s_lshl1_add_u32 s{sROT}, s{sTB}, s{sHP}
    s_and_b32 s{sROT}, s{sROT}, {g.opt.get('rotmask', 6)}
    s_lshr_b32 s{sB}, s{sW}, 2
    s_and_b32 s{sI}, s{sW}, 3
    v_lshlrev_b32 v{vL16}, 4, v1
    """)
    g(f"v_and_b32 v{vT+1}, 0x30, v1")
    g(f"""
    v_lshrrev_b32 v{vT+4}, 3, v1
    v_and_b32 v{vT+5}, 7, v1
    v_lshrrev_b32 v{vT+6}, 4, v1
    v_xor_b32 v{vT+5}, v{vT+5}, v{vT+6}
    v_lshlrev_b32 v{vT+4}, 10, v{vT+4}
    v_lshl_add_u32 v{vDX0}, v{vT+5}, 4, v{vT+4}
    v_xor_b32 v{vDX1}, 64, v{vDX0}
    v_add_u32 v{vDX1}, 0x2000, v{vDX1}
    """)
    g(f"s_lshl_b32 s{sMX}, s{sW}, 11\ns_lshl_b32 s{sDMA}, s{sTB}, 17")
    g(f"""
    s_lshr_b32 s{sT2}, s{sHP}, 1
    s_lshl_b32 s{sT2}, s{sT2}, 14
    s_add_u32 s{sDMA}, s{sDMA}, s{sT2}
    s_lshl_b32 s{sOST}, s{sW}, 7
    s_add_u32 s{sDMA}, s{sDMA}, s{sOST}
    """)
    for k in range(0, 8, 2): g(f"v_mov_b64 v[{40+k}:{41+k}], 0")
    for d, n in ((rX, 2097152), (rWKV, 16384), (rGATE, 1024), (rWS, WS_SIZE)): g.srd_const(d, n)
    g(f"s_add_u32 m0, s{sMX}, {LDS_EW}")
    g("s_waitcnt lgkmcnt(0)")
    g.stamp('karg')
    g.jitter(1)
    def early_loads():
        g(f"s_bitcmp1_b32 s{sHP}, 0\ns_cselect_b64 s[{rWKV}:{rWKV+1}], s[{pWV}:{pWV+1}], s[{pWK}:{pWK+1}]")
        g.srd_base(rGATE, pGATE); g.srd_base(rX, pX)
        g.vmop(f"buffer_load_dwordx4 v{vL16}, {sr(rWKV)}, s{sMX} offen lds", 'e')
        g.vmop(f"buffer_load_dwordx4 v{vL16}, {sr(rWKV)}, s{sMX} offen offset:1024 lds", 'e')
        g(f"s_mov_b32 exec_lo, 0x00010001\ns_mov_b32 exec_hi, 0x00010001")
        g.vmop(f"buffer_load_dwordx4 v[40:43], v{vT+1}, {sr(rGATE)}, s{sOST} offen", 'e')
        g.vmop(f"buffer_load_dwordx4 v[44:47], v{vT+1}, {sr(rGATE)}, s{sOST} offen offset:64", 'e')
        g("s_mov_b64 exec, -1")
        g(f"s_add_u32 m0, s{sMX}, {LDS_EX}\ns_nop 0")
        g.vmop(f"buffer_load_dwordx4 v{vDX0}, {sr(rX)}, s{sDMA} offen lds", 'e')
        g(f"s_add_u32 m0, s{sMX}, {LDS_EX + 1024}\ns_nop 0")
        g.vmop(f"buffer_load_dwordx4 v{vDX1}, {sr(rX)}, s{sDMA} offen lds", 'e')
    g.srd_base(rWS, pWS)
    nonce_scan(g)
    if g.opt.get('elate'): g.srd_base(rX, pX); g.vm.append('scan')
    else: g.vm.append('scan'); early_loads()
    g.stamp('eissue')
    g(f"""
    s_lshr_b32 s{sT0}, s{sW}, 1
    s_cmp_eq_u32 s{sT0}, 3
    s_movk_i32 s{sT2}, 3072
    s_cselect_b32 s{sT1}, 1024, s{sT2}
    s_cselect_b32 s{sT2}, 2, 0
    s_lshl_b32 s{sWSTEP}, s{sT1}, 6
    s_add_u32 s{sMW}, s{sMX}, {LDS_WST}
    s_cmp_lg_u32 s{sB}, 0
    s_cbranch_scc1 L_su_q
    v_bfe_u32 v{vT+4}, v1, 2, 1
    v_bfe_u32 v{vT+5}, v1, 4, 1
    v_xor_b32 v{vT+4}, v{vT+4}, v{vT+5}
    v_and_b32 v{vT+5}, 3, v1
    v_lshl_add_u32 v{vT+5}, v{vT+4}, 2, v{vT+5}
    v_lshrrev_b32 v{vT+4}, 3, v1
    s_movk_i32 s{sW16}, 24576
    s_and_b32 s{sT2}, s{sHP}, 1
    s_add_u32 s{sT2}, s{sT2}, 1
    s_lshl_b32 s{sT2}, s{sT2}, 10
    s_lshr_b32 s{sWO}, s{sHP}, 1
    s_lshl_b32 s{sWO}, s{sWO}, 7
    s_add_u32 s{sWO}, s{sWO}, s{sT2}
    s_mul_i32 s{sT3}, s{sW}, 49152
    s_branch L_su_j
    L_su_q:
    v_lshrrev_b32 v{vT+4}, 2, v1
    v_and_b32 v{vT+5}, 3, v1
    v_xor_b32 v{vT+5}, s{sT2}, v{vT+5}
    s_lshl_b32 s{sW16}, s{sT1}, 4
    s_lshl_b32 s{sWO}, s{sHP}, 6
    s_and_b32 s{sT2}, s{sW}, 1
    s_mul_i32 s{sT3}, s{sT2}, s{sW16}
    s_lshl_b32 s{sT3}, s{sT3}, 1
    L_su_j:
    s_add_u32 s{sWO}, s{sWO}, s{sT3}
    v_mul_u32_u24 v{vT+4}, s{sT1}, v{vT+4}
    v_lshl_add_u32 v{vDW}, v{vT+5}, 4, v{vT+4}
    s_lshl_b32 s{sXO}, s{sTB}, 17
    s_lshl_b32 s{sT2}, s{sW}, 14
    s_add_u32 s{sXO}, s{sXO}, s{sT2}
    s_lshl_b32 s{sKX}, s{sROT}, 7
    s_mul_i32 s{sKW}, s{sROT}, s{sWSTEP}
    """)
    g(f"s_cmp_eq_u32 s{sT0}, 3\ns_cselect_b64 s[{rWS_}:{rWS_+1}], s[{pWQ}:{pWQ+1}], s[{pWQKV}:{pWQKV+1}]")
    g(f"s_mov_b32 s{rWS_+2}, 1572864\ns_cselect_b32 s{rWS_+2}, 524288, s{rWS_+2}\ns_mov_b32 s{rWS_+3}, 0x00020000")
    g.srd_base(rDBG, pDBG); g.srd_const(rDBG, 256)
    g(f"s_mov_b32 s{sMASK}, 0x0000ffff\ns_mov_b32 s{sMASK+1}, 0x0000ffff\ns_mov_b32 s{sSPIN}, {SPIN}\ns_mov_b32 s{sNONCE}, 0\nv_mov_b32 v{vFL}, 0")
    npf = g.opt.get('l2pf', 0)
    if npf:
        l2pf_setup(g)
        for k in range(npf): l2pf(g)
    if g.opt.get('elate'): early_loads()
    if g.opt.get('spf', 0): scalar_prefetch(g)
    g("s_barrier")
    if g.opt.get('pre', 0): p1_addr(g)
    early_addr(g)
    g.stamp('addr')
    runall(p1_dma(g, 0))
    nonce_producer(g)
    g.vm.remove('scan')
    g.stamp('setup')
    g.jitter(2)
    early_compute(g)
    g("s_barrier")
    g.stamp('early')
    if g.opt.get('cearly', 0):
        early_reduce(g)
        p1_addr(g); attn_consts(g); kv_store_addr(g)
        for d, p_, n in ((rOUT, pOUT, 2097152), (rWOA, pWOA, 524288), (rWOB, pWOB, 524288)): g.srd_base(d, p_); g.srd_const(d, n)
        if g.opt.get('cearly', 0) == 1: tail_addr(g)
        runall(p1_dma(g, 1))
    else:
        runall(p1_dma(g, 1))
        early_reduce(g)
        p1_addr(g)


vPFW, vPFX, vPFD = 232, 233, 234
sPFW, sPFX = 86, 88
def l2pf_setup(g):
    lq, lj = g.lab("L_pq"), g.lab("L_pj")
    g(f"""
    v_mul_u32_u24 v{vPFW}, s{sT1}, v1
    v_lshlrev_b32 v{vPFX}, 10, v1
    s_and_b32 s{sT2}, s{sTB}, 3
    s_lshr_b32 s{sPFX}, s{sHP}, 1
    s_lshl_b32 s{sPFX}, s{sPFX}, 7
    s_cmp_lg_u32 s{sB}, 0
    s_cbranch_scc1 {lq}
    s_lshl2_add_u32 s{sT2}, s{sT2}, s{sW}
    s_and_b32 s{sT3}, s{sHP}, 1
    s_add_u32 s{sT3}, s{sT3}, 1
    s_lshl_b32 s{sT3}, s{sT3}, 10
    s_add_u32 s{sPFX}, s{sPFX}, s{sT3}
    s_branch {lj}
    {lq}:
    s_and_b32 s{sT3}, s{sHP}, 1
    s_lshl2_add_u32 s{sT2}, s{sT3}, s{sT2}
    s_and_b32 s{sT3}, s{sW}, 1
    s_lshl1_add_u32 s{sT2}, s{sT2}, s{sT3}
    {lj}:
    s_lshl_b32 s{sT2}, s{sT2}, 2
    s_mul_i32 s{sT2}, s{sT2}, s{sT1}
    s_add_u32 s{sPFW}, s{sPFX}, s{sT2}
    s_and_b32 s{sT2}, s{sHP}, 7
    s_lshl3_add_u32 s{sT2}, s{sT2}, s{sW}
    s_lshl_b32 s{sT2}, s{sT2}, 11
    s_lshl_b32 s{sPFX}, s{sTB}, 17
    s_add_u32 s{sPFX}, s{sPFX}, s{sT2}
    """)
def l2pf(g):
    g("s_mov_b64 exec, 15")
    g.vmop(f"buffer_load_dword v{vPFD}, v{vPFW}, {sr(rWS_)}, s{sPFW} offen", 'pf')
    g("s_mov_b64 exec, 3")
    g.vmop(f"buffer_load_dword v{vPFD}, v{vPFX}, {sr(rX)}, s{sPFX} offen", 'pf')
    g(f"s_mov_b64 exec, -1\ns_add_u32 s{sPFW}, s{sPFW}, s{sWSTEP}\ns_add_u32 s{sPFX}, s{sPFX}, 128")

def p1_dma(g, j):
    p = j & 3
    def f0():
        g(f"s_add_u32 m0, s{sMX}, {p*SLOT}\ns_add_u32 s{sDS}, s{sXO}, s{sKX}")
        g.vmop(f"buffer_load_dwordx4 v{vDX0}, {sr(rX)}, s{sDS} offen lds", f'c{j}')
    def f1():
        g(f"s_add_u32 m0, s{sMX}, {p*SLOT+1024}\ns_add_u32 s{sPOLL+0 if False else sT3}, s{sWO}, s{sKW}")
        g.vmop(f"buffer_load_dwordx4 v{vDX1}, {sr(rX)}, s{sDS} offen lds", f'c{j}')
    def f2():
        g(f"s_add_u32 m0, s{sMW}, {p*SLOT}\ns_add_u32 s{sDS}, s{sT3}, s{sW16}")
        g.vmop(f"buffer_load_dwordx4 v{vDW}, {sr(rWS_)}, s{sT3} offen lds", f'c{j}')
    def f3():
        g(f"s_add_u32 m0, s{sMW}, {p*SLOT+1024}\ns_add_u32 s{sKW}, s{sKW}, s{sWSTEP}")
        g.vmop(f"buffer_load_dwordx4 v{vDW}, {sr(rWS_)}, s{sDS} offen lds", f'c{j}')
        if j < 7:
            g(f"s_add_u32 s{sKX}, s{sKX}, 128\ns_and_b32 s{sKX}, s{sKX}, 1023\ns_cselect_b32 s{sKW}, s{sKW}, 0")
    return [f0, f1, f2, f3]

def scalar_prefetch(g):
    P = sPC
    def base(ptr, off): g(f"s_add_u32 s{P}, s{ptr}, s{off}\ns_addc_u32 s{P+1}, s{ptr+1}, 0")
    g(f"s_and_b32 s{sT1}, s{sHP}, 3\ns_lshl_b32 s{sT1}, s{sT1}, 3\ns_add_u32 s{sT1}, s{sT1}, s{sW}\ns_lshl_b32 s{sT1}, s{sT1}, 12\ns_lshl_b32 s{sT2}, s{sTB}, 17\ns_add_u32 s{sT1}, s{sT1}, s{sT2}\ns_add_u32 s{sT1}, s{sT1}, s{sKX}")
    base(pX, sT1)
    for j in range(4): g(f"s_load_dword s{sFBT}, s[{P}:{P+1}], {j*1024}")
    g(f"s_lshl_b32 s{sT1}, s{sROT}, 1\ns_and_b32 s{sT2}, s{sTB}, 1\ns_add_u32 s{sT1}, s{sT1}, s{sT2}\ns_lshl_b32 s{sT1}, s{sT1}, 3\ns_add_u32 s{sT1}, s{sT1}, s{sW}\ns_mul_i32 s{sT1}, s{sT1}, {4*3072}")
    g(f"s_lshr_b32 s{sT3}, s{sHP}, 1\ns_lshl_b32 s{sT3}, s{sT3}, 7\ns_add_u32 s{sT1}, s{sT1}, s{sT3}\ns_and_b32 s{sT2}, s{sHP}, 1\ns_add_u32 s{sT2}, s{sT2}, 1\ns_lshl_b32 s{sT2}, s{sT2}, 10\ns_add_u32 s{sT1}, s{sT1}, s{sT2}")
    base(pWQKV, sT1)
    for j in range(4): g(f"s_load_dword s{sFBT}, s[{P}:{P+1}], {j*3072}")
    g(f"s_lshl_b32 s{sT1}, s{sROT}, 1\ns_and_b32 s{sT2}, s{sHP}, 1\ns_add_u32 s{sT1}, s{sT1}, s{sT2}\ns_lshl_b32 s{sT1}, s{sT1}, 1\ns_and_b32 s{sT2}, s{sTB}, 1\ns_add_u32 s{sT1}, s{sT1}, s{sT2}\ns_lshl_b32 s{sT1}, s{sT1}, 3\ns_add_u32 s{sT1}, s{sT1}, s{sW}")
    g(f"s_mul_i32 s{sT2}, s{sT1}, {2*3072}\ns_add_u32 s{sT2}, s{sT2}, s{sT3}")
    base(pWQKV, sT2)
    for j in range(2): g(f"s_load_dword s{sFBT}, s[{P}:{P+1}], {j*3072}")
    g(f"s_lshl_b32 s{sT1}, s{sT1}, 11\ns_add_u32 s{sT1}, s{sT1}, s{sT3}")
    base(pWQ, sT1)
    for j in range(2): g(f"s_load_dword s{sFBT}, s[{P}:{P+1}], {j*1024}")

def nonce_scan(g): g.first(lambda: nonce_scan_(g))
def nonce_scan_(g):
    g(f"v_lshrrev_b32 v{vT+4}, 2, v1\nv_and_b32 v{vT+5}, 3, v1\nv_lshlrev_b32 v{vT+4}, 7, v{vT+4}\nv_lshl_add_u32 v{vT+4}, v{vT+5}, 4, v{vT+4}")
    g(f"s_mov_b32 s{sT1}, {WS_F1}")
    g(f"buffer_load_dwordx4 v[176:179], v{vT+4}, {sr(rWS)}, s{sT1} offen sc1")
    g(f"buffer_load_dwordx4 v[180:183], v{vT+4}, {sr(rWS)}, s{sT1} offen offset:2048 sc1")
    g(f"s_mov_b32 s{sT1}, {WS_F3}")
    g(f"buffer_load_dwordx4 v[184:187], v{vT+4}, {sr(rWS)}, s{sT1} offen sc1")

def nonce_producer(g): g.first(lambda: nonce_producer_(g))
def nonce_producer_(g):
    g(f"s_waitcnt vmcnt({len(g.vm) - 1 - g.vm.index('scan')})")
    g(f"v_readfirstlane_b32 s{sT1}, v176")
    lp = g.lab("L_nl")
    g(f"{lp}:\ns_add_u32 s{sT1}, s{sT1}, 1\ns_cbranch_scc1 {lp}")
    g(f"s_mov_b64 s[{sPC}:{sPC+1}], 0")
    for k in range(12):
        g(f"v_cmp_eq_u32 vcc, s{sT1}, v{176+k}\ns_or_b64 s[{sPC}:{sPC+1}], s[{sPC}:{sPC+1}], vcc")
    g(f"s_cbranch_scc1 {lp}")
    g(f"v_mov_b32 v192, s{sT1}\nv_mov_b32 v193, 0\ns_mov_b64 exec, 1")
    g(f"buffer_store_dword v192, v193, {sr(rDBG)}, 0 offen sc1\ns_mov_b64 exec, -1")

def p1_addr(g):
    g(f"""
    v_and_b32 v{vT+2}, 31, v1
    v_lshrrev_b32 v{vT+3}, 5, v1
    v_bfe_u32 v{vT+4}, v1, 1, 3
    v_xor_b32 v{vT+4}, v{vT+4}, v{vT+3}
    v_lshlrev_b32 v{vT+4}, 4, v{vT+4}
    v_lshl_add_u32 v{vT+4}, v{vT+2}, 7, v{vT+4}
    s_lshl_b32 s{sT1}, s{sI}, 12
    v_add_u32 v{vAX}, s{sT1}, v{vT+4}
    v_xor_b32 v{vAX+1}, 32, v{vAX}
    v_xor_b32 v{vAX+2}, 64, v{vAX}
    v_xor_b32 v{vAX+3}, 0x60, v{vAX}
    v_bfe_u32 v{vT+4}, v1, 2, 2
    v_and_b32 v{vT+5}, 3, v1
    v_lshlrev_b32 v{vT+5}, 3, v{vT+5}
    v_lshl_add_u32 v{vT+5}, v{vT+4}, 6, v{vT+5}
    v_lshl_add_u32 v{vT+5}, v{vT+3}, 9, v{vT+5}
    v_bfe_u32 v{vT+6}, v1, 4, 1
    v_bfe_u32 v{vT+7}, v1, 3, 1
    v_xor_b32 v{vT+7}, s{sB}, v{vT+7}
    v_lshlrev_b32 v{vT+7}, 6, v{vT+7}
    v_lshl_add_u32 v{vT+7}, v{vT+4}, 7, v{vT+7}
    v_lshl_add_u32 v{vT+7}, v{vT+3}, 10, v{vT+7}
    v_lshl_add_u32 v{vT+7}, v{vT+6}, 5, v{vT+7}
    v_and_b32 v{vT+2}, 3, v1
    v_lshl_add_u32 v{vT+7}, v{vT+2}, 3, v{vT+7}
    v_add_u32 v{vAW1}, {LDS_WST}, v{vT+7}
    v_xor_b32 v{vT+4}, s{sB}, v{vT+6}
    v_lshl_add_u32 v{vT+5}, v{vT+4}, 5, v{vT+5}
    v_lshl_add_u32 v{vT+5}, v{vT+6}, 12, v{vT+5}
    v_add_u32 v{vAWQ}, {LDS_WST + 8192}, v{vT+5}
    """)

def early_addr(g):
    g(f"""
    v_lshrrev_b32 v{vT+4}, 4, v1
    v_bfe_u32 v{vT+5}, v1, 2, 2
    v_lshl_add_u32 v{vT+4}, v{vT+4}, 3, v{vT+5}
    v_and_b32 v{vT+5}, 3, v1
    v_lshlrev_b32 v{vT+5}, 3, v{vT+5}
    v_lshl_add_u32 v{vT+4}, v{vT+4}, 5, v{vT+5}
    s_add_u32 s{sT1}, s{sMX}, {LDS_EW}
    v_add_u32 v{vT+6}, s{sT1}, v{vT+4}
    s_lshl_b32 s{sT1}, s{sW}, 10
    s_add_u32 s{sT1}, s{sT1}, {LDS_ER}
    v_add_u32 v{vT+7}, s{sT1}, v{vL16}
    s_lshl_b32 s{sT1}, s{sW}, 8
    s_add_u32 s{sT1}, s{sT1}, {LDS_EG}
    v_lshlrev_b32 v{vT+5}, 2, v1
    v_add_u32 v{vT+5}, s{sT1}, v{vT+5}
    """)
    g(f"""
    v_and_b32 v{vT}, 15, v1
    v_lshrrev_b32 v{vT+1}, 4, v1
    v_bfe_u32 v{vT+2}, v1, 1, 3
    v_xor_b32 v{vT+1}, v{vT+1}, v{vT+2}
    v_lshlrev_b32 v{vT+1}, 4, v{vT+1}
    v_lshl_add_u32 v{vT}, v{vT}, 7, v{vT+1}
    s_add_u32 s{sT1}, s{sMX}, {LDS_EX}
    v_add_u32 v{vT}, s{sT1}, v{vT}
    v_xor_b32 v{vT+1}, 64, v{vT}
    """)

def early_compute(g):
    g.wvm('e')
    g.wlg()
    g.ds(f"ds_read_b128 v[16:19], v{vT}", 'ew')
    g.ds(f"ds_read_b128 v[20:23], v{vT+1}", 'ew')
    for s_ in range(2):
        for e in range(2):
            g.ds(f"ds_read_b64_tr_b16 v[{24+4*s_+2*e}:{25+4*s_+2*e}], v{vT+6} offset:{s_*1024+e*128}", 'ew')
    g.wlg('ew')
    lv, le = g.lab("L_ev"), g.lab("L_ee")
    g(f"s_bitcmp1_b32 s{sHP}, 0\ns_cbranch_scc1 {lv}")
    g("v_mfma_f32_16x16x32_bf16 v[32:35], v[24:27], v[16:19], 0")
    g("v_mfma_f32_16x16x32_bf16 v[36:39], v[40:43], v[16:19], 0")
    g("v_mfma_f32_16x16x32_bf16 v[32:35], v[28:31], v[20:23], v[32:35]")
    g("v_mfma_f32_16x16x32_bf16 v[36:39], v[44:47], v[20:23], v[36:39]")
    g(f"s_branch {le}\n{lv}:")
    g("v_mfma_f32_16x16x32_bf16 v[32:35], v[16:19], v[24:27], 0")
    g("v_mov_b32 v36, 0")
    g("v_mfma_f32_16x16x32_bf16 v[32:35], v[20:23], v[28:31], v[32:35]")
    g(f"{le}:\ns_nop 7")
    g.ds(f"ds_write_b128 v{vT+7}, v[32:35]", 'ep')
    g.ds(f"ds_write_b32 v{vT+5}, v36", 'ep')
    g.wlg()

def early_reduce(g): g.wave0(lambda: early_reduce_(g))
def early_reduce_(g):
    g(f"v_add_u32 v{vT+4}, {LDS_ER}, v{vL16}\nv_lshlrev_b32 v{vT+5}, 2, v1\nv_add_u32 v{vT+5}, {LDS_EG}, v{vT+5}")
    for k in range(8): g(f"ds_read_b128 v[{16+4*k}:{19+4*k}], v{vT+4} offset:{k*1024}")
    g("s_waitcnt lgkmcnt(0)")
    for k in range(8): g(f"ds_read_b32 v{64+k}, v{vT+5} offset:{k*256}")
    g(f"""
    s_lshr_b32 s{sT0}, s{sHP}, 1
    s_lshl_b32 s{sT1}, s{sTB}, 2
    s_lshr_b32 s{sT2}, s{sT0}, 1
    s_add_u32 s{sT1}, s{sT1}, s{sT2}
    s_lshr_b32 s{sT2}, s{sT1}, 3
    s_lshl_b32 s{sT2}, s{sT2}, 14
    s_and_b32 s{sT1}, s{sT1}, 7
    s_lshl_b32 s{sT1}, s{sT1}, 10
    s_add_u32 s{sT1}, s{sT1}, s{sT2}
    s_add_u32 s{sT1}, s{sT1}, {WS_KVB}
    s_and_b32 s{sT0}, s{sT0}, 1
    v_and_b32 v{vT}, 15, v1
    v_bfe_u32 v{vT+1}, v1, 4, 1
    v_lshrrev_b32 v{vT+2}, 5, v1
    v_lshlrev_b32 v{vT+2}, 3, v{vT+2}
    """)
    for k in range(1, 8):
        for q in range(4): g(f"v_add_f32 v{16+q}, v{16+q}, v{16+4*k+q}")
    g("v_cvt_pk_bf16_f32 v16, v16, v17\nv_cvt_pk_bf16_f32 v17, v18, v19")
    lv, le = g.lab("L_rv"), g.lab("L_re")
    g(f"s_bitcmp1_b32 s{sHP}, 0\ns_cbranch_scc1 {lv}")
    if True:
        g(f"""
        v_and_b32 v{vT+3}, 3, v{vT}
        v_bfe_u32 v{vT+6}, v{vT}, 2, 1
        v_lshl_add_u32 v{vT+3}, v{vT+6}, 3, v{vT+3}
        v_bfe_u32 v{vT+6}, v{vT}, 3, 1
        v_lshl_add_u32 v{vT+3}, v{vT+6}, 2, v{vT+3}
        v_lshl_add_u32 v{vT+3}, v{vT+1}, 5, v{vT+3}
        v_lshl_add_u32 v{vT+3}, v{vT+3}, 4, v{vT+2}
        s_lshl_b32 s{sT0}, s{sT0}, 8
        s_add_u32 s{sT1}, s{sT1}, s{sT0}
        buffer_store_dwordx2 v[16:17], v{vT+3}, {sr(rWS)}, s{sT1} offen sc1
        s_waitcnt lgkmcnt(0)
        """)
        for k in range(1, 8): g(f"v_add_f32 v64, v64, v{64+k}")
        g(f"""
        v_mul_f32 v64, {f2h(-1.4426950408889634)}, v64
        v_exp_f32 v64, v64
        s_lshr_b32 s{sT0}, s{sHP}, 1
        s_lshl_b32 s{sT0}, s{sT0}, 6
        v_add_f32 v64, 1.0, v64
        v_rcp_f32 v64, v64
        s_lshl_b32 s{sT1}, s{sTB}, 9
        s_add_u32 s{sT1}, s{sT1}, s{sT0}
        s_add_u32 s{sT1}, s{sT1}, {WS_GATE}
        v_lshlrev_b32 v{vT+3}, 2, v1
        s_mov_b64 exec, 0xffff
        buffer_store_dword v64, v{vT+3}, {sr(rWS)}, s{sT1} offen sc1
        s_mov_b64 exec, -1
        s_branch {le}
        {lv}:
        """)
        g(f"""
    v_lshl_add_u32 v{vT+3}, v{vT+1}, 4, v{vT}
    v_lshl_add_u32 v{vT+3}, v{vT+3}, 4, v{vT+2}
    s_lshl_b32 s{sT0}, s{sT0}, 9
    s_add_u32 s{sT1}, s{sT1}, s{sT0}
    s_add_u32 s{sT1}, s{sT1}, 8192
    buffer_store_dwordx2 v[16:17], v{vT+3}, {sr(rWS)}, s{sT1} offen sc1
    s_waitcnt lgkmcnt(0)
        """)
    g(f"{le}:")

def get_nonce(g):
    lp, ok = g.lab("L_gn"), g.lab("L_gk")
    g(f"{lp}:\nv_readfirstlane_b32 s{sNONCE}, v{vNON}\ns_nop 3\ns_cmp_lg_u32 s{sNONCE}, 0\ns_cbranch_scc1 {ok}")
    spin_check(g)
    g(f"v_mov_b32 v{vT+3}, 0\nbuffer_load_dword v{vNON}, v{vT+3}, {sr(rDBG)}, 0 offen sc1\ns_waitcnt vmcnt(0)\ns_branch {lp}\n{ok}:")

def flag_store(g, off_expr_setup):
    g(off_expr_setup)
    g(f"v_mov_b32 v{vT}, s{sNONCE}\nv_mov_b32 v{vT+1}, 0\ns_mov_b64 exec, 1")
    g(f"buffer_store_dword v{vT}, v{vT+1}, {sr(rWS)}, s{sT1} offen sc1\ns_mov_b64 exec, -1")

def poll_issue(g, kind):
    if kind == 1:
        g(f"v_lshrrev_b32 v{vT}, 2, v1\nv_and_b32 v{vT+1}, 3, v1\nv_lshlrev_b32 v{vT}, 7, v{vT}\nv_lshl_add_u32 v{vFL}, v{vT+1}, 4, v{vT}\ns_mov_b32 s{sPOLL}, {WS_F1}")
    elif kind == 2:
        g(f"v_and_b32 v{vT}, 3, v1\nv_bfe_u32 v{vT+1}, v1, 2, 1\nv_lshlrev_b32 v{vT}, 4, v{vT}\nv_lshl_add_u32 v{vFL}, v{vT+1}, 7, v{vT}\ns_and_b32 s{sPOLL}, s{sHP}, 14\ns_lshl_b32 s{sPOLL}, s{sPOLL}, 7\ns_add_u32 s{sPOLL}, s{sPOLL}, {WS_F2}")
    elif kind == 3:
        g(f"v_and_b32 v{vT}, 3, v1\nv_lshlrev_b32 v{vFL}, 4, v{vT}\ns_lshl_b32 s{sPOLL}, s{sTB}, 7\ns_add_u32 s{sPOLL}, s{sPOLL}, {WS_F3}")
    else:
        g(f"v_mov_b32 v{vFL}, 0\ns_lshl_b32 s{sPOLL}, s{sTB}, 2\ns_add_u32 s{sPOLL}, s{sPOLL}, s{sI}\ns_lshl_b32 s{sPOLL}, s{sPOLL}, 7\ns_add_u32 s{sPOLL}, s{sPOLL}, {WS_F4}")
    g(f"buffer_load_dwordx4 {r(vPOLL,4)}, v{vFL}, {sr(rWS)}, s{sPOLL} offen sc1")

def poll_check(g):
    lp, ok = g.lab("L_pl"), g.lab("L_pk")
    g(f"{lp}:")
    for k in range(4): g(f"v_xor_b32 v{vPOLL+k}, s{sNONCE}, v{vPOLL+k}")
    g(f"v_or_b32 v{vPOLL}, v{vPOLL}, v{vPOLL+1}\nv_or3_b32 v{vPOLL}, v{vPOLL}, v{vPOLL+2}, v{vPOLL+3}\nv_cmp_ne_u32 vcc, 0, v{vPOLL}\ns_nop 4\ns_cbranch_vccz {ok}")
    spin_check(g)
    g(f"buffer_load_dwordx4 {r(vPOLL,4)}, v{vFL}, {sr(rWS)}, s{sPOLL} offen sc1\ns_waitcnt vmcnt(0)\ns_branch {lp}\n{ok}:")

def w0(g):
    skip = g.lab("L_w0")
    g(f"s_cmp_lg_u32 s{sW}, 0\ns_cbranch_scc1 {skip}")
    return skip

def kv_dma(g, src_expr, slot, tag):
    def setup(): g(f"s_lshl_b32 s{sT2}, s{sW}, 12\ns_add_u32 m0, s{sT2}, {slot*SLOT}"); g(src_expr)
    def op(e): return lambda: g.vmop(f"buffer_load_dwordx4 v{vL16}, {sr(rWS)}, s{sDS} offen offset:{e*1024} sc1 lds", tag)
    return [setup] + [op(e) for e in range(4)]
def dma_B(g, c, slot, tag):
    return kv_dma(g, f"s_add_u32 s{sDS}, s{sT2}, {WS_KVB + c*SLOT}", slot, tag)
def dma_A(g, c, slot, tag):
    return kv_dma(g, f"s_add_u32 s{sDS}, s{sDMA}, {WS_KVA + c*SLOT}", slot, tag)
def dma_Wo(g, rs, grp, ldsbase, tag):
    def setup(): g(f"s_lshl_b32 s{sDS}, s{sW}, 15\ns_and_b32 s{sT1}, s{sHP}, 7\ns_lshl_b32 s{sT1}, s{sT1}, 7\ns_add_u32 s{sDS}, s{sDS}, s{sT1}")
    def op(e):
        def f():
            g(f"s_lshl_b32 s{sT2}, s{sW}, 12\ns_add_u32 m0, s{sT2}, {ldsbase + grp*32768 + e*1024}\ns_add_u32 s{sT1}, s{sDS}, {grp*262144 + e*8192}")
            g.vmop(f"buffer_load_dwordx4 v{vDWO}, {sr(rs)}, s{sT1} offen lds", tag)
        return f
    return [setup] + [op(e) for e in range(4)]
def runall(fs):
    for f in fs: f()

def phase1(g, b):
    T1, TQ = ACC, ACC + 16
    def XF(s_): return PF + 12 * s_
    def W1(s_): return PF + 12 * s_ + 4
    def WQ(s_): return PF + 12 * s_ + 8
    def reads(p, s_):
        if g.opt.get('noread'): return
        g.ds(f"ds_read_b128 {r(XF(s_),4)}, v{vAX+s_} offset:{p*SLOT}", f'f{s_}')
        for e in range(2): g.ds(f"ds_read_b64_tr_b16 {r(W1(s_)+2*e,2)}, v{vAW1} offset:{p*SLOT+s_*2048+e*512}", f'f{s_}')
        for e in range(2): g.ds(f"ds_read_b64_tr_b16 {r(WQ(s_)+2*e,2)}, v{vAWQ} offset:{p*SLOT+s_*1024+e*256}", f'f{s_}')
    def mf(j, s_, which='both'):
        g.wlg(f'f{s_}')
        if g.opt.get('nomf'): return
        c1 = "0" if (j == 0 and s_ == 0) else r(T1, 16)
        cq = "0" if (j == 0 and s_ == 0) else r(TQ, 16)
        if which != 'q':
            if b == 0: g(f"v_mfma_f32_32x32x16_bf16 {r(T1,16)}, {r(W1(s_),4)}, {r(XF(s_),4)}, {c1}")
            else:      g(f"v_mfma_f32_32x32x16_bf16 {r(T1,16)}, {r(XF(s_),4)}, {r(W1(s_),4)}, {c1}")
        if which != 't': g(f"v_mfma_f32_32x32x16_bf16 {r(TQ,16)}, {r(WQ(s_),4)}, {r(XF(s_),4)}, {cq}")
    f1chk = g.opt.get('f1chk', 6)
    def wait_c(j, extra0):
        if extra0 and f'c{j}' in g.vm:
            n = len(g.vm) - 1 - (len(g.vm) - 1 - g.vm[::-1].index(f'c{j}'))
            sk, dn = g.lab("L_wa"), g.lab("L_wb")
            g(f"s_cmp_eq_u32 s{sW}, 0\ns_cbranch_scc1 {sk}")
            g.wvm(f'c{j}')
            g(f"{sk}:\ns_waitcnt vmcnt({n + extra0})")
        else: g.wvm(f'c{j}')
    jf = g.opt.get('jflag', 2); pd3 = g.opt.get('pdist', 2) == 3
    for j in range(8):
        p = j & 3
        wait_c(j, {0: 1, 1: 1 if g.opt.get('cearly', 0) else 2}.get(j, 0))
        if j == jf:
            g.wave0(lambda: get_nonce(g), lambda: flag_store(g, f"s_lshl_b32 s{sT1}, s{sTB}, 7\ns_lshl_b32 s{sT2}, s{sHP}, 2\ns_add_u32 s{sT1}, s{sT1}, s{sT2}\ns_add_u32 s{sT1}, s{sT1}, {WS_F1}"))
        if j == f1chk:
            g.wave0(lambda: poll_check(g))
        g.wlg()
        g("s_barrier")
        g.stamp(f'b{j}')
        if j in (1, 4, 6): g.jitter(3 + j)
        pd = g.opt.get('pdist', 2)
        dm = []
        if j + pd <= 7 and not (pd == 3 and j == 0): dm = p1_dma(g, j + pd)
        if pd == 3 and j == 0: dm = p1_dma(g, 2) + p1_dma(g, 3)
        if j == f1chk: dm = dma_B(g, 0, 8, 'B01')
        if len(dm) == 5: dm = [lambda a=dm[0], c=dm[1]: (a(), c())] + dm[2:]
        if len(dm) == 8: dm = [lambda a=dm[2*k], c=dm[2*k+1]: (a(), c()) for k in range(4)]
        dp = g.opt.get('dmpos', (1, 2, 3, 4))
        def issue(k):
            for q in range(len(dm)):
                if dp[q] == k: dm[q]()
        if j == f1chk - 1:
            g.wave0(lambda: poll_issue(g, 1))
        if j == 0:
            g.wave0(lambda: g(f"v_mov_b32 v{vT+3}, 0\nbuffer_load_dword v{vNON}, v{vT+3}, {sr(rDBG)}, 0 offen sc1"))
        npf = g.opt.get('l2pf', 0)
        if npf and j + npf <= 7: l2pf(g)
        issue(-1)
        reads(p, 0); reads(p, 1)
        issue(0)
        if j > 0: mf(j - 1, 3)
        issue(1)
        reads(p, 2)
        mf(j, 0)
        issue(2)
        reads(p, 3)
        mf(j, 1)
        issue(3)
        if j == 7:
            issue(4); break
        mf(j, 2)
        issue(4)
        cp = g.opt.get('calcpos', {0: (0, 0, 1, 1), 1: (9, 9, 9, 9), 2: (9, 9, 9, 0)}[g.opt.get('cearly', 0)])
        if j == cp[0]: attn_consts(g)
        if j == cp[1]: kv_store_addr(g)
        if j == cp[2]:
            for d, p_, n in ((rOUT, pOUT, 2097152), (rWOA, pWOA, 524288), (rWOB, pWOB, 524288)): g.srd_base(d, p_); g.srd_const(d, n)
        if j == cp[3]: tail_addr(g)
    g.wlg()
    g.wvm('B01')
    g("s_barrier")
    g.stamp('bstart')
    g.ds(f"ds_read_b128 {r(KF[0],4)}, v{vAK}", 'K0')
    g.ds(f"ds_read_b128 {r(KF[1],4)}, v{vAK} offset:1024", 'kv')
    g(f"s_mov_b64 exec, s[{sMASK}:{sMASK+1}]")
    g.ds(f"ds_read_b128 {r(V0[0],4)}, v{vAV}", 'kv')
    g.ds(f"ds_read_b128 {r(V1[0],4)}, v{vAV} offset:512", 'kv')
    g("s_mov_b64 exec, -1")
    mf(7, 2, 'q'); mf(7, 2, 't')
    for k in range(2, g.opt.get('m0t', 4)): g.ds(f"ds_read_b128 {r(KTB+4*(k-2),4)}, v{vAK} offset:{k*1024}", 'kv')
    mf(7, 3, 'q'); mf(7, 3, 't')

def kv_store_addr(g):
    lv, le = g.lab("L_ka"), g.lab("L_kb")
    g(f"""
    s_and_b32 s{sT1}, s{sHP}, 14
    s_add_u32 s{sT1}, s{sT1}, s{sB}
    s_lshl_b32 s{sT1}, s{sT1}, 18
    s_lshr_b32 s{sT2}, s{sTB}, 1
    s_lshl_b32 s{sT2}, s{sT2}, 14
    s_add_u32 s{sT1}, s{sT1}, s{sT2}
    s_and_b32 s{sT2}, s{sTB}, 1
    s_lshl_b32 s{sT2}, s{sT2}, 2
    s_add_u32 s{sT2}, s{sT2}, s{sI}
    s_lshl_b32 s{sT2}, s{sT2}, 10
    s_add_u32 s{sKV}, s{sT1}, s{sT2}
    s_mov_b32 s{sSC}, {f2h(QSCALE)}
    s_mov_b32 s{sSC+1}, {f2h(QSCALE)}
    s_bitcmp1_b32 s{sHP}, 0
    s_cbranch_scc1 {lv}
    v_and_b32 v{vT}, 0x33, v1
    v_bfe_u32 v{vT+1}, v1, 2, 1
    v_lshl_or_b32 v{vT}, v{vT+1}, 3, v{vT}
    v_bfe_u32 v{vT+1}, v1, 3, 1
    v_lshl_or_b32 v{vT}, v{vT+1}, 2, v{vT}
    v_lshlrev_b32 v{vKVST}, 4, v{vT}
    s_add_u32 s{sKV1}, s{sKV}, 131072
    s_branch {le}
    {lv}:
    v_bfe_u32 v{vT}, v1, 4, 1
    v_lshlrev_b32 v{vT}, 17, v{vT}
    v_lshrrev_b32 v{vT+1}, 5, v1
    v_and_b32 v{vT+2}, 15, v1
    v_lshl_add_u32 v{vT+1}, v{vT+1}, 4, v{vT+2}
    v_lshl_add_u32 v{vKVST}, v{vT+1}, 4, v{vT}
    s_add_u32 s{sKV}, s{sKV}, 8192
    s_add_u32 s{sKV1}, s{sKV}, 512
    {le}:
    """)

def max_tree(Ss):
    regs = [S + k for S in Ss for k in range(16)]
    L = [f"v_max3_f32 v{vT}, v{regs[0]}, v{regs[1]}, v{regs[2]}", f"v_max3_f32 v{vT+1}, v{regs[3]}, v{regs[4]}, v{regs[5]}"]
    rest, k = regs[6:], 0
    while len(rest) >= 2:
        L.append(f"v_max3_f32 v{vT+k}, v{vT+k}, v{rest[0]}, v{rest[1]}"); rest = rest[2:]; k ^= 1
    L += [f"v_max_f32 v{vT}, v{vT}, v{vT+1}", f"v_mov_b32 v{vT+1}, v{vT}"]
    return L
def fill_c(Cr, off):
    L = [f"v_max_f32 v{vT}, v{vT}, v{vT+1}", f"v_sub_f32 v{Cr}, {f2h(-off)}, v{vT}", f"v_sub_f32 v{Cr+1}, {f2h(-off)}, v{vT}"]
    L += [f"v_mov_b64 v[{Cr+k}:{Cr+k+1}], v[{Cr}:{Cr+1}]" for k in range(2, 16, 2)]
    return "\n".join(L)
SWAP = f"v_permlane32_swap_b32 v{vT}, v{vT+1}"

def b_prologue(g):
    T1, TQ = ACC, ACC + 16
    g(f"v_mov_b64 v[{vT+4}:{vT+5}], -1\nv_mov_b64 v[{vT+6}:{vT+7}], -1\ns_nop 8")
    for k in range(8, 16, 2): g(f"v_pk_mul_f32 v[{TQ+k}:{TQ+k+1}], v[{TQ+k}:{TQ+k+1}], s[{sSC}:{sSC+1}]")
    for k in range(4): g(f"v_cvt_pk_bf16_f32 v{QB+k}, v{TQ+8+2*k}, v{TQ+9+2*k}")
    g.wlg('K0'); g("s_nop 0")
    nt = g.opt.get('m0t', 4)
    if nt > 1: g.wlg()
    for k in range(nt): g(f"v_mfma_f32_32x32x16_bf16 {r(STB[k],16)}, {r((KF[0], KF[1], KTB, KTB+4)[k],4)}, {r(QB,4)}, 0")
    for k in range(8): g(f"v_cvt_pk_bf16_f32 v{PF+k}, v{T1+2*k}, v{T1+2*k+1}")
    for k in range(0, 8, 2): g(f"v_pk_mul_f32 v[{TQ+k}:{TQ+k+1}], v[{TQ+k}:{TQ+k+1}], s[{sSC}:{sSC+1}]")
    L = max_tree(STB[:nt])
    for k, x in enumerate(L):
        g(x)
    g("s_nop 1")
    g(SWAP)
    g("s_nop 0")
    g(fill_c(C, g.opt.get('moff', MOFF)))
    g("s_nop 1")
    g(f"v_mfma_f32_32x32x16_bf16 {r(S0,16)}, {r(KF[0],4)}, {r(QB,4)}, {r(C,16)}")
    for k in range(4): g(f"v_cvt_pk_bf16_f32 v{QA+k}, v{TQ+2*k}, v{TQ+2*k+1}")
    g("s_nop 7")

def start_ops(g):
    def kv(k): return lambda: g.vmop(f"buffer_store_dwordx4 {r(PF+4*k,4)}, v{vKVST}, {sr(rWS)}, s{(sKV, sKV1)[k]} offen sc1", 'kvst')
    def sent():
        g(f"s_add_u32 s{sT1}, s{sOST}, {WS_O + 0x200000}")
        g.vmop(f"buffer_store_dwordx4 {r(vT+4,4)}, v{vL16}, {sr(rWS)}, s{sT1} offen sc1", 'sent')
    def gate():
        g(f"v_and_b32 v{vT}, 31, v1\nv_lshlrev_b32 v{vT}, 2, v{vT}\ns_lshl_b32 s{sT1}, s{sTB}, 2\ns_add_u32 s{sT1}, s{sT1}, s{sI}\ns_lshl_b32 s{sT1}, s{sT1}, 7\ns_add_u32 s{sT1}, s{sT1}, {WS_GATE}")
        g.vmop(f"buffer_load_dword v{vG}, v{vT}, {sr(rWS)}, s{sT1} offen sc1", 'gate')
    return kv(0), kv(1), sent, gate

def attn_consts(g):
    g(f"""
    v_mov_b32 v{vIDX}, 0xdddddddd
    v_lshrrev_b32 v{vT}, 5, v1
    v_and_b32 v{vT+1}, 15, v1
    v_lshl_add_u32 v{vT}, v{vT}, 4, v{vT+1}
    v_lshlrev_b32 v{vVOFF}, 4, v{vT}
    v_and_b32 v{vT}, 31, v1
    v_cmp_eq_u32 vcc, 16, v{vT}
    v_mov_b32 v{vT+1}, 0x3f803f80
    v_add_u32 v{vAK}, {8*SLOT}, v{vL16}
    v_cndmask_b32 v{vT+1}, 0, v{vT+1}, vcc
    v_add_u32 v{vAV}, {8*SLOT + 8192}, v{vVOFF}
    """)
    for k in range(16): g(f"v_mov_b32 v{V0[0]+k}, v{vT+1}")
    for Or in OACC:
        for k in range(0, 16, 2): g(f"v_mov_b64 v[{Or+k}:{Or+k+1}], 0")
    g(f"""
    s_lshl_b32 s{sT1}, s{sHP}, 1
    s_add_u32 s{sT1}, s{sT1}, s{sB}
    s_lshl_b32 s{sDMA}, s{sT1}, 17
    s_lshl_b32 s{sT2}, s{sI}, 12
    s_add_u32 s{sDMA}, s{sDMA}, s{sT2}
    s_lshl_b32 s{sT2}, s{sTB}, 2
    s_add_u32 s{sT2}, s{sT2}, s{sI}
    s_lshl_b32 s{sT2}, s{sT2}, 5
    s_add_u32 s{sT2}, s{sT2}, s{sT1}
    s_lshl_b32 s{sOST}, s{sT2}, 10
    """)

def tile(g, U, ev, pos):
    t = U & 7
    p = U & 1
    cur, nxt = (S0, S1) if p == 0 else (S1, S0)
    p1, pq, p0 = pos
    Qn = QB if U + 1 < 64 else QA
    def run(key):
        for f in ev.get((U, key), []): f()
    for i in range(16):
        if i == p1:
            if U > 0: g(f"v_smfmac_f32_32x32x32_bf16 {r(OACC[(U-1) >> 6],16)}, {r(V1[1-p],4)}, {r(nxt+8,8)}, v{vIDX}")
            run('m1')
            for o_ in g.opt.get('gord', 'mw01rk'):
                if o_ == 'w': g.wlg()
                if o_ == 'm' and U < 127: g(f"s_mov_b64 exec, s[{sMASK}:{sMASK+1}]")
                if o_ == '0' and U < 127: g.ds(f"ds_read_b128 {r(V0[1-p],4)}, v{vAV} offset:{((t + 1) & 7) * 1024}", 'kv')
                if o_ == '1' and U < 127: g.ds(f"ds_read_b128 {r(V1[1-p],4)}, v{vAV} offset:{((t + 1) & 7) * 1024 + 512}", 'kv')
                if o_ == 'r' and U < 127: g("s_mov_b64 exec, -1")
                if o_ == 'k' and U < 126: g.ds(f"ds_read_b128 {r(KF[p],4)}, v{vAK} offset:{((t + 2) & 7) * 1024}", 'kv')
            run('gap')
        if i == pq:
            if U < 127: g(f"v_mfma_f32_32x32x16_bf16 {r(nxt,16)}, {r(KF[1-p],4)}, {r(Qn,4)}, {r(C,16)}")
            run('mq')
        if i == p0:
            g(f"v_smfmac_f32_32x32x32_bf16 {r(OACC[U >> 6],16)}, {r(V0[p],4)}, {r(cur,8)}, v{vIDX}")
            run('m0')
        run(i)
        g(f"v_exp_f32 v{cur+i}, v{cur+i}")
    if U == 127:
        g("s_nop 1")
        g(f"v_smfmac_f32_32x32x32_bf16 {r(OACC[1],16)}, {r(V1[p],4)}, {r(cur+8,8)}, v{vIDX}")

def epilogue_parts(g, task):
    O = OACC[task]
    lo, hi = struct.unpack('<I', struct.pack('<f', 2.0**g.opt.get('lo', -110)))[0], struct.unpack('<I', struct.pack('<f', 2.0**120))[0]
    def p1():
        g(f"v_mov_b32 v{vT}, v{O+8}\nv_add_f32 v{vT+2}, |v{O}|, |v{O+1}|")
        for k in range(2, 8): g(f"v_add_f32 v{vT+2}, v{vT+2}, |v{O+k}|")
        g(f"v_permlane32_swap_b32 v{vT}, v{O+8}")
        g(f"v_subrev_u32 v{vT+2}, {lo}, v{vT+2}\ns_mov_b32 s{sT1}, {hi - lo}")
    def p2():
        g(f"v_subrev_u32 v{vT+3}, {lo}, v{vT}\nv_max_u32 v{vT+2}, v{vT+2}, v{vT+3}\nv_cmp_le_u32 vcc, s{sT1}, v{vT+2}")
        if g.opt.get('force_fb'): g("s_mov_b64 vcc, -1")
        g(f"s_nop 0\ns_cbranch_vccnz L_fallback{task}\nL_fbret{task}:\nv_rcp_f32 v{vT}, v{vT}")
        if task == 0: g(f"v_sub_f32 v{vT+3}, 1.0, v{vG}")
    def p3():
        g(f"v_mul_f32 v{vT}, v{vT}, v{vT+3 if task == 0 else vG}")
        for k in range(0, 8, 2): g(f"v_pk_mul_f32 v[{O+k}:{O+k+1}], v[{O+k}:{O+k+1}], v[{vT}:{vT+1}] op_sel_hi:[1,0]")
        for k in range(4): g(f"v_cvt_pk_bf16_f32 v{vT+4+k}, v{O+2*k}, v{O+2*k+1}")
        if task == 1:
            for k in range(4): g(f"v_min_u32 v{vT+4+k}, -2, v{vT+4+k}")
        g(f"s_add_u32 s{sT1}, s{sOST}, {WS_O + (0 if task == 0 else 0x200000)}")
        g.vmop(f"buffer_store_dwordx4 {r(vT+4,4)}, v{vL16}, {sr(rWS)}, s{sT1} offen sc1", 'ost')
    return p1, p2, p3

def fallback(g, task):
    Q, O = (QB, QA)[task], OACC[task]
    S_, C_, K_, A0, A1 = FB_S, FB_C, FB_K, FB_V0, FB_V1
    g(f"L_fallback{task}:")
    if g.opt.get('fbcount'):
        g(f"v_mov_b32 v{vT}, 1\nv_mov_b32 v{vT+1}, 0\ns_mov_b64 exec, 1\nbuffer_atomic_add v{vT}, v{vT+1}, {sr(rDBG)}, 0 offen offset:128\ns_mov_b64 exec, -1")
    if task == 0: g(f"s_mov_b32 s{sFBBASE}, {WS_KVB}")
    else: g(f"s_lshl_b32 s{sT1}, s{sI}, 12\ns_sub_u32 s{sFBBASE}, s{sDMA}, s{sT1}")
    g(f"v_and_b32 v{vT}, 31, v1\nv_cmp_eq_u32 vcc, 16, v{vT}\nv_mov_b32 v{vT+1}, 0x3f803f80\ns_nop 1\nv_cndmask_b32 v{vT+1}, 0, v{vT+1}, vcc")
    for k in range(8): g(f"v_mov_b32 v{A0+k}, v{vT+1}")
    g(f"v_mov_b32 v{vT}, 0xff800000\ns_mov_b32 s{sFBT}, 0")
    def addr():
        g(f"s_lshr_b32 s{sT1}, s{sFBT}, 3\ns_lshl_b32 s{sT1}, s{sT1}, 14\ns_and_b32 s{sT2}, s{sFBT}, 7\ns_lshl_b32 s{sT2}, s{sT2}, 10\ns_add_u32 s{sT1}, s{sT1}, s{sT2}\ns_add_u32 s{sT1}, s{sT1}, s{sFBBASE}")
    g(f"L_fb1_{task}:"); addr()
    g(f"buffer_load_dwordx4 {r(K_,4)}, v{vL16}, {sr(rWS)}, s{sT1} offen sc1\ns_waitcnt vmcnt(0)")
    g(f"v_mfma_f32_32x32x16_bf16 {r(S_,16)}, {r(K_,4)}, {r(Q,4)}, 0\ns_nop 15")
    for k in range(0, 16, 2): g(f"v_max3_f32 v{vT}, v{vT}, v{S_+k}, v{S_+k+1}")
    g(f"s_add_u32 s{sFBT}, s{sFBT}, 1\ns_cmp_lt_u32 s{sFBT}, 64\ns_cbranch_scc1 L_fb1_{task}")
    g(f"v_mov_b32 v{vT+1}, v{vT}\ns_nop 1\n{SWAP}\ns_nop 1")
    g(fill_c(C_, 0.0))
    for k in range(0, 16, 2): g(f"v_mov_b64 v[{O+k}:{O+k+1}], 0")
    g(f"s_mov_b32 s{sFBT}, 0")
    g(f"L_fb2_{task}:"); addr()
    g(f"buffer_load_dwordx4 {r(K_,4)}, v{vL16}, {sr(rWS)}, s{sT1} offen sc1\ns_add_u32 s{sT1}, s{sT1}, 8192")
    g(f"s_mov_b64 exec, s[{sMASK}:{sMASK+1}]")
    g(f"buffer_load_dwordx4 {r(A0,4)}, v{vVOFF}, {sr(rWS)}, s{sT1} offen sc1\nbuffer_load_dwordx4 {r(A1,4)}, v{vVOFF}, {sr(rWS)}, s{sT1} offen offset:512 sc1")
    g("s_mov_b64 exec, -1\ns_waitcnt vmcnt(0)")
    g(f"v_mfma_f32_32x32x16_bf16 {r(S_,16)}, {r(K_,4)}, {r(Q,4)}, {r(C_,16)}\ns_nop 15")
    for k in range(16): g(f"v_exp_f32 v{S_+k}, v{S_+k}")
    g("s_nop 2")
    g(f"v_smfmac_f32_32x32x32_bf16 {r(O,16)}, {r(A0,4)}, {r(S_,8)}, v{vIDX}")
    g(f"v_smfmac_f32_32x32x32_bf16 {r(O,16)}, {r(A1,4)}, {r(S_+8,8)}, v{vIDX}")
    g(f"s_nop 15\ns_add_u32 s{sFBT}, s{sFBT}, 1\ns_cmp_lt_u32 s{sFBT}, 64\ns_cbranch_scc1 L_fb2_{task}")
    g(f"v_mov_b32 v{vT}, v{O+8}\nv_mov_b32 v{vT+1}, v{O+8}\ns_nop 1\n{SWAP}\ns_nop 1\ns_branch L_fbret{task}")

def tail_addr(g):
    g(f"""
    v_lshrrev_b32 v{vT}, 3, v1
    v_bfe_u32 v{vT+1}, v1, 2, 1
    v_bfe_u32 v{vT+2}, v1, 4, 1
    v_xor_b32 v{vT+1}, v{vT+1}, v{vT+2}
    v_lshlrev_b32 v{vT+1}, 6, v{vT+1}
    v_lshl_add_u32 v{vT+1}, v{vT}, 10, v{vT+1}
    v_and_b32 v{vT+3}, 3, v1
    v_lshl_add_u32 v{vDWO}, v{vT+3}, 4, v{vT+1}
    v_lshrrev_b32 v{vT}, 5, v1
    v_bfe_u32 v{vT+1}, v1, 2, 2
    v_lshl_add_u32 v{vT}, v{vT}, 2, v{vT+1}
    v_lshlrev_b32 v{vT}, 7, v{vT}
    v_bfe_u32 v{vT+1}, v1, 3, 1
    v_lshl_add_u32 v{vT}, v{vT+1}, 6, v{vT}
    v_lshl_add_u32 v{vT}, v{vT+2}, 5, v{vT}
    v_lshl_add_u32 v{vT}, v{vT+3}, 3, v{vT}
    s_lshl_b32 s{sT1}, s{sI}, 13
    s_add_u32 s{sT1}, s{sT1}, {LDS_WOB}
    s_lshr_b32 s{sT2}, s{sHP}, 3
    s_lshl_b32 s{sT2}, s{sT2}, 15
    s_add_u32 s{sT1}, s{sT1}, s{sT2}
    v_add_u32 v{vAT+2}, s{sT1}, v{vT}
    v_xor_b32 v{vAT+3}, 64, v{vAT+2}
    s_lshl_b32 s{sT2}, s{sT2}, 1
    s_sub_u32 s{sT1}, s{sT1}, s{sT2}
    s_add_u32 s{sT1}, s{sT1}, 32768
    v_add_u32 v{vAT}, s{sT1}, v{vT}
    v_xor_b32 v{vAT+1}, 64, v{vAT}
    s_mul_i32 s{sT1}, s{sW}, 6144
    v_add_u32 v{vRR}, s{sT1}, v{vL16}
    s_lshl_b32 s{sT1}, s{sTB}, 7
    s_lshr_b32 s{sT2}, s{sHP}, 3
    s_lshl_b32 s{sT2}, s{sT2}, 6
    s_add_u32 s{sT1}, s{sT1}, s{sT2}
    s_lshl_b32 s{sT2}, s{sB}, 5
    s_add_u32 s{sT1}, s{sT1}, s{sT2}
    v_and_b32 v{vT}, 31, v1
    v_add_u32 v{vT}, s{sT1}, v{vT}
    v_lshlrev_b32 v{vT}, 10, v{vT}
    v_lshrrev_b32 v{vT+1}, 5, v1
    v_lshl_add_u32 v{vT}, v{vT+1}, 4, v{vT}
    s_and_b32 s{sT2}, s{sHP}, 7
    s_lshl_b32 s{sT2}, s{sT2}, 7
    s_lshl_b32 s{sT1}, s{sI}, 5
    s_add_u32 s{sT2}, s{sT2}, s{sT1}
    v_add_u32 v{vOUTA}, s{sT2}, v{vT}
    """)

def of_loads(g, branch, tag, dst=None):
    dst = OF if dst is None else dst
    def setup():
        g(f"""
        s_lshl_b32 s{sT1}, s{sTB}, 2
        s_lshr_b32 s{sT2}, s{sHP}, 3
        s_lshl_b32 s{sT2}, s{sT2}, 1
        s_add_u32 s{sT1}, s{sT1}, s{sT2}
        s_add_u32 s{sT1}, s{sT1}, s{sB}
        s_lshl_b32 s{sT1}, s{sT1}, 15
        s_lshl_b32 s{sT2}, s{sI}, 12
        s_add_u32 s{sT1}, s{sT1}, s{sT2}
        s_add_u32 s{sT1}, s{sT1}, {WS_O + branch*0x200000}
        s_lshr_b32 s{sT2}, s{sHP}, 3
        s_lshl_b32 s{sT2}, s{sT2}, 14
        s_add_u32 s{sOF+1}, s{sT1}, s{sT2}
        s_sub_u32 s{sT1}, s{sT1}, s{sT2}
        s_add_u32 s{sOF}, s{sT1}, 16384
        """)
    def op(n): return lambda: g.vmop(f"buffer_load_dwordx4 {r(dst+4*n,4)}, v{vL16}, {sr(rWS)}, s{sOF + (n >> 2)} offen offset:{(n&3)*1024} sc1", f'{tag}{n}')
    return [setup] + [op(n) for n in range(8)]

def wfrag_reads(g, n, base, tag):
    for tc in range(2):
        for e in range(2):
            g.ds(f"ds_read_b64_tr_b16 {r(WF+8*n+4*tc+2*e,2)}, v{vAT+2*(n>>2)+tc} offset:{base+(n&3)*2048+e*1024}", f'{tag}{n}')

def tail(g):
    OA = PF
    p1, p2, p3 = epilogue_parts(g, 1)
    fa = of_loads(g, 1, 'OA', OA)
    oat = list(g.opt.get('oat', (8, 8, 8, 8, 9, 9, 10, 10)))
    for n in range(3): wfrag_reads(g, n, 0, 'w')
    p1(); g("s_nop 0"); p2(); fa[0](); p3()
    g.stamp('A')
    g.jitter(200)
    t1at = g.opt.get('t1at', 0)
    g.wvm('OB7')
    if t1at == 0:
        g.wvm('WoA1'); g("s_barrier")
    g.stamp('T1')
    DA = LDS_WOA - LDS_WOB
    nload = 0
    for n in range(8):
        g.wlg(f'w{n}')
        for tc in range(2):
            c = "0" if n == 0 else r(ACC+16*tc, 16)
            g(f"v_mfma_f32_32x32x16_bf16 {r(ACC+16*tc,16)}, {r(WF+8*n+4*tc,4)}, {r(OF+4*n,4)}, {c}")
        if n == t1at and n > 0:
            g.wvm('WoA1'); g("s_barrier")
        if n + 3 < 8: wfrag_reads(g, n + 3, 0, 'w')
        else: wfrag_reads(g, n - 5, 0, 'x')
        if n in (1, 5):
            for k in range(2): g(f"v_add_u32 v{vAT + (n >> 2) * 2 + k}, {DA}, v{vAT + (n >> 2) * 2 + k}")
        for k in range(8):
            if oat[k] == n: fa[1 + k]()
    g.stamp('bp')
    for n in range(3, 8):
        g.wlg(f'x{n-3}')
        wfrag_reads(g, n, 0, 'x')
        for k in range(8):
            if oat[k] == n + 5: fa[1 + k]()
    for d in range(4):
        g(f"s_sub_u32 s{sT1}, {d + 3}, s{sI}\ns_and_b32 s{sT1}, s{sT1}, 3\ns_lshl_b32 s{sT1}, s{sT1}, 11\ns_mul_i32 s{sT2}, s{sB}, 24576\ns_add_u32 s{sT1}, s{sT1}, s{sT2}\ns_add_u32 s{sT1}, s{sT1}, {d * 6144}\nv_add_u32 v{vT+4+d}, s{sT1}, v{vL16}")
    g.wlg()
    if g.opt.get('t2early', 1): g("s_barrier")
    g.stamp('poll')
    def check(q, bad):
        R = OA + 16 * q
        g(f"v_max3_u32 v{vT}, v{R}, v{R+1}, v{R+2}\nv_max3_u32 v{vT+1}, v{R+3}, v{R+4}, v{R+5}")
        for k in range(6, 16, 4):
            g(f"v_max3_u32 v{vT}, v{vT}, v{R+k}, v{R+k+1}")
            if k + 3 < 16: g(f"v_max3_u32 v{vT+1}, v{vT+1}, v{R+k+2}, v{R+k+3}")
        g(f"v_max_u32 v{vT}, v{vT}, v{vT+1}\nv_cmp_eq_u32 vcc, -1, v{vT}\ns_nop 0\ns_cbranch_vccnz {bad}")
        for tc in range(2):
            for n in range(4 * q, 4 * q + 4):
                g(f"v_mfma_f32_32x32x16_bf16 {r(ACC+16*tc,16)}, {r(WF+8*n+4*tc,4)}, {r(OA+4*n,4)}, {r(ACC+16*tc,16)}")
    g(f"s_mov_b32 s{sDS}, 0")
    for q in range(2):
        sk, bad = g.lab("L_oa"), g.lab("L_ob")
        g.wvm(f'OA{4*q+3}')
        check(q, bad)
        g(f"s_branch {sk}\n{bad}:\ns_bitset1_b32 s{sDS}, {q}\n{sk}:")
    g.stamp('pass1')
    g(f"L_oa_loop:\ns_cmp_eq_u32 s{sDS}, 0\ns_cbranch_scc1 L_oa_done")
    spin_check(g)
    for q in range(2):
        sk = g.lab("L_oc")
        g(f"s_bitcmp1_b32 s{sDS}, {q}\ns_cbranch_scc0 {sk}")
        for n in range(4 * q, 4 * q + 4): fa[1 + n]()
        g.vm = []
        g(f"{sk}:")
    g("s_waitcnt vmcnt(0)")
    for q in range(2):
        sk = g.lab("L_od")
        g(f"s_bitcmp1_b32 s{sDS}, {q}\ns_cbranch_scc0 {sk}")
        check(q, sk)
        g(f"s_bitset0_b32 s{sDS}, {q}\n{sk}:")
    g("s_branch L_oa_loop\nL_oa_done:")
    g.stamp('mm')
    g.jitter(201)
    if not g.opt.get('t2early', 1): g("s_barrier")
    g("s_nop 3")
    def piece(d): return ACC + 16 * (d >> 1) + 8 * (d & 1)
    for d in range(4):
        sk = g.lab("L_rw")
        if d == 2: g("s_nop 6")
        g(f"s_cmp_eq_u32 s{sI}, {d}\ns_cbranch_scc1 {sk}")
        g(f"ds_write_b128 v{vT+4+d}, {r(piece(d),4)}\nds_write_b128 v{vT+4+d}, {r(piece(d)+4,4)} offset:1024\n{sk}:")
    lj = g.lab("L_rj")
    for d in range(4):
        sk = g.lab("L_rs")
        if d < 3: g(f"s_cmp_lg_u32 s{sI}, {d}\ns_cbranch_scc1 {sk}")
        for k in range(0, 8, 2): g(f"v_mov_b64 v[{40+k}:{41+k}], v[{piece(d)+k}:{piece(d)+k+1}]")
        if d < 3: g(f"s_branch {lj}\n{sk}:")
    g(f"{lj}:")
    g("s_waitcnt lgkmcnt(0)\ns_barrier")
    g.stamp('red')
    for k in range(3):
        for e in range(2):
            g.ds(f"ds_read_b128 {r(16+8*k+4*e,4)}, v{vRR} offset:{k*2048+e*1024}", f'rr{k}')
    g.wlg('rr0')
    for k in range(0, 8, 2): g(f"v_pk_add_f32 v[{40+k}:{41+k}], v[{40+k}:{41+k}], v[{16+k}:{17+k}]")
    g.wlg('rr2')
    for k in range(0, 8, 2): g(f"v_pk_add_f32 v[{24+k}:{25+k}], v[{24+k}:{25+k}], v[{32+k}:{33+k}]")
    for k in range(0, 8, 2): g(f"v_pk_add_f32 v[{40+k}:{41+k}], v[{40+k}:{41+k}], v[{24+k}:{25+k}]")
    for k in range(4): g(f"v_cvt_pk_bf16_f32 v{16+k}, v{40+2*k}, v{41+2*k}")
    g("s_nop 1\nv_permlane32_swap_b32 v16, v18\nv_permlane32_swap_b32 v17, v19")
    g.vmop(f"buffer_store_dwordx4 v[16:19], v{vOUTA}, {sr(rOUT)}, 0 offen {g.opt.get('outsc', '')}", 'out')

def schedule(g):
    o = g.opt
    ev = {}
    def at(T, key, *fs): ev.setdefault((T, key), []).extend(fs)
    dpos = o.get('dpos', ((2, 'm0'), (3, 'm0'), (4, 'm0'), (5, 'm0')))
    pp = o.get('pp', {(2, 'mq'): 3, (5, 'm0'): 2, (0, 'm0'): 1, (1, 'mq'): 0})
    def wave0(*fs): return lambda: g.wave0(*fs)
    def flag(base, hi, lo):
        return lambda: flag_store(g, f"s_lshl_b32 s{sT1}, s{hi}, 7\ns_lshl_b32 s{sT2}, s{lo}, 2\ns_add_u32 s{sT1}, s{sT1}, s{sT2}\ns_add_u32 s{sT1}, s{sT1}, {base}")
    def slot(gi): return slotB(gi) if gi < 8 else slotA(gi - 8)
    def vadd(reg, src, gi):
        d = ((slot(gi + 1) - slot(gi)) * SLOT) & 0xffffffff
        if gi != 7: return lambda: g(f"v_add_u32 v{reg}, {d}, v{src}")
        return lambda: g(f"s_lshl_b32 s{sT1}, s{sB}, 14\ns_add_u32 s{sT1}, s{sT1}, {d}\nv_add_u32 v{reg}, s{sT1}, v{src}")
    nt = o.get('m0t', 4)
    at(59, 0, vadd(vT + 3, vAK, 7))
    for k in range(nt):
        at(59, 'gap', lambda k=k: g.ds(f"ds_read_b128 {r(KTMP+4*k,4)}, v{vT+3} offset:{k*1024}", 'kv'))
        at(60 + k // 2, 7 if k % 2 == 0 else 13, lambda k=k: g(f"v_mfma_f32_32x32x16_bf16 {r(STMP[k],16)}, {r(KTMP+4*k,4)}, {r(QA,4)}, 0"))
    L = max_tree(STMP[:nt])
    if nt > 2:
        at(61, 6, lambda: g("\n".join(L[:8]))); at(62, 1, lambda: g("\n".join(L[8:16]))); at(62, 6, lambda: g("\n".join(L[16:])))
    else:
        at(61, 6, lambda: g("\n".join(L[:8]))); at(62, 6, lambda: g("\n".join(L[8:])))
    at(62, 8, lambda: g(SWAP))
    at(62, 12, lambda: g(fill_c(C, o.get('moff', MOFF))))
    e1, e2, e3 = epilogue_parts(g, 0)
    at(65, 0, e1); at(65, 1, e2); at(65, 6, e3, lambda: g.stamp('B'))
    fs = dma_B(g, 2, 0, 'G1')
    at(0, 6, fs[0], fs[1]); at(0, 13, fs[2]); at(1, 1, fs[3]); at(1, 6, fs[4])
    k0, k1, sent, gate = start_ops(g)
    at(4, 6, k0); at(5, 6, k1); at(6, 6, sent); at(7, 6, gate)
    for U in (3, 17, 30, 63, 70, 90, 111, 125): at(U, 9, lambda U=U: g.jitter(U))
    for gi in range(16):
        T0 = 8 * gi
        ppc = dict(pp)
        if gi == 15:
            ppc = {k: v for k, v in pp.items() if k[0] < 2}
            ppc.update(o.get('pplast', {(2, 'm1'): 3, (3, 'm0'): 2, (5, 'm0'): 1, (7, 'm1'): 0}))
        for (t, key), pr in ppc.items(): at(T0 + t, key, lambda pr=pr: g(f"s_setprio {pr}"))
        if gi < 15:
            at(T0 + 6, 0, vadd(vAK, vAK, gi))
            at(T0 + 7, 0, vadd(vAV, vAV, gi))
        wait = {1: 'G1', 2: 'kvst', 3: 'G3', 4: None, 7: 'A0', 8: 'A1', 9: 'A2', 10: 'ost', 11: 'A4', 12: 'A5', 13: 'A6', 14: 'WoB0', 15: 'WoB1'}
        if gi == 4: at(T0 + 1, 1, lambda: g.wvm(), wave0(lambda: poll_check(g)))
        if gi == 14: at(T0 + 1, 1, lambda: g.wvm('WoB0'), wave0(lambda: poll_check(g)))
        if gi in wait: at(T0 + 1, 'm0', lambda w=wait[gi]: g.wvm(w))
        if gi not in o.get('nobar', ()): at(T0 + 1, 'm0', lambda: g("s_barrier"))
        at(T0 + 1, 'm0', lambda gi=gi: g.stamp(f'g{gi}'))
        grp = {0: lambda: dma_B(g, 4, 2, 'G2'), 1: lambda: dma_B(g, 6, 4, 'G3'),
               4: lambda: dma_A(g, 0, 6, 'A0'), 5: lambda: dma_A(g, 1, 8, 'A1'), 6: lambda: dma_A(g, 2, 0, 'A2'), 7: lambda: dma_A(g, 3, 2, 'A3'),
               8: lambda: dma_A(g, 4, 4, 'A4'), 9: lambda: dma_A(g, 5, 6, 'A5'), 10: lambda: dma_A(g, 6, 8, 'A6'), 11: lambda: dma_A(g, 7, 0, 'A7'),
               12: lambda: dma_Wo(g, rWOB, 0, LDS_WOB, 'WoB0'), 13: lambda: dma_Wo(g, rWOB, 1, LDS_WOB, 'WoB1'),
               14: lambda: dma_Wo(g, rWOA, 0, LDS_WOA, 'WoA0'), 15: lambda: dma_Wo(g, rWOA, 1, LDS_WOA, 'WoA1')}
        if gi == 13: at(T0 + 2, 0, wave0(lambda: poll_issue(g, 3)))
        if gi in grp:
            fs = grp[gi]()
            at(T0 + dpos[0][0], dpos[0][1], fs[0])
            for (t, i), f in zip(dpos, fs[1:]): at(T0 + t, i, f)
        if gi == 2: at(T0 + 2, 6, wave0(flag(WS_F2, sHP, sTB)))
        if gi == 3:
            at(T0 + 4, 6, wave0(lambda: poll_issue(g, 2)))
        if gi == 10: at(T0 + 4, 6, wave0(flag(WS_F3, sTB, sHP)))
        if gi == 13 and o.get('wopf', 1):
            def wopf():
                g(f"s_and_b32 s{sT1}, s{sTB}, 3\ns_lshl_b32 s{sT1}, s{sT1}, 13\ns_add_u32 s{sT1}, s{sT1}, s{sDS}\ns_add_u32 s{sT1}, s{sT1}, 262144")
                g.vmop(f"buffer_load_dwordx4 {r(208,4)}, v{vDWO}, {sr(rWOA)}, s{sT1} offen", 'pf')
            at(T0 + 5, 6, wopf)
        if gi == 14:
            fs = of_loads(g, 0, 'OB')
            at(T0 + 4, 6, fs[0])
            for n, f in enumerate(fs[1:]): at(T0 + 4 + n // 2, 6 if n % 2 == 0 else 13, f)
    return ev

def slotB(c): return (8 + c) % 10
def slotA(c): return 2 * ((3 + c) % 5)

def build(**opt):
    g = G(**opt)
    setup(g)
    fork = (list(g.lg), list(g.vm)); nst0 = g.nst
    g(f"s_bitcmp1_b32 s{sHP}, 0\ns_cbranch_scc1 L_p1b")
    g("L_p1a:")
    phase1(g, 0)
    end0 = (list(g.lg), list(g.vm))
    g("s_branch L_p1done\nL_rare0:")
    main0 = g.L; g.L = []
    g.lg, g.vm = list(fork[0]), list(fork[1]); g.nst = nst0
    phase1(g, 1)
    var1 = g.L; g.L = main0
    if g.opt.get('rnear', 1): g.L += g.cold; g.cold = []
    g("L_p1b:")
    g.L += var1
    assert end0 == (g.lg, g.vm), (end0, g.lg, g.vm)
    g("L_p1done:")
    g.stamp('p1')
    b_prologue(g)
    g.stamp('t0')
    ev = schedule(g)
    for U in range(128): tile(g, U, ev, opt.get('pos', (2, 5, 10)))
    tail(g)
    if opt.get('stamps'):
        g.stamp('end')
        g(f"s_lshl_b32 s{sT1}, s2, 3\ns_add_u32 s{sT1}, s{sT1}, s{sW}\ns_lshl_b32 s{sT1}, s{sT1}, 6\ns_add_u32 s{sT1}, s{sT1}, {WS_DBG}")
        g("s_waitcnt lgkmcnt(0)")
        for k in range(12): g(f"v_mov_b32 v{16+k}, s{STAMP_SLOTS[min(k, g.nst-1)]}")
        g(f"v_mov_b32 v30, 0\ns_mov_b64 exec, 1")
        for k in range(3): g(f"buffer_store_dwordx4 v[{16+4*k}:{19+4*k}], v30, {sr(rWS)}, s{sT1} offen offset:{16*k}")
    if opt.get('dbgst'):
        sk = w0(g)
        g("s_waitcnt vmcnt(0) lgkmcnt(0)")
        last = STAMP_SLOTS[g.nst - 1]
        g(f"v_mov_b32 v16, s{last}\ns_not_b32 s{sT1}, s{STAMP_SLOTS[0]}\nv_mov_b32 v17, s{sT1}\nv_mov_b32 v30, 0\ns_mov_b64 exec, 1")
        g(f"buffer_atomic_umax v16, v30, {sr(rDBG)}, 0 offen offset:4\nbuffer_atomic_umax v17, v30, {sr(rDBG)}, 0 offen offset:8")
        sk2 = g.lab("L_d2")
        g(f"s_cmp_lg_u32 s2, {opt['dbgst'] - 1}\ns_cbranch_scc1 {sk2}")
        for k in range(12): g(f"s_sub_u32 s{sT1}, s{STAMP_SLOTS[min(k, g.nst-1)]}, s{STAMP_SLOTS[0]}\nv_mov_b32 v{16+k}, s{sT1}")
        g(f"v_mov_b32 v16, s{STAMP_SLOTS[0]}")
        for k in range(3): g(f"buffer_store_dwordx4 v[{16+4*k}:{19+4*k}], v30, {sr(rDBG)}, 0 offen offset:{16+16*k}")
        g(f"{sk2}:\ns_mov_b64 exec, -1\n{sk}:")
    if opt.get('spinend'):
        base, idx, mult = opt['spinend']
        sk = w0(g); sk2 = g.lab("L_sp")
        g(f"s_cmp_lg_u32 s2, {opt.get('spinwg', 0)}\ns_cbranch_scc1 {sk}\ns_waitcnt vmcnt(0) lgkmcnt(0)")
        g(f"s_sub_u32 s{sT1}, s{STAMP_SLOTS[idx]}, s{STAMP_SLOTS[0]}\ns_mul_i32 s{sT1}, s{sT1}, {mult}\ns_add_u32 s{sT1}, s{sT1}, {base*100}")
        g(f"{sk2}:\ns_memrealtime s[{sPC}:{sPC+1}]\ns_waitcnt lgkmcnt(0)\ns_sub_u32 s{sT2}, s{sPC}, s{STAMP_SLOTS[0]}\ns_cmp_lt_u32 s{sT2}, s{sT1}\ns_cbranch_scc1 {sk2}")
        g(f"{sk}:")
    if opt.get('spinrel'):
        a_, b_, mult, shift = opt['spinrel']
        sk = w0(g); sk2 = g.lab("L_sq")
        g(f"s_cmp_lg_u32 s2, {opt.get('spinwg', 0)}\ns_cbranch_scc1 {sk}\ns_waitcnt vmcnt(0) lgkmcnt(0)")
        g(f"s_sub_u32 s{sT1}, s{STAMP_SLOTS[b_]}, s{STAMP_SLOTS[a_]}\ns_mul_i32 s{sT1}, s{sT1}, {mult}\ns_lshr_b32 s{sT1}, s{sT1}, {shift}")
        g(f"s_memrealtime s[{sSC}:{sSC+1}]\ns_waitcnt lgkmcnt(0)")
        g(f"{sk2}:\ns_memrealtime s[{sPC}:{sPC+1}]\ns_waitcnt lgkmcnt(0)\ns_sub_u32 s{sT2}, s{sPC}, s{sSC}\ns_cmp_lt_u32 s{sT2}, s{sT1}\ns_cbranch_scc1 {sk2}")
        g(f"{sk}:")
    if opt.get('spinconst'):
        sk = w0(g); sk2 = g.lab("L_sc")
        g(f"s_waitcnt vmcnt(0) lgkmcnt(0)\ns_memrealtime s[{sSC}:{sSC+1}]\ns_waitcnt lgkmcnt(0)")
        g(f"{sk2}:\ns_memrealtime s[{sPC}:{sPC+1}]\ns_waitcnt lgkmcnt(0)\ns_sub_u32 s{sT2}, s{sPC}, s{sSC}\ns_cmp_lt_u32 s{sT2}, {opt['spinconst']}\ns_cbranch_scc1 {sk2}")
        g(f"{sk}:")
    g("L_abort:\ns_endpgm")
    g.L += g.cold
    fallback(g, 0)
    fallback(g, 1)
    g("L_end:\ns_endpgm\nL_codeend:")
    hdr = open('gated_mix__mha_block__grouped_kv_mqa__prompt.s.ref').read().split("; Override launch")[0]
    out = hdr + "; One fused launch: projections, MQA and MHA attention, gated output projection.\n"
    out += "; @launch grid=(256,1,1) block=(512,1,1) lds=163840\n"
    out += f""".amdgcn_target "amdgcn-amd-amdhsa--gfx950"
.text
.globl {NAME}
.p2align 8
.type {NAME},@function
{NAME}:
{g.text()}.section .rodata,"a"
.p2align 6
.amdhsa_kernel {NAME}
  .amdhsa_next_free_vgpr 256
  .amdhsa_next_free_sgpr 102
  .amdhsa_accum_offset 256
  .amdhsa_group_segment_fixed_size 0
  .amdhsa_kernarg_size 96
  .amdhsa_user_sgpr_count 2
  .amdhsa_user_sgpr_kernarg_segment_ptr 1
  .amdhsa_system_sgpr_workgroup_id_x 1
.end_amdhsa_kernel
"""
    return out

if __name__ == "__main__":
    path = sys.argv[1] if len(sys.argv) > 1 else 'gated_mix__mha_block__grouped_kv_mqa__prompt.s'
    opt = {}
    for a in sys.argv[2:]:
        k, _, v = a.partition('=')
        opt[k] = eval(v) if v else True
    open(path, 'w').write(build(**opt))
```

```python
import sys, struct, copy
NAME = "gated_mix__mha_block__grouped_kv_mqa__prompt_kernel"

def f2h(x): return "0x%08x" % struct.unpack('<I', struct.pack('<f', x))[0]

WS_KVA  = 0x000000
WS_KVB  = 0x400000
WS_GATE = 0x420000
WS_F1   = 0x424000
WS_F2   = WS_F1 + 2048
WS_F3   = WS_F1 + 4096
WS_F4   = WS_F1 + 6144
WS_O    = 0x500000
WS_DBG  = 0x900000
WS_SIZE = 0x1000000

SLOT = 16384
LDS_WST = 65536
LDS_EW  = 8 * SLOT
LDS_ER  = 9 * SLOT
LDS_EG  = 9 * SLOT + 8192
LDS_EX  = 3 * SLOT
LDS_WOB = 2 * SLOT
LDS_WOA = 6 * SLOT

sW, sHP, sTB, sROT, sB = 3, 4, 5, 6, 7
rX, rWS_, rWKV, rGATE, rWS, rDBG, rOUT, rWOA, rWOB = 8, 12, 16, 20, 24, 28, 32, 36, 40
sMASK = 44
sI, sNONCE, sSPIN, sT0, sT1, sT2 = 46, 47, 48, 49, 50, 51
pX, pWQKV, pWOA, pBX, pWQ, pWK, pWV, pWOB, pGATE, pOUT, pDBG, pWS = 52, 54, 56, 58, 60, 62, 64, 66, 68, 70, 72, 74
sXO, sWO, sWSTEP, sW16, sMX, sMW, sKX, sKW = 76, 77, 78, 79, 80, 81, 82, 83
sOF = 76
sPC = 84
sFBBASE, sKV, sFBT, sDMA, sOST, sT3 = 86, 87, 88, 89, 90, 91
sKV1, sSC = 98, 100
sPOLL, sDS = 92, 93
sST = 94
vIDX, vAK, vAV, vG, vL16, vVOFF = 2, 3, 4, 5, 6, 7
vT = 8
S0, S1, C, QA, QB = 16, 32, 64, 80, 84
OACC = (112, 48)
STMP, KTMP = (128, 144, 160, 176), 192
STB, KTB = (32, 16, 128, 64), 232
FB_S, FB_C, FB_K, FB_V0, FB_V1 = 176, 160, 144, 148, 152
KF, V0, V1 = (88, 92), (96, 100), (104, 108)
OF = 112
ACC = 144
PF = 176
WF = 16
vAX = 240
vAW1, vAWQ, vDX0, vDX1, vDW, vKVST = 244, 245, 246, 247, 248, 249
vDWO, vRR, vOUTA = 224, 225, 226
vAT = 228
vFL, vNON, vDUMMY = 250, 251, 251
vPOLL = 252
QSCALE = 0.25 * 1.4426950408889634
MOFF = 102.0
SPIN = 1 << 20

STAMP_SLOTS = [94, 96, 52, 54, 58, 60, 62, 64, 68, 72, 74, 56]
class G:
    def __init__(s, **opt):
        s.L = []; s.lg = []; s.vm = []; s.opt = opt; s.nlab = 0; s.nst = 0; s.cold = []
    def __call__(s, txt):
        for line in txt.split("\n"):
            line = line.strip()
            if not line: continue
            s.L.append(line if (line.endswith(":") or line.startswith(".")) else "    " + line)
    def rare(s, test, branch, *fs):
        if not s.opt.get('ool', 1):
            sk = s.lab("L_sk")
            s(test); s(f"{'s_cbranch_scc0' if branch.endswith('1') else 's_cbranch_scc1'} {sk}")
            for f in fs: f()
            s(f"{sk}:"); return
        lo, lr = s.lab("L_rare"), s.lab("L_back")
        s(test); s(f"{branch} {lo}\n{lr}:")
        main, s.L = s.L, s.cold
        s(f"{lo}:")
        for f in fs: f()
        s(f"s_branch {lr}")
        s.L = main
    def wave0(s, *fs): s.rare(f"s_cmp_eq_u32 s{sW}, 0", "s_cbranch_scc1", *fs)
    def first(s, *fs): s.rare(f"s_or_b32 s{sT1}, s2, s{sW}", "s_cbranch_scc0", *fs)
    def lab(s, p="L"):
        s.nlab += 1; return f"{p}_{s.nlab}"
    def ds(s, txt, tag=None):
        s(txt); s.lg.append(tag); assert len(s.lg) <= 15, "lgkm overflow"
    def wlg(s, tag=None):
        if tag is None:
            s("s_waitcnt lgkmcnt(0)"); s.lg = []; return
        if tag not in s.lg: return
        i = len(s.lg) - 1 - s.lg[::-1].index(tag)
        n = len(s.lg) - 1 - i
        s(f"s_waitcnt lgkmcnt({n})"); s.lg = s.lg[i + 1:]
    def vmop(s, txt, tag=None):
        s(txt); s.vm.append(tag); assert len(s.vm) <= 63
    def wvm(s, tag=None):
        if tag is None:
            s("s_waitcnt vmcnt(0)"); s.vm = []; return
        if tag not in s.vm: return
        i = len(s.vm) - 1 - s.vm[::-1].index(tag)
        n = len(s.vm) - 1 - i
        s(f"s_waitcnt vmcnt({n})"); s.vm = s.vm[i + 1:]
    def srd(s, d, base, nbytes):
        s(f"s_mov_b32 s{d}, s{base}\ns_and_b32 s{d+1}, s{base+1}, 0xffff\ns_mov_b32 s{d+2}, {nbytes}\ns_mov_b32 s{d+3}, 0x00020000")
    def srd_const(s, d, nbytes): s(f"s_mov_b32 s{d+2}, {nbytes}\ns_mov_b32 s{d+3}, 0x00020000")
    def srd_base(s, d, base): s(f"s_mov_b64 s[{d}:{d+1}], s[{base}:{base+1}]")
    def stamp(s, name):
        if not s.opt.get('stamps'): return
        if name not in s.opt.get('at', ('setup', 'p1', 'bstart', 'B', 'A', 'poll', 'mm', 'end')): return
        ins = "s_memtime" if s.opt.get('stamps') == 2 else "s_memrealtime"
        slot = STAMP_SLOTS[s.nst]
        assert slot >= 94 or name not in ('entry', 'karg', 'eissue')
        s(f"{ins} s[{slot}:{slot+1}]")
        s.nst += 1
    def jitter(s, salt):
        j = s.opt.get('jitter')
        if not j: return
        lp, sk = s.lab("L_j"), s.lab("L_jk")
        if salt % 2: s(f"s_lshl_b32 s{sT2}, s2, 3\ns_add_u32 s{sT2}, s{sT2}, s{sW}")
        else: s(f"s_mov_b32 s{sT2}, s2")
        s(f"s_add_u32 s{sT2}, s{sT2}, {salt * 7919 + j * 104729}\ns_mul_i32 s{sT1}, s{sT2}, 0x9e3779b1\ns_lshr_b32 s{sT1}, s{sT1}, 27")
        s(f"{lp}:\ns_sub_u32 s{sT1}, s{sT1}, 1\ns_cbranch_scc1 {sk}\ns_sleep 8\ns_branch {lp}\n{sk}:")
    def text(s): return "\n".join(s.L) + "\n"

def r(a, n): return f"v[{a}:{a+n-1}]"
def sr(a, n=4): return f"s[{a}:{a+n-1}]"

def spin_check(g):
    g(f"s_sub_u32 s{sSPIN}, s{sSPIN}, 1\ns_cbranch_scc1 L_abort")

def setup(g):
    g(f"""
    s_cmp_ge_u32 s2, 256
    s_cbranch_scc1 L_end
    """)
    g.stamp('entry')
    mode = g.opt.get('pfm', 'v')
    pf = ''
    if mode == 's': pf = f"""
    s_lshl_b32 s{sT1}, s{sW}, 7
    s_and_b32 s{sT0}, s2, 0xf8
    s_lshl_b32 s{sT0}, s{sT0}, 7
    s_add_u32 s{sT0}, s{sT0}, 3072
    s_add_u32 s{sT0}, s{sT0}, s{sT1}
    s_min_u32 s{sT0}, s{sT0}, L_codeend-L_pc-4
    s_load_dword s{sFBT}, s[{sPC}:{sPC+1}], s{sT0}
    s_add_u32 s{sPC}, s{sPC}, s{sT1}
    s_addc_u32 s{sPC+1}, s{sPC+1}, 0
    s_load_dword s{sFBT}, s[{sPC}:{sPC+1}], 0
    s_load_dword s{sFBT}, s[{sPC}:{sPC+1}], 1024
    s_load_dword s{sFBT}, s[{sPC}:{sPC+1}], 2048
    """
    if mode == 'v':
        pf = f"""
    s_and_b32 s{sT0}, s2, 0xf8
    s_add_u32 s{sT0}, s{sT0}, 24
    v_lshlrev_b32 v{vT+2}, 3, v1
    v_mov_b32 v{vT+3}, s{sT0}
    v_cmp_eq_u32 vcc, 3, v1
    s_mov_b64 exec, 15
    s_nop 0
    v_cndmask_b32 v{vT+2}, v{vT+2}, v{vT+3}, vcc
    v_add_lshl_u32 v{vT+2}, v{vT+2}, v{vT+1}, 7
    v_min_u32 v{vT+2}, L_codeend-L_pc-4, v{vT+2}
    global_load_dword v{vDUMMY}, v{vT+2}, s[{sPC}:{sPC+1}]
    s_mov_b64 exec, -1
    """
        g.vm.append('pf')
    if mode == 'w':
        pf = f"""
    s_bitcmp1_b32 s2, 5
    s_mov_b32 s{sT0}, L_p1a-L_pc-2048
    s_cselect_b32 s{sT0}, L_p1b-L_pc-2048, s{sT0}
    v_lshlrev_b32 v{vT+2}, 10, v1
    v_add_u32 v{vT+2}, s{sT0}, v{vT+2}
    s_lshr_b32 s{sT0}, s2, 3
    s_lshl_b32 s{sT0}, s{sT0}, 10
    s_add_u32 s{sT0}, s{sT0}, L_p1done-L_pc
    v_writelane_b32 v{vT+2}, 0, 0
    s_movk_i32 s{sT1}, 1024
    v_writelane_b32 v{vT+2}, s{sT1}, 1
    s_mov_b32 s{sT1}, L_rare0-L_pc
    v_writelane_b32 v{vT+2}, s{sT1}, 6
    v_writelane_b32 v{vT+2}, s{sT0}, 7
    s_mov_b64 exec, 255
    v_lshl_add_u32 v{vT+2}, v{vT+1}, 7, v{vT+2}
    v_min_u32 v{vT+2}, L_codeend-L_pc-4, v{vT+2}
    global_load_dword v{vDUMMY}, v{vT+2}, s[{sPC}:{sPC+1}]
    s_mov_b64 exec, -1
    """
        g.vm.append('pf')
    g(f"""
    s_load_dwordx16 s[52:67], s[0:1], 0
    s_load_dwordx8 s[68:75], s[0:1], 64
    v_lshrrev_b32 v{vT+1}, 6, v0
    v_and_b32 v1, 63, v0
    s_getpc_b64 s[{sPC}:{sPC+1}]
    L_pc:
    v_readfirstlane_b32 s{sW}, v{vT+1}
    {pf}
    s_bfe_u32 s{sTB}, s2, 0x20001
    s_bfe_u32 s{sT0}, s2, 0x20003
    s_lshl2_add_u32 s{sTB}, s{sTB}, s{sT0}
    s_and_b32 s{sHP}, s2, 1
    s_lshr_b32 s{sT0}, s2, 5
    s_lshl3_add_u32 s{sHP}, s{sHP}, s{sT0}
    s_lshl1_add_u32 s{sROT}, s{sTB}, s{sHP}
    s_and_b32 s{sROT}, s{sROT}, {g.opt.get('rotmask', 6)}
    s_lshr_b32 s{sB}, s{sW}, 2
    s_and_b32 s{sI}, s{sW}, 3
    v_lshlrev_b32 v{vL16}, 4, v1
    """)
    g(f"v_and_b32 v{vT+1}, 0x30, v1")
    g(f"""
    v_lshrrev_b32 v{vT+4}, 3, v1
    v_and_b32 v{vT+5}, 7, v1
    v_lshrrev_b32 v{vT+6}, 4, v1
    v_xor_b32 v{vT+5}, v{vT+5}, v{vT+6}
    v_lshlrev_b32 v{vT+4}, 10, v{vT+4}
    v_lshl_add_u32 v{vDX0}, v{vT+5}, 4, v{vT+4}
    v_xor_b32 v{vDX1}, 64, v{vDX0}
    v_add_u32 v{vDX1}, 0x2000, v{vDX1}
    """)
    g(f"s_lshl_b32 s{sMX}, s{sW}, 11\ns_lshl_b32 s{sDMA}, s{sTB}, 17")
    g(f"""
    s_lshr_b32 s{sT2}, s{sHP}, 1
    s_lshl_b32 s{sT2}, s{sT2}, 14
    s_add_u32 s{sDMA}, s{sDMA}, s{sT2}
    s_lshl_b32 s{sOST}, s{sW}, 7
    s_add_u32 s{sDMA}, s{sDMA}, s{sOST}
    """)
    for k in range(0, 8, 2): g(f"v_mov_b64 v[{40+k}:{41+k}], 0")
    for d, n in ((rX, 2097152), (rWKV, 16384), (rGATE, 1024), (rWS, WS_SIZE)): g.srd_const(d, n)
    g(f"s_add_u32 m0, s{sMX}, {LDS_EW}")
    g("s_waitcnt lgkmcnt(0)")
    g.stamp('karg')
    g.jitter(1)
    def early_loads():
        g(f"s_bitcmp1_b32 s{sHP}, 0\ns_cselect_b64 s[{rWKV}:{rWKV+1}], s[{pWV}:{pWV+1}], s[{pWK}:{pWK+1}]")
        g.srd_base(rGATE, pGATE); g.srd_base(rX, pX)
        g.vmop(f"buffer_load_dwordx4 v{vL16}, {sr(rWKV)}, s{sMX} offen lds", 'e')
        g.vmop(f"buffer_load_dwordx4 v{vL16}, {sr(rWKV)}, s{sMX} offen offset:1024 lds", 'e')
        g(f"s_mov_b32 exec_lo, 0x00010001\ns_mov_b32 exec_hi, 0x00010001")
        g.vmop(f"buffer_load_dwordx4 v[40:43], v{vT+1}, {sr(rGATE)}, s{sOST} offen", 'e')
        g.vmop(f"buffer_load_dwordx4 v[44:47], v{vT+1}, {sr(rGATE)}, s{sOST} offen offset:64", 'e')
        g("s_mov_b64 exec, -1")
        g(f"s_add_u32 m0, s{sMX}, {LDS_EX}\ns_nop 0")
        g.vmop(f"buffer_load_dwordx4 v{vDX0}, {sr(rX)}, s{sDMA} offen lds", 'e')
        g(f"s_add_u32 m0, s{sMX}, {LDS_EX + 1024}\ns_nop 0")
        g.vmop(f"buffer_load_dwordx4 v{vDX1}, {sr(rX)}, s{sDMA} offen lds", 'e')
    g.srd_base(rWS, pWS)
    nonce_scan(g)
    if g.opt.get('elate'): g.srd_base(rX, pX); g.vm.append('scan')
    else: g.vm.append('scan'); early_loads()
    g.stamp('eissue')
    g(f"""
    s_lshr_b32 s{sT0}, s{sW}, 1
    s_cmp_eq_u32 s{sT0}, 3
    s_movk_i32 s{sT2}, 3072
    s_cselect_b32 s{sT1}, 1024, s{sT2}
    s_cselect_b32 s{sT2}, 2, 0
    s_lshl_b32 s{sWSTEP}, s{sT1}, 6
    s_add_u32 s{sMW}, s{sMX}, {LDS_WST}
    s_cmp_lg_u32 s{sB}, 0
    s_cbranch_scc1 L_su_q
    v_bfe_u32 v{vT+4}, v1, 2, 1
    v_bfe_u32 v{vT+5}, v1, 4, 1
    v_xor_b32 v{vT+4}, v{vT+4}, v{vT+5}
    v_and_b32 v{vT+5}, 3, v1
    v_lshl_add_u32 v{vT+5}, v{vT+4}, 2, v{vT+5}
    v_lshrrev_b32 v{vT+4}, 3, v1
    s_movk_i32 s{sW16}, 24576
    s_and_b32 s{sT2}, s{sHP}, 1
    s_add_u32 s{sT2}, s{sT2}, 1
    s_lshl_b32 s{sT2}, s{sT2}, 10
    s_lshr_b32 s{sWO}, s{sHP}, 1
    s_lshl_b32 s{sWO}, s{sWO}, 7
    s_add_u32 s{sWO}, s{sWO}, s{sT2}
    s_mul_i32 s{sT3}, s{sW}, 49152
    s_branch L_su_j
    L_su_q:
    v_lshrrev_b32 v{vT+4}, 2, v1
    v_and_b32 v{vT+5}, 3, v1
    v_xor_b32 v{vT+5}, s{sT2}, v{vT+5}
    s_lshl_b32 s{sW16}, s{sT1}, 4
    s_lshl_b32 s{sWO}, s{sHP}, 6
    s_and_b32 s{sT2}, s{sW}, 1
    s_mul_i32 s{sT3}, s{sT2}, s{sW16}
    s_lshl_b32 s{sT3}, s{sT3}, 1
    L_su_j:
    s_add_u32 s{sWO}, s{sWO}, s{sT3}
    v_mul_u32_u24 v{vT+4}, s{sT1}, v{vT+4}
    v_lshl_add_u32 v{vDW}, v{vT+5}, 4, v{vT+4}
    s_lshl_b32 s{sXO}, s{sTB}, 17
    s_lshl_b32 s{sT2}, s{sW}, 14
    s_add_u32 s{sXO}, s{sXO}, s{sT2}
    s_lshl_b32 s{sKX}, s{sROT}, 7
    s_mul_i32 s{sKW}, s{sROT}, s{sWSTEP}
    """)
    g(f"s_cmp_eq_u32 s{sT0}, 3\ns_cselect_b64 s[{rWS_}:{rWS_+1}], s[{pWQ}:{pWQ+1}], s[{pWQKV}:{pWQKV+1}]")
    g(f"s_mov_b32 s{rWS_+2}, 1572864\ns_cselect_b32 s{rWS_+2}, 524288, s{rWS_+2}\ns_mov_b32 s{rWS_+3}, 0x00020000")
    g.srd_base(rDBG, pDBG); g.srd_const(rDBG, 256)
    g(f"s_mov_b32 s{sMASK}, 0x0000ffff\ns_mov_b32 s{sMASK+1}, 0x0000ffff\ns_mov_b32 s{sSPIN}, {SPIN}\ns_mov_b32 s{sNONCE}, 0\nv_mov_b32 v{vFL}, 0")
    npf = g.opt.get('l2pf', 0)
    if npf:
        l2pf_setup(g)
        for k in range(npf): l2pf(g)
    if g.opt.get('elate'): early_loads()
    if g.opt.get('spf', 0): scalar_prefetch(g)
    g("s_barrier")
    if g.opt.get('pre', 0): p1_addr(g)
    early_addr(g)
    g.stamp('addr')
    runall(p1_dma(g, 0))
    nonce_producer(g)
    g.vm.remove('scan')
    g.stamp('setup')
    g.jitter(2)
    early_compute(g)
    g("s_barrier")
    g.stamp('early')
    if g.opt.get('cearly', 0):
        early_reduce(g)
        p1_addr(g); attn_consts(g); kv_store_addr(g)
        for d, p_, n in ((rOUT, pOUT, 2097152), (rWOA, pWOA, 524288), (rWOB, pWOB, 524288)): g.srd_base(d, p_); g.srd_const(d, n)
        if g.opt.get('cearly', 0) == 1: tail_addr(g)
        runall(p1_dma(g, 1))
    else:
        runall(p1_dma(g, 1))
        early_reduce(g)
        p1_addr(g)


vPFW, vPFX, vPFD = 232, 233, 234
sPFW, sPFX = 86, 88
def l2pf_setup(g):
    lq, lj = g.lab("L_pq"), g.lab("L_pj")
    g(f"""
    v_mul_u32_u24 v{vPFW}, s{sT1}, v1
    v_lshlrev_b32 v{vPFX}, 10, v1
    s_and_b32 s{sT2}, s{sTB}, 3
    s_lshr_b32 s{sPFX}, s{sHP}, 1
    s_lshl_b32 s{sPFX}, s{sPFX}, 7
    s_cmp_lg_u32 s{sB}, 0
    s_cbranch_scc1 {lq}
    s_lshl2_add_u32 s{sT2}, s{sT2}, s{sW}
    s_and_b32 s{sT3}, s{sHP}, 1
    s_add_u32 s{sT3}, s{sT3}, 1
    s_lshl_b32 s{sT3}, s{sT3}, 10
    s_add_u32 s{sPFX}, s{sPFX}, s{sT3}
    s_branch {lj}
    {lq}:
    s_and_b32 s{sT3}, s{sHP}, 1
    s_lshl2_add_u32 s{sT2}, s{sT3}, s{sT2}
    s_and_b32 s{sT3}, s{sW}, 1
    s_lshl1_add_u32 s{sT2}, s{sT2}, s{sT3}
    {lj}:
    s_lshl_b32 s{sT2}, s{sT2}, 2
    s_mul_i32 s{sT2}, s{sT2}, s{sT1}
    s_add_u32 s{sPFW}, s{sPFX}, s{sT2}
    s_and_b32 s{sT2}, s{sHP}, 7
    s_lshl3_add_u32 s{sT2}, s{sT2}, s{sW}
    s_lshl_b32 s{sT2}, s{sT2}, 11
    s_lshl_b32 s{sPFX}, s{sTB}, 17
    s_add_u32 s{sPFX}, s{sPFX}, s{sT2}
    """)
def l2pf(g):
    g("s_mov_b64 exec, 15")
    g.vmop(f"buffer_load_dword v{vPFD}, v{vPFW}, {sr(rWS_)}, s{sPFW} offen", 'pf')
    g("s_mov_b64 exec, 3")
    g.vmop(f"buffer_load_dword v{vPFD}, v{vPFX}, {sr(rX)}, s{sPFX} offen", 'pf')
    g(f"s_mov_b64 exec, -1\ns_add_u32 s{sPFW}, s{sPFW}, s{sWSTEP}\ns_add_u32 s{sPFX}, s{sPFX}, 128")

def p1_dma(g, j):
    p = j & 3
    def f0():
        g(f"s_add_u32 m0, s{sMX}, {p*SLOT}\ns_add_u32 s{sDS}, s{sXO}, s{sKX}")
        g.vmop(f"buffer_load_dwordx4 v{vDX0}, {sr(rX)}, s{sDS} offen lds", f'c{j}')
    def f1():
        g(f"s_add_u32 m0, s{sMX}, {p*SLOT+1024}\ns_add_u32 s{sPOLL+0 if False else sT3}, s{sWO}, s{sKW}")
        g.vmop(f"buffer_load_dwordx4 v{vDX1}, {sr(rX)}, s{sDS} offen lds", f'c{j}')
    def f2():
        g(f"s_add_u32 m0, s{sMW}, {p*SLOT}\ns_add_u32 s{sDS}, s{sT3}, s{sW16}")
        g.vmop(f"buffer_load_dwordx4 v{vDW}, {sr(rWS_)}, s{sT3} offen lds", f'c{j}')
    def f3():
        g(f"s_add_u32 m0, s{sMW}, {p*SLOT+1024}\ns_add_u32 s{sKW}, s{sKW}, s{sWSTEP}")
        g.vmop(f"buffer_load_dwordx4 v{vDW}, {sr(rWS_)}, s{sDS} offen lds", f'c{j}')
        if j < 7:
            g(f"s_add_u32 s{sKX}, s{sKX}, 128\ns_and_b32 s{sKX}, s{sKX}, 1023\ns_cselect_b32 s{sKW}, s{sKW}, 0")
    return [f0, f1, f2, f3]

def scalar_prefetch(g):
    P = sPC
    def base(ptr, off): g(f"s_add_u32 s{P}, s{ptr}, s{off}\ns_addc_u32 s{P+1}, s{ptr+1}, 0")
    g(f"s_and_b32 s{sT1}, s{sHP}, 3\ns_lshl_b32 s{sT1}, s{sT1}, 3\ns_add_u32 s{sT1}, s{sT1}, s{sW}\ns_lshl_b32 s{sT1}, s{sT1}, 12\ns_lshl_b32 s{sT2}, s{sTB}, 17\ns_add_u32 s{sT1}, s{sT1}, s{sT2}\ns_add_u32 s{sT1}, s{sT1}, s{sKX}")
    base(pX, sT1)
    for j in range(4): g(f"s_load_dword s{sFBT}, s[{P}:{P+1}], {j*1024}")
    g(f"s_lshl_b32 s{sT1}, s{sROT}, 1\ns_and_b32 s{sT2}, s{sTB}, 1\ns_add_u32 s{sT1}, s{sT1}, s{sT2}\ns_lshl_b32 s{sT1}, s{sT1}, 3\ns_add_u32 s{sT1}, s{sT1}, s{sW}\ns_mul_i32 s{sT1}, s{sT1}, {4*3072}")
    g(f"s_lshr_b32 s{sT3}, s{sHP}, 1\ns_lshl_b32 s{sT3}, s{sT3}, 7\ns_add_u32 s{sT1}, s{sT1}, s{sT3}\ns_and_b32 s{sT2}, s{sHP}, 1\ns_add_u32 s{sT2}, s{sT2}, 1\ns_lshl_b32 s{sT2}, s{sT2}, 10\ns_add_u32 s{sT1}, s{sT1}, s{sT2}")
    base(pWQKV, sT1)
    for j in range(4): g(f"s_load_dword s{sFBT}, s[{P}:{P+1}], {j*3072}")
    g(f"s_lshl_b32 s{sT1}, s{sROT}, 1\ns_and_b32 s{sT2}, s{sHP}, 1\ns_add_u32 s{sT1}, s{sT1}, s{sT2}\ns_lshl_b32 s{sT1}, s{sT1}, 1\ns_and_b32 s{sT2}, s{sTB}, 1\ns_add_u32 s{sT1}, s{sT1}, s{sT2}\ns_lshl_b32 s{sT1}, s{sT1}, 3\ns_add_u32 s{sT1}, s{sT1}, s{sW}")
    g(f"s_mul_i32 s{sT2}, s{sT1}, {2*3072}\ns_add_u32 s{sT2}, s{sT2}, s{sT3}")
    base(pWQKV, sT2)
    for j in range(2): g(f"s_load_dword s{sFBT}, s[{P}:{P+1}], {j*3072}")
    g(f"s_lshl_b32 s{sT1}, s{sT1}, 11\ns_add_u32 s{sT1}, s{sT1}, s{sT3}")
    base(pWQ, sT1)
    for j in range(2): g(f"s_load_dword s{sFBT}, s[{P}:{P+1}], {j*1024}")

def nonce_scan(g): g.first(lambda: nonce_scan_(g))
def nonce_scan_(g):
    g(f"v_lshrrev_b32 v{vT+4}, 2, v1\nv_and_b32 v{vT+5}, 3, v1\nv_lshlrev_b32 v{vT+4}, 7, v{vT+4}\nv_lshl_add_u32 v{vT+4}, v{vT+5}, 4, v{vT+4}")
    g(f"s_mov_b32 s{sT1}, {WS_F1}")
    g(f"buffer_load_dwordx4 v[176:179], v{vT+4}, {sr(rWS)}, s{sT1} offen sc1")
    g(f"buffer_load_dwordx4 v[180:183], v{vT+4}, {sr(rWS)}, s{sT1} offen offset:2048 sc1")
    g(f"s_mov_b32 s{sT1}, {WS_F3}")
    g(f"buffer_load_dwordx4 v[184:187], v{vT+4}, {sr(rWS)}, s{sT1} offen sc1")

def nonce_producer(g): g.first(lambda: nonce_producer_(g))
def nonce_producer_(g):
    g(f"s_waitcnt vmcnt({len(g.vm) - 1 - g.vm.index('scan')})")
    g(f"v_readfirstlane_b32 s{sT1}, v176")
    lp = g.lab("L_nl")
    g(f"{lp}:\ns_add_u32 s{sT1}, s{sT1}, 1\ns_cbranch_scc1 {lp}")
    g(f"s_mov_b64 s[{sPC}:{sPC+1}], 0")
    for k in range(12):
        g(f"v_cmp_eq_u32 vcc, s{sT1}, v{176+k}\ns_or_b64 s[{sPC}:{sPC+1}], s[{sPC}:{sPC+1}], vcc")
    g(f"s_cbranch_scc1 {lp}")
    g(f"v_mov_b32 v192, s{sT1}\nv_mov_b32 v193, 0\ns_mov_b64 exec, 1")
    g(f"buffer_store_dword v192, v193, {sr(rDBG)}, 0 offen sc1\ns_mov_b64 exec, -1")

def p1_addr(g):
    g(f"""
    v_and_b32 v{vT+2}, 31, v1
    v_lshrrev_b32 v{vT+3}, 5, v1
    v_bfe_u32 v{vT+4}, v1, 1, 3
    v_xor_b32 v{vT+4}, v{vT+4}, v{vT+3}
    v_lshlrev_b32 v{vT+4}, 4, v{vT+4}
    v_lshl_add_u32 v{vT+4}, v{vT+2}, 7, v{vT+4}
    s_lshl_b32 s{sT1}, s{sI}, 12
    v_add_u32 v{vAX}, s{sT1}, v{vT+4}
    v_xor_b32 v{vAX+1}, 32, v{vAX}
    v_xor_b32 v{vAX+2}, 64, v{vAX}
    v_xor_b32 v{vAX+3}, 0x60, v{vAX}
    v_bfe_u32 v{vT+4}, v1, 2, 2
    v_and_b32 v{vT+5}, 3, v1
    v_lshlrev_b32 v{vT+5}, 3, v{vT+5}
    v_lshl_add_u32 v{vT+5}, v{vT+4}, 6, v{vT+5}
    v_lshl_add_u32 v{vT+5}, v{vT+3}, 9, v{vT+5}
    v_bfe_u32 v{vT+6}, v1, 4, 1
    v_bfe_u32 v{vT+7}, v1, 3, 1
    v_xor_b32 v{vT+7}, s{sB}, v{vT+7}
    v_lshlrev_b32 v{vT+7}, 6, v{vT+7}
    v_lshl_add_u32 v{vT+7}, v{vT+4}, 7, v{vT+7}
    v_lshl_add_u32 v{vT+7}, v{vT+3}, 10, v{vT+7}
    v_lshl_add_u32 v{vT+7}, v{vT+6}, 5, v{vT+7}
    v_and_b32 v{vT+2}, 3, v1
    v_lshl_add_u32 v{vT+7}, v{vT+2}, 3, v{vT+7}
    v_add_u32 v{vAW1}, {LDS_WST}, v{vT+7}
    v_xor_b32 v{vT+4}, s{sB}, v{vT+6}
    v_lshl_add_u32 v{vT+5}, v{vT+4}, 5, v{vT+5}
    v_lshl_add_u32 v{vT+5}, v{vT+6}, 12, v{vT+5}
    v_add_u32 v{vAWQ}, {LDS_WST + 8192}, v{vT+5}
    """)

def early_addr(g):
    g(f"""
    v_lshrrev_b32 v{vT+4}, 4, v1
    v_bfe_u32 v{vT+5}, v1, 2, 2
    v_lshl_add_u32 v{vT+4}, v{vT+4}, 3, v{vT+5}
    v_and_b32 v{vT+5}, 3, v1
    v_lshlrev_b32 v{vT+5}, 3, v{vT+5}
    v_lshl_add_u32 v{vT+4}, v{vT+4}, 5, v{vT+5}
    s_add_u32 s{sT1}, s{sMX}, {LDS_EW}
    v_add_u32 v{vT+6}, s{sT1}, v{vT+4}
    s_lshl_b32 s{sT1}, s{sW}, 10
    s_add_u32 s{sT1}, s{sT1}, {LDS_ER}
    v_add_u32 v{vT+7}, s{sT1}, v{vL16}
    s_lshl_b32 s{sT1}, s{sW}, 8
    s_add_u32 s{sT1}, s{sT1}, {LDS_EG}
    v_lshlrev_b32 v{vT+5}, 2, v1
    v_add_u32 v{vT+5}, s{sT1}, v{vT+5}
    """)
    g(f"""
    v_and_b32 v{vT}, 15, v1
    v_lshrrev_b32 v{vT+1}, 4, v1
    v_bfe_u32 v{vT+2}, v1, 1, 3
    v_xor_b32 v{vT+1}, v{vT+1}, v{vT+2}
    v_lshlrev_b32 v{vT+1}, 4, v{vT+1}
    v_lshl_add_u32 v{vT}, v{vT}, 7, v{vT+1}
    s_add_u32 s{sT1}, s{sMX}, {LDS_EX}
    v_add_u32 v{vT}, s{sT1}, v{vT}
    v_xor_b32 v{vT+1}, 64, v{vT}
    """)

def early_compute(g):
    g.wvm('e')
    g.wlg()
    g.ds(f"ds_read_b128 v[16:19], v{vT}", 'ew')
    g.ds(f"ds_read_b128 v[20:23], v{vT+1}", 'ew')
    for s_ in range(2):
        for e in range(2):
            g.ds(f"ds_read_b64_tr_b16 v[{24+4*s_+2*e}:{25+4*s_+2*e}], v{vT+6} offset:{s_*1024+e*128}", 'ew')
    g.wlg('ew')
    lv, le = g.lab("L_ev"), g.lab("L_ee")
    g(f"s_bitcmp1_b32 s{sHP}, 0\ns_cbranch_scc1 {lv}")
    g("v_mfma_f32_16x16x32_bf16 v[32:35], v[24:27], v[16:19], 0")
    g("v_mfma_f32_16x16x32_bf16 v[36:39], v[40:43], v[16:19], 0")
    g("v_mfma_f32_16x16x32_bf16 v[32:35], v[28:31], v[20:23], v[32:35]")
    g("v_mfma_f32_16x16x32_bf16 v[36:39], v[44:47], v[20:23], v[36:39]")
    g(f"s_branch {le}\n{lv}:")
    g("v_mfma_f32_16x16x32_bf16 v[32:35], v[16:19], v[24:27], 0")
    g("v_mov_b32 v36, 0")
    g("v_mfma_f32_16x16x32_bf16 v[32:35], v[20:23], v[28:31], v[32:35]")
    g(f"{le}:\ns_nop 7")
    g.ds(f"ds_write_b128 v{vT+7}, v[32:35]", 'ep')
    g.ds(f"ds_write_b32 v{vT+5}, v36", 'ep')
    g.wlg()

def early_reduce(g): g.wave0(lambda: early_reduce_(g))
def early_reduce_(g):
    g(f"v_add_u32 v{vT+4}, {LDS_ER}, v{vL16}\nv_lshlrev_b32 v{vT+5}, 2, v1\nv_add_u32 v{vT+5}, {LDS_EG}, v{vT+5}")
    for k in range(8): g(f"ds_read_b128 v[{16+4*k}:{19+4*k}], v{vT+4} offset:{k*1024}")
    g("s_waitcnt lgkmcnt(0)")
    for k in range(8): g(f"ds_read_b32 v{64+k}, v{vT+5} offset:{k*256}")
    g(f"""
    s_lshr_b32 s{sT0}, s{sHP}, 1
    s_lshl_b32 s{sT1}, s{sTB}, 2
    s_lshr_b32 s{sT2}, s{sT0}, 1
    s_add_u32 s{sT1}, s{sT1}, s{sT2}
    s_lshr_b32 s{sT2}, s{sT1}, 3
    s_lshl_b32 s{sT2}, s{sT2}, 14
    s_and_b32 s{sT1}, s{sT1}, 7
    s_lshl_b32 s{sT1}, s{sT1}, 10
    s_add_u32 s{sT1}, s{sT1}, s{sT2}
    s_add_u32 s{sT1}, s{sT1}, {WS_KVB}
    s_and_b32 s{sT0}, s{sT0}, 1
    v_and_b32 v{vT}, 15, v1
    v_bfe_u32 v{vT+1}, v1, 4, 1
    v_lshrrev_b32 v{vT+2}, 5, v1
    v_lshlrev_b32 v{vT+2}, 3, v{vT+2}
    """)
    for k in range(1, 8):
        for q in range(4): g(f"v_add_f32 v{16+q}, v{16+q}, v{16+4*k+q}")
    g("v_cvt_pk_bf16_f32 v16, v16, v17\nv_cvt_pk_bf16_f32 v17, v18, v19")
    lv, le = g.lab("L_rv"), g.lab("L_re")
    g(f"s_bitcmp1_b32 s{sHP}, 0\ns_cbranch_scc1 {lv}")
    if True:
        g(f"""
        v_and_b32 v{vT+3}, 3, v{vT}
        v_bfe_u32 v{vT+6}, v{vT}, 2, 1
        v_lshl_add_u32 v{vT+3}, v{vT+6}, 3, v{vT+3}
        v_bfe_u32 v{vT+6}, v{vT}, 3, 1
        v_lshl_add_u32 v{vT+3}, v{vT+6}, 2, v{vT+3}
        v_lshl_add_u32 v{vT+3}, v{vT+1}, 5, v{vT+3}
        v_lshl_add_u32 v{vT+3}, v{vT+3}, 4, v{vT+2}
        s_lshl_b32 s{sT0}, s{sT0}, 8
        s_add_u32 s{sT1}, s{sT1}, s{sT0}
        buffer_store_dwordx2 v[16:17], v{vT+3}, {sr(rWS)}, s{sT1} offen sc1
        s_waitcnt lgkmcnt(0)
        """)
        for k in range(1, 8): g(f"v_add_f32 v64, v64, v{64+k}")
        g(f"""
        v_mul_f32 v64, {f2h(-1.4426950408889634)}, v64
        v_exp_f32 v64, v64
        s_lshr_b32 s{sT0}, s{sHP}, 1
        s_lshl_b32 s{sT0}, s{sT0}, 6
        v_add_f32 v64, 1.0, v64
        v_rcp_f32 v64, v64
        s_lshl_b32 s{sT1}, s{sTB}, 9
        s_add_u32 s{sT1}, s{sT1}, s{sT0}
        s_add_u32 s{sT1}, s{sT1}, {WS_GATE}
        v_lshlrev_b32 v{vT+3}, 2, v1
        s_mov_b64 exec, 0xffff
        buffer_store_dword v64, v{vT+3}, {sr(rWS)}, s{sT1} offen sc1
        s_mov_b64 exec, -1
        s_branch {le}
        {lv}:
        """)
        g(f"""
    v_lshl_add_u32 v{vT+3}, v{vT+1}, 4, v{vT}
    v_lshl_add_u32 v{vT+3}, v{vT+3}, 4, v{vT+2}
    s_lshl_b32 s{sT0}, s{sT0}, 9
    s_add_u32 s{sT1}, s{sT1}, s{sT0}
    s_add_u32 s{sT1}, s{sT1}, 8192
    buffer_store_dwordx2 v[16:17], v{vT+3}, {sr(rWS)}, s{sT1} offen sc1
    s_waitcnt lgkmcnt(0)
        """)
    g(f"{le}:")

def get_nonce(g):
    lp, ok = g.lab("L_gn"), g.lab("L_gk")
    g(f"{lp}:\nv_readfirstlane_b32 s{sNONCE}, v{vNON}\ns_nop 3\ns_cmp_lg_u32 s{sNONCE}, 0\ns_cbranch_scc1 {ok}")
    spin_check(g)
    g(f"v_mov_b32 v{vT+3}, 0\nbuffer_load_dword v{vNON}, v{vT+3}, {sr(rDBG)}, 0 offen sc1\ns_waitcnt vmcnt(0)\ns_branch {lp}\n{ok}:")

def flag_store(g, off_expr_setup):
    g(off_expr_setup)
    g(f"v_mov_b32 v{vT}, s{sNONCE}\nv_mov_b32 v{vT+1}, 0\ns_mov_b64 exec, 1")
    g(f"buffer_store_dword v{vT}, v{vT+1}, {sr(rWS)}, s{sT1} offen sc1\ns_mov_b64 exec, -1")

def poll_issue(g, kind):
    if kind == 1:
        g(f"v_lshrrev_b32 v{vT}, 2, v1\nv_and_b32 v{vT+1}, 3, v1\nv_lshlrev_b32 v{vT}, 7, v{vT}\nv_lshl_add_u32 v{vFL}, v{vT+1}, 4, v{vT}\ns_mov_b32 s{sPOLL}, {WS_F1}")
    elif kind == 2:
        g(f"v_and_b32 v{vT}, 3, v1\nv_bfe_u32 v{vT+1}, v1, 2, 1\nv_lshlrev_b32 v{vT}, 4, v{vT}\nv_lshl_add_u32 v{vFL}, v{vT+1}, 7, v{vT}\ns_and_b32 s{sPOLL}, s{sHP}, 14\ns_lshl_b32 s{sPOLL}, s{sPOLL}, 7\ns_add_u32 s{sPOLL}, s{sPOLL}, {WS_F2}")
    elif kind == 3:
        g(f"v_and_b32 v{vT}, 3, v1\nv_lshlrev_b32 v{vFL}, 4, v{vT}\ns_lshl_b32 s{sPOLL}, s{sTB}, 7\ns_add_u32 s{sPOLL}, s{sPOLL}, {WS_F3}")
    else:
        g(f"v_mov_b32 v{vFL}, 0\ns_lshl_b32 s{sPOLL}, s{sTB}, 2\ns_add_u32 s{sPOLL}, s{sPOLL}, s{sI}\ns_lshl_b32 s{sPOLL}, s{sPOLL}, 7\ns_add_u32 s{sPOLL}, s{sPOLL}, {WS_F4}")
    g(f"buffer_load_dwordx4 {r(vPOLL,4)}, v{vFL}, {sr(rWS)}, s{sPOLL} offen sc1")

def poll_check(g):
    lp, ok = g.lab("L_pl"), g.lab("L_pk")
    g(f"{lp}:")
    for k in range(4): g(f"v_xor_b32 v{vPOLL+k}, s{sNONCE}, v{vPOLL+k}")
    g(f"v_or_b32 v{vPOLL}, v{vPOLL}, v{vPOLL+1}\nv_or3_b32 v{vPOLL}, v{vPOLL}, v{vPOLL+2}, v{vPOLL+3}\nv_cmp_ne_u32 vcc, 0, v{vPOLL}\ns_nop 4\ns_cbranch_vccz {ok}")
    spin_check(g)
    g(f"buffer_load_dwordx4 {r(vPOLL,4)}, v{vFL}, {sr(rWS)}, s{sPOLL} offen sc1\ns_waitcnt vmcnt(0)\ns_branch {lp}\n{ok}:")

def w0(g):
    skip = g.lab("L_w0")
    g(f"s_cmp_lg_u32 s{sW}, 0\ns_cbranch_scc1 {skip}")
    return skip

def kv_dma(g, src_expr, slot, tag):
    def setup(): g(f"s_lshl_b32 s{sT2}, s{sW}, 12\ns_add_u32 m0, s{sT2}, {slot*SLOT}"); g(src_expr)
    def op(e): return lambda: g.vmop(f"buffer_load_dwordx4 v{vL16}, {sr(rWS)}, s{sDS} offen offset:{e*1024} sc1 lds", tag)
    return [setup] + [op(e) for e in range(4)]
def dma_B(g, c, slot, tag):
    return kv_dma(g, f"s_add_u32 s{sDS}, s{sT2}, {WS_KVB + c*SLOT}", slot, tag)
def dma_A(g, c, slot, tag):
    return kv_dma(g, f"s_add_u32 s{sDS}, s{sDMA}, {WS_KVA + c*SLOT}", slot, tag)
def dma_Wo(g, rs, grp, ldsbase, tag):
    def setup(): g(f"s_lshl_b32 s{sDS}, s{sW}, 15\ns_and_b32 s{sT1}, s{sHP}, 7\ns_lshl_b32 s{sT1}, s{sT1}, 7\ns_add_u32 s{sDS}, s{sDS}, s{sT1}")
    def op(e):
        def f():
            g(f"s_lshl_b32 s{sT2}, s{sW}, 12\ns_add_u32 m0, s{sT2}, {ldsbase + grp*32768 + e*1024}\ns_add_u32 s{sT1}, s{sDS}, {grp*262144 + e*8192}")
            g.vmop(f"buffer_load_dwordx4 v{vDWO}, {sr(rs)}, s{sT1} offen lds", tag)
        return f
    return [setup] + [op(e) for e in range(4)]
def runall(fs):
    for f in fs: f()

def phase1(g, b):
    T1, TQ = ACC, ACC + 16
    def XF(s_): return PF + 12 * s_
    def W1(s_): return PF + 12 * s_ + 4
    def WQ(s_): return PF + 12 * s_ + 8
    def reads(p, s_):
        if g.opt.get('noread'): return
        g.ds(f"ds_read_b128 {r(XF(s_),4)}, v{vAX+s_} offset:{p*SLOT}", f'f{s_}')
        for e in range(2): g.ds(f"ds_read_b64_tr_b16 {r(W1(s_)+2*e,2)}, v{vAW1} offset:{p*SLOT+s_*2048+e*512}", f'f{s_}')
        for e in range(2): g.ds(f"ds_read_b64_tr_b16 {r(WQ(s_)+2*e,2)}, v{vAWQ} offset:{p*SLOT+s_*1024+e*256}", f'f{s_}')
    def mf(j, s_, which='both'):
        g.wlg(f'f{s_}')
        if g.opt.get('nomf'): return
        c1 = "0" if (j == 0 and s_ == 0) else r(T1, 16)
        cq = "0" if (j == 0 and s_ == 0) else r(TQ, 16)
        if which != 'q':
            if b == 0: g(f"v_mfma_f32_32x32x16_bf16 {r(T1,16)}, {r(W1(s_),4)}, {r(XF(s_),4)}, {c1}")
            else:      g(f"v_mfma_f32_32x32x16_bf16 {r(T1,16)}, {r(XF(s_),4)}, {r(W1(s_),4)}, {c1}")
        if which != 't': g(f"v_mfma_f32_32x32x16_bf16 {r(TQ,16)}, {r(WQ(s_),4)}, {r(XF(s_),4)}, {cq}")
    f1chk = g.opt.get('f1chk', 6)
    def wait_c(j, extra0):
        if extra0 and f'c{j}' in g.vm:
            n = len(g.vm) - 1 - (len(g.vm) - 1 - g.vm[::-1].index(f'c{j}'))
            sk, dn = g.lab("L_wa"), g.lab("L_wb")
            g(f"s_cmp_eq_u32 s{sW}, 0\ns_cbranch_scc1 {sk}")
            g.wvm(f'c{j}')
            g(f"{sk}:\ns_waitcnt vmcnt({n + extra0})")
        else: g.wvm(f'c{j}')
    jf = g.opt.get('jflag', 2); pd3 = g.opt.get('pdist', 2) == 3
    for j in range(8):
        p = j & 3
        wait_c(j, {0: 1, 1: 1 if g.opt.get('cearly', 0) else 2}.get(j, 0))
        if j == jf:
            g.wave0(lambda: get_nonce(g), lambda: flag_store(g, f"s_lshl_b32 s{sT1}, s{sTB}, 7\ns_lshl_b32 s{sT2}, s{sHP}, 2\ns_add_u32 s{sT1}, s{sT1}, s{sT2}\ns_add_u32 s{sT1}, s{sT1}, {WS_F1}"))
        if j == f1chk:
            g.wave0(lambda: poll_check(g))
        g.wlg()
        g("s_barrier")
        g.stamp(f'b{j}')
        if j in (1, 4, 6): g.jitter(3 + j)
        pd = g.opt.get('pdist', 2)
        dm = []
        if j + pd <= 7 and not (pd == 3 and j == 0): dm = p1_dma(g, j + pd)
        if pd == 3 and j == 0: dm = p1_dma(g, 2) + p1_dma(g, 3)
        if j == f1chk: dm = dma_B(g, 0, 8, 'B01')
        if len(dm) == 5: dm = [lambda a=dm[0], c=dm[1]: (a(), c())] + dm[2:]
        if len(dm) == 8: dm = [lambda a=dm[2*k], c=dm[2*k+1]: (a(), c()) for k in range(4)]
        dp = g.opt.get('dmpos', (1, 2, 3, 4))
        def issue(k):
            for q in range(len(dm)):
                if dp[q] == k: dm[q]()
        if j == f1chk - 1:
            g.wave0(lambda: poll_issue(g, 1))
        if j == 0:
            g.wave0(lambda: g(f"v_mov_b32 v{vT+3}, 0\nbuffer_load_dword v{vNON}, v{vT+3}, {sr(rDBG)}, 0 offen sc1"))
        npf = g.opt.get('l2pf', 0)
        if npf and j + npf <= 7: l2pf(g)
        issue(-1)
        reads(p, 0); reads(p, 1)
        issue(0)
        if j > 0: mf(j - 1, 3)
        issue(1)
        reads(p, 2)
        mf(j, 0)
        issue(2)
        reads(p, 3)
        mf(j, 1)
        issue(3)
        if j == 7:
            issue(4); break
        mf(j, 2)
        issue(4)
        cp = g.opt.get('calcpos', {0: (0, 0, 1, 1), 1: (9, 9, 9, 9), 2: (9, 9, 9, 0)}[g.opt.get('cearly', 0)])
        if j == cp[0]: attn_consts(g)
        if j == cp[1]: kv_store_addr(g)
        if j == cp[2]:
            for d, p_, n in ((rOUT, pOUT, 2097152), (rWOA, pWOA, 524288), (rWOB, pWOB, 524288)): g.srd_base(d, p_); g.srd_const(d, n)
        if j == cp[3]: tail_addr(g)
    g.wlg()
    g.wvm('B01')
    g("s_barrier")
    g.stamp('bstart')
    g.ds(f"ds_read_b128 {r(KF[0],4)}, v{vAK}", 'K0')
    g.ds(f"ds_read_b128 {r(KF[1],4)}, v{vAK} offset:1024", 'kv')
    g(f"s_mov_b64 exec, s[{sMASK}:{sMASK+1}]")
    g.ds(f"ds_read_b128 {r(V0[0],4)}, v{vAV}", 'kv')
    g.ds(f"ds_read_b128 {r(V1[0],4)}, v{vAV} offset:512", 'kv')
    g("s_mov_b64 exec, -1")
    mf(7, 2, 'q'); mf(7, 2, 't')
    for k in range(2, g.opt.get('m0t', 4)): g.ds(f"ds_read_b128 {r(KTB+4*(k-2),4)}, v{vAK} offset:{k*1024}", 'kv')
    mf(7, 3, 'q'); mf(7, 3, 't')

def kv_store_addr(g):
    lv, le = g.lab("L_ka"), g.lab("L_kb")
    g(f"""
    s_and_b32 s{sT1}, s{sHP}, 14
    s_add_u32 s{sT1}, s{sT1}, s{sB}
    s_lshl_b32 s{sT1}, s{sT1}, 18
    s_lshr_b32 s{sT2}, s{sTB}, 1
    s_lshl_b32 s{sT2}, s{sT2}, 14
    s_add_u32 s{sT1}, s{sT1}, s{sT2}
    s_and_b32 s{sT2}, s{sTB}, 1
    s_lshl_b32 s{sT2}, s{sT2}, 2
    s_add_u32 s{sT2}, s{sT2}, s{sI}
    s_lshl_b32 s{sT2}, s{sT2}, 10
    s_add_u32 s{sKV}, s{sT1}, s{sT2}
    s_mov_b32 s{sSC}, {f2h(QSCALE)}
    s_mov_b32 s{sSC+1}, {f2h(QSCALE)}
    s_bitcmp1_b32 s{sHP}, 0
    s_cbranch_scc1 {lv}
    v_and_b32 v{vT}, 0x33, v1
    v_bfe_u32 v{vT+1}, v1, 2, 1
    v_lshl_or_b32 v{vT}, v{vT+1}, 3, v{vT}
    v_bfe_u32 v{vT+1}, v1, 3, 1
    v_lshl_or_b32 v{vT}, v{vT+1}, 2, v{vT}
    v_lshlrev_b32 v{vKVST}, 4, v{vT}
    s_add_u32 s{sKV1}, s{sKV}, 131072
    s_branch {le}
    {lv}:
    v_bfe_u32 v{vT}, v1, 4, 1
    v_lshlrev_b32 v{vT}, 17, v{vT}
    v_lshrrev_b32 v{vT+1}, 5, v1
    v_and_b32 v{vT+2}, 15, v1
    v_lshl_add_u32 v{vT+1}, v{vT+1}, 4, v{vT+2}
    v_lshl_add_u32 v{vKVST}, v{vT+1}, 4, v{vT}
    s_add_u32 s{sKV}, s{sKV}, 8192
    s_add_u32 s{sKV1}, s{sKV}, 512
    {le}:
    """)

def max_tree(Ss):
    regs = [S + k for S in Ss for k in range(16)]
    L = [f"v_max3_f32 v{vT}, v{regs[0]}, v{regs[1]}, v{regs[2]}", f"v_max3_f32 v{vT+1}, v{regs[3]}, v{regs[4]}, v{regs[5]}"]
    rest, k = regs[6:], 0
    while len(rest) >= 2:
        L.append(f"v_max3_f32 v{vT+k}, v{vT+k}, v{rest[0]}, v{rest[1]}"); rest = rest[2:]; k ^= 1
    L += [f"v_max_f32 v{vT}, v{vT}, v{vT+1}", f"v_mov_b32 v{vT+1}, v{vT}"]
    return L
def fill_c(Cr, off):
    L = [f"v_max_f32 v{vT}, v{vT}, v{vT+1}", f"v_sub_f32 v{Cr}, {f2h(-off)}, v{vT}", f"v_sub_f32 v{Cr+1}, {f2h(-off)}, v{vT}"]
    L += [f"v_mov_b64 v[{Cr+k}:{Cr+k+1}], v[{Cr}:{Cr+1}]" for k in range(2, 16, 2)]
    return "\n".join(L)
SWAP = f"v_permlane32_swap_b32 v{vT}, v{vT+1}"

def b_prologue(g):
    T1, TQ = ACC, ACC + 16
    g(f"v_mov_b64 v[{vT+4}:{vT+5}], -1\nv_mov_b64 v[{vT+6}:{vT+7}], -1\ns_nop 8")
    for k in range(8, 16, 2): g(f"v_pk_mul_f32 v[{TQ+k}:{TQ+k+1}], v[{TQ+k}:{TQ+k+1}], s[{sSC}:{sSC+1}]")
    for k in range(4): g(f"v_cvt_pk_bf16_f32 v{QB+k}, v{TQ+8+2*k}, v{TQ+9+2*k}")
    g.wlg('K0'); g("s_nop 0")
    nt = g.opt.get('m0t', 4)
    if nt > 1: g.wlg()
    for k in range(nt): g(f"v_mfma_f32_32x32x16_bf16 {r(STB[k],16)}, {r((KF[0], KF[1], KTB, KTB+4)[k],4)}, {r(QB,4)}, 0")
    for k in range(8): g(f"v_cvt_pk_bf16_f32 v{PF+k}, v{T1+2*k}, v{T1+2*k+1}")
    for k in range(0, 8, 2): g(f"v_pk_mul_f32 v[{TQ+k}:{TQ+k+1}], v[{TQ+k}:{TQ+k+1}], s[{sSC}:{sSC+1}]")
    L = max_tree(STB[:nt])
    for k, x in enumerate(L):
        g(x)
    g("s_nop 1")
    g(SWAP)
    g("s_nop 0")
    g(fill_c(C, g.opt.get('moff', MOFF)))
    g("s_nop 1")
    g(f"v_mfma_f32_32x32x16_bf16 {r(S0,16)}, {r(KF[0],4)}, {r(QB,4)}, {r(C,16)}")
    for k in range(4): g(f"v_cvt_pk_bf16_f32 v{QA+k}, v{TQ+2*k}, v{TQ+2*k+1}")
    g("s_nop 7")

def start_ops(g):
    def kv(k): return lambda: g.vmop(f"buffer_store_dwordx4 {r(PF+4*k,4)}, v{vKVST}, {sr(rWS)}, s{(sKV, sKV1)[k]} offen sc1", 'kvst')
    def sent():
        g(f"s_add_u32 s{sT1}, s{sOST}, {WS_O + 0x200000}")
        g.vmop(f"buffer_store_dwordx4 {r(vT+4,4)}, v{vL16}, {sr(rWS)}, s{sT1} offen sc1", 'sent')
    def gate():
        g(f"v_and_b32 v{vT}, 31, v1\nv_lshlrev_b32 v{vT}, 2, v{vT}\ns_lshl_b32 s{sT1}, s{sTB}, 2\ns_add_u32 s{sT1}, s{sT1}, s{sI}\ns_lshl_b32 s{sT1}, s{sT1}, 7\ns_add_u32 s{sT1}, s{sT1}, {WS_GATE}")
        g.vmop(f"buffer_load_dword v{vG}, v{vT}, {sr(rWS)}, s{sT1} offen sc1", 'gate')
    return kv(0), kv(1), sent, gate

def attn_consts(g):
    g(f"""
    v_mov_b32 v{vIDX}, 0xdddddddd
    v_lshrrev_b32 v{vT}, 5, v1
    v_and_b32 v{vT+1}, 15, v1
    v_lshl_add_u32 v{vT}, v{vT}, 4, v{vT+1}
    v_lshlrev_b32 v{vVOFF}, 4, v{vT}
    v_and_b32 v{vT}, 31, v1
    v_cmp_eq_u32 vcc, 16, v{vT}
    v_mov_b32 v{vT+1}, 0x3f803f80
    v_add_u32 v{vAK}, {8*SLOT}, v{vL16}
    v_cndmask_b32 v{vT+1}, 0, v{vT+1}, vcc
    v_add_u32 v{vAV}, {8*SLOT + 8192}, v{vVOFF}
    """)
    for k in range(16): g(f"v_mov_b32 v{V0[0]+k}, v{vT+1}")
    for Or in OACC:
        for k in range(0, 16, 2): g(f"v_mov_b64 v[{Or+k}:{Or+k+1}], 0")
    g(f"""
    s_lshl_b32 s{sT1}, s{sHP}, 1
    s_add_u32 s{sT1}, s{sT1}, s{sB}
    s_lshl_b32 s{sDMA}, s{sT1}, 17
    s_lshl_b32 s{sT2}, s{sI}, 12
    s_add_u32 s{sDMA}, s{sDMA}, s{sT2}
    s_lshl_b32 s{sT2}, s{sTB}, 2
    s_add_u32 s{sT2}, s{sT2}, s{sI}
    s_lshl_b32 s{sT2}, s{sT2}, 5
    s_add_u32 s{sT2}, s{sT2}, s{sT1}
    s_lshl_b32 s{sOST}, s{sT2}, 10
    """)

def tile(g, U, ev, pos):
    t = U & 7
    p = U & 1
    cur, nxt = (S0, S1) if p == 0 else (S1, S0)
    p1, pq, p0 = pos
    Qn = QB if U + 1 < 64 else QA
    def run(key):
        for f in ev.get((U, key), []): f()
    for i in range(16):
        if i == p1:
            if U > 0: g(f"v_smfmac_f32_32x32x32_bf16 {r(OACC[(U-1) >> 6],16)}, {r(V1[1-p],4)}, {r(nxt+8,8)}, v{vIDX}")
            run('m1')
            for o_ in g.opt.get('gord', 'mw01rk'):
                if o_ == 'w': g.wlg()
                if o_ == 'm' and U < 127: g(f"s_mov_b64 exec, s[{sMASK}:{sMASK+1}]")
                if o_ == '0' and U < 127: g.ds(f"ds_read_b128 {r(V0[1-p],4)}, v{vAV} offset:{((t + 1) & 7) * 1024}", 'kv')
                if o_ == '1' and U < 127: g.ds(f"ds_read_b128 {r(V1[1-p],4)}, v{vAV} offset:{((t + 1) & 7) * 1024 + 512}", 'kv')
                if o_ == 'r' and U < 127: g("s_mov_b64 exec, -1")
                if o_ == 'k' and U < 126: g.ds(f"ds_read_b128 {r(KF[p],4)}, v{vAK} offset:{((t + 2) & 7) * 1024}", 'kv')
            run('gap')
        if i == pq:
            if U < 127: g(f"v_mfma_f32_32x32x16_bf16 {r(nxt,16)}, {r(KF[1-p],4)}, {r(Qn,4)}, {r(C,16)}")
            run('mq')
        if i == p0:
            g(f"v_smfmac_f32_32x32x32_bf16 {r(OACC[U >> 6],16)}, {r(V0[p],4)}, {r(cur,8)}, v{vIDX}")
            run('m0')
        run(i)
        g(f"v_exp_f32 v{cur+i}, v{cur+i}")
    if U == 127:
        g("s_nop 1")
        g(f"v_smfmac_f32_32x32x32_bf16 {r(OACC[1],16)}, {r(V1[p],4)}, {r(cur+8,8)}, v{vIDX}")

def epilogue_parts(g, task):
    O = OACC[task]
    lo, hi = struct.unpack('<I', struct.pack('<f', 2.0**g.opt.get('lo', -110)))[0], struct.unpack('<I', struct.pack('<f', 2.0**120))[0]
    def p1():
        g(f"v_mov_b32 v{vT}, v{O+8}\nv_add_f32 v{vT+2}, |v{O}|, |v{O+1}|")
        for k in range(2, 8): g(f"v_add_f32 v{vT+2}, v{vT+2}, |v{O+k}|")
        g(f"v_permlane32_swap_b32 v{vT}, v{O+8}")
        g(f"v_subrev_u32 v{vT+2}, {lo}, v{vT+2}\ns_mov_b32 s{sT1}, {hi - lo}")
    def p2():
        g(f"v_subrev_u32 v{vT+3}, {lo}, v{vT}\nv_max_u32 v{vT+2}, v{vT+2}, v{vT+3}\nv_cmp_le_u32 vcc, s{sT1}, v{vT+2}")
        if g.opt.get('force_fb'): g("s_mov_b64 vcc, -1")
        g(f"s_nop 0\ns_cbranch_vccnz L_fallback{task}\nL_fbret{task}:\nv_rcp_f32 v{vT}, v{vT}")
        if task == 0: g(f"v_sub_f32 v{vT+3}, 1.0, v{vG}")
    def p3():
        g(f"v_mul_f32 v{vT}, v{vT}, v{vT+3 if task == 0 else vG}")
        for k in range(0, 8, 2): g(f"v_pk_mul_f32 v[{O+k}:{O+k+1}], v[{O+k}:{O+k+1}], v[{vT}:{vT+1}] op_sel_hi:[1,0]")
        for k in range(4): g(f"v_cvt_pk_bf16_f32 v{vT+4+k}, v{O+2*k}, v{O+2*k+1}")
        if task == 1:
            for k in range(4): g(f"v_min_u32 v{vT+4+k}, -2, v{vT+4+k}")
        g(f"s_add_u32 s{sT1}, s{sOST}, {WS_O + (0 if task == 0 else 0x200000)}")
        g.vmop(f"buffer_store_dwordx4 {r(vT+4,4)}, v{vL16}, {sr(rWS)}, s{sT1} offen sc1", 'ost')
    return p1, p2, p3

def fallback(g, task):
    Q, O = (QB, QA)[task], OACC[task]
    S_, C_, K_, A0, A1 = FB_S, FB_C, FB_K, FB_V0, FB_V1
    g(f"L_fallback{task}:")
    if g.opt.get('fbcount'):
        g(f"v_mov_b32 v{vT}, 1\nv_mov_b32 v{vT+1}, 0\ns_mov_b64 exec, 1\nbuffer_atomic_add v{vT}, v{vT+1}, {sr(rDBG)}, 0 offen offset:128\ns_mov_b64 exec, -1")
    if task == 0: g(f"s_mov_b32 s{sFBBASE}, {WS_KVB}")
    else: g(f"s_lshl_b32 s{sT1}, s{sI}, 12\ns_sub_u32 s{sFBBASE}, s{sDMA}, s{sT1}")
    g(f"v_and_b32 v{vT}, 31, v1\nv_cmp_eq_u32 vcc, 16, v{vT}\nv_mov_b32 v{vT+1}, 0x3f803f80\ns_nop 1\nv_cndmask_b32 v{vT+1}, 0, v{vT+1}, vcc")
    for k in range(8): g(f"v_mov_b32 v{A0+k}, v{vT+1}")
    g(f"v_mov_b32 v{vT}, 0xff800000\ns_mov_b32 s{sFBT}, 0")
    def addr():
        g(f"s_lshr_b32 s{sT1}, s{sFBT}, 3\ns_lshl_b32 s{sT1}, s{sT1}, 14\ns_and_b32 s{sT2}, s{sFBT}, 7\ns_lshl_b32 s{sT2}, s{sT2}, 10\ns_add_u32 s{sT1}, s{sT1}, s{sT2}\ns_add_u32 s{sT1}, s{sT1}, s{sFBBASE}")
    g(f"L_fb1_{task}:"); addr()
    g(f"buffer_load_dwordx4 {r(K_,4)}, v{vL16}, {sr(rWS)}, s{sT1} offen sc1\ns_waitcnt vmcnt(0)")
    g(f"v_mfma_f32_32x32x16_bf16 {r(S_,16)}, {r(K_,4)}, {r(Q,4)}, 0\ns_nop 15")
    for k in range(0, 16, 2): g(f"v_max3_f32 v{vT}, v{vT}, v{S_+k}, v{S_+k+1}")
    g(f"s_add_u32 s{sFBT}, s{sFBT}, 1\ns_cmp_lt_u32 s{sFBT}, 64\ns_cbranch_scc1 L_fb1_{task}")
    g(f"v_mov_b32 v{vT+1}, v{vT}\ns_nop 1\n{SWAP}\ns_nop 1")
    g(fill_c(C_, 0.0))
    for k in range(0, 16, 2): g(f"v_mov_b64 v[{O+k}:{O+k+1}], 0")
    g(f"s_mov_b32 s{sFBT}, 0")
    g(f"L_fb2_{task}:"); addr()
    g(f"buffer_load_dwordx4 {r(K_,4)}, v{vL16}, {sr(rWS)}, s{sT1} offen sc1\ns_add_u32 s{sT1}, s{sT1}, 8192")
    g(f"s_mov_b64 exec, s[{sMASK}:{sMASK+1}]")
    g(f"buffer_load_dwordx4 {r(A0,4)}, v{vVOFF}, {sr(rWS)}, s{sT1} offen sc1\nbuffer_load_dwordx4 {r(A1,4)}, v{vVOFF}, {sr(rWS)}, s{sT1} offen offset:512 sc1")
    g("s_mov_b64 exec, -1\ns_waitcnt vmcnt(0)")
    g(f"v_mfma_f32_32x32x16_bf16 {r(S_,16)}, {r(K_,4)}, {r(Q,4)}, {r(C_,16)}\ns_nop 15")
    for k in range(16): g(f"v_exp_f32 v{S_+k}, v{S_+k}")
    g("s_nop 2")
    g(f"v_smfmac_f32_32x32x32_bf16 {r(O,16)}, {r(A0,4)}, {r(S_,8)}, v{vIDX}")
    g(f"v_smfmac_f32_32x32x32_bf16 {r(O,16)}, {r(A1,4)}, {r(S_+8,8)}, v{vIDX}")
    g(f"s_nop 15\ns_add_u32 s{sFBT}, s{sFBT}, 1\ns_cmp_lt_u32 s{sFBT}, 64\ns_cbranch_scc1 L_fb2_{task}")
    g(f"v_mov_b32 v{vT}, v{O+8}\nv_mov_b32 v{vT+1}, v{O+8}\ns_nop 1\n{SWAP}\ns_nop 1\ns_branch L_fbret{task}")

def tail_addr(g):
    g(f"""
    v_lshrrev_b32 v{vT}, 3, v1
    v_bfe_u32 v{vT+1}, v1, 2, 1
    v_bfe_u32 v{vT+2}, v1, 4, 1
    v_xor_b32 v{vT+1}, v{vT+1}, v{vT+2}
    v_lshlrev_b32 v{vT+1}, 6, v{vT+1}
    v_lshl_add_u32 v{vT+1}, v{vT}, 10, v{vT+1}
    v_and_b32 v{vT+3}, 3, v1
    v_lshl_add_u32 v{vDWO}, v{vT+3}, 4, v{vT+1}
    v_lshrrev_b32 v{vT}, 5, v1
    v_bfe_u32 v{vT+1}, v1, 2, 2
    v_lshl_add_u32 v{vT}, v{vT}, 2, v{vT+1}
    v_lshlrev_b32 v{vT}, 7, v{vT}
    v_bfe_u32 v{vT+1}, v1, 3, 1
    v_lshl_add_u32 v{vT}, v{vT+1}, 6, v{vT}
    v_lshl_add_u32 v{vT}, v{vT+2}, 5, v{vT}
    v_lshl_add_u32 v{vT}, v{vT+3}, 3, v{vT}
    s_lshl_b32 s{sT1}, s{sI}, 13
    s_add_u32 s{sT1}, s{sT1}, {LDS_WOB}
    s_lshr_b32 s{sT2}, s{sHP}, 3
    s_lshl_b32 s{sT2}, s{sT2}, 15
    s_add_u32 s{sT1}, s{sT1}, s{sT2}
    v_add_u32 v{vAT+2}, s{sT1}, v{vT}
    v_xor_b32 v{vAT+3}, 64, v{vAT+2}
    s_lshl_b32 s{sT2}, s{sT2}, 1
    s_sub_u32 s{sT1}, s{sT1}, s{sT2}
    s_add_u32 s{sT1}, s{sT1}, 32768
    v_add_u32 v{vAT}, s{sT1}, v{vT}
    v_xor_b32 v{vAT+1}, 64, v{vAT}
    s_mul_i32 s{sT1}, s{sW}, 6144
    v_add_u32 v{vRR}, s{sT1}, v{vL16}
    s_lshl_b32 s{sT1}, s{sTB}, 7
    s_lshr_b32 s{sT2}, s{sHP}, 3
    s_lshl_b32 s{sT2}, s{sT2}, 6
    s_add_u32 s{sT1}, s{sT1}, s{sT2}
    s_lshl_b32 s{sT2}, s{sB}, 5
    s_add_u32 s{sT1}, s{sT1}, s{sT2}
    v_and_b32 v{vT}, 31, v1
    v_add_u32 v{vT}, s{sT1}, v{vT}
    v_lshlrev_b32 v{vT}, 10, v{vT}
    v_lshrrev_b32 v{vT+1}, 5, v1
    v_lshl_add_u32 v{vT}, v{vT+1}, 4, v{vT}
    s_and_b32 s{sT2}, s{sHP}, 7
    s_lshl_b32 s{sT2}, s{sT2}, 7
    s_lshl_b32 s{sT1}, s{sI}, 5
    s_add_u32 s{sT2}, s{sT2}, s{sT1}
    v_add_u32 v{vOUTA}, s{sT2}, v{vT}
    """)

def of_loads(g, branch, tag, dst=None):
    dst = OF if dst is None else dst
    def setup():
        g(f"""
        s_lshl_b32 s{sT1}, s{sTB}, 2
        s_lshr_b32 s{sT2}, s{sHP}, 3
        s_lshl_b32 s{sT2}, s{sT2}, 1
        s_add_u32 s{sT1}, s{sT1}, s{sT2}
        s_add_u32 s{sT1}, s{sT1}, s{sB}
        s_lshl_b32 s{sT1}, s{sT1}, 15
        s_lshl_b32 s{sT2}, s{sI}, 12
        s_add_u32 s{sT1}, s{sT1}, s{sT2}
        s_add_u32 s{sT1}, s{sT1}, {WS_O + branch*0x200000}
        s_lshr_b32 s{sT2}, s{sHP}, 3
        s_lshl_b32 s{sT2}, s{sT2}, 14
        s_add_u32 s{sOF+1}, s{sT1}, s{sT2}
        s_sub_u32 s{sT1}, s{sT1}, s{sT2}
        s_add_u32 s{sOF}, s{sT1}, 16384
        """)
    def op(n): return lambda: g.vmop(f"buffer_load_dwordx4 {r(dst+4*n,4)}, v{vL16}, {sr(rWS)}, s{sOF + (n >> 2)} offen offset:{(n&3)*1024} sc1", f'{tag}{n}')
    return [setup] + [op(n) for n in range(8)]

def wfrag_reads(g, n, base, tag):
    for tc in range(2):
        for e in range(2):
            g.ds(f"ds_read_b64_tr_b16 {r(WF+8*n+4*tc+2*e,2)}, v{vAT+2*(n>>2)+tc} offset:{base+(n&3)*2048+e*1024}", f'{tag}{n}')

def tail(g):
    OA = PF
    p1, p2, p3 = epilogue_parts(g, 1)
    fa = of_loads(g, 1, 'OA', OA)
    oat = list(g.opt.get('oat', (8, 8, 8, 8, 9, 9, 10, 10)))
    for n in range(3): wfrag_reads(g, n, 0, 'w')
    p1(); g("s_nop 0"); p2(); fa[0](); p3()
    g.stamp('A')
    g.jitter(200)
    t1at = g.opt.get('t1at', 0)
    g.wvm('OB7')
    if t1at == 0:
        g.wvm('WoA1'); g("s_barrier")
    g.stamp('T1')
    DA = LDS_WOA - LDS_WOB
    nload = 0
    for n in range(8):
        g.wlg(f'w{n}')
        for tc in range(2):
            c = "0" if n == 0 else r(ACC+16*tc, 16)
            g(f"v_mfma_f32_32x32x16_bf16 {r(ACC+16*tc,16)}, {r(WF+8*n+4*tc,4)}, {r(OF+4*n,4)}, {c}")
        if n == t1at and n > 0:
            g.wvm('WoA1'); g("s_barrier")
        if n + 3 < 8: wfrag_reads(g, n + 3, 0, 'w')
        else: wfrag_reads(g, n - 5, 0, 'x')
        if n in (1, 5):
            for k in range(2): g(f"v_add_u32 v{vAT + (n >> 2) * 2 + k}, {DA}, v{vAT + (n >> 2) * 2 + k}")
        for k in range(8):
            if oat[k] == n: fa[1 + k]()
    g.stamp('bp')
    for n in range(3, 8):
        g.wlg(f'x{n-3}')
        wfrag_reads(g, n, 0, 'x')
        for k in range(8):
            if oat[k] == n + 5: fa[1 + k]()
    full = g.opt.get('red', 'full') == 'full'
    if not full:
        for d in range(4):
            g(f"s_sub_u32 s{sT1}, {d + 3}, s{sI}\ns_and_b32 s{sT1}, s{sT1}, 3\ns_lshl_b32 s{sT1}, s{sT1}, 11\ns_mul_i32 s{sT2}, s{sB}, 24576\ns_add_u32 s{sT1}, s{sT1}, s{sT2}\ns_add_u32 s{sT1}, s{sT1}, {d * 6144}\nv_add_u32 v{vT+4+d}, s{sT1}, v{vL16}")
    else:
        RW = 80
        g(f"""
        v_and_b32 v{vT}, 31, v1
        v_lshrrev_b32 v{vT+1}, 5, v1
        v_and_b32 v{vT+2}, 15, v1
        v_xor_b32 v{vT+1}, v{vT+1}, v{vT+2}
        v_lshlrev_b32 v{vT+1}, 4, v{vT+1}
        v_lshl_add_u32 v{vT}, v{vT}, 8, v{vT+1}
        s_lshl_b32 s{sT1}, s{sW}, 13
        v_add_u32 v{RW}, s{sT1}, v{vT}
        v_lshrrev_b32 v{vT}, 3, v1
        s_lshl_b32 s{sT1}, s{sI}, 3
        v_add_u32 v{vT}, s{sT1}, v{vT}
        v_and_b32 v{vT+1}, 7, v1
        v_lshlrev_b32 v{vT+2}, 1, v{vT+1}
        v_and_b32 v{vT+3}, 15, v{vT}
        v_xor_b32 v{vT+2}, v{vT+2}, v{vT+3}
        v_lshlrev_b32 v{vT+2}, 4, v{vT+2}
        v_lshl_add_u32 v{vT+2}, v{vT}, 8, v{vT+2}
        s_lshl_b32 s{sT1}, s{sB}, 15
        v_add_u32 v{RW+8}, s{sT1}, v{vT+2}
        v_xor_b32 v{RW+9}, 16, v{RW+8}
        s_lshl_b32 s{sT1}, s{sTB}, 7
        s_lshr_b32 s{sT2}, s{sHP}, 3
        s_lshl_b32 s{sT2}, s{sT2}, 6
        s_add_u32 s{sT1}, s{sT1}, s{sT2}
        s_lshl_b32 s{sT2}, s{sB}, 5
        s_add_u32 s{sT1}, s{sT1}, s{sT2}
        v_add_u32 v{vT}, s{sT1}, v{vT}
        v_lshlrev_b32 v{vT}, 10, v{vT}
        v_lshl_add_u32 v{vT}, v{vT+1}, 4, v{vT}
        s_and_b32 s{sT2}, s{sHP}, 7
        s_lshl_b32 s{sT2}, s{sT2}, 7
        v_add_u32 v{vOUTA}, s{sT2}, v{vT}
        """)
        for k in range(1, 8): g(f"v_xor_b32 v{RW+k}, {k*32}, v{RW}")
    g.wlg()
    if g.opt.get('t2early', 1): g("s_barrier")
    g.stamp('poll')
    def check(q, bad):
        R = OA + 16 * q
        g(f"v_max3_u32 v{vT}, v{R}, v{R+1}, v{R+2}\nv_max3_u32 v{vT+1}, v{R+3}, v{R+4}, v{R+5}")
        for k in range(6, 16, 4):
            g(f"v_max3_u32 v{vT}, v{vT}, v{R+k}, v{R+k+1}")
            if k + 3 < 16: g(f"v_max3_u32 v{vT+1}, v{vT+1}, v{R+k+2}, v{R+k+3}")
        g(f"v_max_u32 v{vT}, v{vT}, v{vT+1}\nv_cmp_eq_u32 vcc, -1, v{vT}\ns_nop 0\ns_cbranch_vccnz {bad}")
        for tc in range(2):
            for n in range(4 * q, 4 * q + 4):
                g(f"v_mfma_f32_32x32x16_bf16 {r(ACC+16*tc,16)}, {r(WF+8*n+4*tc,4)}, {r(OA+4*n,4)}, {r(ACC+16*tc,16)}")
    g(f"s_mov_b32 s{sDS}, 0")
    for q in range(2):
        sk, bad = g.lab("L_oa"), g.lab("L_ob")
        g.wvm(f'OA{4*q+3}')
        check(q, bad)
        g(f"s_branch {sk}\n{bad}:\ns_bitset1_b32 s{sDS}, {q}\n{sk}:")
    g.stamp('pass1')
    g(f"L_oa_loop:\ns_cmp_eq_u32 s{sDS}, 0\ns_cbranch_scc1 L_oa_done")
    spin_check(g)
    for q in range(2):
        sk = g.lab("L_oc")
        g(f"s_bitcmp1_b32 s{sDS}, {q}\ns_cbranch_scc0 {sk}")
        for n in range(4 * q, 4 * q + 4): fa[1 + n]()
        g.vm = []
        g(f"{sk}:")
    g("s_waitcnt vmcnt(0)")
    for q in range(2):
        sk = g.lab("L_od")
        g(f"s_bitcmp1_b32 s{sDS}, {q}\ns_cbranch_scc0 {sk}")
        check(q, sk)
        g(f"s_bitset0_b32 s{sDS}, {q}\n{sk}:")
    g("s_branch L_oa_loop\nL_oa_done:")
    g.stamp('mm')
    g.jitter(201)
    if full:
        if not g.opt.get('t2early', 1): g("s_barrier")
        g("s_nop 5")
        for tc in range(2):
            if tc == 1: g("s_nop 1")
            for q in range(4): g.ds(f"ds_write_b128 v{RW+4*tc+q}, {r(ACC+16*tc+4*q,4)}", 'rw')
        g.wlg()
        g("s_barrier")
        g.stamp('red')
        for kq in range(4):
            for e in range(2): g.ds(f"ds_read_b128 {r(16+8*kq+4*e,4)}, v{RW+8+e} offset:{kq*8192}", f'rr{kq}')
        g.wlg('rr1')
        for k in range(0, 8, 2): g(f"v_pk_add_f32 v[{16+k}:{17+k}], v[{16+k}:{17+k}], v[{24+k}:{25+k}]")
        g.wlg('rr3')
        for k in range(0, 8, 2): g(f"v_pk_add_f32 v[{32+k}:{33+k}], v[{32+k}:{33+k}], v[{40+k}:{41+k}]")
        for k in range(0, 8, 2): g(f"v_pk_add_f32 v[{16+k}:{17+k}], v[{16+k}:{17+k}], v[{32+k}:{33+k}]")
        for k in range(4): g(f"v_cvt_pk_bf16_f32 v{16+k}, v{16+2*k}, v{17+2*k}")
        g.vmop(f"buffer_store_dwordx4 v[16:19], v{vOUTA}, {sr(rOUT)}, 0 offen {g.opt.get('outsc', '')}", 'out')
        return
    if not g.opt.get('t2early', 1): g("s_barrier")
    g("s_nop 3")
    def piece(d): return ACC + 16 * (d >> 1) + 8 * (d & 1)
    for d in range(4):
        sk = g.lab("L_rw")
        if d == 2: g("s_nop 6")
        g(f"s_cmp_eq_u32 s{sI}, {d}\ns_cbranch_scc1 {sk}")
        g(f"ds_write_b128 v{vT+4+d}, {r(piece(d),4)}\nds_write_b128 v{vT+4+d}, {r(piece(d)+4,4)} offset:1024\n{sk}:")
    lj = g.lab("L_rj")
    for d in range(4):
        sk = g.lab("L_rs")
        if d < 3: g(f"s_cmp_lg_u32 s{sI}, {d}\ns_cbranch_scc1 {sk}")
        for k in range(0, 8, 2): g(f"v_mov_b64 v[{40+k}:{41+k}], v[{piece(d)+k}:{piece(d)+k+1}]")
        if d < 3: g(f"s_branch {lj}\n{sk}:")
    g(f"{lj}:")
    g("s_waitcnt lgkmcnt(0)\ns_barrier")
    g.stamp('red')
    for k in range(3):
        for e in range(2):
            g.ds(f"ds_read_b128 {r(16+8*k+4*e,4)}, v{vRR} offset:{k*2048+e*1024}", f'rr{k}')
    g.wlg('rr0')
    for k in range(0, 8, 2): g(f"v_pk_add_f32 v[{40+k}:{41+k}], v[{40+k}:{41+k}], v[{16+k}:{17+k}]")
    g.wlg('rr2')
    for k in range(0, 8, 2): g(f"v_pk_add_f32 v[{24+k}:{25+k}], v[{24+k}:{25+k}], v[{32+k}:{33+k}]")
    for k in range(0, 8, 2): g(f"v_pk_add_f32 v[{40+k}:{41+k}], v[{40+k}:{41+k}], v[{24+k}:{25+k}]")
    for k in range(4): g(f"v_cvt_pk_bf16_f32 v{16+k}, v{40+2*k}, v{41+2*k}")
    g("s_nop 1\nv_permlane32_swap_b32 v16, v18\nv_permlane32_swap_b32 v17, v19")
    g.vmop(f"buffer_store_dwordx4 v[16:19], v{vOUTA}, {sr(rOUT)}, 0 offen {g.opt.get('outsc', '')}", 'out')

def schedule(g):
    o = g.opt
    ev = {}
    def at(T, key, *fs): ev.setdefault((T, key), []).extend(fs)
    dpos = o.get('dpos', ((2, 'm0'), (3, 'm0'), (4, 'm0'), (5, 'm0')))
    pp = o.get('pp', {(2, 'mq'): 3, (5, 'm0'): 2, (0, 'm0'): 1, (1, 'mq'): 0})
    def wave0(*fs): return lambda: g.wave0(*fs)
    def flag(base, hi, lo):
        return lambda: flag_store(g, f"s_lshl_b32 s{sT1}, s{hi}, 7\ns_lshl_b32 s{sT2}, s{lo}, 2\ns_add_u32 s{sT1}, s{sT1}, s{sT2}\ns_add_u32 s{sT1}, s{sT1}, {base}")
    def slot(gi): return slotB(gi) if gi < 8 else slotA(gi - 8)
    def vadd(reg, src, gi):
        d = ((slot(gi + 1) - slot(gi)) * SLOT) & 0xffffffff
        if gi != 7: return lambda: g(f"v_add_u32 v{reg}, {d}, v{src}")
        return lambda: g(f"s_lshl_b32 s{sT1}, s{sB}, 14\ns_add_u32 s{sT1}, s{sT1}, {d}\nv_add_u32 v{reg}, s{sT1}, v{src}")
    nt = o.get('m0t', 4)
    at(59, 0, vadd(vT + 3, vAK, 7))
    for k in range(nt):
        at(59, 'gap', lambda k=k: g.ds(f"ds_read_b128 {r(KTMP+4*k,4)}, v{vT+3} offset:{k*1024}", 'kv'))
        at(60 + k // 2, 7 if k % 2 == 0 else 13, lambda k=k: g(f"v_mfma_f32_32x32x16_bf16 {r(STMP[k],16)}, {r(KTMP+4*k,4)}, {r(QA,4)}, 0"))
    L = max_tree(STMP[:nt])
    if nt > 2:
        at(61, 6, lambda: g("\n".join(L[:8]))); at(62, 1, lambda: g("\n".join(L[8:16]))); at(62, 6, lambda: g("\n".join(L[16:])))
    else:
        at(61, 6, lambda: g("\n".join(L[:8]))); at(62, 6, lambda: g("\n".join(L[8:])))
    at(62, 8, lambda: g(SWAP))
    at(62, 12, lambda: g(fill_c(C, o.get('moff', MOFF))))
    e1, e2, e3 = epilogue_parts(g, 0)
    at(65, 0, e1); at(65, 1, e2); at(65, 6, e3, lambda: g.stamp('B'))
    fs = dma_B(g, 2, 0, 'G1')
    at(0, 6, fs[0], fs[1]); at(0, 13, fs[2]); at(1, 1, fs[3]); at(1, 6, fs[4])
    k0, k1, sent, gate = start_ops(g)
    at(4, 6, k0); at(5, 6, k1); at(6, 6, sent); at(7, 6, gate)
    for U in (3, 17, 30, 63, 70, 90, 111, 125): at(U, 9, lambda U=U: g.jitter(U))
    for gi in range(16):
        T0 = 8 * gi
        ppc = dict(pp)
        if gi == 15:
            ppc = {k: v for k, v in pp.items() if k[0] < 2}
            ppc.update(o.get('pplast', {(2, 'm1'): 3, (3, 'm0'): 2, (5, 'm0'): 1, (7, 'm1'): 0}))
        for (t, key), pr in ppc.items(): at(T0 + t, key, lambda pr=pr: g(f"s_setprio {pr}"))
        if gi < 15:
            at(T0 + 6, 0, vadd(vAK, vAK, gi))
            at(T0 + 7, 0, vadd(vAV, vAV, gi))
        wait = {1: 'G1', 2: 'kvst', 3: 'G3', 4: None, 7: 'A0', 8: 'A1', 9: 'A2', 10: 'ost', 11: 'A4', 12: 'A5', 13: 'A6', 14: 'WoB0', 15: 'WoB1'}
        if gi == 4: at(T0 + 1, 1, lambda: g.wvm(), wave0(lambda: poll_check(g)))
        if gi == 14: at(T0 + 1, 1, lambda: g.wvm('WoB0'), wave0(lambda: poll_check(g)))
        if gi in wait: at(T0 + 1, 'm0', lambda w=wait[gi]: g.wvm(w))
        if gi not in o.get('nobar', ()): at(T0 + 1, 'm0', lambda: g("s_barrier"))
        at(T0 + 1, 'm0', lambda gi=gi: g.stamp(f'g{gi}'))
        grp = {0: lambda: dma_B(g, 4, 2, 'G2'), 1: lambda: dma_B(g, 6, 4, 'G3'),
               4: lambda: dma_A(g, 0, 6, 'A0'), 5: lambda: dma_A(g, 1, 8, 'A1'), 6: lambda: dma_A(g, 2, 0, 'A2'), 7: lambda: dma_A(g, 3, 2, 'A3'),
               8: lambda: dma_A(g, 4, 4, 'A4'), 9: lambda: dma_A(g, 5, 6, 'A5'), 10: lambda: dma_A(g, 6, 8, 'A6'), 11: lambda: dma_A(g, 7, 0, 'A7'),
               12: lambda: dma_Wo(g, rWOB, 0, LDS_WOB, 'WoB0'), 13: lambda: dma_Wo(g, rWOB, 1, LDS_WOB, 'WoB1'),
               14: lambda: dma_Wo(g, rWOA, 0, LDS_WOA, 'WoA0'), 15: lambda: dma_Wo(g, rWOA, 1, LDS_WOA, 'WoA1')}
        if gi == 13: at(T0 + 2, 0, wave0(lambda: poll_issue(g, 3)))
        if gi in grp:
            fs = grp[gi]()
            at(T0 + dpos[0][0], dpos[0][1], fs[0])
            for (t, i), f in zip(dpos, fs[1:]): at(T0 + t, i, f)
        if gi == 2: at(T0 + 2, 6, wave0(flag(WS_F2, sHP, sTB)))
        if gi == 3:
            at(T0 + 4, 6, wave0(lambda: poll_issue(g, 2)))
        if gi == 10: at(T0 + 4, 6, wave0(flag(WS_F3, sTB, sHP)))
        if gi == 13 and o.get('wopf', 1):
            def wopf():
                g(f"s_and_b32 s{sT1}, s{sTB}, 3\ns_lshl_b32 s{sT1}, s{sT1}, 13\ns_add_u32 s{sT1}, s{sT1}, s{sDS}\ns_add_u32 s{sT1}, s{sT1}, 262144")
                g.vmop(f"buffer_load_dwordx4 {r(208,4)}, v{vDWO}, {sr(rWOA)}, s{sT1} offen", 'pf')
            at(T0 + 5, 6, wopf)
        if gi == 14:
            fs = of_loads(g, 0, 'OB')
            at(T0 + 4, 6, fs[0])
            for n, f in enumerate(fs[1:]): at(T0 + 4 + n // 2, 6 if n % 2 == 0 else 13, f)
    return ev

def slotB(c): return (8 + c) % 10
def slotA(c): return 2 * ((3 + c) % 5)

def build(**opt):
    g = G(**opt)
    setup(g)
    fork = (list(g.lg), list(g.vm)); nst0 = g.nst
    g(f"s_bitcmp1_b32 s{sHP}, 0\ns_cbranch_scc1 L_p1b")
    g("L_p1a:")
    phase1(g, 0)
    end0 = (list(g.lg), list(g.vm))
    g("s_branch L_p1done\nL_rare0:")
    main0 = g.L; g.L = []
    g.lg, g.vm = list(fork[0]), list(fork[1]); g.nst = nst0
    phase1(g, 1)
    var1 = g.L; g.L = main0
    if g.opt.get('rnear', 1): g.L += g.cold; g.cold = []
    g("L_p1b:")
    g.L += var1
    assert end0 == (g.lg, g.vm), (end0, g.lg, g.vm)
    g("L_p1done:")
    g.stamp('p1')
    b_prologue(g)
    g.stamp('t0')
    ev = schedule(g)
    for U in range(128): tile(g, U, ev, opt.get('pos', (2, 5, 10)))
    tail(g)
    if opt.get('stamps'):
        g.stamp('end')
        g(f"s_lshl_b32 s{sT1}, s2, 3\ns_add_u32 s{sT1}, s{sT1}, s{sW}\ns_lshl_b32 s{sT1}, s{sT1}, 6\ns_add_u32 s{sT1}, s{sT1}, {WS_DBG}")
        g("s_waitcnt lgkmcnt(0)")
        for k in range(12): g(f"v_mov_b32 v{16+k}, s{STAMP_SLOTS[min(k, g.nst-1)]}")
        g(f"v_mov_b32 v30, 0\ns_mov_b64 exec, 1")
        for k in range(3): g(f"buffer_store_dwordx4 v[{16+4*k}:{19+4*k}], v30, {sr(rWS)}, s{sT1} offen offset:{16*k}")
    if opt.get('dbgst'):
        sk = w0(g)
        g("s_waitcnt vmcnt(0) lgkmcnt(0)")
        last = STAMP_SLOTS[g.nst - 1]
        g(f"v_mov_b32 v16, s{last}\ns_not_b32 s{sT1}, s{STAMP_SLOTS[0]}\nv_mov_b32 v17, s{sT1}\nv_mov_b32 v30, 0\ns_mov_b64 exec, 1")
        g(f"buffer_atomic_umax v16, v30, {sr(rDBG)}, 0 offen offset:4\nbuffer_atomic_umax v17, v30, {sr(rDBG)}, 0 offen offset:8")
        sk2 = g.lab("L_d2")
        g(f"s_cmp_lg_u32 s2, {opt['dbgst'] - 1}\ns_cbranch_scc1 {sk2}")
        for k in range(12): g(f"s_sub_u32 s{sT1}, s{STAMP_SLOTS[min(k, g.nst-1)]}, s{STAMP_SLOTS[0]}\nv_mov_b32 v{16+k}, s{sT1}")
        g(f"v_mov_b32 v16, s{STAMP_SLOTS[0]}")
        for k in range(3): g(f"buffer_store_dwordx4 v[{16+4*k}:{19+4*k}], v30, {sr(rDBG)}, 0 offen offset:{16+16*k}")
        g(f"{sk2}:\ns_mov_b64 exec, -1\n{sk}:")
    if opt.get('spinend'):
        base, idx, mult = opt['spinend']
        sk = w0(g); sk2 = g.lab("L_sp")
        g(f"s_cmp_lg_u32 s2, {opt.get('spinwg', 0)}\ns_cbranch_scc1 {sk}\ns_waitcnt vmcnt(0) lgkmcnt(0)")
        g(f"s_sub_u32 s{sT1}, s{STAMP_SLOTS[idx]}, s{STAMP_SLOTS[0]}\ns_mul_i32 s{sT1}, s{sT1}, {mult}\ns_add_u32 s{sT1}, s{sT1}, {base*100}")
        g(f"{sk2}:\ns_memrealtime s[{sPC}:{sPC+1}]\ns_waitcnt lgkmcnt(0)\ns_sub_u32 s{sT2}, s{sPC}, s{STAMP_SLOTS[0]}\ns_cmp_lt_u32 s{sT2}, s{sT1}\ns_cbranch_scc1 {sk2}")
        g(f"{sk}:")
    if opt.get('spinrel'):
        a_, b_, mult, shift = opt['spinrel']
        sk = w0(g); sk2 = g.lab("L_sq")
        g(f"s_cmp_lg_u32 s2, {opt.get('spinwg', 0)}\ns_cbranch_scc1 {sk}\ns_waitcnt vmcnt(0) lgkmcnt(0)")
        g(f"s_sub_u32 s{sT1}, s{STAMP_SLOTS[b_]}, s{STAMP_SLOTS[a_]}\ns_mul_i32 s{sT1}, s{sT1}, {mult}\ns_lshr_b32 s{sT1}, s{sT1}, {shift}")
        g(f"s_memrealtime s[{sSC}:{sSC+1}]\ns_waitcnt lgkmcnt(0)")
        g(f"{sk2}:\ns_memrealtime s[{sPC}:{sPC+1}]\ns_waitcnt lgkmcnt(0)\ns_sub_u32 s{sT2}, s{sPC}, s{sSC}\ns_cmp_lt_u32 s{sT2}, s{sT1}\ns_cbranch_scc1 {sk2}")
        g(f"{sk}:")
    if opt.get('spinconst'):
        sk = w0(g); sk2 = g.lab("L_sc")
        g(f"s_waitcnt vmcnt(0) lgkmcnt(0)\ns_memrealtime s[{sSC}:{sSC+1}]\ns_waitcnt lgkmcnt(0)")
        g(f"{sk2}:\ns_memrealtime s[{sPC}:{sPC+1}]\ns_waitcnt lgkmcnt(0)\ns_sub_u32 s{sT2}, s{sPC}, s{sSC}\ns_cmp_lt_u32 s{sT2}, {opt['spinconst']}\ns_cbranch_scc1 {sk2}")
        g(f"{sk}:")
    g("L_abort:\ns_endpgm")
    g.L += g.cold
    fallback(g, 0)
    fallback(g, 1)
    g("L_end:\ns_endpgm\nL_codeend:")
    hdr = open('gated_mix__mha_block__grouped_kv_mqa__prompt.s.ref').read().split("; Override launch")[0]
    out = hdr + "; One fused launch: projections, MQA and MHA attention, gated output projection.\n"
    out += "; @launch grid=(256,1,1) block=(512,1,1) lds=163840\n"
    out += f""".amdgcn_target "amdgcn-amd-amdhsa--gfx950"
.text
.globl {NAME}
.p2align 8
.type {NAME},@function
{NAME}:
{g.text()}.section .rodata,"a"
.p2align 6
.amdhsa_kernel {NAME}
  .amdhsa_next_free_vgpr 256
  .amdhsa_next_free_sgpr 102
  .amdhsa_accum_offset 256
  .amdhsa_group_segment_fixed_size 0
  .amdhsa_kernarg_size 96
  .amdhsa_user_sgpr_count 2
  .amdhsa_user_sgpr_kernarg_segment_ptr 1
  .amdhsa_system_sgpr_workgroup_id_x 1
.end_amdhsa_kernel
"""
    return out

if __name__ == "__main__":
    path = sys.argv[1] if len(sys.argv) > 1 else 'gated_mix__mha_block__grouped_kv_mqa__prompt.s'
    opt = {}
    for a in sys.argv[2:]:
        k, _, v = a.partition('=')
        opt[k] = eval(v) if v else True
    open(path, 'w').write(build(**opt))
```

```python
import sys, struct, copy
NAME = "gated_mix__mha_block__grouped_kv_mqa__prompt_kernel"

def f2h(x): return "0x%08x" % struct.unpack('<I', struct.pack('<f', x))[0]

WS_KVA  = 0x000000
WS_KVB  = 0x400000
WS_GATE = 0x420000
WS_F1   = 0x424000
WS_F2   = WS_F1 + 2048
WS_F3   = WS_F1 + 4096
WS_F4   = WS_F1 + 6144
WS_O    = 0x500000
WS_DBG  = 0x900000
WS_SIZE = 0x1000000

SLOT = 16384
LDS_WST = 65536
LDS_EW  = 8 * SLOT
LDS_ER  = 9 * SLOT
LDS_EG  = 9 * SLOT + 8192
LDS_EX  = 3 * SLOT
LDS_WOB = 2 * SLOT
LDS_WOA = 6 * SLOT

sW, sHP, sTB, sROT, sB = 3, 4, 5, 6, 7
rX, rWS_, rWKV, rGATE, rWS, rDBG, rOUT, rWOA, rWOB = 8, 12, 16, 20, 24, 28, 32, 36, 40
sMASK = 44
sI, sNONCE, sSPIN, sT0, sT1, sT2 = 46, 47, 48, 49, 50, 51
pX, pWQKV, pWOA, pBX, pWQ, pWK, pWV, pWOB, pGATE, pOUT, pDBG, pWS = 52, 54, 56, 58, 60, 62, 64, 66, 68, 70, 72, 74
sXO, sWO, sWSTEP, sW16, sMX, sMW, sKX, sKW = 76, 77, 78, 79, 80, 81, 82, 83
sOF = 76
sPC = 84
sFBBASE, sKV, sFBT, sDMA, sOST, sT3 = 86, 87, 88, 89, 90, 91
sKV1, sSC = 98, 100
sPOLL, sDS = 92, 93
sST = 94
vIDX, vAK, vAV, vG, vL16, vVOFF = 2, 3, 4, 5, 6, 7
vT = 8
S0, S1, C, QA, QB = 16, 32, 64, 80, 84
OACC = (112, 48)
STMP, KTMP = (128, 144, 160, 176), 192
STB, KTB = (32, 16, 128, 64), 232
FB_S, FB_C, FB_K, FB_V0, FB_V1 = 176, 160, 144, 148, 152
KF, V0, V1 = (88, 92), (96, 100), (104, 108)
OF = 112
ACC = 144
PF = 176
WF = 16
vAX = 240
vAW1, vAWQ, vDX0, vDX1, vDW, vKVST = 244, 245, 246, 247, 248, 249
vDWO, vRR, vOUTA = 224, 225, 226
vAT = 228
vFL, vNON, vDUMMY = 250, 251, 251
vPOLL = 252
QSCALE = 0.25 * 1.4426950408889634
MOFF = 102.0
SPIN = 1 << 20

STAMP_SLOTS = [94, 96, 52, 54, 58, 60, 62, 64, 68, 72, 74, 56]
class G:
    def __init__(s, **opt):
        s.L = []; s.lg = []; s.vm = []; s.opt = opt; s.nlab = 0; s.nst = 0; s.cold = []
    def __call__(s, txt):
        for line in txt.split("\n"):
            line = line.strip()
            if not line: continue
            s.L.append(line if (line.endswith(":") or line.startswith(".")) else "    " + line)
    def rare(s, test, branch, *fs):
        if not s.opt.get('ool', 1):
            sk = s.lab("L_sk")
            s(test); s(f"{'s_cbranch_scc0' if branch.endswith('1') else 's_cbranch_scc1'} {sk}")
            for f in fs: f()
            s(f"{sk}:"); return
        lo, lr = s.lab("L_rare"), s.lab("L_back")
        s(test); s(f"{branch} {lo}\n{lr}:")
        main, s.L = s.L, s.cold
        s(f"{lo}:")
        for f in fs: f()
        s(f"s_branch {lr}")
        s.L = main
    def wave0(s, *fs): s.rare(f"s_cmp_eq_u32 s{sW}, 0", "s_cbranch_scc1", *fs)
    def first(s, *fs): s.rare(f"s_or_b32 s{sT1}, s2, s{sW}", "s_cbranch_scc0", *fs)
    def lab(s, p="L"):
        s.nlab += 1; return f"{p}_{s.nlab}"
    def ds(s, txt, tag=None):
        s(txt); s.lg.append(tag); assert len(s.lg) <= 15, "lgkm overflow"
    def wlg(s, tag=None):
        if tag is None:
            s("s_waitcnt lgkmcnt(0)"); s.lg = []; return
        if tag not in s.lg: return
        i = len(s.lg) - 1 - s.lg[::-1].index(tag)
        n = len(s.lg) - 1 - i
        s(f"s_waitcnt lgkmcnt({n})"); s.lg = s.lg[i + 1:]
    def vmop(s, txt, tag=None):
        s(txt); s.vm.append(tag); assert len(s.vm) <= 63
    def wvm(s, tag=None):
        if tag is None:
            s("s_waitcnt vmcnt(0)"); s.vm = []; return
        if tag not in s.vm: return
        i = len(s.vm) - 1 - s.vm[::-1].index(tag)
        n = len(s.vm) - 1 - i
        s(f"s_waitcnt vmcnt({n})"); s.vm = s.vm[i + 1:]
    def srd(s, d, base, nbytes):
        s(f"s_mov_b32 s{d}, s{base}\ns_and_b32 s{d+1}, s{base+1}, 0xffff\ns_mov_b32 s{d+2}, {nbytes}\ns_mov_b32 s{d+3}, 0x00020000")
    def srd_const(s, d, nbytes): s(f"s_mov_b32 s{d+2}, {nbytes}\ns_mov_b32 s{d+3}, 0x00020000")
    def srd_base(s, d, base): s(f"s_mov_b64 s[{d}:{d+1}], s[{base}:{base+1}]")
    def stamp(s, name):
        if not s.opt.get('stamps'): return
        if name not in s.opt.get('at', ('setup', 'p1', 'bstart', 'B', 'A', 'poll', 'mm', 'end')): return
        ins = "s_memtime" if s.opt.get('stamps') == 2 else "s_memrealtime"
        slot = STAMP_SLOTS[s.nst]
        assert slot >= 94 or name not in ('entry', 'karg', 'eissue')
        s(f"{ins} s[{slot}:{slot+1}]")
        s.nst += 1
    def jitter(s, salt):
        j = s.opt.get('jitter')
        if not j: return
        lp, sk = s.lab("L_j"), s.lab("L_jk")
        if salt % 2: s(f"s_lshl_b32 s{sT2}, s2, 3\ns_add_u32 s{sT2}, s{sT2}, s{sW}")
        else: s(f"s_mov_b32 s{sT2}, s2")
        s(f"s_add_u32 s{sT2}, s{sT2}, {salt * 7919 + j * 104729}\ns_mul_i32 s{sT1}, s{sT2}, 0x9e3779b1\ns_lshr_b32 s{sT1}, s{sT1}, 27")
        s(f"{lp}:\ns_sub_u32 s{sT1}, s{sT1}, 1\ns_cbranch_scc1 {sk}\ns_sleep 8\ns_branch {lp}\n{sk}:")
    def text(s): return "\n".join(s.L) + "\n"

def r(a, n): return f"v[{a}:{a+n-1}]"
def sr(a, n=4): return f"s[{a}:{a+n-1}]"

def spin_check(g):
    g(f"s_sub_u32 s{sSPIN}, s{sSPIN}, 1\ns_cbranch_scc1 L_abort")

def setup(g):
    g(f"""
    s_cmp_ge_u32 s2, 256
    s_cbranch_scc1 L_end
    """)
    g.stamp('entry')
    mode = g.opt.get('pfm', 'v')
    pf = ''
    if mode == 's': pf = f"""
    s_lshl_b32 s{sT1}, s{sW}, 7
    s_and_b32 s{sT0}, s2, 0xf8
    s_lshl_b32 s{sT0}, s{sT0}, 7
    s_add_u32 s{sT0}, s{sT0}, 3072
    s_add_u32 s{sT0}, s{sT0}, s{sT1}
    s_min_u32 s{sT0}, s{sT0}, L_codeend-L_pc-4
    s_load_dword s{sFBT}, s[{sPC}:{sPC+1}], s{sT0}
    s_add_u32 s{sPC}, s{sPC}, s{sT1}
    s_addc_u32 s{sPC+1}, s{sPC+1}, 0
    s_load_dword s{sFBT}, s[{sPC}:{sPC+1}], 0
    s_load_dword s{sFBT}, s[{sPC}:{sPC+1}], 1024
    s_load_dword s{sFBT}, s[{sPC}:{sPC+1}], 2048
    """
    if mode == 'v':
        pf = f"""
    s_and_b32 s{sT0}, s2, 0xf8
    s_add_u32 s{sT0}, s{sT0}, 24
    v_lshlrev_b32 v{vT+2}, 3, v1
    v_mov_b32 v{vT+3}, s{sT0}
    v_cmp_eq_u32 vcc, 3, v1
    s_mov_b64 exec, 15
    s_nop 0
    v_cndmask_b32 v{vT+2}, v{vT+2}, v{vT+3}, vcc
    v_add_lshl_u32 v{vT+2}, v{vT+2}, v{vT+1}, 7
    v_min_u32 v{vT+2}, L_codeend-L_pc-4, v{vT+2}
    global_load_dword v{vDUMMY}, v{vT+2}, s[{sPC}:{sPC+1}]
    s_mov_b64 exec, -1
    """
        g.vm.append('pf')
    if mode == 'w':
        pf = f"""
    s_bitcmp1_b32 s2, 5
    s_mov_b32 s{sT0}, L_p1a-L_pc-2048
    s_cselect_b32 s{sT0}, L_p1b-L_pc-2048, s{sT0}
    v_lshlrev_b32 v{vT+2}, 10, v1
    v_add_u32 v{vT+2}, s{sT0}, v{vT+2}
    s_lshr_b32 s{sT0}, s2, 3
    s_lshl_b32 s{sT0}, s{sT0}, 10
    s_add_u32 s{sT0}, s{sT0}, L_p1done-L_pc
    v_writelane_b32 v{vT+2}, 0, 0
    s_movk_i32 s{sT1}, 1024
    v_writelane_b32 v{vT+2}, s{sT1}, 1
    s_mov_b32 s{sT1}, L_rare0-L_pc
    v_writelane_b32 v{vT+2}, s{sT1}, 6
    v_writelane_b32 v{vT+2}, s{sT0}, 7
    s_mov_b64 exec, 255
    v_lshl_add_u32 v{vT+2}, v{vT+1}, 7, v{vT+2}
    v_min_u32 v{vT+2}, L_codeend-L_pc-4, v{vT+2}
    global_load_dword v{vDUMMY}, v{vT+2}, s[{sPC}:{sPC+1}]
    s_mov_b64 exec, -1
    """
        g.vm.append('pf')
    g(f"""
    s_load_dwordx16 s[52:67], s[0:1], 0
    s_load_dwordx8 s[68:75], s[0:1], 64
    v_lshrrev_b32 v{vT+1}, 6, v0
    v_and_b32 v1, 63, v0
    s_getpc_b64 s[{sPC}:{sPC+1}]
    L_pc:
    v_readfirstlane_b32 s{sW}, v{vT+1}
    {pf}
    s_bfe_u32 s{sTB}, s2, 0x20001
    s_bfe_u32 s{sT0}, s2, 0x20003
    s_lshl2_add_u32 s{sTB}, s{sTB}, s{sT0}
    s_and_b32 s{sHP}, s2, 1
    s_lshr_b32 s{sT0}, s2, 5
    s_lshl3_add_u32 s{sHP}, s{sHP}, s{sT0}
    s_lshl1_add_u32 s{sROT}, s{sTB}, s{sHP}
    s_and_b32 s{sROT}, s{sROT}, {g.opt.get('rotmask', 6)}
    s_lshr_b32 s{sB}, s{sW}, 2
    s_and_b32 s{sI}, s{sW}, 3
    v_lshlrev_b32 v{vL16}, 4, v1
    """)
    g(f"v_and_b32 v{vT+1}, 0x30, v1")
    g(f"""
    v_lshrrev_b32 v{vT+4}, 3, v1
    v_and_b32 v{vT+5}, 7, v1
    v_lshrrev_b32 v{vT+6}, 4, v1
    v_xor_b32 v{vT+5}, v{vT+5}, v{vT+6}
    v_lshlrev_b32 v{vT+4}, 10, v{vT+4}
    v_lshl_add_u32 v{vDX0}, v{vT+5}, 4, v{vT+4}
    v_xor_b32 v{vDX1}, 64, v{vDX0}
    v_add_u32 v{vDX1}, 0x2000, v{vDX1}
    """)
    g(f"s_lshl_b32 s{sMX}, s{sW}, 11\ns_lshl_b32 s{sDMA}, s{sTB}, 17")
    g(f"""
    s_lshr_b32 s{sT2}, s{sHP}, 1
    s_lshl_b32 s{sT2}, s{sT2}, 14
    s_add_u32 s{sDMA}, s{sDMA}, s{sT2}
    s_lshl_b32 s{sOST}, s{sW}, 7
    s_add_u32 s{sDMA}, s{sDMA}, s{sOST}
    """)
    for k in range(0, 8, 2): g(f"v_mov_b64 v[{40+k}:{41+k}], 0")
    for d, n in ((rX, 2097152), (rWKV, 16384), (rGATE, 1024), (rWS, WS_SIZE)): g.srd_const(d, n)
    g(f"s_add_u32 m0, s{sMX}, {LDS_EW}")
    g("s_waitcnt lgkmcnt(0)")
    g.stamp('karg')
    g.jitter(1)
    def early_loads():
        g(f"s_bitcmp1_b32 s{sHP}, 0\ns_cselect_b64 s[{rWKV}:{rWKV+1}], s[{pWV}:{pWV+1}], s[{pWK}:{pWK+1}]")
        g.srd_base(rGATE, pGATE); g.srd_base(rX, pX)
        g.vmop(f"buffer_load_dwordx4 v{vL16}, {sr(rWKV)}, s{sMX} offen lds", 'e')
        g.vmop(f"buffer_load_dwordx4 v{vL16}, {sr(rWKV)}, s{sMX} offen offset:1024 lds", 'e')
        g(f"s_mov_b32 exec_lo, 0x00010001\ns_mov_b32 exec_hi, 0x00010001")
        g.vmop(f"buffer_load_dwordx4 v[40:43], v{vT+1}, {sr(rGATE)}, s{sOST} offen", 'e')
        g.vmop(f"buffer_load_dwordx4 v[44:47], v{vT+1}, {sr(rGATE)}, s{sOST} offen offset:64", 'e')
        g("s_mov_b64 exec, -1")
        g(f"s_add_u32 m0, s{sMX}, {LDS_EX}\ns_nop 0")
        g.vmop(f"buffer_load_dwordx4 v{vDX0}, {sr(rX)}, s{sDMA} offen lds", 'e')
        g(f"s_add_u32 m0, s{sMX}, {LDS_EX + 1024}\ns_nop 0")
        g.vmop(f"buffer_load_dwordx4 v{vDX1}, {sr(rX)}, s{sDMA} offen lds", 'e')
    g.srd_base(rWS, pWS)
    nonce_scan(g)
    if g.opt.get('elate'): g.srd_base(rX, pX); g.vm.append('scan')
    else: g.vm.append('scan'); early_loads()
    g.stamp('eissue')
    g(f"""
    s_lshr_b32 s{sT0}, s{sW}, 1
    s_cmp_eq_u32 s{sT0}, 3
    s_movk_i32 s{sT2}, 3072
    s_cselect_b32 s{sT1}, 1024, s{sT2}
    s_cselect_b32 s{sT2}, 2, 0
    s_lshl_b32 s{sWSTEP}, s{sT1}, 6
    s_add_u32 s{sMW}, s{sMX}, {LDS_WST}
    s_cmp_lg_u32 s{sB}, 0
    s_cbranch_scc1 L_su_q
    v_bfe_u32 v{vT+4}, v1, 2, 1
    v_bfe_u32 v{vT+5}, v1, 4, 1
    v_xor_b32 v{vT+4}, v{vT+4}, v{vT+5}
    v_and_b32 v{vT+5}, 3, v1
    v_lshl_add_u32 v{vT+5}, v{vT+4}, 2, v{vT+5}
    v_lshrrev_b32 v{vT+4}, 3, v1
    s_movk_i32 s{sW16}, 24576
    s_and_b32 s{sT2}, s{sHP}, 1
    s_add_u32 s{sT2}, s{sT2}, 1
    s_lshl_b32 s{sT2}, s{sT2}, 10
    s_lshr_b32 s{sWO}, s{sHP}, 1
    s_lshl_b32 s{sWO}, s{sWO}, 7
    s_add_u32 s{sWO}, s{sWO}, s{sT2}
    s_mul_i32 s{sT3}, s{sW}, 49152
    s_branch L_su_j
    L_su_q:
    v_lshrrev_b32 v{vT+4}, 2, v1
    v_and_b32 v{vT+5}, 3, v1
    v_xor_b32 v{vT+5}, s{sT2}, v{vT+5}
    s_lshl_b32 s{sW16}, s{sT1}, 4
    s_lshl_b32 s{sWO}, s{sHP}, 6
    s_and_b32 s{sT2}, s{sW}, 1
    s_mul_i32 s{sT3}, s{sT2}, s{sW16}
    s_lshl_b32 s{sT3}, s{sT3}, 1
    L_su_j:
    s_add_u32 s{sWO}, s{sWO}, s{sT3}
    v_mul_u32_u24 v{vT+4}, s{sT1}, v{vT+4}
    v_lshl_add_u32 v{vDW}, v{vT+5}, 4, v{vT+4}
    s_lshl_b32 s{sXO}, s{sTB}, 17
    s_lshl_b32 s{sT2}, s{sW}, 14
    s_add_u32 s{sXO}, s{sXO}, s{sT2}
    s_lshl_b32 s{sKX}, s{sROT}, 7
    s_mul_i32 s{sKW}, s{sROT}, s{sWSTEP}
    """)
    g(f"s_cmp_eq_u32 s{sT0}, 3\ns_cselect_b64 s[{rWS_}:{rWS_+1}], s[{pWQ}:{pWQ+1}], s[{pWQKV}:{pWQKV+1}]")
    g(f"s_mov_b32 s{rWS_+2}, 1572864\ns_cselect_b32 s{rWS_+2}, 524288, s{rWS_+2}\ns_mov_b32 s{rWS_+3}, 0x00020000")
    g.srd_base(rDBG, pDBG); g.srd_const(rDBG, 256)
    g(f"s_mov_b32 s{sMASK}, 0x0000ffff\ns_mov_b32 s{sMASK+1}, 0x0000ffff\ns_mov_b32 s{sSPIN}, {SPIN}\ns_mov_b32 s{sNONCE}, 0\nv_mov_b32 v{vFL}, 0")
    npf = g.opt.get('l2pf', 0)
    if npf:
        l2pf_setup(g)
        for k in range(npf): l2pf(g)
    if g.opt.get('elate'): early_loads()
    if g.opt.get('spf', 0): scalar_prefetch(g)
    g("s_barrier")
    if g.opt.get('pre', 0): p1_addr(g)
    early_addr(g)
    g.stamp('addr')
    runall(p1_dma(g, 0))
    nonce_producer(g)
    g.vm.remove('scan')
    g.stamp('setup')
    g.jitter(2)
    early_compute(g)
    g("s_barrier")
    g.stamp('early')
    if g.opt.get('cearly', 0):
        early_reduce(g)
        p1_addr(g); attn_consts(g); kv_store_addr(g)
        for d, p_, n in ((rOUT, pOUT, 2097152), (rWOA, pWOA, 524288), (rWOB, pWOB, 524288)): g.srd_base(d, p_); g.srd_const(d, n)
        if g.opt.get('cearly', 0) == 1: tail_addr(g)
        runall(p1_dma(g, 1))
    else:
        runall(p1_dma(g, 1))
        early_reduce(g)
        p1_addr(g)


vPFW, vPFX, vPFD = 232, 233, 234
sPFW, sPFX = 86, 88
def l2pf_setup(g):
    lq, lj = g.lab("L_pq"), g.lab("L_pj")
    g(f"""
    v_mul_u32_u24 v{vPFW}, s{sT1}, v1
    v_lshlrev_b32 v{vPFX}, 10, v1
    s_and_b32 s{sT2}, s{sTB}, 3
    s_lshr_b32 s{sPFX}, s{sHP}, 1
    s_lshl_b32 s{sPFX}, s{sPFX}, 7
    s_cmp_lg_u32 s{sB}, 0
    s_cbranch_scc1 {lq}
    s_lshl2_add_u32 s{sT2}, s{sT2}, s{sW}
    s_and_b32 s{sT3}, s{sHP}, 1
    s_add_u32 s{sT3}, s{sT3}, 1
    s_lshl_b32 s{sT3}, s{sT3}, 10
    s_add_u32 s{sPFX}, s{sPFX}, s{sT3}
    s_branch {lj}
    {lq}:
    s_and_b32 s{sT3}, s{sHP}, 1
    s_lshl2_add_u32 s{sT2}, s{sT3}, s{sT2}
    s_and_b32 s{sT3}, s{sW}, 1
    s_lshl1_add_u32 s{sT2}, s{sT2}, s{sT3}
    {lj}:
    s_lshl_b32 s{sT2}, s{sT2}, 2
    s_mul_i32 s{sT2}, s{sT2}, s{sT1}
    s_add_u32 s{sPFW}, s{sPFX}, s{sT2}
    s_and_b32 s{sT2}, s{sHP}, 7
    s_lshl3_add_u32 s{sT2}, s{sT2}, s{sW}
    s_lshl_b32 s{sT2}, s{sT2}, 11
    s_lshl_b32 s{sPFX}, s{sTB}, 17
    s_add_u32 s{sPFX}, s{sPFX}, s{sT2}
    """)
def l2pf(g):
    g("s_mov_b64 exec, 15")
    g.vmop(f"buffer_load_dword v{vPFD}, v{vPFW}, {sr(rWS_)}, s{sPFW} offen", 'pf')
    g("s_mov_b64 exec, 3")
    g.vmop(f"buffer_load_dword v{vPFD}, v{vPFX}, {sr(rX)}, s{sPFX} offen", 'pf')
    g(f"s_mov_b64 exec, -1\ns_add_u32 s{sPFW}, s{sPFW}, s{sWSTEP}\ns_add_u32 s{sPFX}, s{sPFX}, 128")

def p1_dma(g, j):
    p = j & 3
    def f0():
        g(f"s_add_u32 m0, s{sMX}, {p*SLOT}\ns_add_u32 s{sDS}, s{sXO}, s{sKX}")
        g.vmop(f"buffer_load_dwordx4 v{vDX0}, {sr(rX)}, s{sDS} offen lds", f'c{j}')
    def f1():
        g(f"s_add_u32 m0, s{sMX}, {p*SLOT+1024}\ns_add_u32 s{sPOLL+0 if False else sT3}, s{sWO}, s{sKW}")
        g.vmop(f"buffer_load_dwordx4 v{vDX1}, {sr(rX)}, s{sDS} offen lds", f'c{j}')
    def f2():
        g(f"s_add_u32 m0, s{sMW}, {p*SLOT}\ns_add_u32 s{sDS}, s{sT3}, s{sW16}")
        g.vmop(f"buffer_load_dwordx4 v{vDW}, {sr(rWS_)}, s{sT3} offen lds", f'c{j}')
    def f3():
        g(f"s_add_u32 m0, s{sMW}, {p*SLOT+1024}\ns_add_u32 s{sKW}, s{sKW}, s{sWSTEP}")
        g.vmop(f"buffer_load_dwordx4 v{vDW}, {sr(rWS_)}, s{sDS} offen lds", f'c{j}')
        if j < 7:
            g(f"s_add_u32 s{sKX}, s{sKX}, 128\ns_and_b32 s{sKX}, s{sKX}, 1023\ns_cselect_b32 s{sKW}, s{sKW}, 0")
    return [f0, f1, f2, f3]

def scalar_prefetch(g):
    P = sPC
    def base(ptr, off): g(f"s_add_u32 s{P}, s{ptr}, s{off}\ns_addc_u32 s{P+1}, s{ptr+1}, 0")
    g(f"s_and_b32 s{sT1}, s{sHP}, 3\ns_lshl_b32 s{sT1}, s{sT1}, 3\ns_add_u32 s{sT1}, s{sT1}, s{sW}\ns_lshl_b32 s{sT1}, s{sT1}, 12\ns_lshl_b32 s{sT2}, s{sTB}, 17\ns_add_u32 s{sT1}, s{sT1}, s{sT2}\ns_add_u32 s{sT1}, s{sT1}, s{sKX}")
    base(pX, sT1)
    for j in range(4): g(f"s_load_dword s{sFBT}, s[{P}:{P+1}], {j*1024}")
    g(f"s_lshl_b32 s{sT1}, s{sROT}, 1\ns_and_b32 s{sT2}, s{sTB}, 1\ns_add_u32 s{sT1}, s{sT1}, s{sT2}\ns_lshl_b32 s{sT1}, s{sT1}, 3\ns_add_u32 s{sT1}, s{sT1}, s{sW}\ns_mul_i32 s{sT1}, s{sT1}, {4*3072}")
    g(f"s_lshr_b32 s{sT3}, s{sHP}, 1\ns_lshl_b32 s{sT3}, s{sT3}, 7\ns_add_u32 s{sT1}, s{sT1}, s{sT3}\ns_and_b32 s{sT2}, s{sHP}, 1\ns_add_u32 s{sT2}, s{sT2}, 1\ns_lshl_b32 s{sT2}, s{sT2}, 10\ns_add_u32 s{sT1}, s{sT1}, s{sT2}")
    base(pWQKV, sT1)
    for j in range(4): g(f"s_load_dword s{sFBT}, s[{P}:{P+1}], {j*3072}")
    g(f"s_lshl_b32 s{sT1}, s{sROT}, 1\ns_and_b32 s{sT2}, s{sHP}, 1\ns_add_u32 s{sT1}, s{sT1}, s{sT2}\ns_lshl_b32 s{sT1}, s{sT1}, 1\ns_and_b32 s{sT2}, s{sTB}, 1\ns_add_u32 s{sT1}, s{sT1}, s{sT2}\ns_lshl_b32 s{sT1}, s{sT1}, 3\ns_add_u32 s{sT1}, s{sT1}, s{sW}")
    g(f"s_mul_i32 s{sT2}, s{sT1}, {2*3072}\ns_add_u32 s{sT2}, s{sT2}, s{sT3}")
    base(pWQKV, sT2)
    for j in range(2): g(f"s_load_dword s{sFBT}, s[{P}:{P+1}], {j*3072}")
    g(f"s_lshl_b32 s{sT1}, s{sT1}, 11\ns_add_u32 s{sT1}, s{sT1}, s{sT3}")
    base(pWQ, sT1)
    for j in range(2): g(f"s_load_dword s{sFBT}, s[{P}:{P+1}], {j*1024}")

def nonce_scan(g): g.first(lambda: nonce_scan_(g))
def nonce_scan_(g):
    g(f"v_lshrrev_b32 v{vT+4}, 2, v1\nv_and_b32 v{vT+5}, 3, v1\nv_lshlrev_b32 v{vT+4}, 7, v{vT+4}\nv_lshl_add_u32 v{vT+4}, v{vT+5}, 4, v{vT+4}")
    g(f"s_mov_b32 s{sT1}, {WS_F1}")
    g(f"buffer_load_dwordx4 v[176:179], v{vT+4}, {sr(rWS)}, s{sT1} offen sc1")
    g(f"buffer_load_dwordx4 v[180:183], v{vT+4}, {sr(rWS)}, s{sT1} offen offset:2048 sc1")
    g(f"s_mov_b32 s{sT1}, {WS_F3}")
    g(f"buffer_load_dwordx4 v[184:187], v{vT+4}, {sr(rWS)}, s{sT1} offen sc1")

def nonce_producer(g): g.first(lambda: nonce_producer_(g))
def nonce_producer_(g):
    g(f"s_waitcnt vmcnt({len(g.vm) - 1 - g.vm.index('scan')})")
    g(f"v_readfirstlane_b32 s{sT1}, v176")
    lp = g.lab("L_nl")
    g(f"{lp}:\ns_add_u32 s{sT1}, s{sT1}, 1\ns_cbranch_scc1 {lp}")
    g(f"s_mov_b64 s[{sPC}:{sPC+1}], 0")
    for k in range(12):
        g(f"v_cmp_eq_u32 vcc, s{sT1}, v{176+k}\ns_or_b64 s[{sPC}:{sPC+1}], s[{sPC}:{sPC+1}], vcc")
    g(f"s_cbranch_scc1 {lp}")
    g(f"v_mov_b32 v192, s{sT1}\nv_mov_b32 v193, 0\ns_mov_b64 exec, 1")
    g(f"buffer_store_dword v192, v193, {sr(rDBG)}, 0 offen sc1\ns_mov_b64 exec, -1")

def p1_addr(g):
    g(f"""
    v_and_b32 v{vT+2}, 31, v1
    v_lshrrev_b32 v{vT+3}, 5, v1
    v_bfe_u32 v{vT+4}, v1, 1, 3
    v_xor_b32 v{vT+4}, v{vT+4}, v{vT+3}
    v_lshlrev_b32 v{vT+4}, 4, v{vT+4}
    v_lshl_add_u32 v{vT+4}, v{vT+2}, 7, v{vT+4}
    s_lshl_b32 s{sT1}, s{sI}, 12
    v_add_u32 v{vAX}, s{sT1}, v{vT+4}
    v_xor_b32 v{vAX+1}, 32, v{vAX}
    v_xor_b32 v{vAX+2}, 64, v{vAX}
    v_xor_b32 v{vAX+3}, 0x60, v{vAX}
    v_bfe_u32 v{vT+4}, v1, 2, 2
    v_and_b32 v{vT+5}, 3, v1
    v_lshlrev_b32 v{vT+5}, 3, v{vT+5}
    v_lshl_add_u32 v{vT+5}, v{vT+4}, 6, v{vT+5}
    v_lshl_add_u32 v{vT+5}, v{vT+3}, 9, v{vT+5}
    v_bfe_u32 v{vT+6}, v1, 4, 1
    v_bfe_u32 v{vT+7}, v1, 3, 1
    v_xor_b32 v{vT+7}, s{sB}, v{vT+7}
    v_lshlrev_b32 v{vT+7}, 6, v{vT+7}
    v_lshl_add_u32 v{vT+7}, v{vT+4}, 7, v{vT+7}
    v_lshl_add_u32 v{vT+7}, v{vT+3}, 10, v{vT+7}
    v_lshl_add_u32 v{vT+7}, v{vT+6}, 5, v{vT+7}
    v_and_b32 v{vT+2}, 3, v1
    v_lshl_add_u32 v{vT+7}, v{vT+2}, 3, v{vT+7}
    v_add_u32 v{vAW1}, {LDS_WST}, v{vT+7}
    v_xor_b32 v{vT+4}, s{sB}, v{vT+6}
    v_lshl_add_u32 v{vT+5}, v{vT+4}, 5, v{vT+5}
    v_lshl_add_u32 v{vT+5}, v{vT+6}, 12, v{vT+5}
    v_add_u32 v{vAWQ}, {LDS_WST + 8192}, v{vT+5}
    """)

def early_addr(g):
    g(f"""
    v_lshrrev_b32 v{vT+4}, 4, v1
    v_bfe_u32 v{vT+5}, v1, 2, 2
    v_lshl_add_u32 v{vT+4}, v{vT+4}, 3, v{vT+5}
    v_and_b32 v{vT+5}, 3, v1
    v_lshlrev_b32 v{vT+5}, 3, v{vT+5}
    v_lshl_add_u32 v{vT+4}, v{vT+4}, 5, v{vT+5}
    s_add_u32 s{sT1}, s{sMX}, {LDS_EW}
    v_add_u32 v{vT+6}, s{sT1}, v{vT+4}
    s_lshl_b32 s{sT1}, s{sW}, 10
    s_add_u32 s{sT1}, s{sT1}, {LDS_ER}
    v_add_u32 v{vT+7}, s{sT1}, v{vL16}
    s_lshl_b32 s{sT1}, s{sW}, 8
    s_add_u32 s{sT1}, s{sT1}, {LDS_EG}
    v_lshlrev_b32 v{vT+5}, 2, v1
    v_add_u32 v{vT+5}, s{sT1}, v{vT+5}
    """)
    g(f"""
    v_and_b32 v{vT}, 15, v1
    v_lshrrev_b32 v{vT+1}, 4, v1
    v_bfe_u32 v{vT+2}, v1, 1, 3
    v_xor_b32 v{vT+1}, v{vT+1}, v{vT+2}
    v_lshlrev_b32 v{vT+1}, 4, v{vT+1}
    v_lshl_add_u32 v{vT}, v{vT}, 7, v{vT+1}
    s_add_u32 s{sT1}, s{sMX}, {LDS_EX}
    v_add_u32 v{vT}, s{sT1}, v{vT}
    v_xor_b32 v{vT+1}, 64, v{vT}
    """)

def early_compute(g):
    g.wvm('e')
    g.wlg()
    g.ds(f"ds_read_b128 v[16:19], v{vT}", 'ew')
    g.ds(f"ds_read_b128 v[20:23], v{vT+1}", 'ew')
    for s_ in range(2):
        for e in range(2):
            g.ds(f"ds_read_b64_tr_b16 v[{24+4*s_+2*e}:{25+4*s_+2*e}], v{vT+6} offset:{s_*1024+e*128}", 'ew')
    g.wlg('ew')
    lv, le = g.lab("L_ev"), g.lab("L_ee")
    g(f"s_bitcmp1_b32 s{sHP}, 0\ns_cbranch_scc1 {lv}")
    g("v_mfma_f32_16x16x32_bf16 v[32:35], v[24:27], v[16:19], 0")
    g("v_mfma_f32_16x16x32_bf16 v[36:39], v[40:43], v[16:19], 0")
    g("v_mfma_f32_16x16x32_bf16 v[32:35], v[28:31], v[20:23], v[32:35]")
    g("v_mfma_f32_16x16x32_bf16 v[36:39], v[44:47], v[20:23], v[36:39]")
    g(f"s_branch {le}\n{lv}:")
    g("v_mfma_f32_16x16x32_bf16 v[32:35], v[16:19], v[24:27], 0")
    g("v_mov_b32 v36, 0")
    g("v_mfma_f32_16x16x32_bf16 v[32:35], v[20:23], v[28:31], v[32:35]")
    g(f"{le}:\ns_nop 7")
    g.ds(f"ds_write_b128 v{vT+7}, v[32:35]", 'ep')
    g.ds(f"ds_write_b32 v{vT+5}, v36", 'ep')
    g.wlg()

def early_reduce(g): g.wave0(lambda: early_reduce_(g))
def early_reduce_(g):
    g(f"v_add_u32 v{vT+4}, {LDS_ER}, v{vL16}\nv_lshlrev_b32 v{vT+5}, 2, v1\nv_add_u32 v{vT+5}, {LDS_EG}, v{vT+5}")
    for k in range(8): g(f"ds_read_b128 v[{16+4*k}:{19+4*k}], v{vT+4} offset:{k*1024}")
    g("s_waitcnt lgkmcnt(0)")
    for k in range(8): g(f"ds_read_b32 v{64+k}, v{vT+5} offset:{k*256}")
    g(f"""
    s_lshr_b32 s{sT0}, s{sHP}, 1
    s_lshl_b32 s{sT1}, s{sTB}, 2
    s_lshr_b32 s{sT2}, s{sT0}, 1
    s_add_u32 s{sT1}, s{sT1}, s{sT2}
    s_lshr_b32 s{sT2}, s{sT1}, 3
    s_lshl_b32 s{sT2}, s{sT2}, 14
    s_and_b32 s{sT1}, s{sT1}, 7
    s_lshl_b32 s{sT1}, s{sT1}, 10
    s_add_u32 s{sT1}, s{sT1}, s{sT2}
    s_add_u32 s{sT1}, s{sT1}, {WS_KVB}
    s_and_b32 s{sT0}, s{sT0}, 1
    v_and_b32 v{vT}, 15, v1
    v_bfe_u32 v{vT+1}, v1, 4, 1
    v_lshrrev_b32 v{vT+2}, 5, v1
    v_lshlrev_b32 v{vT+2}, 3, v{vT+2}
    """)
    for k in range(1, 8):
        for q in range(4): g(f"v_add_f32 v{16+q}, v{16+q}, v{16+4*k+q}")
    g("v_cvt_pk_bf16_f32 v16, v16, v17\nv_cvt_pk_bf16_f32 v17, v18, v19")
    lv, le = g.lab("L_rv"), g.lab("L_re")
    g(f"s_bitcmp1_b32 s{sHP}, 0\ns_cbranch_scc1 {lv}")
    if True:
        g(f"""
        v_and_b32 v{vT+3}, 3, v{vT}
        v_bfe_u32 v{vT+6}, v{vT}, 2, 1
        v_lshl_add_u32 v{vT+3}, v{vT+6}, 3, v{vT+3}
        v_bfe_u32 v{vT+6}, v{vT}, 3, 1
        v_lshl_add_u32 v{vT+3}, v{vT+6}, 2, v{vT+3}
        v_lshl_add_u32 v{vT+3}, v{vT+1}, 5, v{vT+3}
        v_lshl_add_u32 v{vT+3}, v{vT+3}, 4, v{vT+2}
        s_lshl_b32 s{sT0}, s{sT0}, 8
        s_add_u32 s{sT1}, s{sT1}, s{sT0}
        buffer_store_dwordx2 v[16:17], v{vT+3}, {sr(rWS)}, s{sT1} offen sc1
        s_waitcnt lgkmcnt(0)
        """)
        for k in range(1, 8): g(f"v_add_f32 v64, v64, v{64+k}")
        g(f"""
        v_mul_f32 v64, {f2h(-1.4426950408889634)}, v64
        v_exp_f32 v64, v64
        s_lshr_b32 s{sT0}, s{sHP}, 1
        s_lshl_b32 s{sT0}, s{sT0}, 6
        v_add_f32 v64, 1.0, v64
        v_rcp_f32 v64, v64
        s_lshl_b32 s{sT1}, s{sTB}, 9
        s_add_u32 s{sT1}, s{sT1}, s{sT0}
        s_add_u32 s{sT1}, s{sT1}, {WS_GATE}
        v_lshlrev_b32 v{vT+3}, 2, v1
        s_mov_b64 exec, 0xffff
        buffer_store_dword v64, v{vT+3}, {sr(rWS)}, s{sT1} offen sc1
        s_mov_b64 exec, -1
        s_branch {le}
        {lv}:
        """)
        g(f"""
    v_lshl_add_u32 v{vT+3}, v{vT+1}, 4, v{vT}
    v_lshl_add_u32 v{vT+3}, v{vT+3}, 4, v{vT+2}
    s_lshl_b32 s{sT0}, s{sT0}, 9
    s_add_u32 s{sT1}, s{sT1}, s{sT0}
    s_add_u32 s{sT1}, s{sT1}, 8192
    buffer_store_dwordx2 v[16:17], v{vT+3}, {sr(rWS)}, s{sT1} offen sc1
    s_waitcnt lgkmcnt(0)
        """)
    g(f"{le}:")

def get_nonce(g):
    lp, ok = g.lab("L_gn"), g.lab("L_gk")
    g(f"{lp}:\nv_readfirstlane_b32 s{sNONCE}, v{vNON}\ns_nop 3\ns_cmp_lg_u32 s{sNONCE}, 0\ns_cbranch_scc1 {ok}")
    spin_check(g)
    g(f"v_mov_b32 v{vT+3}, 0\nbuffer_load_dword v{vNON}, v{vT+3}, {sr(rDBG)}, 0 offen sc1\ns_waitcnt vmcnt(0)\ns_branch {lp}\n{ok}:")

def flag_store(g, off_expr_setup):
    g(off_expr_setup)
    g(f"v_mov_b32 v{vT}, s{sNONCE}\nv_mov_b32 v{vT+1}, 0\ns_mov_b64 exec, 1")
    g(f"buffer_store_dword v{vT}, v{vT+1}, {sr(rWS)}, s{sT1} offen sc1\ns_mov_b64 exec, -1")

def poll_issue(g, kind):
    if kind == 1:
        g(f"v_lshrrev_b32 v{vT}, 2, v1\nv_and_b32 v{vT+1}, 3, v1\nv_lshlrev_b32 v{vT}, 7, v{vT}\nv_lshl_add_u32 v{vFL}, v{vT+1}, 4, v{vT}\ns_mov_b32 s{sPOLL}, {WS_F1}")
    elif kind == 2:
        g(f"v_and_b32 v{vT}, 3, v1\nv_bfe_u32 v{vT+1}, v1, 2, 1\nv_lshlrev_b32 v{vT}, 4, v{vT}\nv_lshl_add_u32 v{vFL}, v{vT+1}, 7, v{vT}\ns_and_b32 s{sPOLL}, s{sHP}, 14\ns_lshl_b32 s{sPOLL}, s{sPOLL}, 7\ns_add_u32 s{sPOLL}, s{sPOLL}, {WS_F2}")
    elif kind == 3:
        g(f"v_and_b32 v{vT}, 3, v1\nv_lshlrev_b32 v{vFL}, 4, v{vT}\ns_lshl_b32 s{sPOLL}, s{sTB}, 7\ns_add_u32 s{sPOLL}, s{sPOLL}, {WS_F3}")
    else:
        g(f"v_mov_b32 v{vFL}, 0\ns_lshl_b32 s{sPOLL}, s{sTB}, 2\ns_add_u32 s{sPOLL}, s{sPOLL}, s{sI}\ns_lshl_b32 s{sPOLL}, s{sPOLL}, 7\ns_add_u32 s{sPOLL}, s{sPOLL}, {WS_F4}")
    g(f"buffer_load_dwordx4 {r(vPOLL,4)}, v{vFL}, {sr(rWS)}, s{sPOLL} offen sc1")

def poll_check(g):
    lp, ok = g.lab("L_pl"), g.lab("L_pk")
    g(f"{lp}:")
    for k in range(4): g(f"v_xor_b32 v{vPOLL+k}, s{sNONCE}, v{vPOLL+k}")
    g(f"v_or_b32 v{vPOLL}, v{vPOLL}, v{vPOLL+1}\nv_or3_b32 v{vPOLL}, v{vPOLL}, v{vPOLL+2}, v{vPOLL+3}\nv_cmp_ne_u32 vcc, 0, v{vPOLL}\ns_nop 4\ns_cbranch_vccz {ok}")
    spin_check(g)
    g(f"buffer_load_dwordx4 {r(vPOLL,4)}, v{vFL}, {sr(rWS)}, s{sPOLL} offen sc1\ns_waitcnt vmcnt(0)\ns_branch {lp}\n{ok}:")

def w0(g):
    skip = g.lab("L_w0")
    g(f"s_cmp_lg_u32 s{sW}, 0\ns_cbranch_scc1 {skip}")
    return skip

def kv_dma(g, src_expr, slot, tag):
    def setup(): g(f"s_lshl_b32 s{sT2}, s{sW}, 12\ns_add_u32 m0, s{sT2}, {slot*SLOT}"); g(src_expr)
    def op(e): return lambda: g.vmop(f"buffer_load_dwordx4 v{vL16}, {sr(rWS)}, s{sDS} offen offset:{e*1024} sc1 lds", tag)
    return [setup] + [op(e) for e in range(4)]
def dma_B(g, c, slot, tag):
    return kv_dma(g, f"s_add_u32 s{sDS}, s{sT2}, {WS_KVB + c*SLOT}", slot, tag)
def dma_A(g, c, slot, tag):
    return kv_dma(g, f"s_add_u32 s{sDS}, s{sDMA}, {WS_KVA + c*SLOT}", slot, tag)
def dma_Wo(g, rs, grp, ldsbase, tag):
    def setup(): g(f"s_lshl_b32 s{sDS}, s{sW}, 15\ns_and_b32 s{sT1}, s{sHP}, 7\ns_lshl_b32 s{sT1}, s{sT1}, 7\ns_add_u32 s{sDS}, s{sDS}, s{sT1}")
    def op(e):
        def f():
            g(f"s_lshl_b32 s{sT2}, s{sW}, 12\ns_add_u32 m0, s{sT2}, {ldsbase + grp*32768 + e*1024}\ns_add_u32 s{sT1}, s{sDS}, {grp*262144 + e*8192}")
            g.vmop(f"buffer_load_dwordx4 v{vDWO}, {sr(rs)}, s{sT1} offen lds", tag)
        return f
    return [setup] + [op(e) for e in range(4)]
def runall(fs):
    for f in fs: f()

def phase1(g, b):
    T1, TQ = ACC, ACC + 16
    def XF(s_): return PF + 12 * s_
    def W1(s_): return PF + 12 * s_ + 4
    def WQ(s_): return PF + 12 * s_ + 8
    def reads(p, s_):
        if g.opt.get('noread'): return
        g.ds(f"ds_read_b128 {r(XF(s_),4)}, v{vAX+s_} offset:{p*SLOT}", f'f{s_}')
        for e in range(2): g.ds(f"ds_read_b64_tr_b16 {r(W1(s_)+2*e,2)}, v{vAW1} offset:{p*SLOT+s_*2048+e*512}", f'f{s_}')
        for e in range(2): g.ds(f"ds_read_b64_tr_b16 {r(WQ(s_)+2*e,2)}, v{vAWQ} offset:{p*SLOT+s_*1024+e*256}", f'f{s_}')
    def mf(j, s_, which='both'):
        g.wlg(f'f{s_}')
        if g.opt.get('nomf'): return
        c1 = "0" if (j == 0 and s_ == 0) else r(T1, 16)
        cq = "0" if (j == 0 and s_ == 0) else r(TQ, 16)
        if which != 'q':
            if b == 0: g(f"v_mfma_f32_32x32x16_bf16 {r(T1,16)}, {r(W1(s_),4)}, {r(XF(s_),4)}, {c1}")
            else:      g(f"v_mfma_f32_32x32x16_bf16 {r(T1,16)}, {r(XF(s_),4)}, {r(W1(s_),4)}, {c1}")
        if which != 't': g(f"v_mfma_f32_32x32x16_bf16 {r(TQ,16)}, {r(WQ(s_),4)}, {r(XF(s_),4)}, {cq}")
    f1chk = g.opt.get('f1chk', 6)
    def wait_c(j, extra0):
        if extra0 and f'c{j}' in g.vm:
            n = len(g.vm) - 1 - (len(g.vm) - 1 - g.vm[::-1].index(f'c{j}'))
            sk, dn = g.lab("L_wa"), g.lab("L_wb")
            g(f"s_cmp_eq_u32 s{sW}, 0\ns_cbranch_scc1 {sk}")
            g.wvm(f'c{j}')
            g(f"{sk}:\ns_waitcnt vmcnt({n + extra0})")
        else: g.wvm(f'c{j}')
    jf = g.opt.get('jflag', 2); pd3 = g.opt.get('pdist', 2) == 3
    for j in range(8):
        p = j & 3
        wait_c(j, {0: 1, 1: 1 if g.opt.get('cearly', 0) else 2}.get(j, 0))
        if j == jf:
            g.wave0(lambda: get_nonce(g), lambda: flag_store(g, f"s_lshl_b32 s{sT1}, s{sTB}, 7\ns_lshl_b32 s{sT2}, s{sHP}, 2\ns_add_u32 s{sT1}, s{sT1}, s{sT2}\ns_add_u32 s{sT1}, s{sT1}, {WS_F1}"))
        if j == f1chk:
            g.wave0(lambda: poll_check(g))
        g.wlg()
        g("s_barrier")
        g.stamp(f'b{j}')
        if j in (1, 4, 6): g.jitter(3 + j)
        pd = g.opt.get('pdist', 2)
        dm = []
        if j + pd <= 7 and not (pd == 3 and j == 0): dm = p1_dma(g, j + pd)
        if pd == 3 and j == 0: dm = p1_dma(g, 2) + p1_dma(g, 3)
        if j == f1chk: dm = dma_B(g, 0, 8, 'B01')
        if len(dm) == 5: dm = [lambda a=dm[0], c=dm[1]: (a(), c())] + dm[2:]
        if len(dm) == 8: dm = [lambda a=dm[2*k], c=dm[2*k+1]: (a(), c()) for k in range(4)]
        dp = g.opt.get('dmpos', (1, 2, 3, 4))
        def issue(k):
            for q in range(len(dm)):
                if dp[q] == k: dm[q]()
        if j == f1chk - 1:
            g.wave0(lambda: poll_issue(g, 1))
        if j == 0:
            g.wave0(lambda: g(f"v_mov_b32 v{vT+3}, 0\nbuffer_load_dword v{vNON}, v{vT+3}, {sr(rDBG)}, 0 offen sc1"))
        npf = g.opt.get('l2pf', 0)
        if npf and j + npf <= 7: l2pf(g)
        issue(-1)
        reads(p, 0); reads(p, 1)
        issue(0)
        if j > 0: mf(j - 1, 3)
        issue(1)
        reads(p, 2)
        mf(j, 0)
        issue(2)
        reads(p, 3)
        mf(j, 1)
        issue(3)
        if j == 7:
            issue(4); break
        mf(j, 2)
        issue(4)
        cp = g.opt.get('calcpos', {0: (0, 0, 1, 1), 1: (9, 9, 9, 9), 2: (9, 9, 9, 0)}[g.opt.get('cearly', 0)])
        if j == cp[0]: attn_consts(g)
        if j == cp[1]: kv_store_addr(g)
        if j == cp[2]:
            for d, p_, n in ((rOUT, pOUT, 2097152), (rWOA, pWOA, 524288), (rWOB, pWOB, 524288)): g.srd_base(d, p_); g.srd_const(d, n)
        if j == cp[3]: tail_addr(g)
    g.wlg()
    g.wvm('B01')
    g("s_barrier")
    g.stamp('bstart')
    g.ds(f"ds_read_b128 {r(KF[0],4)}, v{vAK}", 'K0')
    g.ds(f"ds_read_b128 {r(KF[1],4)}, v{vAK} offset:1024", 'kv')
    g(f"s_mov_b64 exec, s[{sMASK}:{sMASK+1}]")
    g.ds(f"ds_read_b128 {r(V0[0],4)}, v{vAV}", 'kv')
    g.ds(f"ds_read_b128 {r(V1[0],4)}, v{vAV} offset:512", 'kv')
    g("s_mov_b64 exec, -1")
    mf(7, 2, 'q'); mf(7, 2, 't')
    for k in range(2, g.opt.get('m0t', 4)): g.ds(f"ds_read_b128 {r(KTB+4*(k-2),4)}, v{vAK} offset:{k*1024}", 'kv')
    mf(7, 3, 'q'); mf(7, 3, 't')

def kv_store_addr(g):
    lv, le = g.lab("L_ka"), g.lab("L_kb")
    g(f"""
    s_and_b32 s{sT1}, s{sHP}, 14
    s_add_u32 s{sT1}, s{sT1}, s{sB}
    s_lshl_b32 s{sT1}, s{sT1}, 18
    s_lshr_b32 s{sT2}, s{sTB}, 1
    s_lshl_b32 s{sT2}, s{sT2}, 14
    s_add_u32 s{sT1}, s{sT1}, s{sT2}
    s_and_b32 s{sT2}, s{sTB}, 1
    s_lshl_b32 s{sT2}, s{sT2}, 2
    s_add_u32 s{sT2}, s{sT2}, s{sI}
    s_lshl_b32 s{sT2}, s{sT2}, 10
    s_add_u32 s{sKV}, s{sT1}, s{sT2}
    s_mov_b32 s{sSC}, {f2h(QSCALE)}
    s_mov_b32 s{sSC+1}, {f2h(QSCALE)}
    s_bitcmp1_b32 s{sHP}, 0
    s_cbranch_scc1 {lv}
    v_and_b32 v{vT}, 0x33, v1
    v_bfe_u32 v{vT+1}, v1, 2, 1
    v_lshl_or_b32 v{vT}, v{vT+1}, 3, v{vT}
    v_bfe_u32 v{vT+1}, v1, 3, 1
    v_lshl_or_b32 v{vT}, v{vT+1}, 2, v{vT}
    v_lshlrev_b32 v{vKVST}, 4, v{vT}
    s_add_u32 s{sKV1}, s{sKV}, 131072
    s_branch {le}
    {lv}:
    v_bfe_u32 v{vT}, v1, 4, 1
    v_lshlrev_b32 v{vT}, 17, v{vT}
    v_lshrrev_b32 v{vT+1}, 5, v1
    v_and_b32 v{vT+2}, 15, v1
    v_lshl_add_u32 v{vT+1}, v{vT+1}, 4, v{vT+2}
    v_lshl_add_u32 v{vKVST}, v{vT+1}, 4, v{vT}
    s_add_u32 s{sKV}, s{sKV}, 8192
    s_add_u32 s{sKV1}, s{sKV}, 512
    {le}:
    """)

def max_tree(Ss):
    regs = [S + k for S in Ss for k in range(16)]
    L = [f"v_max3_f32 v{vT}, v{regs[0]}, v{regs[1]}, v{regs[2]}", f"v_max3_f32 v{vT+1}, v{regs[3]}, v{regs[4]}, v{regs[5]}"]
    rest, k = regs[6:], 0
    while len(rest) >= 2:
        L.append(f"v_max3_f32 v{vT+k}, v{vT+k}, v{rest[0]}, v{rest[1]}"); rest = rest[2:]; k ^= 1
    L += [f"v_max_f32 v{vT}, v{vT}, v{vT+1}", f"v_mov_b32 v{vT+1}, v{vT}"]
    return L
def fill_c(Cr, off):
    L = [f"v_max_f32 v{vT}, v{vT}, v{vT+1}", f"v_sub_f32 v{Cr}, {f2h(-off)}, v{vT}", f"v_sub_f32 v{Cr+1}, {f2h(-off)}, v{vT}"]
    L += [f"v_mov_b64 v[{Cr+k}:{Cr+k+1}], v[{Cr}:{Cr+1}]" for k in range(2, 16, 2)]
    return "\n".join(L)
SWAP = f"v_permlane32_swap_b32 v{vT}, v{vT+1}"

def b_prologue(g):
    T1, TQ = ACC, ACC + 16
    g(f"v_mov_b64 v[{vT+4}:{vT+5}], -1\nv_mov_b64 v[{vT+6}:{vT+7}], -1\ns_nop 8")
    for k in range(8, 16, 2): g(f"v_pk_mul_f32 v[{TQ+k}:{TQ+k+1}], v[{TQ+k}:{TQ+k+1}], s[{sSC}:{sSC+1}]")
    for k in range(4): g(f"v_cvt_pk_bf16_f32 v{QB+k}, v{TQ+8+2*k}, v{TQ+9+2*k}")
    g.wlg('K0'); g("s_nop 0")
    nt = g.opt.get('m0t', 4)
    if nt > 1: g.wlg()
    for k in range(nt): g(f"v_mfma_f32_32x32x16_bf16 {r(STB[k],16)}, {r((KF[0], KF[1], KTB, KTB+4)[k],4)}, {r(QB,4)}, 0")
    for k in range(8): g(f"v_cvt_pk_bf16_f32 v{PF+k}, v{T1+2*k}, v{T1+2*k+1}")
    for k in range(0, 8, 2): g(f"v_pk_mul_f32 v[{TQ+k}:{TQ+k+1}], v[{TQ+k}:{TQ+k+1}], s[{sSC}:{sSC+1}]")
    L = max_tree(STB[:nt])
    for k, x in enumerate(L):
        g(x)
    g("s_nop 1")
    g(SWAP)
    g("s_nop 0")
    g(fill_c(C, g.opt.get('moff', MOFF)))
    g("s_nop 1")
    g(f"v_mfma_f32_32x32x16_bf16 {r(S0,16)}, {r(KF[0],4)}, {r(QB,4)}, {r(C,16)}")
    for k in range(4): g(f"v_cvt_pk_bf16_f32 v{QA+k}, v{TQ+2*k}, v{TQ+2*k+1}")
    g("s_nop 7")

def start_ops(g):
    def kv(k): return lambda: g.vmop(f"buffer_store_dwordx4 {r(PF+4*k,4)}, v{vKVST}, {sr(rWS)}, s{(sKV, sKV1)[k]} offen sc1", 'kvst')
    def sent():
        g(f"s_add_u32 s{sT1}, s{sOST}, {WS_O + 0x200000}")
        g.vmop(f"buffer_store_dwordx4 {r(vT+4,4)}, v{vL16}, {sr(rWS)}, s{sT1} offen sc1", 'sent')
    def gate():
        g(f"v_and_b32 v{vT}, 31, v1\nv_lshlrev_b32 v{vT}, 2, v{vT}\ns_lshl_b32 s{sT1}, s{sTB}, 2\ns_add_u32 s{sT1}, s{sT1}, s{sI}\ns_lshl_b32 s{sT1}, s{sT1}, 7\ns_add_u32 s{sT1}, s{sT1}, {WS_GATE}")
        g.vmop(f"buffer_load_dword v{vG}, v{vT}, {sr(rWS)}, s{sT1} offen sc1", 'gate')
    return kv(0), kv(1), sent, gate

def attn_consts(g):
    g(f"""
    v_mov_b32 v{vIDX}, 0xdddddddd
    v_lshrrev_b32 v{vT}, 5, v1
    v_and_b32 v{vT+1}, 15, v1
    v_lshl_add_u32 v{vT}, v{vT}, 4, v{vT+1}
    v_lshlrev_b32 v{vVOFF}, 4, v{vT}
    v_and_b32 v{vT}, 31, v1
    v_cmp_eq_u32 vcc, 16, v{vT}
    v_mov_b32 v{vT+1}, 0x3f803f80
    v_add_u32 v{vAK}, {8*SLOT}, v{vL16}
    v_cndmask_b32 v{vT+1}, 0, v{vT+1}, vcc
    v_add_u32 v{vAV}, {8*SLOT + 8192}, v{vVOFF}
    """)
    for k in range(16): g(f"v_mov_b32 v{V0[0]+k}, v{vT+1}")
    for Or in OACC:
        for k in range(0, 16, 2): g(f"v_mov_b64 v[{Or+k}:{Or+k+1}], 0")
    g(f"""
    s_lshl_b32 s{sT1}, s{sHP}, 1
    s_add_u32 s{sT1}, s{sT1}, s{sB}
    s_lshl_b32 s{sDMA}, s{sT1}, 17
    s_lshl_b32 s{sT2}, s{sI}, 12
    s_add_u32 s{sDMA}, s{sDMA}, s{sT2}
    s_lshl_b32 s{sT2}, s{sTB}, 2
    s_add_u32 s{sT2}, s{sT2}, s{sI}
    s_lshl_b32 s{sT2}, s{sT2}, 5
    s_add_u32 s{sT2}, s{sT2}, s{sT1}
    s_lshl_b32 s{sOST}, s{sT2}, 10
    """)

def tile(g, U, ev, pos):
    t = U & 7
    p = U & 1
    cur, nxt = (S0, S1) if p == 0 else (S1, S0)
    p1, pq, p0 = pos
    Qn = QB if U + 1 < 64 else QA
    def run(key):
        for f in ev.get((U, key), []): f()
    for i in range(16):
        if i == p1:
            if U > 0: g(f"v_smfmac_f32_32x32x32_bf16 {r(OACC[(U-1) >> 6],16)}, {r(V1[1-p],4)}, {r(nxt+8,8)}, v{vIDX}")
            run('m1')
            for o_ in g.opt.get('gord', 'mw01rk'):
                if o_ == 'w': g.wlg()
                if o_ == 'm' and U < 127: g(f"s_mov_b64 exec, s[{sMASK}:{sMASK+1}]")
                if o_ == '0' and U < 127: g.ds(f"ds_read_b128 {r(V0[1-p],4)}, v{vAV} offset:{((t + 1) & 7) * 1024}", 'kv')
                if o_ == '1' and U < 127: g.ds(f"ds_read_b128 {r(V1[1-p],4)}, v{vAV} offset:{((t + 1) & 7) * 1024 + 512}", 'kv')
                if o_ == 'r' and U < 127: g("s_mov_b64 exec, -1")
                if o_ == 'k' and U < 126: g.ds(f"ds_read_b128 {r(KF[p],4)}, v{vAK} offset:{((t + 2) & 7) * 1024}", 'kv')
            run('gap')
        if i == pq:
            if U < 127: g(f"v_mfma_f32_32x32x16_bf16 {r(nxt,16)}, {r(KF[1-p],4)}, {r(Qn,4)}, {r(C,16)}")
            run('mq')
        if i == p0:
            g(f"v_smfmac_f32_32x32x32_bf16 {r(OACC[U >> 6],16)}, {r(V0[p],4)}, {r(cur,8)}, v{vIDX}")
            run('m0')
        run(i)
        g(f"v_exp_f32 v{cur+i}, v{cur+i}")
    if U == 127:
        g("s_nop 1")
        g(f"v_smfmac_f32_32x32x32_bf16 {r(OACC[1],16)}, {r(V1[p],4)}, {r(cur+8,8)}, v{vIDX}")

def epilogue_parts(g, task):
    O = OACC[task]
    lo, hi = struct.unpack('<I', struct.pack('<f', 2.0**g.opt.get('lo', -110)))[0], struct.unpack('<I', struct.pack('<f', 2.0**120))[0]
    def p1():
        g(f"v_mov_b32 v{vT}, v{O+8}\nv_add_f32 v{vT+2}, |v{O}|, |v{O+1}|")
        for k in range(2, 8): g(f"v_add_f32 v{vT+2}, v{vT+2}, |v{O+k}|")
        g(f"v_permlane32_swap_b32 v{vT}, v{O+8}")
        g(f"v_subrev_u32 v{vT+2}, {lo}, v{vT+2}\ns_mov_b32 s{sT1}, {hi - lo}")
    def p2():
        g(f"v_subrev_u32 v{vT+3}, {lo}, v{vT}\nv_max_u32 v{vT+2}, v{vT+2}, v{vT+3}\nv_cmp_le_u32 vcc, s{sT1}, v{vT+2}")
        if g.opt.get('force_fb'): g("s_mov_b64 vcc, -1")
        g(f"s_nop 0\ns_cbranch_vccnz L_fallback{task}\nL_fbret{task}:\nv_rcp_f32 v{vT}, v{vT}")
        if task == 0: g(f"v_sub_f32 v{vT+3}, 1.0, v{vG}")
    def p3():
        g(f"v_mul_f32 v{vT}, v{vT}, v{vT+3 if task == 0 else vG}")
        for k in range(0, 8, 2): g(f"v_pk_mul_f32 v[{O+k}:{O+k+1}], v[{O+k}:{O+k+1}], v[{vT}:{vT+1}] op_sel_hi:[1,0]")
        for k in range(4): g(f"v_cvt_pk_bf16_f32 v{vT+4+k}, v{O+2*k}, v{O+2*k+1}")
        if task == 1:
            for k in range(4): g(f"v_min_u32 v{vT+4+k}, -2, v{vT+4+k}")
        g(f"s_add_u32 s{sT1}, s{sOST}, {WS_O + (0 if task == 0 else 0x200000)}")
        g.vmop(f"buffer_store_dwordx4 {r(vT+4,4)}, v{vL16}, {sr(rWS)}, s{sT1} offen sc1", 'ost')
    return p1, p2, p3

def fallback(g, task):
    Q, O = (QB, QA)[task], OACC[task]
    S_, C_, K_, A0, A1 = FB_S, FB_C, FB_K, FB_V0, FB_V1
    g(f"L_fallback{task}:")
    if g.opt.get('fbcount'):
        g(f"v_mov_b32 v{vT}, 1\nv_mov_b32 v{vT+1}, 0\ns_mov_b64 exec, 1\nbuffer_atomic_add v{vT}, v{vT+1}, {sr(rDBG)}, 0 offen offset:128\ns_mov_b64 exec, -1")
    if task == 0: g(f"s_mov_b32 s{sFBBASE}, {WS_KVB}")
    else: g(f"s_lshl_b32 s{sT1}, s{sI}, 12\ns_sub_u32 s{sFBBASE}, s{sDMA}, s{sT1}")
    g(f"v_and_b32 v{vT}, 31, v1\nv_cmp_eq_u32 vcc, 16, v{vT}\nv_mov_b32 v{vT+1}, 0x3f803f80\ns_nop 1\nv_cndmask_b32 v{vT+1}, 0, v{vT+1}, vcc")
    for k in range(8): g(f"v_mov_b32 v{A0+k}, v{vT+1}")
    g(f"v_mov_b32 v{vT}, 0xff800000\ns_mov_b32 s{sFBT}, 0")
    def addr():
        g(f"s_lshr_b32 s{sT1}, s{sFBT}, 3\ns_lshl_b32 s{sT1}, s{sT1}, 14\ns_and_b32 s{sT2}, s{sFBT}, 7\ns_lshl_b32 s{sT2}, s{sT2}, 10\ns_add_u32 s{sT1}, s{sT1}, s{sT2}\ns_add_u32 s{sT1}, s{sT1}, s{sFBBASE}")
    g(f"L_fb1_{task}:"); addr()
    g(f"buffer_load_dwordx4 {r(K_,4)}, v{vL16}, {sr(rWS)}, s{sT1} offen sc1\ns_waitcnt vmcnt(0)")
    g(f"v_mfma_f32_32x32x16_bf16 {r(S_,16)}, {r(K_,4)}, {r(Q,4)}, 0\ns_nop 15")
    for k in range(0, 16, 2): g(f"v_max3_f32 v{vT}, v{vT}, v{S_+k}, v{S_+k+1}")
    g(f"s_add_u32 s{sFBT}, s{sFBT}, 1\ns_cmp_lt_u32 s{sFBT}, 64\ns_cbranch_scc1 L_fb1_{task}")
    g(f"v_mov_b32 v{vT+1}, v{vT}\ns_nop 1\n{SWAP}\ns_nop 1")
    g(fill_c(C_, 0.0))
    for k in range(0, 16, 2): g(f"v_mov_b64 v[{O+k}:{O+k+1}], 0")
    g(f"s_mov_b32 s{sFBT}, 0")
    g(f"L_fb2_{task}:"); addr()
    g(f"buffer_load_dwordx4 {r(K_,4)}, v{vL16}, {sr(rWS)}, s{sT1} offen sc1\ns_add_u32 s{sT1}, s{sT1}, 8192")
    g(f"s_mov_b64 exec, s[{sMASK}:{sMASK+1}]")
    g(f"buffer_load_dwordx4 {r(A0,4)}, v{vVOFF}, {sr(rWS)}, s{sT1} offen sc1\nbuffer_load_dwordx4 {r(A1,4)}, v{vVOFF}, {sr(rWS)}, s{sT1} offen offset:512 sc1")
    g("s_mov_b64 exec, -1\ns_waitcnt vmcnt(0)")
    g(f"v_mfma_f32_32x32x16_bf16 {r(S_,16)}, {r(K_,4)}, {r(Q,4)}, {r(C_,16)}\ns_nop 15")
    for k in range(16): g(f"v_exp_f32 v{S_+k}, v{S_+k}")
    g("s_nop 2")
    g(f"v_smfmac_f32_32x32x32_bf16 {r(O,16)}, {r(A0,4)}, {r(S_,8)}, v{vIDX}")
    g(f"v_smfmac_f32_32x32x32_bf16 {r(O,16)}, {r(A1,4)}, {r(S_+8,8)}, v{vIDX}")
    g(f"s_nop 15\ns_add_u32 s{sFBT}, s{sFBT}, 1\ns_cmp_lt_u32 s{sFBT}, 64\ns_cbranch_scc1 L_fb2_{task}")
    g(f"v_mov_b32 v{vT}, v{O+8}\nv_mov_b32 v{vT+1}, v{O+8}\ns_nop 1\n{SWAP}\ns_nop 1\ns_branch L_fbret{task}")

def tail_addr(g):
    g(f"""
    v_lshrrev_b32 v{vT}, 3, v1
    v_bfe_u32 v{vT+1}, v1, 2, 1
    v_bfe_u32 v{vT+2}, v1, 4, 1
    v_xor_b32 v{vT+1}, v{vT+1}, v{vT+2}
    v_lshlrev_b32 v{vT+1}, 6, v{vT+1}
    v_lshl_add_u32 v{vT+1}, v{vT}, 10, v{vT+1}
    v_and_b32 v{vT+3}, 3, v1
    v_lshl_add_u32 v{vDWO}, v{vT+3}, 4, v{vT+1}
    v_lshrrev_b32 v{vT}, 5, v1
    v_bfe_u32 v{vT+1}, v1, 2, 2
    v_lshl_add_u32 v{vT}, v{vT}, 2, v{vT+1}
    v_lshlrev_b32 v{vT}, 7, v{vT}
    v_bfe_u32 v{vT+1}, v1, 3, 1
    v_lshl_add_u32 v{vT}, v{vT+1}, 6, v{vT}
    v_lshl_add_u32 v{vT}, v{vT+2}, 5, v{vT}
    v_lshl_add_u32 v{vT}, v{vT+3}, 3, v{vT}
    s_lshl_b32 s{sT1}, s{sI}, 13
    s_add_u32 s{sT1}, s{sT1}, {LDS_WOB}
    s_lshr_b32 s{sT2}, s{sHP}, 3
    s_lshl_b32 s{sT2}, s{sT2}, 15
    s_add_u32 s{sT1}, s{sT1}, s{sT2}
    v_add_u32 v{vAT+2}, s{sT1}, v{vT}
    v_xor_b32 v{vAT+3}, 64, v{vAT+2}
    s_lshl_b32 s{sT2}, s{sT2}, 1
    s_sub_u32 s{sT1}, s{sT1}, s{sT2}
    s_add_u32 s{sT1}, s{sT1}, 32768
    v_add_u32 v{vAT}, s{sT1}, v{vT}
    v_xor_b32 v{vAT+1}, 64, v{vAT}
    s_mul_i32 s{sT1}, s{sW}, 6144
    v_add_u32 v{vRR}, s{sT1}, v{vL16}
    s_lshl_b32 s{sT1}, s{sTB}, 7
    s_lshr_b32 s{sT2}, s{sHP}, 3
    s_lshl_b32 s{sT2}, s{sT2}, 6
    s_add_u32 s{sT1}, s{sT1}, s{sT2}
    s_lshl_b32 s{sT2}, s{sB}, 5
    s_add_u32 s{sT1}, s{sT1}, s{sT2}
    v_and_b32 v{vT}, 31, v1
    v_add_u32 v{vT}, s{sT1}, v{vT}
    v_lshlrev_b32 v{vT}, 10, v{vT}
    v_lshrrev_b32 v{vT+1}, 5, v1
    v_lshl_add_u32 v{vT}, v{vT+1}, 4, v{vT}
    s_and_b32 s{sT2}, s{sHP}, 7
    s_lshl_b32 s{sT2}, s{sT2}, 7
    s_lshl_b32 s{sT1}, s{sI}, 5
    s_add_u32 s{sT2}, s{sT2}, s{sT1}
    v_add_u32 v{vOUTA}, s{sT2}, v{vT}
    """)

def of_loads(g, branch, tag, dst=None):
    dst = OF if dst is None else dst
    def setup():
        g(f"""
        s_lshl_b32 s{sT1}, s{sTB}, 2
        s_lshr_b32 s{sT2}, s{sHP}, 3
        s_lshl_b32 s{sT2}, s{sT2}, 1
        s_add_u32 s{sT1}, s{sT1}, s{sT2}
        s_add_u32 s{sT1}, s{sT1}, s{sB}
        s_lshl_b32 s{sT1}, s{sT1}, 15
        s_lshl_b32 s{sT2}, s{sI}, 12
        s_add_u32 s{sT1}, s{sT1}, s{sT2}
        s_add_u32 s{sT1}, s{sT1}, {WS_O + branch*0x200000}
        s_lshr_b32 s{sT2}, s{sHP}, 3
        s_lshl_b32 s{sT2}, s{sT2}, 14
        s_add_u32 s{sOF+1}, s{sT1}, s{sT2}
        s_sub_u32 s{sT1}, s{sT1}, s{sT2}
        s_add_u32 s{sOF}, s{sT1}, 16384
        """)
    def op(n): return lambda: g.vmop(f"buffer_load_dwordx4 {r(dst+4*n,4)}, v{vL16}, {sr(rWS)}, s{sOF + (n >> 2)} offen offset:{(n&3)*1024} sc1", f'{tag}{n}')
    return [setup] + [op(n) for n in range(8)]

def wfrag_reads(g, n, base, tag):
    for tc in range(2):
        for e in range(2):
            g.ds(f"ds_read_b64_tr_b16 {r(WF+8*n+4*tc+2*e,2)}, v{vAT+2*(n>>2)+tc} offset:{base+(n&3)*2048+e*1024}", f'{tag}{n}')

def tail(g):
    OA = PF
    p1, p2, p3 = epilogue_parts(g, 1)
    fa = of_loads(g, 1, 'OA', OA)
    oat = list(g.opt.get('oat', (8, 8, 8, 8, 9, 9, 10, 10)))
    for n in range(3): wfrag_reads(g, n, 0, 'w')
    p1(); g("s_nop 0"); p2(); fa[0](); p3()
    g.stamp('A')
    g.jitter(200)
    t1at = g.opt.get('t1at', 0)
    g.wvm('OB7')
    if t1at == 0:
        g.wvm('WoA1'); g("s_barrier")
    g.stamp('T1')
    DA = LDS_WOA - LDS_WOB
    nload = 0
    for n in range(8):
        g.wlg(f'w{n}')
        for tc in range(2):
            c = "0" if n == 0 else r(ACC+16*tc, 16)
            g(f"v_mfma_f32_32x32x16_bf16 {r(ACC+16*tc,16)}, {r(WF+8*n+4*tc,4)}, {r(OF+4*n,4)}, {c}")
        if n == t1at and n > 0:
            g.wvm('WoA1'); g("s_barrier")
        if n + 3 < 8: wfrag_reads(g, n + 3, 0, 'w')
        else: wfrag_reads(g, n - 5, 0, 'x')
        if n in (1, 5):
            for k in range(2): g(f"v_add_u32 v{vAT + (n >> 2) * 2 + k}, {DA}, v{vAT + (n >> 2) * 2 + k}")
        for k in range(8):
            if oat[k] == n: fa[1 + k]()
    g.stamp('bp')
    for n in range(3, 8):
        g.wlg(f'x{n-3}')
        wfrag_reads(g, n, 0, 'x')
        for k in range(8):
            if oat[k] == n + 5: fa[1 + k]()
    full = g.opt.get('red', 'full') == 'full'
    if not full:
        for d in range(4):
            g(f"s_sub_u32 s{sT1}, {d + 3}, s{sI}\ns_and_b32 s{sT1}, s{sT1}, 3\ns_lshl_b32 s{sT1}, s{sT1}, 11\ns_mul_i32 s{sT2}, s{sB}, 24576\ns_add_u32 s{sT1}, s{sT1}, s{sT2}\ns_add_u32 s{sT1}, s{sT1}, {d * 6144}\nv_add_u32 v{vT+4+d}, s{sT1}, v{vL16}")
    else:
        RW = 80
        g(f"""
        v_and_b32 v{vT}, 31, v1
        v_lshrrev_b32 v{vT+1}, 5, v1
        v_and_b32 v{vT+2}, 15, v1
        v_xor_b32 v{vT+1}, v{vT+1}, v{vT+2}
        v_lshlrev_b32 v{vT+1}, 4, v{vT+1}
        v_lshl_add_u32 v{vT}, v{vT}, 8, v{vT+1}
        s_lshl_b32 s{sT1}, s{sW}, 13
        v_add_u32 v{RW}, s{sT1}, v{vT}
        v_lshrrev_b32 v{vT}, 3, v1
        s_lshl_b32 s{sT1}, s{sI}, 3
        v_add_u32 v{vT}, s{sT1}, v{vT}
        v_and_b32 v{vT+1}, 7, v1
        v_lshlrev_b32 v{vT+2}, 1, v{vT+1}
        v_and_b32 v{vT+3}, 15, v{vT}
        v_xor_b32 v{vT+2}, v{vT+2}, v{vT+3}
        v_lshlrev_b32 v{vT+2}, 4, v{vT+2}
        v_lshl_add_u32 v{vT+2}, v{vT}, 8, v{vT+2}
        s_lshl_b32 s{sT1}, s{sB}, 15
        v_add_u32 v{RW+8}, s{sT1}, v{vT+2}
        v_xor_b32 v{RW+9}, 16, v{RW+8}
        s_lshl_b32 s{sT1}, s{sTB}, 7
        s_lshr_b32 s{sT2}, s{sHP}, 3
        s_lshl_b32 s{sT2}, s{sT2}, 6
        s_add_u32 s{sT1}, s{sT1}, s{sT2}
        s_lshl_b32 s{sT2}, s{sB}, 5
        s_add_u32 s{sT1}, s{sT1}, s{sT2}
        v_add_u32 v{vT}, s{sT1}, v{vT}
        v_lshlrev_b32 v{vT}, 10, v{vT}
        v_lshl_add_u32 v{vT}, v{vT+1}, 4, v{vT}
        s_and_b32 s{sT2}, s{sHP}, 7
        s_lshl_b32 s{sT2}, s{sT2}, 7
        v_add_u32 v{vOUTA}, s{sT2}, v{vT}
        """)
        for k in range(1, 8): g(f"v_xor_b32 v{RW+k}, {k*32}, v{RW}")
    g.wlg()
    if g.opt.get('t2early', 1): g("s_barrier")
    g.stamp('poll')
    def check(q, bad):
        R = OA + 16 * q
        g(f"v_max3_u32 v{vT}, v{R}, v{R+1}, v{R+2}\nv_max3_u32 v{vT+1}, v{R+3}, v{R+4}, v{R+5}")
        for k in range(6, 16, 4):
            g(f"v_max3_u32 v{vT}, v{vT}, v{R+k}, v{R+k+1}")
            if k + 3 < 16: g(f"v_max3_u32 v{vT+1}, v{vT+1}, v{R+k+2}, v{R+k+3}")
        g(f"v_max_u32 v{vT}, v{vT}, v{vT+1}\nv_cmp_eq_u32 vcc, -1, v{vT}\ns_nop 0\ns_cbranch_vccnz {bad}")
        for tc in range(2):
            for n in range(4 * q, 4 * q + 4):
                g(f"v_mfma_f32_32x32x16_bf16 {r(ACC+16*tc,16)}, {r(WF+8*n+4*tc,4)}, {r(OA+4*n,4)}, {r(ACC+16*tc,16)}")
    g(f"s_mov_b32 s{sDS}, 0")
    for q in range(2):
        sk, bad = g.lab("L_oa"), g.lab("L_ob")
        g.wvm(f'OA{4*q+3}')
        check(q, bad)
        g(f"s_branch {sk}\n{bad}:\ns_bitset1_b32 s{sDS}, {q}\n{sk}:")
    g.stamp('pass1')
    g(f"L_oa_loop:\ns_cmp_eq_u32 s{sDS}, 0\ns_cbranch_scc1 L_oa_done")
    spin_check(g)
    for q in range(2):
        sk = g.lab("L_oc")
        g(f"s_bitcmp1_b32 s{sDS}, {q}\ns_cbranch_scc0 {sk}")
        for n in range(4 * q, 4 * q + 4): fa[1 + n]()
        g.vm = []
        g(f"{sk}:")
    g("s_waitcnt vmcnt(0)")
    for q in range(2):
        sk = g.lab("L_od")
        g(f"s_bitcmp1_b32 s{sDS}, {q}\ns_cbranch_scc0 {sk}")
        check(q, sk)
        g(f"s_bitset0_b32 s{sDS}, {q}\n{sk}:")
    g("s_branch L_oa_loop\nL_oa_done:")
    g.stamp('mm')
    g.jitter(201)
    if full:
        if not g.opt.get('t2early', 1): g("s_barrier")
        g("s_nop 5")
        for tc in range(2):
            if tc == 1: g("s_nop 1")
            for q in range(4): g.ds(f"ds_write_b128 v{RW+4*tc+q}, {r(ACC+16*tc+4*q,4)}", 'rw')
        g.wlg()
        g("s_barrier")
        g.stamp('red')
        for kq in range(4):
            for e in range(2): g.ds(f"ds_read_b128 {r(16+8*kq+4*e,4)}, v{RW+8+e} offset:{kq*8192}", f'rr{kq}')
        g.wlg('rr1')
        for k in range(0, 8, 2): g(f"v_pk_add_f32 v[{16+k}:{17+k}], v[{16+k}:{17+k}], v[{24+k}:{25+k}]")
        g.wlg('rr3')
        for k in range(0, 8, 2): g(f"v_pk_add_f32 v[{32+k}:{33+k}], v[{32+k}:{33+k}], v[{40+k}:{41+k}]")
        for k in range(0, 8, 2): g(f"v_pk_add_f32 v[{16+k}:{17+k}], v[{16+k}:{17+k}], v[{32+k}:{33+k}]")
        for k in range(4): g(f"v_cvt_pk_bf16_f32 v{16+k}, v{16+2*k}, v{17+2*k}")
        g.vmop(f"buffer_store_dwordx4 v[16:19], v{vOUTA}, {sr(rOUT)}, 0 offen {g.opt.get('outsc', 'nt')}", 'out')
        return
    if not g.opt.get('t2early', 1): g("s_barrier")
    g("s_nop 3")
    def piece(d): return ACC + 16 * (d >> 1) + 8 * (d & 1)
    for d in range(4):
        sk = g.lab("L_rw")
        if d == 2: g("s_nop 6")
        g(f"s_cmp_eq_u32 s{sI}, {d}\ns_cbranch_scc1 {sk}")
        g(f"ds_write_b128 v{vT+4+d}, {r(piece(d),4)}\nds_write_b128 v{vT+4+d}, {r(piece(d)+4,4)} offset:1024\n{sk}:")
    lj = g.lab("L_rj")
    for d in range(4):
        sk = g.lab("L_rs")
        if d < 3: g(f"s_cmp_lg_u32 s{sI}, {d}\ns_cbranch_scc1 {sk}")
        for k in range(0, 8, 2): g(f"v_mov_b64 v[{40+k}:{41+k}], v[{piece(d)+k}:{piece(d)+k+1}]")
        if d < 3: g(f"s_branch {lj}\n{sk}:")
    g(f"{lj}:")
    g("s_waitcnt lgkmcnt(0)\ns_barrier")
    g.stamp('red')
    for k in range(3):
        for e in range(2):
            g.ds(f"ds_read_b128 {r(16+8*k+4*e,4)}, v{vRR} offset:{k*2048+e*1024}", f'rr{k}')
    g.wlg('rr0')
    for k in range(0, 8, 2): g(f"v_pk_add_f32 v[{40+k}:{41+k}], v[{40+k}:{41+k}], v[{16+k}:{17+k}]")
    g.wlg('rr2')
    for k in range(0, 8, 2): g(f"v_pk_add_f32 v[{24+k}:{25+k}], v[{24+k}:{25+k}], v[{32+k}:{33+k}]")
    for k in range(0, 8, 2): g(f"v_pk_add_f32 v[{40+k}:{41+k}], v[{40+k}:{41+k}], v[{24+k}:{25+k}]")
    for k in range(4): g(f"v_cvt_pk_bf16_f32 v{16+k}, v{40+2*k}, v{41+2*k}")
    g("s_nop 1\nv_permlane32_swap_b32 v16, v18\nv_permlane32_swap_b32 v17, v19")
    g.vmop(f"buffer_store_dwordx4 v[16:19], v{vOUTA}, {sr(rOUT)}, 0 offen {g.opt.get('outsc', 'nt')}", 'out')

def schedule(g):
    o = g.opt
    ev = {}
    def at(T, key, *fs): ev.setdefault((T, key), []).extend(fs)
    dpos = o.get('dpos', ((2, 'm0'), (3, 'm0'), (4, 'm0'), (5, 'm0')))
    pp = o.get('pp', {(2, 'mq'): 3, (5, 'm0'): 2, (0, 'm0'): 1, (1, 'mq'): 0})
    def wave0(*fs): return lambda: g.wave0(*fs)
    def flag(base, hi, lo):
        return lambda: flag_store(g, f"s_lshl_b32 s{sT1}, s{hi}, 7\ns_lshl_b32 s{sT2}, s{lo}, 2\ns_add_u32 s{sT1}, s{sT1}, s{sT2}\ns_add_u32 s{sT1}, s{sT1}, {base}")
    def slot(gi): return slotB(gi) if gi < 8 else slotA(gi - 8)
    def vadd(reg, src, gi):
        d = ((slot(gi + 1) - slot(gi)) * SLOT) & 0xffffffff
        if gi != 7: return lambda: g(f"v_add_u32 v{reg}, {d}, v{src}")
        return lambda: g(f"s_lshl_b32 s{sT1}, s{sB}, 14\ns_add_u32 s{sT1}, s{sT1}, {d}\nv_add_u32 v{reg}, s{sT1}, v{src}")
    nt = o.get('m0t', 4)
    at(59, 0, vadd(vT + 3, vAK, 7))
    for k in range(nt):
        at(59, 'gap', lambda k=k: g.ds(f"ds_read_b128 {r(KTMP+4*k,4)}, v{vT+3} offset:{k*1024}", 'kv'))
        at(60 + k // 2, 7 if k % 2 == 0 else 13, lambda k=k: g(f"v_mfma_f32_32x32x16_bf16 {r(STMP[k],16)}, {r(KTMP+4*k,4)}, {r(QA,4)}, 0"))
    L = max_tree(STMP[:nt])
    if nt > 2:
        at(61, 6, lambda: g("\n".join(L[:8]))); at(62, 1, lambda: g("\n".join(L[8:16]))); at(62, 6, lambda: g("\n".join(L[16:])))
    else:
        at(61, 6, lambda: g("\n".join(L[:8]))); at(62, 6, lambda: g("\n".join(L[8:])))
    at(62, 8, lambda: g(SWAP))
    at(62, 12, lambda: g(fill_c(C, o.get('moff', MOFF))))
    e1, e2, e3 = epilogue_parts(g, 0)
    at(65, 0, e1); at(65, 1, e2); at(65, 6, e3, lambda: g.stamp('B'))
    fs = dma_B(g, 2, 0, 'G1')
    at(0, 6, fs[0], fs[1]); at(0, 13, fs[2]); at(1, 1, fs[3]); at(1, 6, fs[4])
    k0, k1, sent, gate = start_ops(g)
    at(4, 6, k0); at(5, 6, k1); at(6, 6, sent); at(7, 6, gate)
    for U in (3, 17, 30, 63, 70, 90, 111, 125): at(U, 9, lambda U=U: g.jitter(U))
    for gi in range(16):
        T0 = 8 * gi
        ppc = dict(pp)
        if gi == 15:
            ppc = {k: v for k, v in pp.items() if k[0] < 2}
            ppc.update(o.get('pplast', {(2, 'm1'): 3, (3, 'm0'): 2, (5, 'm0'): 1, (7, 'm1'): 0}))
        for (t, key), pr in ppc.items(): at(T0 + t, key, lambda pr=pr: g(f"s_setprio {pr}"))
        if gi < 15:
            at(T0 + 6, 0, vadd(vAK, vAK, gi))
            at(T0 + 7, 0, vadd(vAV, vAV, gi))
        wait = {1: 'G1', 2: 'kvst', 3: 'G3', 4: None, 7: 'A0', 8: 'A1', 9: 'A2', 10: 'ost', 11: 'A4', 12: 'A5', 13: 'A6', 14: 'WoB0', 15: 'WoB1'}
        if gi == 4: at(T0 + 1, 1, lambda: g.wvm(), wave0(lambda: poll_check(g)))
        if gi == 14: at(T0 + 1, 1, lambda: g.wvm('WoB0'), wave0(lambda: poll_check(g)))
        if gi in wait: at(T0 + 1, 'm0', lambda w=wait[gi]: g.wvm(w))
        if gi not in o.get('nobar', ()): at(T0 + 1, 'm0', lambda: g("s_barrier"))
        at(T0 + 1, 'm0', lambda gi=gi: g.stamp(f'g{gi}'))
        grp = {0: lambda: dma_B(g, 4, 2, 'G2'), 1: lambda: dma_B(g, 6, 4, 'G3'),
               4: lambda: dma_A(g, 0, 6, 'A0'), 5: lambda: dma_A(g, 1, 8, 'A1'), 6: lambda: dma_A(g, 2, 0, 'A2'), 7: lambda: dma_A(g, 3, 2, 'A3'),
               8: lambda: dma_A(g, 4, 4, 'A4'), 9: lambda: dma_A(g, 5, 6, 'A5'), 10: lambda: dma_A(g, 6, 8, 'A6'), 11: lambda: dma_A(g, 7, 0, 'A7'),
               12: lambda: dma_Wo(g, rWOB, 0, LDS_WOB, 'WoB0'), 13: lambda: dma_Wo(g, rWOB, 1, LDS_WOB, 'WoB1'),
               14: lambda: dma_Wo(g, rWOA, 0, LDS_WOA, 'WoA0'), 15: lambda: dma_Wo(g, rWOA, 1, LDS_WOA, 'WoA1')}
        if gi == 13: at(T0 + 2, 0, wave0(lambda: poll_issue(g, 3)))
        if gi in grp:
            fs = grp[gi]()
            at(T0 + dpos[0][0], dpos[0][1], fs[0])
            for (t, i), f in zip(dpos, fs[1:]): at(T0 + t, i, f)
        if gi == 2: at(T0 + 2, 6, wave0(flag(WS_F2, sHP, sTB)))
        if gi == 3:
            at(T0 + 4, 6, wave0(lambda: poll_issue(g, 2)))
        if gi == 10: at(T0 + 4, 6, wave0(flag(WS_F3, sTB, sHP)))
        if gi == 13 and o.get('wopf', 1):
            def wopf():
                g(f"s_and_b32 s{sT1}, s{sTB}, 3\ns_lshl_b32 s{sT1}, s{sT1}, 13\ns_add_u32 s{sT1}, s{sT1}, s{sDS}\ns_add_u32 s{sT1}, s{sT1}, 262144")
                g.vmop(f"buffer_load_dwordx4 {r(208,4)}, v{vDWO}, {sr(rWOA)}, s{sT1} offen", 'pf')
            at(T0 + 5, 6, wopf)
        if gi == 12 and o.get('outpf', 0):
            def outpf():
                g(f"s_lshl_b32 s{sT1}, s{sTB}, 1\ns_lshr_b32 s{sT2}, s{sHP}, 3\ns_add_u32 s{sT1}, s{sT1}, s{sT2}\ns_lshl3_add_u32 s{sT1}, s{sT1}, s{sW}\ns_lshl_b32 s{sT1}, s{sT1}, 13" if False else
                  f"s_lshl_b32 s{sT1}, s{sTB}, 1\ns_lshr_b32 s{sT2}, s{sHP}, 3\ns_add_u32 s{sT1}, s{sT1}, s{sT2}\ns_lshl3_add_u32 s{sT1}, s{sT1}, s{sW}\ns_lshl_b32 s{sT1}, s{sT1}, 13\ns_and_b32 s{sT2}, s{sHP}, 7\ns_lshl_b32 s{sT2}, s{sT2}, 7\ns_add_u32 s{sT1}, s{sT1}, s{sT2}")
                g(f"v_lshlrev_b32 v{vT}, 10, v1\ns_mov_b64 exec, {255 if o.get('outpf') == 1 else 1}")
                g.vmop(f"buffer_load_dword v212, v{vT}, {sr(rOUT)}, s{sT1} offen", 'pf')
                g("s_mov_b64 exec, -1")
            at(T0 + 6, 6, outpf)
        if gi == 14:
            fs = of_loads(g, 0, 'OB')
            at(T0 + 4, 6, fs[0])
            for n, f in enumerate(fs[1:]): at(T0 + 4 + n // 2, 6 if n % 2 == 0 else 13, f)
    return ev

def slotB(c): return (8 + c) % 10
def slotA(c): return 2 * ((3 + c) % 5)

def build(**opt):
    g = G(**opt)
    setup(g)
    fork = (list(g.lg), list(g.vm)); nst0 = g.nst
    g(f"s_bitcmp1_b32 s{sHP}, 0\ns_cbranch_scc1 L_p1b")
    g("L_p1a:")
    phase1(g, 0)
    end0 = (list(g.lg), list(g.vm))
    g("s_branch L_p1done\nL_rare0:")
    main0 = g.L; g.L = []
    g.lg, g.vm = list(fork[0]), list(fork[1]); g.nst = nst0
    phase1(g, 1)
    var1 = g.L; g.L = main0
    if g.opt.get('rnear', 1): g.L += g.cold; g.cold = []
    g("L_p1b:")
    g.L += var1
    assert end0 == (g.lg, g.vm), (end0, g.lg, g.vm)
    g("L_p1done:")
    g.stamp('p1')
    b_prologue(g)
    g.stamp('t0')
    ev = schedule(g)
    for U in range(128): tile(g, U, ev, opt.get('pos', (2, 5, 10)))
    tail(g)
    if opt.get('stamps'):
        g.stamp('end')
        g(f"s_lshl_b32 s{sT1}, s2, 3\ns_add_u32 s{sT1}, s{sT1}, s{sW}\ns_lshl_b32 s{sT1}, s{sT1}, 6\ns_add_u32 s{sT1}, s{sT1}, {WS_DBG}")
        g("s_waitcnt lgkmcnt(0)")
        for k in range(12): g(f"v_mov_b32 v{16+k}, s{STAMP_SLOTS[min(k, g.nst-1)]}")
        g(f"v_mov_b32 v30, 0\ns_mov_b64 exec, 1")
        for k in range(3): g(f"buffer_store_dwordx4 v[{16+4*k}:{19+4*k}], v30, {sr(rWS)}, s{sT1} offen offset:{16*k}")
    if opt.get('dbgst'):
        sk = w0(g)
        g("s_waitcnt vmcnt(0) lgkmcnt(0)")
        last = STAMP_SLOTS[g.nst - 1]
        g(f"v_mov_b32 v16, s{last}\ns_not_b32 s{sT1}, s{STAMP_SLOTS[0]}\nv_mov_b32 v17, s{sT1}\nv_mov_b32 v30, 0\ns_mov_b64 exec, 1")
        g(f"buffer_atomic_umax v16, v30, {sr(rDBG)}, 0 offen offset:4\nbuffer_atomic_umax v17, v30, {sr(rDBG)}, 0 offen offset:8")
        sk2 = g.lab("L_d2")
        g(f"s_cmp_lg_u32 s2, {opt['dbgst'] - 1}\ns_cbranch_scc1 {sk2}")
        for k in range(12): g(f"s_sub_u32 s{sT1}, s{STAMP_SLOTS[min(k, g.nst-1)]}, s{STAMP_SLOTS[0]}\nv_mov_b32 v{16+k}, s{sT1}")
        g(f"v_mov_b32 v16, s{STAMP_SLOTS[0]}")
        for k in range(3): g(f"buffer_store_dwordx4 v[{16+4*k}:{19+4*k}], v30, {sr(rDBG)}, 0 offen offset:{16+16*k}")
        g(f"{sk2}:\ns_mov_b64 exec, -1\n{sk}:")
    if opt.get('spinend'):
        base, idx, mult = opt['spinend']
        sk = w0(g); sk2 = g.lab("L_sp")
        g(f"s_cmp_lg_u32 s2, {opt.get('spinwg', 0)}\ns_cbranch_scc1 {sk}\ns_waitcnt vmcnt(0) lgkmcnt(0)")
        g(f"s_sub_u32 s{sT1}, s{STAMP_SLOTS[idx]}, s{STAMP_SLOTS[0]}\ns_mul_i32 s{sT1}, s{sT1}, {mult}\ns_add_u32 s{sT1}, s{sT1}, {base*100}")
        g(f"{sk2}:\ns_memrealtime s[{sPC}:{sPC+1}]\ns_waitcnt lgkmcnt(0)\ns_sub_u32 s{sT2}, s{sPC}, s{STAMP_SLOTS[0]}\ns_cmp_lt_u32 s{sT2}, s{sT1}\ns_cbranch_scc1 {sk2}")
        g(f"{sk}:")
    if opt.get('spinrel'):
        a_, b_, mult, shift = opt['spinrel']
        sk = w0(g); sk2 = g.lab("L_sq")
        g(f"s_cmp_lg_u32 s2, {opt.get('spinwg', 0)}\ns_cbranch_scc1 {sk}\ns_waitcnt vmcnt(0) lgkmcnt(0)")
        g(f"s_sub_u32 s{sT1}, s{STAMP_SLOTS[b_]}, s{STAMP_SLOTS[a_]}\ns_mul_i32 s{sT1}, s{sT1}, {mult}\ns_lshr_b32 s{sT1}, s{sT1}, {shift}")
        g(f"s_memrealtime s[{sSC}:{sSC+1}]\ns_waitcnt lgkmcnt(0)")
        g(f"{sk2}:\ns_memrealtime s[{sPC}:{sPC+1}]\ns_waitcnt lgkmcnt(0)\ns_sub_u32 s{sT2}, s{sPC}, s{sSC}\ns_cmp_lt_u32 s{sT2}, s{sT1}\ns_cbranch_scc1 {sk2}")
        g(f"{sk}:")
    if opt.get('spinconst'):
        sk = w0(g); sk2 = g.lab("L_sc")
        g(f"s_waitcnt vmcnt(0) lgkmcnt(0)\ns_memrealtime s[{sSC}:{sSC+1}]\ns_waitcnt lgkmcnt(0)")
        g(f"{sk2}:\ns_memrealtime s[{sPC}:{sPC+1}]\ns_waitcnt lgkmcnt(0)\ns_sub_u32 s{sT2}, s{sPC}, s{sSC}\ns_cmp_lt_u32 s{sT2}, {opt['spinconst']}\ns_cbranch_scc1 {sk2}")
        g(f"{sk}:")
    g("L_abort:\ns_endpgm")
    g.L += g.cold
    fallback(g, 0)
    fallback(g, 1)
    g("L_end:\ns_endpgm\nL_codeend:")
    hdr = open('gated_mix__mha_block__grouped_kv_mqa__prompt.s.ref').read().split("; Override launch")[0]
    out = hdr + "; One fused launch: projections, MQA and MHA attention, gated output projection.\n"
    out += "; @launch grid=(256,1,1) block=(512,1,1) lds=163840\n"
    out += f""".amdgcn_target "amdgcn-amd-amdhsa--gfx950"
.text
.globl {NAME}
.p2align 8
.type {NAME},@function
{NAME}:
{g.text()}.section .rodata,"a"
.p2align 6
.amdhsa_kernel {NAME}
  .amdhsa_next_free_vgpr 256
  .amdhsa_next_free_sgpr 102
  .amdhsa_accum_offset 256
  .amdhsa_group_segment_fixed_size 0
  .amdhsa_kernarg_size 96
  .amdhsa_user_sgpr_count 2
  .amdhsa_user_sgpr_kernarg_segment_ptr 1
  .amdhsa_system_sgpr_workgroup_id_x 1
.end_amdhsa_kernel
"""
    return out

if __name__ == "__main__":
    path = sys.argv[1] if len(sys.argv) > 1 else 'gated_mix__mha_block__grouped_kv_mqa__prompt.s'
    opt = {}
    for a in sys.argv[2:]:
        k, _, v = a.partition('=')
        opt[k] = eval(v) if v else True
    open(path, 'w').write(build(**opt))
```

```python
import sys, struct, copy
NAME = "gated_mix__mha_block__grouped_kv_mqa__prompt_kernel"

def f2h(x): return "0x%08x" % struct.unpack('<I', struct.pack('<f', x))[0]

WS_KVA  = 0x000000
WS_KVB  = 0x400000
WS_GATE = 0x420000
WS_F1   = 0x424000
WS_F2   = WS_F1 + 2048
WS_F3   = WS_F1 + 4096
WS_F4   = WS_F1 + 6144
WS_O    = 0x500000
WS_DBG  = 0x900000
WS_SIZE = 0x1000000

SLOT = 16384
LDS_WST = 65536
LDS_EW  = 8 * SLOT
LDS_ER  = 9 * SLOT
LDS_EG  = 9 * SLOT + 8192
LDS_EX  = 3 * SLOT
LDS_WOB = 2 * SLOT
LDS_WOA = 6 * SLOT

sW, sHP, sTB, sROT, sB = 3, 4, 5, 6, 7
rX, rWS_, rWKV, rGATE, rWS, rDBG, rOUT, rWOA, rWOB = 8, 12, 16, 20, 24, 28, 32, 36, 40
sMASK = 44
sI, sNONCE, sSPIN, sT0, sT1, sT2 = 46, 47, 48, 49, 50, 51
pX, pWQKV, pWOA, pBX, pWQ, pWK, pWV, pWOB, pGATE, pOUT, pDBG, pWS = 52, 54, 56, 58, 60, 62, 64, 66, 68, 70, 72, 74
sXO, sWO, sWSTEP, sW16, sMX, sMW, sKX, sKW = 76, 77, 78, 79, 80, 81, 82, 83
sOF = 76
sPC = 84
sFBBASE, sKV, sFBT, sDMA, sOST, sT3 = 86, 87, 88, 89, 90, 91
sKV1, sSC = 98, 100
sPOLL, sDS = 92, 93
sST = 94
vIDX, vAK, vAV, vG, vL16, vVOFF = 2, 3, 4, 5, 6, 7
vT = 8
S0, S1, C, QA, QB = 16, 32, 64, 80, 84
OACC = (112, 48)
STMP, KTMP = (128, 144, 160, 176), 192
STB, KTB = (32, 16, 128, 64), 232
FB_S, FB_C, FB_K, FB_V0, FB_V1 = 176, 160, 144, 148, 152
KF, V0, V1 = (88, 92), (96, 100), (104, 108)
OF = 112
ACC = 144
PF = 176
WF = 16
vAX = 240
vAW1, vAWQ, vDX0, vDX1, vDW, vKVST = 244, 245, 246, 247, 248, 249
vDWO, vRR, vOUTA = 224, 225, 226
vAT = 228
vFL, vNON, vDUMMY = 250, 251, 251
vPOLL = 252
QSCALE = 0.25 * 1.4426950408889634
MOFF = 102.0
SPIN = 1 << 20

STAMP_SLOTS = [94, 96, 52, 54, 58, 60, 62, 64, 68, 72, 74, 56]
class G:
    def __init__(s, **opt):
        s.L = []; s.lg = []; s.vm = []; s.opt = opt; s.nlab = 0; s.nst = 0; s.cold = []
    def __call__(s, txt):
        for line in txt.split("\n"):
            line = line.strip()
            if not line: continue
            s.L.append(line if (line.endswith(":") or line.startswith(".")) else "    " + line)
    def rare(s, test, branch, *fs):
        if not s.opt.get('ool', 1):
            sk = s.lab("L_sk")
            s(test); s(f"{'s_cbranch_scc0' if branch.endswith('1') else 's_cbranch_scc1'} {sk}")
            for f in fs: f()
            s(f"{sk}:"); return
        lo, lr = s.lab("L_rare"), s.lab("L_back")
        s(test); s(f"{branch} {lo}\n{lr}:")
        main, s.L = s.L, s.cold
        s(f"{lo}:")
        for f in fs: f()
        s(f"s_branch {lr}")
        s.L = main
    def wave0(s, *fs): s.rare(f"s_cmp_eq_u32 s{sW}, 0", "s_cbranch_scc1", *fs)
    def first(s, *fs): s.rare(f"s_or_b32 s{sT1}, s2, s{sW}", "s_cbranch_scc0", *fs)
    def lab(s, p="L"):
        s.nlab += 1; return f"{p}_{s.nlab}"
    def ds(s, txt, tag=None):
        s(txt); s.lg.append(tag); assert len(s.lg) <= 15, "lgkm overflow"
    def wlg(s, tag=None):
        if tag is None:
            s("s_waitcnt lgkmcnt(0)"); s.lg = []; return
        if tag not in s.lg: return
        i = len(s.lg) - 1 - s.lg[::-1].index(tag)
        n = len(s.lg) - 1 - i
        s(f"s_waitcnt lgkmcnt({n})"); s.lg = s.lg[i + 1:]
    def vmop(s, txt, tag=None):
        s(txt); s.vm.append(tag); assert len(s.vm) <= 63
    def wvm(s, tag=None):
        if tag is None:
            s("s_waitcnt vmcnt(0)"); s.vm = []; return
        if tag not in s.vm: return
        i = len(s.vm) - 1 - s.vm[::-1].index(tag)
        n = len(s.vm) - 1 - i
        s(f"s_waitcnt vmcnt({n})"); s.vm = s.vm[i + 1:]
    def srd(s, d, base, nbytes):
        s(f"s_mov_b32 s{d}, s{base}\ns_and_b32 s{d+1}, s{base+1}, 0xffff\ns_mov_b32 s{d+2}, {nbytes}\ns_mov_b32 s{d+3}, 0x00020000")
    def srd_const(s, d, nbytes): s(f"s_mov_b32 s{d+2}, {nbytes}\ns_mov_b32 s{d+3}, 0x00020000")
    def srd_base(s, d, base): s(f"s_mov_b64 s[{d}:{d+1}], s[{base}:{base+1}]")
    def stamp(s, name):
        if not s.opt.get('stamps'): return
        if name not in s.opt.get('at', ('setup', 'p1', 'bstart', 'B', 'A', 'poll', 'mm', 'end')): return
        ins = "s_memtime" if s.opt.get('stamps') == 2 else "s_memrealtime"
        slot = STAMP_SLOTS[s.nst]
        assert slot >= 94 or name not in ('entry', 'karg', 'eissue')
        s(f"{ins} s[{slot}:{slot+1}]")
        s.nst += 1
    def jitter(s, salt):
        j = s.opt.get('jitter')
        if not j: return
        lp, sk = s.lab("L_j"), s.lab("L_jk")
        if salt % 2: s(f"s_lshl_b32 s{sT2}, s2, 3\ns_add_u32 s{sT2}, s{sT2}, s{sW}")
        else: s(f"s_mov_b32 s{sT2}, s2")
        s(f"s_add_u32 s{sT2}, s{sT2}, {salt * 7919 + j * 104729}\ns_mul_i32 s{sT1}, s{sT2}, 0x9e3779b1\ns_lshr_b32 s{sT1}, s{sT1}, 27")
        s(f"{lp}:\ns_sub_u32 s{sT1}, s{sT1}, 1\ns_cbranch_scc1 {sk}\ns_sleep 8\ns_branch {lp}\n{sk}:")
    def text(s): return "\n".join(s.L) + "\n"

def r(a, n): return f"v[{a}:{a+n-1}]"
def sr(a, n=4): return f"s[{a}:{a+n-1}]"

def spin_check(g):
    g(f"s_sub_u32 s{sSPIN}, s{sSPIN}, 1\ns_cbranch_scc1 L_abort")

def setup(g):
    g(f"""
    s_cmp_ge_u32 s2, 256
    s_cbranch_scc1 L_end
    """)
    g.stamp('entry')
    mode = g.opt.get('pfm', 'v')
    pf = ''
    if mode == 's': pf = f"""
    s_lshl_b32 s{sT1}, s{sW}, 7
    s_and_b32 s{sT0}, s2, 0xf8
    s_lshl_b32 s{sT0}, s{sT0}, 7
    s_add_u32 s{sT0}, s{sT0}, 3072
    s_add_u32 s{sT0}, s{sT0}, s{sT1}
    s_min_u32 s{sT0}, s{sT0}, L_codeend-L_pc-4
    s_load_dword s{sFBT}, s[{sPC}:{sPC+1}], s{sT0}
    s_add_u32 s{sPC}, s{sPC}, s{sT1}
    s_addc_u32 s{sPC+1}, s{sPC+1}, 0
    s_load_dword s{sFBT}, s[{sPC}:{sPC+1}], 0
    s_load_dword s{sFBT}, s[{sPC}:{sPC+1}], 1024
    s_load_dword s{sFBT}, s[{sPC}:{sPC+1}], 2048
    """
    if mode == 'v':
        pf = f"""
    s_and_b32 s{sT0}, s2, 0xf8
    s_add_u32 s{sT0}, s{sT0}, 24
    v_lshlrev_b32 v{vT+2}, 3, v1
    v_mov_b32 v{vT+3}, s{sT0}
    v_cmp_eq_u32 vcc, 3, v1
    s_mov_b64 exec, 15
    s_nop 0
    v_cndmask_b32 v{vT+2}, v{vT+2}, v{vT+3}, vcc
    v_add_lshl_u32 v{vT+2}, v{vT+2}, v{vT+1}, 7
    v_min_u32 v{vT+2}, L_codeend-L_pc-4, v{vT+2}
    global_load_dword v{vDUMMY}, v{vT+2}, s[{sPC}:{sPC+1}]
    s_mov_b64 exec, -1
    """
        g.vm.append('pf')
    if mode == 'w':
        pf = f"""
    s_bitcmp1_b32 s2, 5
    s_mov_b32 s{sT0}, L_p1a-L_pc-2048
    s_cselect_b32 s{sT0}, L_p1b-L_pc-2048, s{sT0}
    v_lshlrev_b32 v{vT+2}, 10, v1
    v_add_u32 v{vT+2}, s{sT0}, v{vT+2}
    s_lshr_b32 s{sT0}, s2, 3
    s_lshl_b32 s{sT0}, s{sT0}, 10
    s_add_u32 s{sT0}, s{sT0}, L_p1done-L_pc
    v_writelane_b32 v{vT+2}, 0, 0
    s_movk_i32 s{sT1}, 1024
    v_writelane_b32 v{vT+2}, s{sT1}, 1
    s_mov_b32 s{sT1}, L_rare0-L_pc
    v_writelane_b32 v{vT+2}, s{sT1}, 6
    v_writelane_b32 v{vT+2}, s{sT0}, 7
    s_mov_b64 exec, 255
    v_lshl_add_u32 v{vT+2}, v{vT+1}, 7, v{vT+2}
    v_min_u32 v{vT+2}, L_codeend-L_pc-4, v{vT+2}
    global_load_dword v{vDUMMY}, v{vT+2}, s[{sPC}:{sPC+1}]
    s_mov_b64 exec, -1
    """
        g.vm.append('pf')
    g(f"""
    s_load_dwordx16 s[52:67], s[0:1], 0
    s_load_dwordx8 s[68:75], s[0:1], 64
    v_lshrrev_b32 v{vT+1}, 6, v0
    v_and_b32 v1, 63, v0
    s_getpc_b64 s[{sPC}:{sPC+1}]
    L_pc:
    v_readfirstlane_b32 s{sW}, v{vT+1}
    {pf}
    s_bfe_u32 s{sTB}, s2, 0x20001
    s_bfe_u32 s{sT0}, s2, 0x20003
    s_lshl2_add_u32 s{sTB}, s{sTB}, s{sT0}
    s_and_b32 s{sHP}, s2, 1
    s_lshr_b32 s{sT0}, s2, 5
    s_lshl3_add_u32 s{sHP}, s{sHP}, s{sT0}
    s_lshl1_add_u32 s{sROT}, s{sTB}, s{sHP}
    s_and_b32 s{sROT}, s{sROT}, {g.opt.get('rotmask', 6)}
    s_lshr_b32 s{sB}, s{sW}, 2
    s_and_b32 s{sI}, s{sW}, 3
    v_lshlrev_b32 v{vL16}, 4, v1
    """)
    g(f"v_and_b32 v{vT+1}, 0x30, v1")
    g(f"""
    v_lshrrev_b32 v{vT+4}, 3, v1
    v_and_b32 v{vT+5}, 7, v1
    v_lshrrev_b32 v{vT+6}, 4, v1
    v_xor_b32 v{vT+5}, v{vT+5}, v{vT+6}
    v_lshlrev_b32 v{vT+4}, 10, v{vT+4}
    v_lshl_add_u32 v{vDX0}, v{vT+5}, 4, v{vT+4}
    v_xor_b32 v{vDX1}, 64, v{vDX0}
    v_add_u32 v{vDX1}, 0x2000, v{vDX1}
    """)
    g(f"s_lshl_b32 s{sMX}, s{sW}, 11\ns_lshl_b32 s{sDMA}, s{sTB}, 17")
    g(f"""
    s_lshr_b32 s{sT2}, s{sHP}, 1
    s_lshl_b32 s{sT2}, s{sT2}, 14
    s_add_u32 s{sDMA}, s{sDMA}, s{sT2}
    s_lshl_b32 s{sOST}, s{sW}, 7
    s_add_u32 s{sDMA}, s{sDMA}, s{sOST}
    """)
    for k in range(0, 8, 2): g(f"v_mov_b64 v[{40+k}:{41+k}], 0")
    for d, n in ((rX, 2097152), (rWKV, 16384), (rGATE, 1024), (rWS, WS_SIZE)): g.srd_const(d, n)
    g(f"s_add_u32 m0, s{sMX}, {LDS_EW}")
    g("s_waitcnt lgkmcnt(0)")
    g.stamp('karg')
    g.jitter(1)
    def early_loads():
        g(f"s_bitcmp1_b32 s{sHP}, 0\ns_cselect_b64 s[{rWKV}:{rWKV+1}], s[{pWV}:{pWV+1}], s[{pWK}:{pWK+1}]")
        g.srd_base(rGATE, pGATE); g.srd_base(rX, pX)
        g.vmop(f"buffer_load_dwordx4 v{vL16}, {sr(rWKV)}, s{sMX} offen lds", 'e')
        g.vmop(f"buffer_load_dwordx4 v{vL16}, {sr(rWKV)}, s{sMX} offen offset:1024 lds", 'e')
        g(f"s_mov_b32 exec_lo, 0x00010001\ns_mov_b32 exec_hi, 0x00010001")
        g.vmop(f"buffer_load_dwordx4 v[40:43], v{vT+1}, {sr(rGATE)}, s{sOST} offen", 'e')
        g.vmop(f"buffer_load_dwordx4 v[44:47], v{vT+1}, {sr(rGATE)}, s{sOST} offen offset:64", 'e')
        g("s_mov_b64 exec, -1")
        g(f"s_add_u32 m0, s{sMX}, {LDS_EX}\ns_nop 0")
        g.vmop(f"buffer_load_dwordx4 v{vDX0}, {sr(rX)}, s{sDMA} offen lds", 'e')
        g(f"s_add_u32 m0, s{sMX}, {LDS_EX + 1024}\ns_nop 0")
        g.vmop(f"buffer_load_dwordx4 v{vDX1}, {sr(rX)}, s{sDMA} offen lds", 'e')
    g.srd_base(rWS, pWS)
    nonce_scan(g)
    if g.opt.get('elate'): g.srd_base(rX, pX); g.vm.append('scan')
    else: g.vm.append('scan'); early_loads()
    g.stamp('eissue')
    g(f"""
    s_lshr_b32 s{sT0}, s{sW}, 1
    s_cmp_eq_u32 s{sT0}, 3
    s_movk_i32 s{sT2}, 3072
    s_cselect_b32 s{sT1}, 1024, s{sT2}
    s_cselect_b32 s{sT2}, 2, 0
    s_lshl_b32 s{sWSTEP}, s{sT1}, 6
    s_add_u32 s{sMW}, s{sMX}, {LDS_WST}
    s_cmp_lg_u32 s{sB}, 0
    s_cbranch_scc1 L_su_q
    v_bfe_u32 v{vT+4}, v1, 2, 1
    v_bfe_u32 v{vT+5}, v1, 4, 1
    v_xor_b32 v{vT+4}, v{vT+4}, v{vT+5}
    v_and_b32 v{vT+5}, 3, v1
    v_lshl_add_u32 v{vT+5}, v{vT+4}, 2, v{vT+5}
    v_lshrrev_b32 v{vT+4}, 3, v1
    s_movk_i32 s{sW16}, 24576
    s_and_b32 s{sT2}, s{sHP}, 1
    s_add_u32 s{sT2}, s{sT2}, 1
    s_lshl_b32 s{sT2}, s{sT2}, 10
    s_lshr_b32 s{sWO}, s{sHP}, 1
    s_lshl_b32 s{sWO}, s{sWO}, 7
    s_add_u32 s{sWO}, s{sWO}, s{sT2}
    s_mul_i32 s{sT3}, s{sW}, 49152
    s_branch L_su_j
    L_su_q:
    v_lshrrev_b32 v{vT+4}, 2, v1
    v_and_b32 v{vT+5}, 3, v1
    v_xor_b32 v{vT+5}, s{sT2}, v{vT+5}
    s_lshl_b32 s{sW16}, s{sT1}, 4
    s_lshl_b32 s{sWO}, s{sHP}, 6
    s_and_b32 s{sT2}, s{sW}, 1
    s_mul_i32 s{sT3}, s{sT2}, s{sW16}
    s_lshl_b32 s{sT3}, s{sT3}, 1
    L_su_j:
    s_add_u32 s{sWO}, s{sWO}, s{sT3}
    v_mul_u32_u24 v{vT+4}, s{sT1}, v{vT+4}
    v_lshl_add_u32 v{vDW}, v{vT+5}, 4, v{vT+4}
    s_lshl_b32 s{sXO}, s{sTB}, 17
    s_lshl_b32 s{sT2}, s{sW}, 14
    s_add_u32 s{sXO}, s{sXO}, s{sT2}
    s_lshl_b32 s{sKX}, s{sROT}, 7
    s_mul_i32 s{sKW}, s{sROT}, s{sWSTEP}
    """)
    g(f"s_cmp_eq_u32 s{sT0}, 3\ns_cselect_b64 s[{rWS_}:{rWS_+1}], s[{pWQ}:{pWQ+1}], s[{pWQKV}:{pWQKV+1}]")
    g(f"s_mov_b32 s{rWS_+2}, 1572864\ns_cselect_b32 s{rWS_+2}, 524288, s{rWS_+2}\ns_mov_b32 s{rWS_+3}, 0x00020000")
    g.srd_base(rDBG, pDBG); g.srd_const(rDBG, 256)
    g(f"s_mov_b32 s{sMASK}, 0x0000ffff\ns_mov_b32 s{sMASK+1}, 0x0000ffff\ns_mov_b32 s{sSPIN}, {SPIN}\ns_mov_b32 s{sNONCE}, 0\nv_mov_b32 v{vFL}, 0")
    npf = g.opt.get('l2pf', 0)
    if npf:
        l2pf_setup(g)
        for k in range(npf): l2pf(g)
    if g.opt.get('elate'): early_loads()
    if g.opt.get('spf', 0): scalar_prefetch(g)
    g("s_barrier")
    if g.opt.get('pre', 0): p1_addr(g)
    early_addr(g)
    g.stamp('addr')
    if g.opt.get('nearly', 0): nonce_producer(g)
    runall(p1_dma(g, 0))
    if not g.opt.get('nearly', 0): nonce_producer(g)
    g.vm.remove('scan')
    g.stamp('setup')
    g.jitter(2)
    early_compute(g)
    g("s_barrier")
    g.stamp('early')
    if g.opt.get('cearly', 0):
        early_reduce(g)
        p1_addr(g); attn_consts(g); kv_store_addr(g)
        for d, p_, n in ((rOUT, pOUT, 2097152), (rWOA, pWOA, 524288), (rWOB, pWOB, 524288)): g.srd_base(d, p_); g.srd_const(d, n)
        if g.opt.get('cearly', 0) == 1: tail_addr(g)
        runall(p1_dma(g, 1))
    else:
        runall(p1_dma(g, 1))
        early_reduce(g)
        p1_addr(g)


vPFW, vPFX, vPFD = 232, 233, 234
sPFW, sPFX = 86, 88
def l2pf_setup(g):
    lq, lj = g.lab("L_pq"), g.lab("L_pj")
    g(f"""
    v_mul_u32_u24 v{vPFW}, s{sT1}, v1
    v_lshlrev_b32 v{vPFX}, 10, v1
    s_and_b32 s{sT2}, s{sTB}, 3
    s_lshr_b32 s{sPFX}, s{sHP}, 1
    s_lshl_b32 s{sPFX}, s{sPFX}, 7
    s_cmp_lg_u32 s{sB}, 0
    s_cbranch_scc1 {lq}
    s_lshl2_add_u32 s{sT2}, s{sT2}, s{sW}
    s_and_b32 s{sT3}, s{sHP}, 1
    s_add_u32 s{sT3}, s{sT3}, 1
    s_lshl_b32 s{sT3}, s{sT3}, 10
    s_add_u32 s{sPFX}, s{sPFX}, s{sT3}
    s_branch {lj}
    {lq}:
    s_and_b32 s{sT3}, s{sHP}, 1
    s_lshl2_add_u32 s{sT2}, s{sT3}, s{sT2}
    s_and_b32 s{sT3}, s{sW}, 1
    s_lshl1_add_u32 s{sT2}, s{sT2}, s{sT3}
    {lj}:
    s_lshl_b32 s{sT2}, s{sT2}, 2
    s_mul_i32 s{sT2}, s{sT2}, s{sT1}
    s_add_u32 s{sPFW}, s{sPFX}, s{sT2}
    s_and_b32 s{sT2}, s{sHP}, 7
    s_lshl3_add_u32 s{sT2}, s{sT2}, s{sW}
    s_lshl_b32 s{sT2}, s{sT2}, 11
    s_lshl_b32 s{sPFX}, s{sTB}, 17
    s_add_u32 s{sPFX}, s{sPFX}, s{sT2}
    """)
def l2pf(g):
    g("s_mov_b64 exec, 15")
    g.vmop(f"buffer_load_dword v{vPFD}, v{vPFW}, {sr(rWS_)}, s{sPFW} offen", 'pf')
    g("s_mov_b64 exec, 3")
    g.vmop(f"buffer_load_dword v{vPFD}, v{vPFX}, {sr(rX)}, s{sPFX} offen", 'pf')
    g(f"s_mov_b64 exec, -1\ns_add_u32 s{sPFW}, s{sPFW}, s{sWSTEP}\ns_add_u32 s{sPFX}, s{sPFX}, 128")

def p1_dma(g, j):
    p = j & 3
    def f0():
        g(f"s_add_u32 m0, s{sMX}, {p*SLOT}\ns_add_u32 s{sDS}, s{sXO}, s{sKX}")
        g.vmop(f"buffer_load_dwordx4 v{vDX0}, {sr(rX)}, s{sDS} offen lds", f'c{j}')
    def f1():
        g(f"s_add_u32 m0, s{sMX}, {p*SLOT+1024}\ns_add_u32 s{sPOLL+0 if False else sT3}, s{sWO}, s{sKW}")
        g.vmop(f"buffer_load_dwordx4 v{vDX1}, {sr(rX)}, s{sDS} offen lds", f'c{j}')
    def f2():
        g(f"s_add_u32 m0, s{sMW}, {p*SLOT}\ns_add_u32 s{sDS}, s{sT3}, s{sW16}")
        g.vmop(f"buffer_load_dwordx4 v{vDW}, {sr(rWS_)}, s{sT3} offen lds", f'c{j}')
    def f3():
        g(f"s_add_u32 m0, s{sMW}, {p*SLOT+1024}\ns_add_u32 s{sKW}, s{sKW}, s{sWSTEP}")
        g.vmop(f"buffer_load_dwordx4 v{vDW}, {sr(rWS_)}, s{sDS} offen lds", f'c{j}')
        if j < 7:
            g(f"s_add_u32 s{sKX}, s{sKX}, 128\ns_and_b32 s{sKX}, s{sKX}, 1023\ns_cselect_b32 s{sKW}, s{sKW}, 0")
    return [f0, f1, f2, f3]

def scalar_prefetch(g):
    P = sPC
    def base(ptr, off): g(f"s_add_u32 s{P}, s{ptr}, s{off}\ns_addc_u32 s{P+1}, s{ptr+1}, 0")
    g(f"s_and_b32 s{sT1}, s{sHP}, 3\ns_lshl_b32 s{sT1}, s{sT1}, 3\ns_add_u32 s{sT1}, s{sT1}, s{sW}\ns_lshl_b32 s{sT1}, s{sT1}, 12\ns_lshl_b32 s{sT2}, s{sTB}, 17\ns_add_u32 s{sT1}, s{sT1}, s{sT2}\ns_add_u32 s{sT1}, s{sT1}, s{sKX}")
    base(pX, sT1)
    for j in range(4): g(f"s_load_dword s{sFBT}, s[{P}:{P+1}], {j*1024}")
    g(f"s_lshl_b32 s{sT1}, s{sROT}, 1\ns_and_b32 s{sT2}, s{sTB}, 1\ns_add_u32 s{sT1}, s{sT1}, s{sT2}\ns_lshl_b32 s{sT1}, s{sT1}, 3\ns_add_u32 s{sT1}, s{sT1}, s{sW}\ns_mul_i32 s{sT1}, s{sT1}, {4*3072}")
    g(f"s_lshr_b32 s{sT3}, s{sHP}, 1\ns_lshl_b32 s{sT3}, s{sT3}, 7\ns_add_u32 s{sT1}, s{sT1}, s{sT3}\ns_and_b32 s{sT2}, s{sHP}, 1\ns_add_u32 s{sT2}, s{sT2}, 1\ns_lshl_b32 s{sT2}, s{sT2}, 10\ns_add_u32 s{sT1}, s{sT1}, s{sT2}")
    base(pWQKV, sT1)
    for j in range(4): g(f"s_load_dword s{sFBT}, s[{P}:{P+1}], {j*3072}")
    g(f"s_lshl_b32 s{sT1}, s{sROT}, 1\ns_and_b32 s{sT2}, s{sHP}, 1\ns_add_u32 s{sT1}, s{sT1}, s{sT2}\ns_lshl_b32 s{sT1}, s{sT1}, 1\ns_and_b32 s{sT2}, s{sTB}, 1\ns_add_u32 s{sT1}, s{sT1}, s{sT2}\ns_lshl_b32 s{sT1}, s{sT1}, 3\ns_add_u32 s{sT1}, s{sT1}, s{sW}")
    g(f"s_mul_i32 s{sT2}, s{sT1}, {2*3072}\ns_add_u32 s{sT2}, s{sT2}, s{sT3}")
    base(pWQKV, sT2)
    for j in range(2): g(f"s_load_dword s{sFBT}, s[{P}:{P+1}], {j*3072}")
    g(f"s_lshl_b32 s{sT1}, s{sT1}, 11\ns_add_u32 s{sT1}, s{sT1}, s{sT3}")
    base(pWQ, sT1)
    for j in range(2): g(f"s_load_dword s{sFBT}, s[{P}:{P+1}], {j*1024}")

def nonce_scan(g): g.first(lambda: nonce_scan_(g))
def nonce_scan_(g):
    g(f"v_lshrrev_b32 v{vT+4}, 2, v1\nv_and_b32 v{vT+5}, 3, v1\nv_lshlrev_b32 v{vT+4}, 7, v{vT+4}\nv_lshl_add_u32 v{vT+4}, v{vT+5}, 4, v{vT+4}")
    g(f"s_mov_b32 s{sT1}, {WS_F1}")
    g(f"buffer_load_dwordx4 v[176:179], v{vT+4}, {sr(rWS)}, s{sT1} offen sc1")
    g(f"buffer_load_dwordx4 v[180:183], v{vT+4}, {sr(rWS)}, s{sT1} offen offset:2048 sc1")
    g(f"s_mov_b32 s{sT1}, {WS_F3}")
    g(f"buffer_load_dwordx4 v[184:187], v{vT+4}, {sr(rWS)}, s{sT1} offen sc1")

def nonce_producer(g): g.first(lambda: nonce_producer_(g))
def nonce_producer_(g):
    g(f"s_waitcnt vmcnt({len(g.vm) - 1 - g.vm.index('scan')})")
    g(f"v_readfirstlane_b32 s{sT1}, v176")
    lp = g.lab("L_nl")
    g(f"{lp}:\ns_add_u32 s{sT1}, s{sT1}, 1\ns_cbranch_scc1 {lp}")
    g(f"s_mov_b64 s[{sPC}:{sPC+1}], 0")
    for k in range(12):
        g(f"v_cmp_eq_u32 vcc, s{sT1}, v{176+k}\ns_or_b64 s[{sPC}:{sPC+1}], s[{sPC}:{sPC+1}], vcc")
    g(f"s_cbranch_scc1 {lp}")
    g(f"v_mov_b32 v192, s{sT1}\nv_mov_b32 v193, 0\ns_mov_b64 exec, 1")
    g(f"buffer_store_dword v192, v193, {sr(rDBG)}, 0 offen sc1\ns_mov_b64 exec, -1")

def p1_addr(g):
    g(f"""
    v_and_b32 v{vT+2}, 31, v1
    v_lshrrev_b32 v{vT+3}, 5, v1
    v_bfe_u32 v{vT+4}, v1, 1, 3
    v_xor_b32 v{vT+4}, v{vT+4}, v{vT+3}
    v_lshlrev_b32 v{vT+4}, 4, v{vT+4}
    v_lshl_add_u32 v{vT+4}, v{vT+2}, 7, v{vT+4}
    s_lshl_b32 s{sT1}, s{sI}, 12
    v_add_u32 v{vAX}, s{sT1}, v{vT+4}
    v_xor_b32 v{vAX+1}, 32, v{vAX}
    v_xor_b32 v{vAX+2}, 64, v{vAX}
    v_xor_b32 v{vAX+3}, 0x60, v{vAX}
    v_bfe_u32 v{vT+4}, v1, 2, 2
    v_and_b32 v{vT+5}, 3, v1
    v_lshlrev_b32 v{vT+5}, 3, v{vT+5}
    v_lshl_add_u32 v{vT+5}, v{vT+4}, 6, v{vT+5}
    v_lshl_add_u32 v{vT+5}, v{vT+3}, 9, v{vT+5}
    v_bfe_u32 v{vT+6}, v1, 4, 1
    v_bfe_u32 v{vT+7}, v1, 3, 1
    v_xor_b32 v{vT+7}, s{sB}, v{vT+7}
    v_lshlrev_b32 v{vT+7}, 6, v{vT+7}
    v_lshl_add_u32 v{vT+7}, v{vT+4}, 7, v{vT+7}
    v_lshl_add_u32 v{vT+7}, v{vT+3}, 10, v{vT+7}
    v_lshl_add_u32 v{vT+7}, v{vT+6}, 5, v{vT+7}
    v_and_b32 v{vT+2}, 3, v1
    v_lshl_add_u32 v{vT+7}, v{vT+2}, 3, v{vT+7}
    v_add_u32 v{vAW1}, {LDS_WST}, v{vT+7}
    v_xor_b32 v{vT+4}, s{sB}, v{vT+6}
    v_lshl_add_u32 v{vT+5}, v{vT+4}, 5, v{vT+5}
    v_lshl_add_u32 v{vT+5}, v{vT+6}, 12, v{vT+5}
    v_add_u32 v{vAWQ}, {LDS_WST + 8192}, v{vT+5}
    """)

def early_addr(g):
    g(f"""
    v_lshrrev_b32 v{vT+4}, 4, v1
    v_bfe_u32 v{vT+5}, v1, 2, 2
    v_lshl_add_u32 v{vT+4}, v{vT+4}, 3, v{vT+5}
    v_and_b32 v{vT+5}, 3, v1
    v_lshlrev_b32 v{vT+5}, 3, v{vT+5}
    v_lshl_add_u32 v{vT+4}, v{vT+4}, 5, v{vT+5}
    s_add_u32 s{sT1}, s{sMX}, {LDS_EW}
    v_add_u32 v{vT+6}, s{sT1}, v{vT+4}
    s_lshl_b32 s{sT1}, s{sW}, 10
    s_add_u32 s{sT1}, s{sT1}, {LDS_ER}
    v_add_u32 v{vT+7}, s{sT1}, v{vL16}
    s_lshl_b32 s{sT1}, s{sW}, 8
    s_add_u32 s{sT1}, s{sT1}, {LDS_EG}
    v_lshlrev_b32 v{vT+5}, 2, v1
    v_add_u32 v{vT+5}, s{sT1}, v{vT+5}
    """)
    g(f"""
    v_and_b32 v{vT}, 15, v1
    v_lshrrev_b32 v{vT+1}, 4, v1
    v_bfe_u32 v{vT+2}, v1, 1, 3
    v_xor_b32 v{vT+1}, v{vT+1}, v{vT+2}
    v_lshlrev_b32 v{vT+1}, 4, v{vT+1}
    v_lshl_add_u32 v{vT}, v{vT}, 7, v{vT+1}
    s_add_u32 s{sT1}, s{sMX}, {LDS_EX}
    v_add_u32 v{vT}, s{sT1}, v{vT}
    v_xor_b32 v{vT+1}, 64, v{vT}
    """)

def early_compute(g):
    if g.opt.get('nearly', 0):
        n = g.vm[::-1].index('e'); sk = g.lab("L_we")
        g(f"s_or_b32 s{sT1}, s2, s{sW}\ns_cbranch_scc0 {sk}")
        g.wvm('e')
        g(f"{sk}:\ns_waitcnt vmcnt({n + 1})")
    g.wvm('e')
    g.wlg()
    g.ds(f"ds_read_b128 v[16:19], v{vT}", 'ew')
    g.ds(f"ds_read_b128 v[20:23], v{vT+1}", 'ew')
    for s_ in range(2):
        for e in range(2):
            g.ds(f"ds_read_b64_tr_b16 v[{24+4*s_+2*e}:{25+4*s_+2*e}], v{vT+6} offset:{s_*1024+e*128}", 'ew')
    g.wlg('ew')
    lv, le = g.lab("L_ev"), g.lab("L_ee")
    g(f"s_bitcmp1_b32 s{sHP}, 0\ns_cbranch_scc1 {lv}")
    g("v_mfma_f32_16x16x32_bf16 v[32:35], v[24:27], v[16:19], 0")
    g("v_mfma_f32_16x16x32_bf16 v[36:39], v[40:43], v[16:19], 0")
    g("v_mfma_f32_16x16x32_bf16 v[32:35], v[28:31], v[20:23], v[32:35]")
    g("v_mfma_f32_16x16x32_bf16 v[36:39], v[44:47], v[20:23], v[36:39]")
    g(f"s_branch {le}\n{lv}:")
    g("v_mfma_f32_16x16x32_bf16 v[32:35], v[16:19], v[24:27], 0")
    g("v_mov_b32 v36, 0")
    g("v_mfma_f32_16x16x32_bf16 v[32:35], v[20:23], v[28:31], v[32:35]")
    g(f"{le}:\ns_nop 7")
    g.ds(f"ds_write_b128 v{vT+7}, v[32:35]", 'ep')
    g.ds(f"ds_write_b32 v{vT+5}, v36", 'ep')
    g.wlg()

def early_reduce(g): g.wave0(lambda: early_reduce_(g))
def early_reduce_(g):
    g(f"v_add_u32 v{vT+4}, {LDS_ER}, v{vL16}\nv_lshlrev_b32 v{vT+5}, 2, v1\nv_add_u32 v{vT+5}, {LDS_EG}, v{vT+5}")
    for k in range(8): g(f"ds_read_b128 v[{16+4*k}:{19+4*k}], v{vT+4} offset:{k*1024}")
    g("s_waitcnt lgkmcnt(0)")
    for k in range(8): g(f"ds_read_b32 v{64+k}, v{vT+5} offset:{k*256}")
    g(f"""
    s_lshr_b32 s{sT0}, s{sHP}, 1
    s_lshl_b32 s{sT1}, s{sTB}, 2
    s_lshr_b32 s{sT2}, s{sT0}, 1
    s_add_u32 s{sT1}, s{sT1}, s{sT2}
    s_lshr_b32 s{sT2}, s{sT1}, 3
    s_lshl_b32 s{sT2}, s{sT2}, 14
    s_and_b32 s{sT1}, s{sT1}, 7
    s_lshl_b32 s{sT1}, s{sT1}, 10
    s_add_u32 s{sT1}, s{sT1}, s{sT2}
    s_add_u32 s{sT1}, s{sT1}, {WS_KVB}
    s_and_b32 s{sT0}, s{sT0}, 1
    v_and_b32 v{vT}, 15, v1
    v_bfe_u32 v{vT+1}, v1, 4, 1
    v_lshrrev_b32 v{vT+2}, 5, v1
    v_lshlrev_b32 v{vT+2}, 3, v{vT+2}
    """)
    for k in range(1, 8):
        for q in range(4): g(f"v_add_f32 v{16+q}, v{16+q}, v{16+4*k+q}")
    g("v_cvt_pk_bf16_f32 v16, v16, v17\nv_cvt_pk_bf16_f32 v17, v18, v19")
    lv, le = g.lab("L_rv"), g.lab("L_re")
    g(f"s_bitcmp1_b32 s{sHP}, 0\ns_cbranch_scc1 {lv}")
    if True:
        g(f"""
        v_and_b32 v{vT+3}, 3, v{vT}
        v_bfe_u32 v{vT+6}, v{vT}, 2, 1
        v_lshl_add_u32 v{vT+3}, v{vT+6}, 3, v{vT+3}
        v_bfe_u32 v{vT+6}, v{vT}, 3, 1
        v_lshl_add_u32 v{vT+3}, v{vT+6}, 2, v{vT+3}
        v_lshl_add_u32 v{vT+3}, v{vT+1}, 5, v{vT+3}
        v_lshl_add_u32 v{vT+3}, v{vT+3}, 4, v{vT+2}
        s_lshl_b32 s{sT0}, s{sT0}, 8
        s_add_u32 s{sT1}, s{sT1}, s{sT0}
        buffer_store_dwordx2 v[16:17], v{vT+3}, {sr(rWS)}, s{sT1} offen sc1
        s_waitcnt lgkmcnt(0)
        """)
        for k in range(1, 8): g(f"v_add_f32 v64, v64, v{64+k}")
        g(f"""
        v_mul_f32 v64, {f2h(-1.4426950408889634)}, v64
        v_exp_f32 v64, v64
        s_lshr_b32 s{sT0}, s{sHP}, 1
        s_lshl_b32 s{sT0}, s{sT0}, 6
        v_add_f32 v64, 1.0, v64
        v_rcp_f32 v64, v64
        s_lshl_b32 s{sT1}, s{sTB}, 9
        s_add_u32 s{sT1}, s{sT1}, s{sT0}
        s_add_u32 s{sT1}, s{sT1}, {WS_GATE}
        v_lshlrev_b32 v{vT+3}, 2, v1
        s_mov_b64 exec, 0xffff
        buffer_store_dword v64, v{vT+3}, {sr(rWS)}, s{sT1} offen sc1
        s_mov_b64 exec, -1
        s_branch {le}
        {lv}:
        """)
        g(f"""
    v_lshl_add_u32 v{vT+3}, v{vT+1}, 4, v{vT}
    v_lshl_add_u32 v{vT+3}, v{vT+3}, 4, v{vT+2}
    s_lshl_b32 s{sT0}, s{sT0}, 9
    s_add_u32 s{sT1}, s{sT1}, s{sT0}
    s_add_u32 s{sT1}, s{sT1}, 8192
    buffer_store_dwordx2 v[16:17], v{vT+3}, {sr(rWS)}, s{sT1} offen sc1
    s_waitcnt lgkmcnt(0)
        """)
    g(f"{le}:")

def get_nonce(g):
    lp, ok = g.lab("L_gn"), g.lab("L_gk")
    g(f"{lp}:\nv_readfirstlane_b32 s{sNONCE}, v{vNON}\ns_nop 3\ns_cmp_lg_u32 s{sNONCE}, 0\ns_cbranch_scc1 {ok}")
    spin_check(g)
    g(f"v_mov_b32 v{vT+3}, 0\nbuffer_load_dword v{vNON}, v{vT+3}, {sr(rDBG)}, 0 offen sc1\ns_waitcnt vmcnt(0)\ns_branch {lp}\n{ok}:")

def flag_store(g, off_expr_setup):
    g(off_expr_setup)
    g(f"v_mov_b32 v{vT}, s{sNONCE}\nv_mov_b32 v{vT+1}, 0\ns_mov_b64 exec, 1")
    g(f"buffer_store_dword v{vT}, v{vT+1}, {sr(rWS)}, s{sT1} offen sc1\ns_mov_b64 exec, -1")

def poll_issue(g, kind):
    if kind == 1:
        g(f"v_lshrrev_b32 v{vT}, 2, v1\nv_and_b32 v{vT+1}, 3, v1\nv_lshlrev_b32 v{vT}, 7, v{vT}\nv_lshl_add_u32 v{vFL}, v{vT+1}, 4, v{vT}\ns_mov_b32 s{sPOLL}, {WS_F1}")
    elif kind == 2:
        g(f"v_and_b32 v{vT}, 3, v1\nv_bfe_u32 v{vT+1}, v1, 2, 1\nv_lshlrev_b32 v{vT}, 4, v{vT}\nv_lshl_add_u32 v{vFL}, v{vT+1}, 7, v{vT}\ns_and_b32 s{sPOLL}, s{sHP}, 14\ns_lshl_b32 s{sPOLL}, s{sPOLL}, 7\ns_add_u32 s{sPOLL}, s{sPOLL}, {WS_F2}")
    elif kind == 3:
        g(f"v_and_b32 v{vT}, 3, v1\nv_lshlrev_b32 v{vFL}, 4, v{vT}\ns_lshl_b32 s{sPOLL}, s{sTB}, 7\ns_add_u32 s{sPOLL}, s{sPOLL}, {WS_F3}")
    else:
        g(f"v_mov_b32 v{vFL}, 0\ns_lshl_b32 s{sPOLL}, s{sTB}, 2\ns_add_u32 s{sPOLL}, s{sPOLL}, s{sI}\ns_lshl_b32 s{sPOLL}, s{sPOLL}, 7\ns_add_u32 s{sPOLL}, s{sPOLL}, {WS_F4}")
    g(f"buffer_load_dwordx4 {r(vPOLL,4)}, v{vFL}, {sr(rWS)}, s{sPOLL} offen sc1")

def poll_check(g):
    lp, ok = g.lab("L_pl"), g.lab("L_pk")
    g(f"{lp}:")
    for k in range(4): g(f"v_xor_b32 v{vPOLL+k}, s{sNONCE}, v{vPOLL+k}")
    g(f"v_or_b32 v{vPOLL}, v{vPOLL}, v{vPOLL+1}\nv_or3_b32 v{vPOLL}, v{vPOLL}, v{vPOLL+2}, v{vPOLL+3}\nv_cmp_ne_u32 vcc, 0, v{vPOLL}\ns_nop 4\ns_cbranch_vccz {ok}")
    spin_check(g)
    g(f"buffer_load_dwordx4 {r(vPOLL,4)}, v{vFL}, {sr(rWS)}, s{sPOLL} offen sc1\ns_waitcnt vmcnt(0)\ns_branch {lp}\n{ok}:")

def w0(g):
    skip = g.lab("L_w0")
    g(f"s_cmp_lg_u32 s{sW}, 0\ns_cbranch_scc1 {skip}")
    return skip

def kv_dma(g, src_expr, slot, tag):
    def setup(): g(f"s_lshl_b32 s{sT2}, s{sW}, 12\ns_add_u32 m0, s{sT2}, {slot*SLOT}"); g(src_expr)
    def op(e): return lambda: g.vmop(f"buffer_load_dwordx4 v{vL16}, {sr(rWS)}, s{sDS} offen offset:{e*1024} sc1 lds", tag)
    return [setup] + [op(e) for e in range(4)]
def dma_B(g, c, slot, tag):
    return kv_dma(g, f"s_add_u32 s{sDS}, s{sT2}, {WS_KVB + c*SLOT}", slot, tag)
def dma_A(g, c, slot, tag):
    return kv_dma(g, f"s_add_u32 s{sDS}, s{sDMA}, {WS_KVA + c*SLOT}", slot, tag)
def dma_Wo(g, rs, grp, ldsbase, tag):
    def setup(): g(f"s_lshl_b32 s{sDS}, s{sW}, 15\ns_and_b32 s{sT1}, s{sHP}, 7\ns_lshl_b32 s{sT1}, s{sT1}, 7\ns_add_u32 s{sDS}, s{sDS}, s{sT1}")
    def op(e):
        def f():
            g(f"s_lshl_b32 s{sT2}, s{sW}, 12\ns_add_u32 m0, s{sT2}, {ldsbase + grp*32768 + e*1024}\ns_add_u32 s{sT1}, s{sDS}, {grp*262144 + e*8192}")
            g.vmop(f"buffer_load_dwordx4 v{vDWO}, {sr(rs)}, s{sT1} offen lds", tag)
        return f
    return [setup] + [op(e) for e in range(4)]
def runall(fs):
    for f in fs: f()

def phase1(g, b):
    T1, TQ = ACC, ACC + 16
    def XF(s_): return PF + 12 * s_
    def W1(s_): return PF + 12 * s_ + 4
    def WQ(s_): return PF + 12 * s_ + 8
    def reads(p, s_):
        if g.opt.get('noread'): return
        g.ds(f"ds_read_b128 {r(XF(s_),4)}, v{vAX+s_} offset:{p*SLOT}", f'f{s_}')
        for e in range(2): g.ds(f"ds_read_b64_tr_b16 {r(W1(s_)+2*e,2)}, v{vAW1} offset:{p*SLOT+s_*2048+e*512}", f'f{s_}')
        for e in range(2): g.ds(f"ds_read_b64_tr_b16 {r(WQ(s_)+2*e,2)}, v{vAWQ} offset:{p*SLOT+s_*1024+e*256}", f'f{s_}')
    def mf(j, s_, which='both'):
        g.wlg(f'f{s_}')
        if g.opt.get('nomf'): return
        c1 = "0" if (j == 0 and s_ == 0) else r(T1, 16)
        cq = "0" if (j == 0 and s_ == 0) else r(TQ, 16)
        if which != 'q':
            if b == 0: g(f"v_mfma_f32_32x32x16_bf16 {r(T1,16)}, {r(W1(s_),4)}, {r(XF(s_),4)}, {c1}")
            else:      g(f"v_mfma_f32_32x32x16_bf16 {r(T1,16)}, {r(XF(s_),4)}, {r(W1(s_),4)}, {c1}")
        if which != 't': g(f"v_mfma_f32_32x32x16_bf16 {r(TQ,16)}, {r(WQ(s_),4)}, {r(XF(s_),4)}, {cq}")
    f1chk = g.opt.get('f1chk', 6)
    def wait_c(j, extra0):
        if extra0 and f'c{j}' in g.vm:
            n = len(g.vm) - 1 - (len(g.vm) - 1 - g.vm[::-1].index(f'c{j}'))
            sk, dn = g.lab("L_wa"), g.lab("L_wb")
            g(f"s_cmp_eq_u32 s{sW}, 0\ns_cbranch_scc1 {sk}")
            g.wvm(f'c{j}')
            g(f"{sk}:\ns_waitcnt vmcnt({n + extra0})")
        else: g.wvm(f'c{j}')
    jf = g.opt.get('jflag', 2); pd3 = g.opt.get('pdist', 2) == 3
    for j in range(8):
        p = j & 3
        wait_c(j, {0: 1, 1: 1 if g.opt.get('cearly', 0) else 2}.get(j, 0))
        if j == jf:
            g.wave0(lambda: get_nonce(g), lambda: flag_store(g, f"s_lshl_b32 s{sT1}, s{sTB}, 7\ns_lshl_b32 s{sT2}, s{sHP}, 2\ns_add_u32 s{sT1}, s{sT1}, s{sT2}\ns_add_u32 s{sT1}, s{sT1}, {WS_F1}"))
        if j == f1chk:
            g.wave0(lambda: poll_check(g))
        g.wlg()
        g("s_barrier")
        g.stamp(f'b{j}')
        if j in (1, 4, 6): g.jitter(3 + j)
        pd = g.opt.get('pdist', 2)
        dm = []
        if j + pd <= 7 and not (pd == 3 and j == 0): dm = p1_dma(g, j + pd)
        if pd == 3 and j == 0: dm = p1_dma(g, 2) + p1_dma(g, 3)
        if j == f1chk: dm = dma_B(g, 0, 8, 'B01')
        if len(dm) == 5: dm = [lambda a=dm[0], c=dm[1]: (a(), c())] + dm[2:]
        if len(dm) == 8: dm = [lambda a=dm[2*k], c=dm[2*k+1]: (a(), c()) for k in range(4)]
        dp = g.opt.get('dmpos', (0, 1, 1, 2))
        def issue(k):
            for q in range(len(dm)):
                if dp[q] == k: dm[q]()
        if j == f1chk - 1:
            g.wave0(lambda: poll_issue(g, 1))
        if j == 0:
            g.wave0(lambda: g(f"v_mov_b32 v{vT+3}, 0\nbuffer_load_dword v{vNON}, v{vT+3}, {sr(rDBG)}, 0 offen sc1"))
        npf = g.opt.get('l2pf', 0)
        if npf and j + npf <= 7: l2pf(g)
        issue(-1)
        reads(p, 0); reads(p, 1)
        issue(0)
        if j > 0: mf(j - 1, 3)
        issue(1)
        reads(p, 2)
        mf(j, 0)
        issue(2)
        reads(p, 3)
        mf(j, 1)
        issue(3)
        if j == 7:
            issue(4); break
        mf(j, 2)
        issue(4)
        cp = g.opt.get('calcpos', {0: (0, 0, 1, 1), 1: (9, 9, 9, 9), 2: (9, 9, 9, 0)}[g.opt.get('cearly', 0)])
        if j == cp[0]: attn_consts(g)
        if j == cp[1]: kv_store_addr(g)
        if j == cp[2]:
            for d, p_, n in ((rOUT, pOUT, 2097152), (rWOA, pWOA, 524288), (rWOB, pWOB, 524288)): g.srd_base(d, p_); g.srd_const(d, n)
        if j == cp[3]: tail_addr(g)
    g.wlg()
    g.wvm('B01')
    g("s_barrier")
    g.stamp('bstart')
    g.ds(f"ds_read_b128 {r(KF[0],4)}, v{vAK}", 'K0')
    g.ds(f"ds_read_b128 {r(KF[1],4)}, v{vAK} offset:1024", 'kv')
    g(f"s_mov_b64 exec, s[{sMASK}:{sMASK+1}]")
    g.ds(f"ds_read_b128 {r(V0[0],4)}, v{vAV}", 'kv')
    g.ds(f"ds_read_b128 {r(V1[0],4)}, v{vAV} offset:512", 'kv')
    g("s_mov_b64 exec, -1")
    mf(7, 2, 'q'); mf(7, 2, 't')
    for k in range(2, g.opt.get('m0t', 4)): g.ds(f"ds_read_b128 {r(KTB+4*(k-2),4)}, v{vAK} offset:{k*1024}", 'kv')
    mf(7, 3, 'q'); mf(7, 3, 't')

def kv_store_addr(g):
    lv, le = g.lab("L_ka"), g.lab("L_kb")
    g(f"""
    s_and_b32 s{sT1}, s{sHP}, 14
    s_add_u32 s{sT1}, s{sT1}, s{sB}
    s_lshl_b32 s{sT1}, s{sT1}, 18
    s_lshr_b32 s{sT2}, s{sTB}, 1
    s_lshl_b32 s{sT2}, s{sT2}, 14
    s_add_u32 s{sT1}, s{sT1}, s{sT2}
    s_and_b32 s{sT2}, s{sTB}, 1
    s_lshl_b32 s{sT2}, s{sT2}, 2
    s_add_u32 s{sT2}, s{sT2}, s{sI}
    s_lshl_b32 s{sT2}, s{sT2}, 10
    s_add_u32 s{sKV}, s{sT1}, s{sT2}
    s_mov_b32 s{sSC}, {f2h(QSCALE)}
    s_mov_b32 s{sSC+1}, {f2h(QSCALE)}
    s_bitcmp1_b32 s{sHP}, 0
    s_cbranch_scc1 {lv}
    v_and_b32 v{vT}, 0x33, v1
    v_bfe_u32 v{vT+1}, v1, 2, 1
    v_lshl_or_b32 v{vT}, v{vT+1}, 3, v{vT}
    v_bfe_u32 v{vT+1}, v1, 3, 1
    v_lshl_or_b32 v{vT}, v{vT+1}, 2, v{vT}
    v_lshlrev_b32 v{vKVST}, 4, v{vT}
    s_add_u32 s{sKV1}, s{sKV}, 131072
    s_branch {le}
    {lv}:
    v_bfe_u32 v{vT}, v1, 4, 1
    v_lshlrev_b32 v{vT}, 17, v{vT}
    v_lshrrev_b32 v{vT+1}, 5, v1
    v_and_b32 v{vT+2}, 15, v1
    v_lshl_add_u32 v{vT+1}, v{vT+1}, 4, v{vT+2}
    v_lshl_add_u32 v{vKVST}, v{vT+1}, 4, v{vT}
    s_add_u32 s{sKV}, s{sKV}, 8192
    s_add_u32 s{sKV1}, s{sKV}, 512
    {le}:
    """)

def max_tree(Ss):
    regs = [S + k for S in Ss for k in range(16)]
    L = [f"v_max3_f32 v{vT}, v{regs[0]}, v{regs[1]}, v{regs[2]}", f"v_max3_f32 v{vT+1}, v{regs[3]}, v{regs[4]}, v{regs[5]}"]
    rest, k = regs[6:], 0
    while len(rest) >= 2:
        L.append(f"v_max3_f32 v{vT+k}, v{vT+k}, v{rest[0]}, v{rest[1]}"); rest = rest[2:]; k ^= 1
    L += [f"v_max_f32 v{vT}, v{vT}, v{vT+1}", f"v_mov_b32 v{vT+1}, v{vT}"]
    return L
def fill_c(Cr, off):
    L = [f"v_max_f32 v{vT}, v{vT}, v{vT+1}", f"v_sub_f32 v{Cr}, {f2h(-off)}, v{vT}", f"v_sub_f32 v{Cr+1}, {f2h(-off)}, v{vT}"]
    L += [f"v_mov_b64 v[{Cr+k}:{Cr+k+1}], v[{Cr}:{Cr+1}]" for k in range(2, 16, 2)]
    return "\n".join(L)
SWAP = f"v_permlane32_swap_b32 v{vT}, v{vT+1}"

def b_prologue(g):
    T1, TQ = ACC, ACC + 16
    g(f"v_mov_b64 v[{vT+4}:{vT+5}], -1\nv_mov_b64 v[{vT+6}:{vT+7}], -1\ns_nop 8")
    for k in range(8, 16, 2): g(f"v_pk_mul_f32 v[{TQ+k}:{TQ+k+1}], v[{TQ+k}:{TQ+k+1}], s[{sSC}:{sSC+1}]")
    for k in range(4): g(f"v_cvt_pk_bf16_f32 v{QB+k}, v{TQ+8+2*k}, v{TQ+9+2*k}")
    g.wlg('K0'); g("s_nop 0")
    nt = g.opt.get('m0t', 4)
    if nt > 1: g.wlg()
    for k in range(nt): g(f"v_mfma_f32_32x32x16_bf16 {r(STB[k],16)}, {r((KF[0], KF[1], KTB, KTB+4)[k],4)}, {r(QB,4)}, 0")
    for k in range(8): g(f"v_cvt_pk_bf16_f32 v{PF+k}, v{T1+2*k}, v{T1+2*k+1}")
    for k in range(0, 8, 2): g(f"v_pk_mul_f32 v[{TQ+k}:{TQ+k+1}], v[{TQ+k}:{TQ+k+1}], s[{sSC}:{sSC+1}]")
    L = max_tree(STB[:nt])
    for k, x in enumerate(L):
        g(x)
    g("s_nop 1")
    g(SWAP)
    g("s_nop 0")
    g(fill_c(C, g.opt.get('moff', MOFF)))
    g("s_nop 1")
    g(f"v_mfma_f32_32x32x16_bf16 {r(S0,16)}, {r(KF[0],4)}, {r(QB,4)}, {r(C,16)}")
    for k in range(4): g(f"v_cvt_pk_bf16_f32 v{QA+k}, v{TQ+2*k}, v{TQ+2*k+1}")
    g("s_nop 7")

def start_ops(g):
    def kv(k): return lambda: g.vmop(f"buffer_store_dwordx4 {r(PF+4*k,4)}, v{vKVST}, {sr(rWS)}, s{(sKV, sKV1)[k]} offen sc1", 'kvst')
    def sent():
        g(f"s_add_u32 s{sT1}, s{sOST}, {WS_O + 0x200000}")
        g.vmop(f"buffer_store_dwordx4 {r(vT+4,4)}, v{vL16}, {sr(rWS)}, s{sT1} offen sc1", 'sent')
    def gate():
        g(f"v_and_b32 v{vT}, 31, v1\nv_lshlrev_b32 v{vT}, 2, v{vT}\ns_lshl_b32 s{sT1}, s{sTB}, 2\ns_add_u32 s{sT1}, s{sT1}, s{sI}\ns_lshl_b32 s{sT1}, s{sT1}, 7\ns_add_u32 s{sT1}, s{sT1}, {WS_GATE}")
        g.vmop(f"buffer_load_dword v{vG}, v{vT}, {sr(rWS)}, s{sT1} offen sc1", 'gate')
    return kv(0), kv(1), sent, gate

def attn_consts(g):
    g(f"""
    v_mov_b32 v{vIDX}, 0xdddddddd
    v_lshrrev_b32 v{vT}, 5, v1
    v_and_b32 v{vT+1}, 15, v1
    v_lshl_add_u32 v{vT}, v{vT}, 4, v{vT+1}
    v_lshlrev_b32 v{vVOFF}, 4, v{vT}
    v_and_b32 v{vT}, 31, v1
    v_cmp_eq_u32 vcc, 16, v{vT}
    v_mov_b32 v{vT+1}, 0x3f803f80
    v_add_u32 v{vAK}, {8*SLOT}, v{vL16}
    v_cndmask_b32 v{vT+1}, 0, v{vT+1}, vcc
    v_add_u32 v{vAV}, {8*SLOT + 8192}, v{vVOFF}
    """)
    for k in range(16): g(f"v_mov_b32 v{V0[0]+k}, v{vT+1}")
    for Or in OACC:
        for k in range(0, 16, 2): g(f"v_mov_b64 v[{Or+k}:{Or+k+1}], 0")
    g(f"""
    s_lshl_b32 s{sT1}, s{sHP}, 1
    s_add_u32 s{sT1}, s{sT1}, s{sB}
    s_lshl_b32 s{sDMA}, s{sT1}, 17
    s_lshl_b32 s{sT2}, s{sI}, 12
    s_add_u32 s{sDMA}, s{sDMA}, s{sT2}
    s_lshl_b32 s{sT2}, s{sTB}, 2
    s_add_u32 s{sT2}, s{sT2}, s{sI}
    s_lshl_b32 s{sT2}, s{sT2}, 5
    s_add_u32 s{sT2}, s{sT2}, s{sT1}
    s_lshl_b32 s{sOST}, s{sT2}, 10
    """)

def tile(g, U, ev, pos):
    t = U & 7
    p = U & 1
    cur, nxt = (S0, S1) if p == 0 else (S1, S0)
    p1, pq, p0 = pos
    Qn = QB if U + 1 < 64 else QA
    def run(key):
        for f in ev.get((U, key), []): f()
    for i in range(16):
        if i == p1:
            if U > 0: g(f"v_smfmac_f32_32x32x32_bf16 {r(OACC[(U-1) >> 6],16)}, {r(V1[1-p],4)}, {r(nxt+8,8)}, v{vIDX}")
            run('m1')
            for o_ in g.opt.get('gord', 'mw01rk'):
                if o_ == 'w': g.wlg()
                if o_ == 'm' and U < 127: g(f"s_mov_b64 exec, s[{sMASK}:{sMASK+1}]")
                if o_ == '0' and U < 127: g.ds(f"ds_read_b128 {r(V0[1-p],4)}, v{vAV} offset:{((t + 1) & 7) * 1024}", 'kv')
                if o_ == '1' and U < 127: g.ds(f"ds_read_b128 {r(V1[1-p],4)}, v{vAV} offset:{((t + 1) & 7) * 1024 + 512}", 'kv')
                if o_ == 'r' and U < 127: g("s_mov_b64 exec, -1")
                if o_ == 'k' and U < 126: g.ds(f"ds_read_b128 {r(KF[p],4)}, v{vAK} offset:{((t + 2) & 7) * 1024}", 'kv')
            run('gap')
        if i == pq:
            if U < 127: g(f"v_mfma_f32_32x32x16_bf16 {r(nxt,16)}, {r(KF[1-p],4)}, {r(Qn,4)}, {r(C,16)}")
            run('mq')
        if i == p0:
            g(f"v_smfmac_f32_32x32x32_bf16 {r(OACC[U >> 6],16)}, {r(V0[p],4)}, {r(cur,8)}, v{vIDX}")
            run('m0')
        run(i)
        g(f"v_exp_f32 v{cur+i}, v{cur+i}")
    if U == 127:
        g("s_nop 1")
        g(f"v_smfmac_f32_32x32x32_bf16 {r(OACC[1],16)}, {r(V1[p],4)}, {r(cur+8,8)}, v{vIDX}")

def epilogue_parts(g, task):
    O = OACC[task]
    lo, hi = struct.unpack('<I', struct.pack('<f', 2.0**g.opt.get('lo', -110)))[0], struct.unpack('<I', struct.pack('<f', 2.0**120))[0]
    def p1():
        g(f"v_mov_b32 v{vT}, v{O+8}\nv_add_f32 v{vT+2}, |v{O}|, |v{O+1}|")
        for k in range(2, 8): g(f"v_add_f32 v{vT+2}, v{vT+2}, |v{O+k}|")
        g(f"v_permlane32_swap_b32 v{vT}, v{O+8}")
        g(f"v_subrev_u32 v{vT+2}, {lo}, v{vT+2}\ns_mov_b32 s{sT1}, {hi - lo}")
    def p2():
        g(f"v_subrev_u32 v{vT+3}, {lo}, v{vT}\nv_max_u32 v{vT+2}, v{vT+2}, v{vT+3}\nv_cmp_le_u32 vcc, s{sT1}, v{vT+2}")
        if g.opt.get('force_fb'): g("s_mov_b64 vcc, -1")
        g(f"s_nop 0\ns_cbranch_vccnz L_fallback{task}\nL_fbret{task}:\nv_rcp_f32 v{vT}, v{vT}")
        if task == 0: g(f"v_sub_f32 v{vT+3}, 1.0, v{vG}")
    def p3():
        g(f"v_mul_f32 v{vT}, v{vT}, v{vT+3 if task == 0 else vG}")
        for k in range(0, 8, 2): g(f"v_pk_mul_f32 v[{O+k}:{O+k+1}], v[{O+k}:{O+k+1}], v[{vT}:{vT+1}] op_sel_hi:[1,0]")
        for k in range(4): g(f"v_cvt_pk_bf16_f32 v{vT+4+k}, v{O+2*k}, v{O+2*k+1}")
        if task == 1:
            for k in range(4): g(f"v_min_u32 v{vT+4+k}, -2, v{vT+4+k}")
        g(f"s_add_u32 s{sT1}, s{sOST}, {WS_O + (0 if task == 0 else 0x200000)}")
        g.vmop(f"buffer_store_dwordx4 {r(vT+4,4)}, v{vL16}, {sr(rWS)}, s{sT1} offen sc1", 'ost')
    return p1, p2, p3

def fallback(g, task):
    Q, O = (QB, QA)[task], OACC[task]
    S_, C_, K_, A0, A1 = FB_S, FB_C, FB_K, FB_V0, FB_V1
    g(f"L_fallback{task}:")
    if g.opt.get('fbcount'):
        g(f"v_mov_b32 v{vT}, 1\nv_mov_b32 v{vT+1}, 0\ns_mov_b64 exec, 1\nbuffer_atomic_add v{vT}, v{vT+1}, {sr(rDBG)}, 0 offen offset:128\ns_mov_b64 exec, -1")
    if task == 0: g(f"s_mov_b32 s{sFBBASE}, {WS_KVB}")
    else: g(f"s_lshl_b32 s{sT1}, s{sI}, 12\ns_sub_u32 s{sFBBASE}, s{sDMA}, s{sT1}")
    g(f"v_and_b32 v{vT}, 31, v1\nv_cmp_eq_u32 vcc, 16, v{vT}\nv_mov_b32 v{vT+1}, 0x3f803f80\ns_nop 1\nv_cndmask_b32 v{vT+1}, 0, v{vT+1}, vcc")
    for k in range(8): g(f"v_mov_b32 v{A0+k}, v{vT+1}")
    g(f"v_mov_b32 v{vT}, 0xff800000\ns_mov_b32 s{sFBT}, 0")
    def addr():
        g(f"s_lshr_b32 s{sT1}, s{sFBT}, 3\ns_lshl_b32 s{sT1}, s{sT1}, 14\ns_and_b32 s{sT2}, s{sFBT}, 7\ns_lshl_b32 s{sT2}, s{sT2}, 10\ns_add_u32 s{sT1}, s{sT1}, s{sT2}\ns_add_u32 s{sT1}, s{sT1}, s{sFBBASE}")
    g(f"L_fb1_{task}:"); addr()
    g(f"buffer_load_dwordx4 {r(K_,4)}, v{vL16}, {sr(rWS)}, s{sT1} offen sc1\ns_waitcnt vmcnt(0)")
    g(f"v_mfma_f32_32x32x16_bf16 {r(S_,16)}, {r(K_,4)}, {r(Q,4)}, 0\ns_nop 15")
    for k in range(0, 16, 2): g(f"v_max3_f32 v{vT}, v{vT}, v{S_+k}, v{S_+k+1}")
    g(f"s_add_u32 s{sFBT}, s{sFBT}, 1\ns_cmp_lt_u32 s{sFBT}, 64\ns_cbranch_scc1 L_fb1_{task}")
    g(f"v_mov_b32 v{vT+1}, v{vT}\ns_nop 1\n{SWAP}\ns_nop 1")
    g(fill_c(C_, 0.0))
    for k in range(0, 16, 2): g(f"v_mov_b64 v[{O+k}:{O+k+1}], 0")
    g(f"s_mov_b32 s{sFBT}, 0")
    g(f"L_fb2_{task}:"); addr()
    g(f"buffer_load_dwordx4 {r(K_,4)}, v{vL16}, {sr(rWS)}, s{sT1} offen sc1\ns_add_u32 s{sT1}, s{sT1}, 8192")
    g(f"s_mov_b64 exec, s[{sMASK}:{sMASK+1}]")
    g(f"buffer_load_dwordx4 {r(A0,4)}, v{vVOFF}, {sr(rWS)}, s{sT1} offen sc1\nbuffer_load_dwordx4 {r(A1,4)}, v{vVOFF}, {sr(rWS)}, s{sT1} offen offset:512 sc1")
    g("s_mov_b64 exec, -1\ns_waitcnt vmcnt(0)")
    g(f"v_mfma_f32_32x32x16_bf16 {r(S_,16)}, {r(K_,4)}, {r(Q,4)}, {r(C_,16)}\ns_nop 15")
    for k in range(16): g(f"v_exp_f32 v{S_+k}, v{S_+k}")
    g("s_nop 2")
    g(f"v_smfmac_f32_32x32x32_bf16 {r(O,16)}, {r(A0,4)}, {r(S_,8)}, v{vIDX}")
    g(f"v_smfmac_f32_32x32x32_bf16 {r(O,16)}, {r(A1,4)}, {r(S_+8,8)}, v{vIDX}")
    g(f"s_nop 15\ns_add_u32 s{sFBT}, s{sFBT}, 1\ns_cmp_lt_u32 s{sFBT}, 64\ns_cbranch_scc1 L_fb2_{task}")
    g(f"v_mov_b32 v{vT}, v{O+8}\nv_mov_b32 v{vT+1}, v{O+8}\ns_nop 1\n{SWAP}\ns_nop 1\ns_branch L_fbret{task}")

def tail_addr(g):
    g(f"""
    v_lshrrev_b32 v{vT}, 3, v1
    v_bfe_u32 v{vT+1}, v1, 2, 1
    v_bfe_u32 v{vT+2}, v1, 4, 1
    v_xor_b32 v{vT+1}, v{vT+1}, v{vT+2}
    v_lshlrev_b32 v{vT+1}, 6, v{vT+1}
    v_lshl_add_u32 v{vT+1}, v{vT}, 10, v{vT+1}
    v_and_b32 v{vT+3}, 3, v1
    v_lshl_add_u32 v{vDWO}, v{vT+3}, 4, v{vT+1}
    v_lshrrev_b32 v{vT}, 5, v1
    v_bfe_u32 v{vT+1}, v1, 2, 2
    v_lshl_add_u32 v{vT}, v{vT}, 2, v{vT+1}
    v_lshlrev_b32 v{vT}, 7, v{vT}
    v_bfe_u32 v{vT+1}, v1, 3, 1
    v_lshl_add_u32 v{vT}, v{vT+1}, 6, v{vT}
    v_lshl_add_u32 v{vT}, v{vT+2}, 5, v{vT}
    v_lshl_add_u32 v{vT}, v{vT+3}, 3, v{vT}
    s_lshl_b32 s{sT1}, s{sI}, 13
    s_add_u32 s{sT1}, s{sT1}, {LDS_WOB}
    s_lshr_b32 s{sT2}, s{sHP}, 3
    s_lshl_b32 s{sT2}, s{sT2}, 15
    s_add_u32 s{sT1}, s{sT1}, s{sT2}
    v_add_u32 v{vAT+2}, s{sT1}, v{vT}
    v_xor_b32 v{vAT+3}, 64, v{vAT+2}
    s_lshl_b32 s{sT2}, s{sT2}, 1
    s_sub_u32 s{sT1}, s{sT1}, s{sT2}
    s_add_u32 s{sT1}, s{sT1}, 32768
    v_add_u32 v{vAT}, s{sT1}, v{vT}
    v_xor_b32 v{vAT+1}, 64, v{vAT}
    s_mul_i32 s{sT1}, s{sW}, 6144
    v_add_u32 v{vRR}, s{sT1}, v{vL16}
    s_lshl_b32 s{sT1}, s{sTB}, 7
    s_lshr_b32 s{sT2}, s{sHP}, 3
    s_lshl_b32 s{sT2}, s{sT2}, 6
    s_add_u32 s{sT1}, s{sT1}, s{sT2}
    s_lshl_b32 s{sT2}, s{sB}, 5
    s_add_u32 s{sT1}, s{sT1}, s{sT2}
    v_and_b32 v{vT}, 31, v1
    v_add_u32 v{vT}, s{sT1}, v{vT}
    v_lshlrev_b32 v{vT}, 10, v{vT}
    v_lshrrev_b32 v{vT+1}, 5, v1
    v_lshl_add_u32 v{vT}, v{vT+1}, 4, v{vT}
    s_and_b32 s{sT2}, s{sHP}, 7
    s_lshl_b32 s{sT2}, s{sT2}, 7
    s_lshl_b32 s{sT1}, s{sI}, 5
    s_add_u32 s{sT2}, s{sT2}, s{sT1}
    v_add_u32 v{vOUTA}, s{sT2}, v{vT}
    """)

def of_loads(g, branch, tag, dst=None):
    dst = OF if dst is None else dst
    def setup():
        g(f"""
        s_lshl_b32 s{sT1}, s{sTB}, 2
        s_lshr_b32 s{sT2}, s{sHP}, 3
        s_lshl_b32 s{sT2}, s{sT2}, 1
        s_add_u32 s{sT1}, s{sT1}, s{sT2}
        s_add_u32 s{sT1}, s{sT1}, s{sB}
        s_lshl_b32 s{sT1}, s{sT1}, 15
        s_lshl_b32 s{sT2}, s{sI}, 12
        s_add_u32 s{sT1}, s{sT1}, s{sT2}
        s_add_u32 s{sT1}, s{sT1}, {WS_O + branch*0x200000}
        s_lshr_b32 s{sT2}, s{sHP}, 3
        s_lshl_b32 s{sT2}, s{sT2}, 14
        s_add_u32 s{sOF+1}, s{sT1}, s{sT2}
        s_sub_u32 s{sT1}, s{sT1}, s{sT2}
        s_add_u32 s{sOF}, s{sT1}, 16384
        """)
    def op(n): return lambda: g.vmop(f"buffer_load_dwordx4 {r(dst+4*n,4)}, v{vL16}, {sr(rWS)}, s{sOF + (n >> 2)} offen offset:{(n&3)*1024} sc1", f'{tag}{n}')
    return [setup] + [op(n) for n in range(8)]

def wfrag_reads(g, n, base, tag):
    for tc in range(2):
        for e in range(2):
            g.ds(f"ds_read_b64_tr_b16 {r(WF+8*n+4*tc+2*e,2)}, v{vAT+2*(n>>2)+tc} offset:{base+(n&3)*2048+e*1024}", f'{tag}{n}')

def tail(g):
    OA = PF
    p1, p2, p3 = epilogue_parts(g, 1)
    fa = of_loads(g, 1, 'OA', OA)
    oat = list(g.opt.get('oat', (8, 8, 8, 8, 9, 9, 10, 10)))
    for n in range(3): wfrag_reads(g, n, 0, 'w')
    p1(); g("s_nop 0"); p2(); fa[0](); p3()
    if g.opt.get('endprio') is not None: g(f"s_setprio {g.opt['endprio']}")
    g.stamp('A')
    g.jitter(200)
    t1at = g.opt.get('t1at', 0)
    g.wvm('OB7')
    if t1at == 0:
        g.wvm('WoA1'); g("s_barrier")
    g.stamp('T1')
    DA = LDS_WOA - LDS_WOB
    nload = 0
    for n in range(8):
        g.wlg(f'w{n}')
        for tc in range(2):
            c = "0" if n == 0 else r(ACC+16*tc, 16)
            g(f"v_mfma_f32_32x32x16_bf16 {r(ACC+16*tc,16)}, {r(WF+8*n+4*tc,4)}, {r(OF+4*n,4)}, {c}")
        if n == t1at and n > 0:
            g.wvm('WoA1'); g("s_barrier")
        if n + 3 < 8: wfrag_reads(g, n + 3, 0, 'w')
        else: wfrag_reads(g, n - 5, 0, 'x')
        if n in (1, 5):
            for k in range(2): g(f"v_add_u32 v{vAT + (n >> 2) * 2 + k}, {DA}, v{vAT + (n >> 2) * 2 + k}")
        for k in range(8):
            if oat[k] == n: fa[1 + k]()
    g.stamp('bp')
    for n in range(3, 8):
        g.wlg(f'x{n-3}')
        wfrag_reads(g, n, 0, 'x')
        for k in range(8):
            if oat[k] == n + 5: fa[1 + k]()
    full = g.opt.get('red', 'full') == 'full'
    if not full:
        for d in range(4):
            g(f"s_sub_u32 s{sT1}, {d + 3}, s{sI}\ns_and_b32 s{sT1}, s{sT1}, 3\ns_lshl_b32 s{sT1}, s{sT1}, 11\ns_mul_i32 s{sT2}, s{sB}, 24576\ns_add_u32 s{sT1}, s{sT1}, s{sT2}\ns_add_u32 s{sT1}, s{sT1}, {d * 6144}\nv_add_u32 v{vT+4+d}, s{sT1}, v{vL16}")
    else:
        RW = 80
        g(f"""
        v_and_b32 v{vT}, 31, v1
        v_lshrrev_b32 v{vT+1}, 5, v1
        v_and_b32 v{vT+2}, 15, v1
        v_xor_b32 v{vT+1}, v{vT+1}, v{vT+2}
        v_lshlrev_b32 v{vT+1}, 4, v{vT+1}
        v_lshl_add_u32 v{vT}, v{vT}, 8, v{vT+1}
        s_lshl_b32 s{sT1}, s{sW}, 13
        v_add_u32 v{RW}, s{sT1}, v{vT}
        v_lshrrev_b32 v{vT}, 3, v1
        s_lshl_b32 s{sT1}, s{sI}, 3
        v_add_u32 v{vT}, s{sT1}, v{vT}
        v_and_b32 v{vT+1}, 7, v1
        v_lshlrev_b32 v{vT+2}, 1, v{vT+1}
        v_and_b32 v{vT+3}, 15, v{vT}
        v_xor_b32 v{vT+2}, v{vT+2}, v{vT+3}
        v_lshlrev_b32 v{vT+2}, 4, v{vT+2}
        v_lshl_add_u32 v{vT+2}, v{vT}, 8, v{vT+2}
        s_lshl_b32 s{sT1}, s{sB}, 15
        v_add_u32 v{RW+8}, s{sT1}, v{vT+2}
        v_xor_b32 v{RW+9}, 16, v{RW+8}
        s_lshl_b32 s{sT1}, s{sTB}, 7
        s_lshr_b32 s{sT2}, s{sHP}, 3
        s_lshl_b32 s{sT2}, s{sT2}, 6
        s_add_u32 s{sT1}, s{sT1}, s{sT2}
        s_lshl_b32 s{sT2}, s{sB}, 5
        s_add_u32 s{sT1}, s{sT1}, s{sT2}
        v_add_u32 v{vT}, s{sT1}, v{vT}
        v_lshlrev_b32 v{vT}, 10, v{vT}
        v_lshl_add_u32 v{vT}, v{vT+1}, 4, v{vT}
        s_and_b32 s{sT2}, s{sHP}, 7
        s_lshl_b32 s{sT2}, s{sT2}, 7
        v_add_u32 v{vOUTA}, s{sT2}, v{vT}
        """)
        for k in range(1, 8): g(f"v_xor_b32 v{RW+k}, {k*32}, v{RW}")
    g.wlg()
    if g.opt.get('t2early', 1): g("s_barrier")
    g.stamp('poll')
    def check(q, bad):
        R = OA + 16 * q
        g(f"v_max3_u32 v{vT}, v{R}, v{R+1}, v{R+2}\nv_max3_u32 v{vT+1}, v{R+3}, v{R+4}, v{R+5}")
        for k in range(6, 16, 4):
            g(f"v_max3_u32 v{vT}, v{vT}, v{R+k}, v{R+k+1}")
            if k + 3 < 16: g(f"v_max3_u32 v{vT+1}, v{vT+1}, v{R+k+2}, v{R+k+3}")
        g(f"v_max_u32 v{vT}, v{vT}, v{vT+1}\nv_cmp_eq_u32 vcc, -1, v{vT}\ns_nop 0\ns_cbranch_vccnz {bad}")
        for tc in range(2):
            for n in range(4 * q, 4 * q + 4):
                g(f"v_mfma_f32_32x32x16_bf16 {r(ACC+16*tc,16)}, {r(WF+8*n+4*tc,4)}, {r(OA+4*n,4)}, {r(ACC+16*tc,16)}")
    g(f"s_mov_b32 s{sDS}, 0")
    for q in range(2):
        sk, bad = g.lab("L_oa"), g.lab("L_ob")
        g.wvm(f'OA{4*q+3}')
        check(q, bad)
        g(f"s_branch {sk}\n{bad}:\ns_bitset1_b32 s{sDS}, {q}\n{sk}:")
    g.stamp('pass1')
    g(f"L_oa_loop:\ns_cmp_eq_u32 s{sDS}, 0\ns_cbranch_scc1 L_oa_done")
    spin_check(g)
    for q in range(2):
        sk = g.lab("L_oc")
        g(f"s_bitcmp1_b32 s{sDS}, {q}\ns_cbranch_scc0 {sk}")
        for n in range(4 * q, 4 * q + 4): fa[1 + n]()
        g.vm = []
        g(f"{sk}:")
    g("s_waitcnt vmcnt(0)")
    for q in range(2):
        sk = g.lab("L_od")
        g(f"s_bitcmp1_b32 s{sDS}, {q}\ns_cbranch_scc0 {sk}")
        check(q, sk)
        g(f"s_bitset0_b32 s{sDS}, {q}\n{sk}:")
    g("s_branch L_oa_loop\nL_oa_done:")
    g.stamp('mm')
    g.jitter(201)
    if full:
        if not g.opt.get('t2early', 1): g("s_barrier")
        g("s_nop 5")
        for tc in range(2):
            if tc == 1: g("s_nop 1")
            for q in range(4): g.ds(f"ds_write_b128 v{RW+4*tc+q}, {r(ACC+16*tc+4*q,4)}", 'rw')
        g.wlg()
        g("s_barrier")
        g.stamp('red')
        for kq in range(4):
            for e in range(2): g.ds(f"ds_read_b128 {r(16+8*kq+4*e,4)}, v{RW+8+e} offset:{kq*8192}", f'rr{kq}')
        g.wlg('rr1')
        for k in range(0, 8, 2): g(f"v_pk_add_f32 v[{16+k}:{17+k}], v[{16+k}:{17+k}], v[{24+k}:{25+k}]")
        g.wlg('rr3')
        for k in range(0, 8, 2): g(f"v_pk_add_f32 v[{32+k}:{33+k}], v[{32+k}:{33+k}], v[{40+k}:{41+k}]")
        for k in range(0, 8, 2): g(f"v_pk_add_f32 v[{16+k}:{17+k}], v[{16+k}:{17+k}], v[{32+k}:{33+k}]")
        for k in range(4): g(f"v_cvt_pk_bf16_f32 v{16+k}, v{16+2*k}, v{17+2*k}")
        g.vmop(f"buffer_store_dwordx4 v[16:19], v{vOUTA}, {sr(rOUT)}, 0 offen {g.opt.get('outsc', 'nt')}", 'out')
        return
    if not g.opt.get('t2early', 1): g("s_barrier")
    g("s_nop 3")
    def piece(d): return ACC + 16 * (d >> 1) + 8 * (d & 1)
    for d in range(4):
        sk = g.lab("L_rw")
        if d == 2: g("s_nop 6")
        g(f"s_cmp_eq_u32 s{sI}, {d}\ns_cbranch_scc1 {sk}")
        g(f"ds_write_b128 v{vT+4+d}, {r(piece(d),4)}\nds_write_b128 v{vT+4+d}, {r(piece(d)+4,4)} offset:1024\n{sk}:")
    lj = g.lab("L_rj")
    for d in range(4):
        sk = g.lab("L_rs")
        if d < 3: g(f"s_cmp_lg_u32 s{sI}, {d}\ns_cbranch_scc1 {sk}")
        for k in range(0, 8, 2): g(f"v_mov_b64 v[{40+k}:{41+k}], v[{piece(d)+k}:{piece(d)+k+1}]")
        if d < 3: g(f"s_branch {lj}\n{sk}:")
    g(f"{lj}:")
    g("s_waitcnt lgkmcnt(0)\ns_barrier")
    g.stamp('red')
    for k in range(3):
        for e in range(2):
            g.ds(f"ds_read_b128 {r(16+8*k+4*e,4)}, v{vRR} offset:{k*2048+e*1024}", f'rr{k}')
    g.wlg('rr0')
    for k in range(0, 8, 2): g(f"v_pk_add_f32 v[{40+k}:{41+k}], v[{40+k}:{41+k}], v[{16+k}:{17+k}]")
    g.wlg('rr2')
    for k in range(0, 8, 2): g(f"v_pk_add_f32 v[{24+k}:{25+k}], v[{24+k}:{25+k}], v[{32+k}:{33+k}]")
    for k in range(0, 8, 2): g(f"v_pk_add_f32 v[{40+k}:{41+k}], v[{40+k}:{41+k}], v[{24+k}:{25+k}]")
    for k in range(4): g(f"v_cvt_pk_bf16_f32 v{16+k}, v{40+2*k}, v{41+2*k}")
    g("s_nop 1\nv_permlane32_swap_b32 v16, v18\nv_permlane32_swap_b32 v17, v19")
    g.vmop(f"buffer_store_dwordx4 v[16:19], v{vOUTA}, {sr(rOUT)}, 0 offen {g.opt.get('outsc', 'nt')}", 'out')

def schedule(g):
    o = g.opt
    ev = {}
    def at(T, key, *fs): ev.setdefault((T, key), []).extend(fs)
    dpos = o.get('dpos', ((2, 'm0'), (3, 'm0'), (4, 'm0'), (5, 'm0')))
    pp = o.get('pp', {(2, 'mq'): 3, (5, 'm0'): 2, (0, 'm0'): 1, (1, 'mq'): 0})
    def wave0(*fs): return lambda: g.wave0(*fs)
    def flag(base, hi, lo):
        return lambda: flag_store(g, f"s_lshl_b32 s{sT1}, s{hi}, 7\ns_lshl_b32 s{sT2}, s{lo}, 2\ns_add_u32 s{sT1}, s{sT1}, s{sT2}\ns_add_u32 s{sT1}, s{sT1}, {base}")
    def slot(gi): return slotB(gi) if gi < 8 else slotA(gi - 8)
    def vadd(reg, src, gi):
        d = ((slot(gi + 1) - slot(gi)) * SLOT) & 0xffffffff
        if gi != 7: return lambda: g(f"v_add_u32 v{reg}, {d}, v{src}")
        return lambda: g(f"s_lshl_b32 s{sT1}, s{sB}, 14\ns_add_u32 s{sT1}, s{sT1}, {d}\nv_add_u32 v{reg}, s{sT1}, v{src}")
    nt = o.get('m0t', 4)
    at(59, 0, vadd(vT + 3, vAK, 7))
    for k in range(nt):
        at(59, 'gap', lambda k=k: g.ds(f"ds_read_b128 {r(KTMP+4*k,4)}, v{vT+3} offset:{k*1024}", 'kv'))
        at(60 + k // 2, 7 if k % 2 == 0 else 13, lambda k=k: g(f"v_mfma_f32_32x32x16_bf16 {r(STMP[k],16)}, {r(KTMP+4*k,4)}, {r(QA,4)}, 0"))
    L = max_tree(STMP[:nt])
    if nt > 2:
        at(61, 6, lambda: g("\n".join(L[:8]))); at(62, 1, lambda: g("\n".join(L[8:16]))); at(62, 6, lambda: g("\n".join(L[16:])))
    else:
        at(61, 6, lambda: g("\n".join(L[:8]))); at(62, 6, lambda: g("\n".join(L[8:])))
    at(62, 8, lambda: g(SWAP))
    at(62, 12, lambda: g(fill_c(C, o.get('moff', MOFF))))
    e1, e2, e3 = epilogue_parts(g, 0)
    at(65, 0, e1); at(65, 1, e2); at(65, 6, e3, lambda: g.stamp('B'))
    fs = dma_B(g, 2, 0, 'G1')
    at(0, 6, fs[0], fs[1]); at(0, 13, fs[2]); at(1, 1, fs[3]); at(1, 6, fs[4])
    k0, k1, sent, gate = start_ops(g)
    at(4, 6, k0); at(5, 6, k1); at(6, 6, sent); at(7, 6, gate)
    for U in (3, 17, 30, 63, 70, 90, 111, 125): at(U, 9, lambda U=U: g.jitter(U))
    for gi in range(16):
        T0 = 8 * gi
        ppc = dict(pp)
        if gi == 15:
            ppc = {k: v for k, v in pp.items() if k[0] < 2}
            ppc.update(o.get('pplast', {(2, 'm1'): 3, (3, 'm0'): 2, (5, 'm0'): 1, (7, 'm1'): 0}))
        for (t, key), pr in ppc.items(): at(T0 + t, key, lambda pr=pr: g(f"s_setprio {pr}"))
        if gi < 15:
            at(T0 + 6, 0, vadd(vAK, vAK, gi))
            at(T0 + 7, 0, vadd(vAV, vAV, gi))
        wait = {1: 'G1', 2: 'kvst', 3: 'G3', 4: None, 7: 'A0', 8: 'A1', 9: 'A2', 10: 'ost', 11: 'A4', 12: 'A5', 13: 'A6', 14: 'WoB0', 15: 'WoB1'}
        if gi == 4: at(T0 + 1, 1, lambda: g.wvm(), wave0(lambda: poll_check(g)))
        if gi == 14: at(T0 + 1, 1, lambda: g.wvm('WoB0'), wave0(lambda: poll_check(g)))
        if gi in wait: at(T0 + 1, 'm0', lambda w=wait[gi]: g.wvm(w))
        if gi not in o.get('nobar', ()): at(T0 + 1, 'm0', lambda: g("s_barrier"))
        at(T0 + 1, 'm0', lambda gi=gi: g.stamp(f'g{gi}'))
        grp = {0: lambda: dma_B(g, 4, 2, 'G2'), 1: lambda: dma_B(g, 6, 4, 'G3'),
               4: lambda: dma_A(g, 0, 6, 'A0'), 5: lambda: dma_A(g, 1, 8, 'A1'), 6: lambda: dma_A(g, 2, 0, 'A2'), 7: lambda: dma_A(g, 3, 2, 'A3'),
               8: lambda: dma_A(g, 4, 4, 'A4'), 9: lambda: dma_A(g, 5, 6, 'A5'), 10: lambda: dma_A(g, 6, 8, 'A6'), 11: lambda: dma_A(g, 7, 0, 'A7'),
               12: lambda: dma_Wo(g, rWOB, 0, LDS_WOB, 'WoB0'), 13: lambda: dma_Wo(g, rWOB, 1, LDS_WOB, 'WoB1'),
               14: lambda: dma_Wo(g, rWOA, 0, LDS_WOA, 'WoA0'), 15: lambda: dma_Wo(g, rWOA, 1, LDS_WOA, 'WoA1')}
        if gi == 13: at(T0 + 2, 0, wave0(lambda: poll_issue(g, 3)))
        if gi in grp:
            fs = grp[gi]()
            at(T0 + dpos[0][0], dpos[0][1], fs[0])
            for (t, i), f in zip(dpos, fs[1:]): at(T0 + t, i, f)
        if gi == 2: at(T0 + 2, 6, wave0(flag(WS_F2, sHP, sTB)))
        if gi == 3:
            at(T0 + 4, 6, wave0(lambda: poll_issue(g, 2)))
        if gi == 10: at(T0 + 4, 6, wave0(flag(WS_F3, sTB, sHP)))
        if gi == 13 and o.get('wopf', 1):
            def wopf():
                g(f"s_and_b32 s{sT1}, s{sTB}, 3\ns_lshl_b32 s{sT1}, s{sT1}, 13\ns_add_u32 s{sT1}, s{sT1}, s{sDS}\ns_add_u32 s{sT1}, s{sT1}, 262144")
                g.vmop(f"buffer_load_dwordx4 {r(208,4)}, v{vDWO}, {sr(rWOA)}, s{sT1} offen", 'pf')
            at(T0 + 5, 6, wopf)
        if gi == 12 and o.get('outpf', 0):
            def outpf():
                g(f"s_lshl_b32 s{sT1}, s{sTB}, 1\ns_lshr_b32 s{sT2}, s{sHP}, 3\ns_add_u32 s{sT1}, s{sT1}, s{sT2}\ns_lshl3_add_u32 s{sT1}, s{sT1}, s{sW}\ns_lshl_b32 s{sT1}, s{sT1}, 13" if False else
                  f"s_lshl_b32 s{sT1}, s{sTB}, 1\ns_lshr_b32 s{sT2}, s{sHP}, 3\ns_add_u32 s{sT1}, s{sT1}, s{sT2}\ns_lshl3_add_u32 s{sT1}, s{sT1}, s{sW}\ns_lshl_b32 s{sT1}, s{sT1}, 13\ns_and_b32 s{sT2}, s{sHP}, 7\ns_lshl_b32 s{sT2}, s{sT2}, 7\ns_add_u32 s{sT1}, s{sT1}, s{sT2}")
                g(f"v_lshlrev_b32 v{vT}, 10, v1\ns_mov_b64 exec, {255 if o.get('outpf') == 1 else 1}")
                g.vmop(f"buffer_load_dword v212, v{vT}, {sr(rOUT)}, s{sT1} offen", 'pf')
                g("s_mov_b64 exec, -1")
            at(T0 + 6, 6, outpf)
        if gi == 14:
            fs = of_loads(g, 0, 'OB')
            at(T0 + 4, 6, fs[0])
            for n, f in enumerate(fs[1:]): at(T0 + 4 + n // 2, 6 if n % 2 == 0 else 13, f)
    return ev

def slotB(c): return (8 + c) % 10
def slotA(c): return 2 * ((3 + c) % 5)

def build(**opt):
    g = G(**opt)
    setup(g)
    fork = (list(g.lg), list(g.vm)); nst0 = g.nst
    g(f"s_bitcmp1_b32 s{sHP}, 0\ns_cbranch_scc1 L_p1b")
    g("L_p1a:")
    phase1(g, 0)
    end0 = (list(g.lg), list(g.vm))
    g("s_branch L_p1done\nL_rare0:")
    main0 = g.L; g.L = []
    g.lg, g.vm = list(fork[0]), list(fork[1]); g.nst = nst0
    phase1(g, 1)
    var1 = g.L; g.L = main0
    if g.opt.get('rnear', 1): g.L += g.cold; g.cold = []
    g("L_p1b:")
    g.L += var1
    assert end0 == (g.lg, g.vm), (end0, g.lg, g.vm)
    g("L_p1done:")
    g.stamp('p1')
    b_prologue(g)
    g.stamp('t0')
    ev = schedule(g)
    for U in range(128): tile(g, U, ev, opt.get('pos', (2, 5, 10)))
    tail(g)
    if opt.get('stamps'):
        g.stamp('end')
        g(f"s_lshl_b32 s{sT1}, s2, 3\ns_add_u32 s{sT1}, s{sT1}, s{sW}\ns_lshl_b32 s{sT1}, s{sT1}, 6\ns_add_u32 s{sT1}, s{sT1}, {WS_DBG}")
        g("s_waitcnt lgkmcnt(0)")
        for k in range(12): g(f"v_mov_b32 v{16+k}, s{STAMP_SLOTS[min(k, g.nst-1)]}")
        g(f"v_mov_b32 v30, 0\ns_mov_b64 exec, 1")
        for k in range(3): g(f"buffer_store_dwordx4 v[{16+4*k}:{19+4*k}], v30, {sr(rWS)}, s{sT1} offen offset:{16*k}")
    if opt.get('dbgst'):
        sk = w0(g)
        g("s_waitcnt vmcnt(0) lgkmcnt(0)")
        last = STAMP_SLOTS[g.nst - 1]
        g(f"v_mov_b32 v16, s{last}\ns_not_b32 s{sT1}, s{STAMP_SLOTS[0]}\nv_mov_b32 v17, s{sT1}\nv_mov_b32 v30, 0\ns_mov_b64 exec, 1")
        g(f"buffer_atomic_umax v16, v30, {sr(rDBG)}, 0 offen offset:4\nbuffer_atomic_umax v17, v30, {sr(rDBG)}, 0 offen offset:8")
        sk2 = g.lab("L_d2")
        g(f"s_cmp_lg_u32 s2, {opt['dbgst'] - 1}\ns_cbranch_scc1 {sk2}")
        for k in range(12): g(f"s_sub_u32 s{sT1}, s{STAMP_SLOTS[min(k, g.nst-1)]}, s{STAMP_SLOTS[0]}\nv_mov_b32 v{16+k}, s{sT1}")
        g(f"v_mov_b32 v16, s{STAMP_SLOTS[0]}")
        for k in range(3): g(f"buffer_store_dwordx4 v[{16+4*k}:{19+4*k}], v30, {sr(rDBG)}, 0 offen offset:{16+16*k}")
        g(f"{sk2}:\ns_mov_b64 exec, -1\n{sk}:")
    if opt.get('spinend'):
        base, idx, mult = opt['spinend']
        sk = w0(g); sk2 = g.lab("L_sp")
        g(f"s_cmp_lg_u32 s2, {opt.get('spinwg', 0)}\ns_cbranch_scc1 {sk}\ns_waitcnt vmcnt(0) lgkmcnt(0)")
        g(f"s_sub_u32 s{sT1}, s{STAMP_SLOTS[idx]}, s{STAMP_SLOTS[0]}\ns_mul_i32 s{sT1}, s{sT1}, {mult}\ns_add_u32 s{sT1}, s{sT1}, {base*100}")
        g(f"{sk2}:\ns_memrealtime s[{sPC}:{sPC+1}]\ns_waitcnt lgkmcnt(0)\ns_sub_u32 s{sT2}, s{sPC}, s{STAMP_SLOTS[0]}\ns_cmp_lt_u32 s{sT2}, s{sT1}\ns_cbranch_scc1 {sk2}")
        g(f"{sk}:")
    if opt.get('spinrel'):
        a_, b_, mult, shift = opt['spinrel']
        sk = w0(g); sk2 = g.lab("L_sq")
        g(f"s_cmp_lg_u32 s2, {opt.get('spinwg', 0)}\ns_cbranch_scc1 {sk}\ns_waitcnt vmcnt(0) lgkmcnt(0)")
        g(f"s_sub_u32 s{sT1}, s{STAMP_SLOTS[b_]}, s{STAMP_SLOTS[a_]}\ns_mul_i32 s{sT1}, s{sT1}, {mult}\ns_lshr_b32 s{sT1}, s{sT1}, {shift}")
        g(f"s_memrealtime s[{sSC}:{sSC+1}]\ns_waitcnt lgkmcnt(0)")
        g(f"{sk2}:\ns_memrealtime s[{sPC}:{sPC+1}]\ns_waitcnt lgkmcnt(0)\ns_sub_u32 s{sT2}, s{sPC}, s{sSC}\ns_cmp_lt_u32 s{sT2}, s{sT1}\ns_cbranch_scc1 {sk2}")
        g(f"{sk}:")
    if opt.get('spinconst'):
        sk = w0(g); sk2 = g.lab("L_sc")
        g(f"s_waitcnt vmcnt(0) lgkmcnt(0)\ns_memrealtime s[{sSC}:{sSC+1}]\ns_waitcnt lgkmcnt(0)")
        g(f"{sk2}:\ns_memrealtime s[{sPC}:{sPC+1}]\ns_waitcnt lgkmcnt(0)\ns_sub_u32 s{sT2}, s{sPC}, s{sSC}\ns_cmp_lt_u32 s{sT2}, {opt['spinconst']}\ns_cbranch_scc1 {sk2}")
        g(f"{sk}:")
    g("L_abort:\ns_endpgm")
    g.L += g.cold
    fallback(g, 0)
    fallback(g, 1)
    g("L_end:\ns_endpgm\nL_codeend:")
    hdr = open('gated_mix__mha_block__grouped_kv_mqa__prompt.s.ref').read().split("; Override launch")[0]
    out = hdr + "; One fused launch: projections, MQA and MHA attention, gated output projection.\n"
    out += "; @launch grid=(256,1,1) block=(512,1,1) lds=163840\n"
    out += f""".amdgcn_target "amdgcn-amd-amdhsa--gfx950"
.text
.globl {NAME}
.p2align 8
.type {NAME},@function
{NAME}:
{g.text()}.section .rodata,"a"
.p2align 6
.amdhsa_kernel {NAME}
  .amdhsa_next_free_vgpr 256
  .amdhsa_next_free_sgpr 102
  .amdhsa_accum_offset 256
  .amdhsa_group_segment_fixed_size 0
  .amdhsa_kernarg_size 96
  .amdhsa_user_sgpr_count 2
  .amdhsa_user_sgpr_kernarg_segment_ptr 1
  .amdhsa_system_sgpr_workgroup_id_x 1
.end_amdhsa_kernel
"""
    return out

if __name__ == "__main__":
    path = sys.argv[1] if len(sys.argv) > 1 else 'gated_mix__mha_block__grouped_kv_mqa__prompt.s'
    opt = {}
    for a in sys.argv[2:]:
        k, _, v = a.partition('=')
        opt[k] = eval(v) if v else True
    open(path, 'w').write(build(**opt))
```

```python
import sys, struct, copy
NAME = "gated_mix__mha_block__grouped_kv_mqa__prompt_kernel"

def f2h(x): return "0x%08x" % struct.unpack('<I', struct.pack('<f', x))[0]

WS_KVA  = 0x000000
WS_KVB  = 0x400000
WS_GATE = 0x420000
WS_F1   = 0x424000
WS_F2   = WS_F1 + 2048
WS_F3   = WS_F1 + 4096
WS_F4   = WS_F1 + 6144
WS_O    = 0x500000
WS_DBG  = 0x900000
WS_SIZE = 0x1000000

SLOT = 16384
LDS_WST = 65536
LDS_EW  = 8 * SLOT
LDS_ER  = 9 * SLOT
LDS_EG  = 9 * SLOT + 8192
LDS_EX  = 3 * SLOT
LDS_WOB = 2 * SLOT
LDS_WOA = 6 * SLOT

sW, sHP, sTB, sROT, sB = 3, 4, 5, 6, 7
rX, rWS_, rWKV, rGATE, rWS, rDBG, rOUT, rWOA, rWOB = 8, 12, 16, 20, 24, 28, 32, 36, 40
sMASK = 44
sI, sNONCE, sSPIN, sT0, sT1, sT2 = 46, 47, 48, 49, 50, 51
pX, pWQKV, pWOA, pBX, pWQ, pWK, pWV, pWOB, pGATE, pOUT, pDBG, pWS = 52, 54, 56, 58, 60, 62, 64, 66, 68, 70, 72, 74
sXO, sWO, sWSTEP, sW16, sMX, sMW, sKX, sKW = 76, 77, 78, 79, 80, 81, 82, 83
sOF = 76
sPC = 84
sFBBASE, sKV, sFBT, sDMA, sOST, sT3 = 86, 87, 88, 89, 90, 91
sHI, sKQ = 99, 6
sKV1, sSC = 98, 100
sPOLL, sDS = 92, 93
sST = 94
vIDX, vAK, vAV, vG, vL16, vVOFF = 2, 3, 4, 5, 6, 7
vT = 8
S0, S1, C, QA, QB = 16, 32, 64, 80, 84
OACC = (112, 48)
STMP, KTMP = (128, 144, 160, 176), 192
STB, KTB = (32, 16, 128, 64), 232
FB_S, FB_C, FB_K, FB_V0, FB_V1 = 176, 160, 144, 148, 152
KF, V0, V1 = (88, 92), (96, 100), (104, 108)
OF = 112
ACC = 144
PF = 176
WF = 16
vAX = 240
vAW1, vAWQ, vDX0, vDX1, vDW, vKVST = 244, 245, 246, 247, 248, 249
vDWO, vRR, vOUTA = 224, 225, 226
vAT = 228
vFL, vNON, vDUMMY = 250, 251, 251
vPOLL = 252
QSCALE = 0.25 * 1.4426950408889634
MOFF = 102.0
SPIN = 1 << 20

STAMP_SLOTS = [94, 96, 52, 54, 58, 60, 62, 64, 68, 72, 74, 56]
class G:
    def __init__(s, **opt):
        s.L = []; s.lg = []; s.vm = []; s.opt = opt; s.nlab = 0; s.nst = 0; s.cold = []
    def __call__(s, txt):
        for line in txt.split("\n"):
            line = line.strip()
            if not line: continue
            s.L.append(line if (line.endswith(":") or line.startswith(".")) else "    " + line)
    def rare(s, test, branch, *fs):
        if not s.opt.get('ool', 1):
            sk = s.lab("L_sk")
            s(test); s(f"{'s_cbranch_scc0' if branch.endswith('1') else 's_cbranch_scc1'} {sk}")
            for f in fs: f()
            s(f"{sk}:"); return
        lo, lr = s.lab("L_rare"), s.lab("L_back")
        s(test); s(f"{branch} {lo}\n{lr}:")
        main, s.L = s.L, s.cold
        s(f"{lo}:")
        for f in fs: f()
        s(f"s_branch {lr}")
        s.L = main
    def half(s, hi, txt):
        sk = s.lab("L_h")
        s(f"s_cmp_lg_u32 s{sHI}, {hi}\ns_cbranch_scc1 {sk}\n{txt}\n{sk}:")
    def count(s, tag): return s.vm[::-1].index(tag)
    def wave0(s, *fs): s.rare(f"s_cmp_eq_u32 s{sW}, 0", "s_cbranch_scc1", *fs)
    def first(s, *fs): s.rare(f"s_or_b32 s{sT1}, s2, s{sW}", "s_cbranch_scc0", *fs)
    def lab(s, p="L"):
        s.nlab += 1; return f"{p}_{s.nlab}"
    def ds(s, txt, tag=None):
        s(txt); s.lg.append(tag); assert len(s.lg) <= 15, "lgkm overflow"
    def wlg(s, tag=None):
        if tag is None:
            s("s_waitcnt lgkmcnt(0)"); s.lg = []; return
        if tag not in s.lg: return
        i = len(s.lg) - 1 - s.lg[::-1].index(tag)
        n = len(s.lg) - 1 - i
        s(f"s_waitcnt lgkmcnt({n})"); s.lg = s.lg[i + 1:]
    def vmop(s, txt, tag=None):
        s(txt); s.vm.append(tag); assert len(s.vm) <= 63
    def wvm(s, tag=None):
        if tag is None:
            s("s_waitcnt vmcnt(0)"); s.vm = []; return
        if tag not in s.vm: return
        i = len(s.vm) - 1 - s.vm[::-1].index(tag)
        n = len(s.vm) - 1 - i
        s(f"s_waitcnt vmcnt({n})"); s.vm = s.vm[i + 1:]
    def srd(s, d, base, nbytes):
        s(f"s_mov_b32 s{d}, s{base}\ns_and_b32 s{d+1}, s{base+1}, 0xffff\ns_mov_b32 s{d+2}, {nbytes}\ns_mov_b32 s{d+3}, 0x00020000")
    def srd_const(s, d, nbytes): s(f"s_mov_b32 s{d+2}, {nbytes}\ns_mov_b32 s{d+3}, 0x00020000")
    def srd_base(s, d, base): s(f"s_mov_b64 s[{d}:{d+1}], s[{base}:{base+1}]")
    def stamp(s, name):
        if not s.opt.get('stamps'): return
        if name not in s.opt.get('at', ('setup', 'p1', 'bstart', 'B', 'A', 'poll', 'mm', 'end')): return
        ins = "s_memtime" if s.opt.get('stamps') == 2 else "s_memrealtime"
        slot = STAMP_SLOTS[s.nst]
        assert slot >= 94 or name not in ('entry', 'karg', 'eissue')
        s(f"{ins} s[{slot}:{slot+1}]")
        s.nst += 1
    def jitter(s, salt):
        j = s.opt.get('jitter')
        if not j: return
        lp, sk = s.lab("L_j"), s.lab("L_jk")
        if salt % 2: s(f"s_lshl_b32 s{sT2}, s2, 3\ns_add_u32 s{sT2}, s{sT2}, s{sW}")
        else: s(f"s_mov_b32 s{sT2}, s2")
        s(f"s_add_u32 s{sT2}, s{sT2}, {salt * 7919 + j * 104729}\ns_mul_i32 s{sT1}, s{sT2}, 0x9e3779b1\ns_lshr_b32 s{sT1}, s{sT1}, 27")
        s(f"{lp}:\ns_sub_u32 s{sT1}, s{sT1}, 1\ns_cbranch_scc1 {sk}\ns_sleep 8\ns_branch {lp}\n{sk}:")
    def text(s): return "\n".join(s.L) + "\n"

def r(a, n): return f"v[{a}:{a+n-1}]"
def sr(a, n=4): return f"s[{a}:{a+n-1}]"

def spin_check(g):
    g(f"s_sub_u32 s{sSPIN}, s{sSPIN}, 1\ns_cbranch_scc1 L_abort")

def setup(g):
    g(f"""
    s_cmp_ge_u32 s2, 256
    s_cbranch_scc1 L_end
    """)
    g.stamp('entry')
    if g.opt.get('split', 0):
        roles = f"s_bfe_u32 s{sB}, s{sW}, 0x10001\ns_and_b32 s{sI}, s{sW}, 1\ns_lshl1_add_u32 s{sI}, s{sHI}, s{sI}"
    else:
        roles = f"s_mov_b32 s{sB}, s{sHI}\ns_and_b32 s{sI}, s{sW}, 3"
    mode = g.opt.get('pfm', 'v')
    pf = ''
    if mode == 's': pf = f"""
    s_lshl_b32 s{sT1}, s{sW}, 7
    s_and_b32 s{sT0}, s2, 0xf8
    s_lshl_b32 s{sT0}, s{sT0}, 7
    s_add_u32 s{sT0}, s{sT0}, 3072
    s_add_u32 s{sT0}, s{sT0}, s{sT1}
    s_min_u32 s{sT0}, s{sT0}, L_codeend-L_pc-4
    s_load_dword s{sFBT}, s[{sPC}:{sPC+1}], s{sT0}
    s_add_u32 s{sPC}, s{sPC}, s{sT1}
    s_addc_u32 s{sPC+1}, s{sPC+1}, 0
    s_load_dword s{sFBT}, s[{sPC}:{sPC+1}], 0
    s_load_dword s{sFBT}, s[{sPC}:{sPC+1}], 1024
    s_load_dword s{sFBT}, s[{sPC}:{sPC+1}], 2048
    """
    if mode == 'v':
        pf = f"""
    s_and_b32 s{sT0}, s2, 0xf8
    s_add_u32 s{sT0}, s{sT0}, 24
    v_lshlrev_b32 v{vT+2}, 3, v1
    v_mov_b32 v{vT+3}, s{sT0}
    v_cmp_eq_u32 vcc, 3, v1
    s_mov_b64 exec, 15
    s_nop 0
    v_cndmask_b32 v{vT+2}, v{vT+2}, v{vT+3}, vcc
    v_add_lshl_u32 v{vT+2}, v{vT+2}, v{vT+1}, 7
    v_min_u32 v{vT+2}, L_codeend-L_pc-4, v{vT+2}
    global_load_dword v{vDUMMY}, v{vT+2}, s[{sPC}:{sPC+1}]
    s_mov_b64 exec, -1
    """
        g.vm.append('pf')
    if mode == 'w':
        pf = f"""
    s_bitcmp1_b32 s2, 5
    s_mov_b32 s{sT0}, L_p1a-L_pc-2048
    s_cselect_b32 s{sT0}, L_p1b-L_pc-2048, s{sT0}
    v_lshlrev_b32 v{vT+2}, 10, v1
    v_add_u32 v{vT+2}, s{sT0}, v{vT+2}
    s_lshr_b32 s{sT0}, s2, 3
    s_lshl_b32 s{sT0}, s{sT0}, 10
    s_add_u32 s{sT0}, s{sT0}, L_p1done-L_pc
    v_writelane_b32 v{vT+2}, 0, 0
    s_movk_i32 s{sT1}, 1024
    v_writelane_b32 v{vT+2}, s{sT1}, 1
    s_mov_b32 s{sT1}, L_rare0-L_pc
    v_writelane_b32 v{vT+2}, s{sT1}, 6
    v_writelane_b32 v{vT+2}, s{sT0}, 7
    s_mov_b64 exec, 255
    v_lshl_add_u32 v{vT+2}, v{vT+1}, 7, v{vT+2}
    v_min_u32 v{vT+2}, L_codeend-L_pc-4, v{vT+2}
    global_load_dword v{vDUMMY}, v{vT+2}, s[{sPC}:{sPC+1}]
    s_mov_b64 exec, -1
    """
        g.vm.append('pf')
    g(f"""
    s_load_dwordx16 s[52:67], s[0:1], 0
    s_load_dwordx8 s[68:75], s[0:1], 64
    v_lshrrev_b32 v{vT+1}, 6, v0
    v_and_b32 v1, 63, v0
    s_getpc_b64 s[{sPC}:{sPC+1}]
    L_pc:
    v_readfirstlane_b32 s{sW}, v{vT+1}
    {pf}
    s_bfe_u32 s{sTB}, s2, 0x20001
    s_bfe_u32 s{sT0}, s2, 0x20003
    s_lshl2_add_u32 s{sTB}, s{sTB}, s{sT0}
    s_and_b32 s{sHP}, s2, 1
    s_lshr_b32 s{sT0}, s2, 5
    s_lshl3_add_u32 s{sHP}, s{sHP}, s{sT0}
    s_lshl1_add_u32 s{sROT}, s{sTB}, s{sHP}
    s_and_b32 s{sROT}, s{sROT}, {g.opt.get('rotmask', 6)}
    s_lshr_b32 s{sHI}, s{sW}, 2
    {roles}
    v_lshlrev_b32 v{vL16}, 4, v1
    """)
    g(f"v_and_b32 v{vT+1}, 0x30, v1")
    g(f"""
    v_lshrrev_b32 v{vT+4}, 3, v1
    v_and_b32 v{vT+5}, 7, v1
    v_lshrrev_b32 v{vT+6}, 4, v1
    v_xor_b32 v{vT+5}, v{vT+5}, v{vT+6}
    v_lshlrev_b32 v{vT+4}, 10, v{vT+4}
    v_lshl_add_u32 v{vDX0}, v{vT+5}, 4, v{vT+4}
    v_xor_b32 v{vDX1}, 64, v{vDX0}
    v_add_u32 v{vDX1}, 0x2000, v{vDX1}
    """)
    g(f"s_lshl_b32 s{sMX}, s{sW}, 11\ns_lshl_b32 s{sDMA}, s{sTB}, 17")
    g(f"""
    s_lshr_b32 s{sT2}, s{sHP}, 1
    s_lshl_b32 s{sT2}, s{sT2}, 14
    s_add_u32 s{sDMA}, s{sDMA}, s{sT2}
    s_lshl_b32 s{sOST}, s{sW}, 7
    s_add_u32 s{sDMA}, s{sDMA}, s{sOST}
    """)
    for k in range(0, 8, 2): g(f"v_mov_b64 v[{40+k}:{41+k}], 0")
    for d, n in ((rX, 2097152), (rWKV, 16384), (rGATE, 1024), (rWS, WS_SIZE)): g.srd_const(d, n)
    g(f"s_add_u32 m0, s{sMX}, {LDS_EW}")
    g("s_waitcnt lgkmcnt(0)")
    g.stamp('karg')
    g.jitter(1)
    def early_loads():
        g(f"s_bitcmp1_b32 s{sHP}, 0\ns_cselect_b64 s[{rWKV}:{rWKV+1}], s[{pWV}:{pWV+1}], s[{pWK}:{pWK+1}]")
        g.srd_base(rGATE, pGATE); g.srd_base(rX, pX)
        g.vmop(f"buffer_load_dwordx4 v{vL16}, {sr(rWKV)}, s{sMX} offen lds", 'e')
        g.vmop(f"buffer_load_dwordx4 v{vL16}, {sr(rWKV)}, s{sMX} offen offset:1024 lds", 'e')
        g(f"s_mov_b32 exec_lo, 0x00010001\ns_mov_b32 exec_hi, 0x00010001")
        g.vmop(f"buffer_load_dwordx4 v[40:43], v{vT+1}, {sr(rGATE)}, s{sOST} offen", 'e')
        g.vmop(f"buffer_load_dwordx4 v[44:47], v{vT+1}, {sr(rGATE)}, s{sOST} offen offset:64", 'e')
        g("s_mov_b64 exec, -1")
        g(f"s_add_u32 m0, s{sMX}, {LDS_EX}\ns_nop 0")
        g.vmop(f"buffer_load_dwordx4 v{vDX0}, {sr(rX)}, s{sDMA} offen lds", 'e')
        g(f"s_add_u32 m0, s{sMX}, {LDS_EX + 1024}\ns_nop 0")
        g.vmop(f"buffer_load_dwordx4 v{vDX1}, {sr(rX)}, s{sDMA} offen lds", 'e')
    g.srd_base(rWS, pWS)
    nonce_scan(g)
    if g.opt.get('elate'): g.srd_base(rX, pX); g.vm.append('scan')
    else: g.vm.append('scan'); early_loads()
    g.stamp('eissue')
    g(f"""
    s_lshr_b32 s{sT0}, s{sW}, 1
    s_cmp_eq_u32 s{sT0}, 3
    s_movk_i32 s{sT2}, 3072
    s_cselect_b32 s{sT1}, 1024, s{sT2}
    s_cselect_b32 s{sT2}, 2, 0
    s_lshl_b32 s{sWSTEP}, s{sT1}, 6
    s_add_u32 s{sMW}, s{sMX}, {LDS_WST}
    s_cmp_lg_u32 s{sHI}, 0
    s_cbranch_scc1 L_su_q
    v_bfe_u32 v{vT+4}, v1, 2, 1
    v_bfe_u32 v{vT+5}, v1, 4, 1
    v_xor_b32 v{vT+4}, v{vT+4}, v{vT+5}
    v_and_b32 v{vT+5}, 3, v1
    v_lshl_add_u32 v{vT+5}, v{vT+4}, 2, v{vT+5}
    v_lshrrev_b32 v{vT+4}, 3, v1
    s_movk_i32 s{sW16}, 24576
    s_and_b32 s{sT2}, s{sHP}, 1
    s_add_u32 s{sT2}, s{sT2}, 1
    s_lshl_b32 s{sT2}, s{sT2}, 10
    s_lshr_b32 s{sWO}, s{sHP}, 1
    s_lshl_b32 s{sWO}, s{sWO}, 7
    s_add_u32 s{sWO}, s{sWO}, s{sT2}
    s_mul_i32 s{sT3}, s{sW}, 49152
    s_branch L_su_j
    L_su_q:
    v_lshrrev_b32 v{vT+4}, 2, v1
    v_and_b32 v{vT+5}, 3, v1
    v_xor_b32 v{vT+5}, s{sT2}, v{vT+5}
    s_lshl_b32 s{sW16}, s{sT1}, 4
    s_lshl_b32 s{sWO}, s{sHP}, 6
    s_and_b32 s{sT2}, s{sW}, 1
    s_mul_i32 s{sT3}, s{sT2}, s{sW16}
    s_lshl_b32 s{sT3}, s{sT3}, 1
    L_su_j:
    s_add_u32 s{sWO}, s{sWO}, s{sT3}
    v_mul_u32_u24 v{vT+4}, s{sT1}, v{vT+4}
    v_lshl_add_u32 v{vDW}, v{vT+5}, 4, v{vT+4}
    s_lshl_b32 s{sXO}, s{sTB}, 17
    s_lshl_b32 s{sT2}, s{sW}, 14
    s_add_u32 s{sXO}, s{sXO}, s{sT2}
    s_lshl_b32 s{sKX}, s{sROT}, 7
    s_mul_i32 s{sKW}, s{sROT}, s{sWSTEP}
    s_and_b32 s{sKQ}, s{sW}, 3
    """)
    g(f"s_cmp_eq_u32 s{sT0}, 3\ns_cselect_b64 s[{rWS_}:{rWS_+1}], s[{pWQ}:{pWQ+1}], s[{pWQKV}:{pWQKV+1}]")
    g(f"s_mov_b32 s{rWS_+2}, 1572864\ns_cselect_b32 s{rWS_+2}, 524288, s{rWS_+2}\ns_mov_b32 s{rWS_+3}, 0x00020000")
    g.srd_base(rDBG, pDBG); g.srd_const(rDBG, 256)
    g(f"s_mov_b32 s{sMASK}, 0x0000ffff\ns_mov_b32 s{sMASK+1}, 0x0000ffff\ns_mov_b32 s{sSPIN}, {SPIN}\ns_mov_b32 s{sNONCE}, 0\nv_mov_b32 v{vFL}, 0")
    npf = g.opt.get('l2pf', 0)
    if npf:
        l2pf_setup(g)
        for k in range(npf): l2pf(g)
    if g.opt.get('elate'): early_loads()
    if g.opt.get('spf', 0): scalar_prefetch(g)
    g("s_barrier")
    if g.opt.get('pre', 0): p1_addr(g)
    early_addr(g)
    g.stamp('addr')
    if g.opt.get('nearly', 0): nonce_producer(g)
    runall(p1_dma(g, 0))
    if not g.opt.get('nearly', 0): nonce_producer(g)
    g.vm.remove('scan')
    g.stamp('setup')
    g.jitter(2)
    early_compute(g)
    g("s_barrier")
    g.stamp('early')
    if g.opt.get('cearly', 0):
        early_reduce(g)
        p1_addr(g); attn_consts(g); kv_store_addr(g)
        for d, p_, n in ((rOUT, pOUT, 2097152), (rWOA, pWOA, 524288), (rWOB, pWOB, 524288)): g.srd_base(d, p_); g.srd_const(d, n)
        if g.opt.get('cearly', 0) == 1: tail_addr(g)
        runall(p1_dma(g, 1))
    else:
        runall(p1_dma(g, 1))
        early_reduce(g)
        p1_addr(g)


vPFW, vPFX, vPFD = 232, 233, 234
sPFW, sPFX = 86, 88
def l2pf_setup(g):
    lq, lj = g.lab("L_pq"), g.lab("L_pj")
    g(f"""
    v_mul_u32_u24 v{vPFW}, s{sT1}, v1
    v_lshlrev_b32 v{vPFX}, 10, v1
    s_and_b32 s{sT2}, s{sTB}, 3
    s_lshr_b32 s{sPFX}, s{sHP}, 1
    s_lshl_b32 s{sPFX}, s{sPFX}, 7
    s_cmp_lg_u32 s{sB}, 0
    s_cbranch_scc1 {lq}
    s_lshl2_add_u32 s{sT2}, s{sT2}, s{sW}
    s_and_b32 s{sT3}, s{sHP}, 1
    s_add_u32 s{sT3}, s{sT3}, 1
    s_lshl_b32 s{sT3}, s{sT3}, 10
    s_add_u32 s{sPFX}, s{sPFX}, s{sT3}
    s_branch {lj}
    {lq}:
    s_and_b32 s{sT3}, s{sHP}, 1
    s_lshl2_add_u32 s{sT2}, s{sT3}, s{sT2}
    s_and_b32 s{sT3}, s{sW}, 1
    s_lshl1_add_u32 s{sT2}, s{sT2}, s{sT3}
    {lj}:
    s_lshl_b32 s{sT2}, s{sT2}, 2
    s_mul_i32 s{sT2}, s{sT2}, s{sT1}
    s_add_u32 s{sPFW}, s{sPFX}, s{sT2}
    s_and_b32 s{sT2}, s{sHP}, 7
    s_lshl3_add_u32 s{sT2}, s{sT2}, s{sW}
    s_lshl_b32 s{sT2}, s{sT2}, 11
    s_lshl_b32 s{sPFX}, s{sTB}, 17
    s_add_u32 s{sPFX}, s{sPFX}, s{sT2}
    """)
def l2pf(g):
    g("s_mov_b64 exec, 15")
    g.vmop(f"buffer_load_dword v{vPFD}, v{vPFW}, {sr(rWS_)}, s{sPFW} offen", 'pf')
    g("s_mov_b64 exec, 3")
    g.vmop(f"buffer_load_dword v{vPFD}, v{vPFX}, {sr(rX)}, s{sPFX} offen", 'pf')
    g(f"s_mov_b64 exec, -1\ns_add_u32 s{sPFW}, s{sPFW}, s{sWSTEP}\ns_add_u32 s{sPFX}, s{sPFX}, 128")

def p1_dma(g, j):
    p = j & 3
    def f0():
        g(f"s_add_u32 m0, s{sMX}, {p*SLOT}\ns_add_u32 s{sDS}, s{sXO}, s{sKX}")
        g.vmop(f"buffer_load_dwordx4 v{vDX0}, {sr(rX)}, s{sDS} offen lds", f'c{j}')
    def f1():
        g(f"s_add_u32 m0, s{sMX}, {p*SLOT+1024}\ns_add_u32 s{sPOLL+0 if False else sT3}, s{sWO}, s{sKW}")
        g.vmop(f"buffer_load_dwordx4 v{vDX1}, {sr(rX)}, s{sDS} offen lds", f'c{j}')
    def f2():
        g(f"s_add_u32 m0, s{sMW}, {p*SLOT}\ns_add_u32 s{sDS}, s{sT3}, s{sW16}")
        g.vmop(f"buffer_load_dwordx4 v{vDW}, {sr(rWS_)}, s{sT3} offen lds", f'c{j}')
    def f3():
        g(f"s_add_u32 m0, s{sMW}, {p*SLOT+1024}\ns_add_u32 s{sKW}, s{sKW}, s{sWSTEP}")
        g.vmop(f"buffer_load_dwordx4 v{vDW}, {sr(rWS_)}, s{sDS} offen lds", f'c{j}')
        if j < 7:
            g(f"s_add_u32 s{sKX}, s{sKX}, 128\ns_and_b32 s{sKX}, s{sKX}, 1023\ns_cselect_b32 s{sKW}, s{sKW}, 0")
    return [f0, f1, f2, f3]

def scalar_prefetch(g):
    P = sPC
    def base(ptr, off): g(f"s_add_u32 s{P}, s{ptr}, s{off}\ns_addc_u32 s{P+1}, s{ptr+1}, 0")
    g(f"s_and_b32 s{sT1}, s{sHP}, 3\ns_lshl_b32 s{sT1}, s{sT1}, 3\ns_add_u32 s{sT1}, s{sT1}, s{sW}\ns_lshl_b32 s{sT1}, s{sT1}, 12\ns_lshl_b32 s{sT2}, s{sTB}, 17\ns_add_u32 s{sT1}, s{sT1}, s{sT2}\ns_add_u32 s{sT1}, s{sT1}, s{sKX}")
    base(pX, sT1)
    for j in range(4): g(f"s_load_dword s{sFBT}, s[{P}:{P+1}], {j*1024}")
    g(f"s_lshl_b32 s{sT1}, s{sROT}, 1\ns_and_b32 s{sT2}, s{sTB}, 1\ns_add_u32 s{sT1}, s{sT1}, s{sT2}\ns_lshl_b32 s{sT1}, s{sT1}, 3\ns_add_u32 s{sT1}, s{sT1}, s{sW}\ns_mul_i32 s{sT1}, s{sT1}, {4*3072}")
    g(f"s_lshr_b32 s{sT3}, s{sHP}, 1\ns_lshl_b32 s{sT3}, s{sT3}, 7\ns_add_u32 s{sT1}, s{sT1}, s{sT3}\ns_and_b32 s{sT2}, s{sHP}, 1\ns_add_u32 s{sT2}, s{sT2}, 1\ns_lshl_b32 s{sT2}, s{sT2}, 10\ns_add_u32 s{sT1}, s{sT1}, s{sT2}")
    base(pWQKV, sT1)
    for j in range(4): g(f"s_load_dword s{sFBT}, s[{P}:{P+1}], {j*3072}")
    g(f"s_lshl_b32 s{sT1}, s{sROT}, 1\ns_and_b32 s{sT2}, s{sHP}, 1\ns_add_u32 s{sT1}, s{sT1}, s{sT2}\ns_lshl_b32 s{sT1}, s{sT1}, 1\ns_and_b32 s{sT2}, s{sTB}, 1\ns_add_u32 s{sT1}, s{sT1}, s{sT2}\ns_lshl_b32 s{sT1}, s{sT1}, 3\ns_add_u32 s{sT1}, s{sT1}, s{sW}")
    g(f"s_mul_i32 s{sT2}, s{sT1}, {2*3072}\ns_add_u32 s{sT2}, s{sT2}, s{sT3}")
    base(pWQKV, sT2)
    for j in range(2): g(f"s_load_dword s{sFBT}, s[{P}:{P+1}], {j*3072}")
    g(f"s_lshl_b32 s{sT1}, s{sT1}, 11\ns_add_u32 s{sT1}, s{sT1}, s{sT3}")
    base(pWQ, sT1)
    for j in range(2): g(f"s_load_dword s{sFBT}, s[{P}:{P+1}], {j*1024}")

def nonce_scan(g): g.first(lambda: nonce_scan_(g))
def nonce_scan_(g):
    g(f"v_lshrrev_b32 v{vT+4}, 2, v1\nv_and_b32 v{vT+5}, 3, v1\nv_lshlrev_b32 v{vT+4}, 7, v{vT+4}\nv_lshl_add_u32 v{vT+4}, v{vT+5}, 4, v{vT+4}")
    g(f"s_mov_b32 s{sT1}, {WS_F1}")
    g(f"buffer_load_dwordx4 v[176:179], v{vT+4}, {sr(rWS)}, s{sT1} offen sc1")
    g(f"buffer_load_dwordx4 v[180:183], v{vT+4}, {sr(rWS)}, s{sT1} offen offset:2048 sc1")
    g(f"s_mov_b32 s{sT1}, {WS_F3}")
    g(f"buffer_load_dwordx4 v[184:187], v{vT+4}, {sr(rWS)}, s{sT1} offen sc1")

def nonce_producer(g): g.first(lambda: nonce_producer_(g))
def nonce_producer_(g):
    g(f"s_waitcnt vmcnt({len(g.vm) - 1 - g.vm.index('scan')})")
    g(f"v_readfirstlane_b32 s{sT1}, v176")
    lp = g.lab("L_nl")
    g(f"{lp}:\ns_add_u32 s{sT1}, s{sT1}, 1\ns_cbranch_scc1 {lp}")
    g(f"s_mov_b64 s[{sPC}:{sPC+1}], 0")
    for k in range(12):
        g(f"v_cmp_eq_u32 vcc, s{sT1}, v{176+k}\ns_or_b64 s[{sPC}:{sPC+1}], s[{sPC}:{sPC+1}], vcc")
    g(f"s_cbranch_scc1 {lp}")
    g(f"v_mov_b32 v192, s{sT1}\nv_mov_b32 v193, 0\ns_mov_b64 exec, 1")
    g(f"buffer_store_dword v192, v193, {sr(rDBG)}, 0 offen sc1\ns_mov_b64 exec, -1")

def p1_addr(g):
    g(f"""
    v_and_b32 v{vT+2}, 31, v1
    v_lshrrev_b32 v{vT+3}, 5, v1
    v_bfe_u32 v{vT+4}, v1, 1, 3
    v_xor_b32 v{vT+4}, v{vT+4}, v{vT+3}
    v_lshlrev_b32 v{vT+4}, 4, v{vT+4}
    v_lshl_add_u32 v{vT+4}, v{vT+2}, 7, v{vT+4}
    s_lshl_b32 s{sT1}, s{sI}, 12
    v_add_u32 v{vAX}, s{sT1}, v{vT+4}
    v_xor_b32 v{vAX+1}, 32, v{vAX}
    v_xor_b32 v{vAX+2}, 64, v{vAX}
    v_xor_b32 v{vAX+3}, 0x60, v{vAX}
    v_bfe_u32 v{vT+4}, v1, 2, 2
    v_and_b32 v{vT+5}, 3, v1
    v_lshlrev_b32 v{vT+5}, 3, v{vT+5}
    v_lshl_add_u32 v{vT+5}, v{vT+4}, 6, v{vT+5}
    v_lshl_add_u32 v{vT+5}, v{vT+3}, 9, v{vT+5}
    v_bfe_u32 v{vT+6}, v1, 4, 1
    v_bfe_u32 v{vT+7}, v1, 3, 1
    v_xor_b32 v{vT+7}, s{sB}, v{vT+7}
    v_lshlrev_b32 v{vT+7}, 6, v{vT+7}
    v_lshl_add_u32 v{vT+7}, v{vT+4}, 7, v{vT+7}
    v_lshl_add_u32 v{vT+7}, v{vT+3}, 10, v{vT+7}
    v_lshl_add_u32 v{vT+7}, v{vT+6}, 5, v{vT+7}
    v_and_b32 v{vT+2}, 3, v1
    v_lshl_add_u32 v{vT+7}, v{vT+2}, 3, v{vT+7}
    v_add_u32 v{vAW1}, {LDS_WST}, v{vT+7}
    v_xor_b32 v{vT+4}, s{sB}, v{vT+6}
    v_lshl_add_u32 v{vT+5}, v{vT+4}, 5, v{vT+5}
    v_lshl_add_u32 v{vT+5}, v{vT+6}, 12, v{vT+5}
    v_add_u32 v{vAWQ}, {LDS_WST + 8192}, v{vT+5}
    """)

def early_addr(g):
    g(f"""
    v_lshrrev_b32 v{vT+4}, 4, v1
    v_bfe_u32 v{vT+5}, v1, 2, 2
    v_lshl_add_u32 v{vT+4}, v{vT+4}, 3, v{vT+5}
    v_and_b32 v{vT+5}, 3, v1
    v_lshlrev_b32 v{vT+5}, 3, v{vT+5}
    v_lshl_add_u32 v{vT+4}, v{vT+4}, 5, v{vT+5}
    s_add_u32 s{sT1}, s{sMX}, {LDS_EW}
    v_add_u32 v{vT+6}, s{sT1}, v{vT+4}
    s_lshl_b32 s{sT1}, s{sW}, 10
    s_add_u32 s{sT1}, s{sT1}, {LDS_ER}
    v_add_u32 v{vT+7}, s{sT1}, v{vL16}
    s_lshl_b32 s{sT1}, s{sW}, 8
    s_add_u32 s{sT1}, s{sT1}, {LDS_EG}
    v_lshlrev_b32 v{vT+5}, 2, v1
    v_add_u32 v{vT+5}, s{sT1}, v{vT+5}
    """)
    g(f"""
    v_and_b32 v{vT}, 15, v1
    v_lshrrev_b32 v{vT+1}, 4, v1
    v_bfe_u32 v{vT+2}, v1, 1, 3
    v_xor_b32 v{vT+1}, v{vT+1}, v{vT+2}
    v_lshlrev_b32 v{vT+1}, 4, v{vT+1}
    v_lshl_add_u32 v{vT}, v{vT}, 7, v{vT+1}
    s_add_u32 s{sT1}, s{sMX}, {LDS_EX}
    v_add_u32 v{vT}, s{sT1}, v{vT}
    v_xor_b32 v{vT+1}, 64, v{vT}
    """)

def early_compute(g):
    if g.opt.get('nearly', 0):
        n = g.vm[::-1].index('e'); sk = g.lab("L_we")
        g(f"s_or_b32 s{sT1}, s2, s{sW}\ns_cbranch_scc0 {sk}")
        g.wvm('e')
        g(f"{sk}:\ns_waitcnt vmcnt({n + 1})")
    g.wvm('e')
    g.wlg()
    g.ds(f"ds_read_b128 v[16:19], v{vT}", 'ew')
    g.ds(f"ds_read_b128 v[20:23], v{vT+1}", 'ew')
    for s_ in range(2):
        for e in range(2):
            g.ds(f"ds_read_b64_tr_b16 v[{24+4*s_+2*e}:{25+4*s_+2*e}], v{vT+6} offset:{s_*1024+e*128}", 'ew')
    g.wlg('ew')
    lv, le = g.lab("L_ev"), g.lab("L_ee")
    g(f"s_bitcmp1_b32 s{sHP}, 0\ns_cbranch_scc1 {lv}")
    g("v_mfma_f32_16x16x32_bf16 v[32:35], v[24:27], v[16:19], 0")
    g("v_mfma_f32_16x16x32_bf16 v[36:39], v[40:43], v[16:19], 0")
    g("v_mfma_f32_16x16x32_bf16 v[32:35], v[28:31], v[20:23], v[32:35]")
    g("v_mfma_f32_16x16x32_bf16 v[36:39], v[44:47], v[20:23], v[36:39]")
    g(f"s_branch {le}\n{lv}:")
    g("v_mfma_f32_16x16x32_bf16 v[32:35], v[16:19], v[24:27], 0")
    g("v_mov_b32 v36, 0")
    g("v_mfma_f32_16x16x32_bf16 v[32:35], v[20:23], v[28:31], v[32:35]")
    g(f"{le}:\ns_nop 7")
    g.ds(f"ds_write_b128 v{vT+7}, v[32:35]", 'ep')
    g.ds(f"ds_write_b32 v{vT+5}, v36", 'ep')
    g.wlg()

def early_reduce(g): g.wave0(lambda: early_reduce_(g))
def early_reduce_(g):
    g(f"v_add_u32 v{vT+4}, {LDS_ER}, v{vL16}\nv_lshlrev_b32 v{vT+5}, 2, v1\nv_add_u32 v{vT+5}, {LDS_EG}, v{vT+5}")
    for k in range(8): g(f"ds_read_b128 v[{16+4*k}:{19+4*k}], v{vT+4} offset:{k*1024}")
    g("s_waitcnt lgkmcnt(0)")
    for k in range(8): g(f"ds_read_b32 v{64+k}, v{vT+5} offset:{k*256}")
    g(f"""
    s_lshr_b32 s{sT0}, s{sHP}, 1
    s_lshl_b32 s{sT1}, s{sTB}, 2
    s_lshr_b32 s{sT2}, s{sT0}, 1
    s_add_u32 s{sT1}, s{sT1}, s{sT2}
    s_lshr_b32 s{sT2}, s{sT1}, 3
    s_lshl_b32 s{sT2}, s{sT2}, 14
    s_and_b32 s{sT1}, s{sT1}, 7
    s_lshl_b32 s{sT1}, s{sT1}, 10
    s_add_u32 s{sT1}, s{sT1}, s{sT2}
    s_add_u32 s{sT1}, s{sT1}, {WS_KVB}
    s_and_b32 s{sT0}, s{sT0}, 1
    v_and_b32 v{vT}, 15, v1
    v_bfe_u32 v{vT+1}, v1, 4, 1
    v_lshrrev_b32 v{vT+2}, 5, v1
    v_lshlrev_b32 v{vT+2}, 3, v{vT+2}
    """)
    for k in range(1, 8):
        for q in range(4): g(f"v_add_f32 v{16+q}, v{16+q}, v{16+4*k+q}")
    g("v_cvt_pk_bf16_f32 v16, v16, v17\nv_cvt_pk_bf16_f32 v17, v18, v19")
    lv, le = g.lab("L_rv"), g.lab("L_re")
    g(f"s_bitcmp1_b32 s{sHP}, 0\ns_cbranch_scc1 {lv}")
    if True:
        g(f"""
        v_and_b32 v{vT+3}, 3, v{vT}
        v_bfe_u32 v{vT+6}, v{vT}, 2, 1
        v_lshl_add_u32 v{vT+3}, v{vT+6}, 3, v{vT+3}
        v_bfe_u32 v{vT+6}, v{vT}, 3, 1
        v_lshl_add_u32 v{vT+3}, v{vT+6}, 2, v{vT+3}
        v_lshl_add_u32 v{vT+3}, v{vT+1}, 5, v{vT+3}
        v_lshl_add_u32 v{vT+3}, v{vT+3}, 4, v{vT+2}
        s_lshl_b32 s{sT0}, s{sT0}, 8
        s_add_u32 s{sT1}, s{sT1}, s{sT0}
        buffer_store_dwordx2 v[16:17], v{vT+3}, {sr(rWS)}, s{sT1} offen sc1
        s_waitcnt lgkmcnt(0)
        """)
        for k in range(1, 8): g(f"v_add_f32 v64, v64, v{64+k}")
        g(f"""
        v_mul_f32 v64, {f2h(-1.4426950408889634)}, v64
        v_exp_f32 v64, v64
        s_lshr_b32 s{sT0}, s{sHP}, 1
        s_lshl_b32 s{sT0}, s{sT0}, 6
        v_add_f32 v64, 1.0, v64
        v_rcp_f32 v64, v64
        s_lshl_b32 s{sT1}, s{sTB}, 9
        s_add_u32 s{sT1}, s{sT1}, s{sT0}
        s_add_u32 s{sT1}, s{sT1}, {WS_GATE}
        v_lshlrev_b32 v{vT+3}, 2, v1
        s_mov_b64 exec, 0xffff
        buffer_store_dword v64, v{vT+3}, {sr(rWS)}, s{sT1} offen sc1
        s_mov_b64 exec, -1
        s_branch {le}
        {lv}:
        """)
        g(f"""
    v_lshl_add_u32 v{vT+3}, v{vT+1}, 4, v{vT}
    v_lshl_add_u32 v{vT+3}, v{vT+3}, 4, v{vT+2}
    s_lshl_b32 s{sT0}, s{sT0}, 9
    s_add_u32 s{sT1}, s{sT1}, s{sT0}
    s_add_u32 s{sT1}, s{sT1}, 8192
    buffer_store_dwordx2 v[16:17], v{vT+3}, {sr(rWS)}, s{sT1} offen sc1
    s_waitcnt lgkmcnt(0)
        """)
    g(f"{le}:")

def get_nonce(g):
    lp, ok = g.lab("L_gn"), g.lab("L_gk")
    g(f"{lp}:\nv_readfirstlane_b32 s{sNONCE}, v{vNON}\ns_nop 3\ns_cmp_lg_u32 s{sNONCE}, 0\ns_cbranch_scc1 {ok}")
    spin_check(g)
    g(f"v_mov_b32 v{vT+3}, 0\nbuffer_load_dword v{vNON}, v{vT+3}, {sr(rDBG)}, 0 offen sc1\ns_waitcnt vmcnt(0)\ns_branch {lp}\n{ok}:")

def flag_store(g, off_expr_setup):
    g(off_expr_setup)
    g(f"v_mov_b32 v{vT}, s{sNONCE}\nv_mov_b32 v{vT+1}, 0\ns_mov_b64 exec, 1")
    g(f"buffer_store_dword v{vT}, v{vT+1}, {sr(rWS)}, s{sT1} offen sc1\ns_mov_b64 exec, -1")

def poll_issue(g, kind):
    if kind == 1:
        g(f"v_lshrrev_b32 v{vT}, 2, v1\nv_and_b32 v{vT+1}, 3, v1\nv_lshlrev_b32 v{vT}, 7, v{vT}\nv_lshl_add_u32 v{vFL}, v{vT+1}, 4, v{vT}\ns_mov_b32 s{sPOLL}, {WS_F1}")
    elif kind == 2:
        g(f"v_and_b32 v{vT}, 3, v1\nv_bfe_u32 v{vT+1}, v1, 2, 1\nv_lshlrev_b32 v{vT}, 4, v{vT}\nv_lshl_add_u32 v{vFL}, v{vT+1}, 7, v{vT}\ns_and_b32 s{sPOLL}, s{sHP}, 14\ns_lshl_b32 s{sPOLL}, s{sPOLL}, 7\ns_add_u32 s{sPOLL}, s{sPOLL}, {WS_F2}")
    elif kind == 3:
        g(f"v_and_b32 v{vT}, 3, v1\nv_lshlrev_b32 v{vFL}, 4, v{vT}\ns_lshl_b32 s{sPOLL}, s{sTB}, 7\ns_add_u32 s{sPOLL}, s{sPOLL}, {WS_F3}")
    else:
        g(f"v_mov_b32 v{vFL}, 0\ns_lshl_b32 s{sPOLL}, s{sTB}, 2\ns_add_u32 s{sPOLL}, s{sPOLL}, s{sI}\ns_lshl_b32 s{sPOLL}, s{sPOLL}, 7\ns_add_u32 s{sPOLL}, s{sPOLL}, {WS_F4}")
    g(f"buffer_load_dwordx4 {r(vPOLL,4)}, v{vFL}, {sr(rWS)}, s{sPOLL} offen sc1")

def poll_check(g):
    lp, ok = g.lab("L_pl"), g.lab("L_pk")
    g(f"{lp}:")
    for k in range(4): g(f"v_xor_b32 v{vPOLL+k}, s{sNONCE}, v{vPOLL+k}")
    g(f"v_or_b32 v{vPOLL}, v{vPOLL}, v{vPOLL+1}\nv_or3_b32 v{vPOLL}, v{vPOLL}, v{vPOLL+2}, v{vPOLL+3}\nv_cmp_ne_u32 vcc, 0, v{vPOLL}\ns_nop 4\ns_cbranch_vccz {ok}")
    spin_check(g)
    g(f"buffer_load_dwordx4 {r(vPOLL,4)}, v{vFL}, {sr(rWS)}, s{sPOLL} offen sc1\ns_waitcnt vmcnt(0)\ns_branch {lp}\n{ok}:")

def w0(g):
    skip = g.lab("L_w0")
    g(f"s_cmp_lg_u32 s{sW}, 0\ns_cbranch_scc1 {skip}")
    return skip

def kv_dma(g, src_expr, slot, tag):
    def setup(): g(f"s_lshl_b32 s{sT2}, s{sW}, 12\ns_add_u32 m0, s{sT2}, {slot*SLOT}"); g(src_expr)
    def op(e): return lambda: g.vmop(f"buffer_load_dwordx4 v{vL16}, {sr(rWS)}, s{sDS} offen offset:{e*1024} sc1 lds", tag)
    return [setup] + [op(e) for e in range(4)]
def dma_B(g, c, slot, tag):
    return kv_dma(g, f"s_add_u32 s{sDS}, s{sT2}, {WS_KVB + c*SLOT}", slot, tag)
def dma_A(g, c, slot, tag):
    return kv_dma(g, f"s_add_u32 s{sDS}, s{sDMA}, {WS_KVA + c*SLOT}", slot, tag)
def dma_Wo(g, rs, grp, ldsbase, tag):
    def setup(): g(f"s_lshl_b32 s{sDS}, s{sW}, 15\ns_and_b32 s{sT1}, s{sHP}, 7\ns_lshl_b32 s{sT1}, s{sT1}, 7\ns_add_u32 s{sDS}, s{sDS}, s{sT1}")
    def op(e):
        def f():
            g(f"s_lshl_b32 s{sT2}, s{sW}, 12\ns_add_u32 m0, s{sT2}, {ldsbase + grp*32768 + e*1024}\ns_add_u32 s{sT1}, s{sDS}, {grp*262144 + e*8192}")
            g.vmop(f"buffer_load_dwordx4 v{vDWO}, {sr(rs)}, s{sT1} offen lds", tag)
        return f
    return [setup] + [op(e) for e in range(4)]
def runall(fs):
    for f in fs: f()

def phase1(g, b):
    T1, TQ = ACC, ACC + 16
    def XF(s_): return PF + 12 * s_
    def W1(s_): return PF + 12 * s_ + 4
    def WQ(s_): return PF + 12 * s_ + 8
    def reads(p, s_):
        if g.opt.get('noread'): return
        g.ds(f"ds_read_b128 {r(XF(s_),4)}, v{vAX+s_} offset:{p*SLOT}", f'f{s_}')
        for e in range(2): g.ds(f"ds_read_b64_tr_b16 {r(W1(s_)+2*e,2)}, v{vAW1} offset:{p*SLOT+s_*2048+e*512}", f'f{s_}')
        for e in range(2): g.ds(f"ds_read_b64_tr_b16 {r(WQ(s_)+2*e,2)}, v{vAWQ} offset:{p*SLOT+s_*1024+e*256}", f'f{s_}')
    def mf(j, s_, which='both'):
        g.wlg(f'f{s_}')
        if g.opt.get('nomf'): return
        c1 = "0" if (j == 0 and s_ == 0) else r(T1, 16)
        cq = "0" if (j == 0 and s_ == 0) else r(TQ, 16)
        if which != 'q':
            if b == 0: g(f"v_mfma_f32_32x32x16_bf16 {r(T1,16)}, {r(W1(s_),4)}, {r(XF(s_),4)}, {c1}")
            else:      g(f"v_mfma_f32_32x32x16_bf16 {r(T1,16)}, {r(XF(s_),4)}, {r(W1(s_),4)}, {c1}")
        if which != 't': g(f"v_mfma_f32_32x32x16_bf16 {r(TQ,16)}, {r(WQ(s_),4)}, {r(XF(s_),4)}, {cq}")
    f1chk = g.opt.get('f1chk', 6)
    def wait_c(j, extra0):
        if extra0 and f'c{j}' in g.vm:
            n = len(g.vm) - 1 - (len(g.vm) - 1 - g.vm[::-1].index(f'c{j}'))
            sk, dn = g.lab("L_wa"), g.lab("L_wb")
            g(f"s_cmp_eq_u32 s{sW}, 0\ns_cbranch_scc1 {sk}")
            g.wvm(f'c{j}')
            g(f"{sk}:\ns_waitcnt vmcnt({n + extra0})")
        else: g.wvm(f'c{j}')
    jf = g.opt.get('jflag', 2); pd3 = g.opt.get('pdist', 2) == 3
    for j in range(8):
        p = j & 3
        wait_c(j, {0: 1, 1: 1 if g.opt.get('cearly', 0) else 2}.get(j, 0))
        if j == jf:
            g.wave0(lambda: get_nonce(g), lambda: flag_store(g, f"s_lshl_b32 s{sT1}, s{sTB}, 7\ns_lshl_b32 s{sT2}, s{sHP}, 2\ns_add_u32 s{sT1}, s{sT1}, s{sT2}\ns_add_u32 s{sT1}, s{sT1}, {WS_F1}"))
        if j == f1chk:
            g.wave0(lambda: poll_check(g))
        g.wlg()
        g("s_barrier")
        g.stamp(f'b{j}')
        if j in (1, 4, 6): g.jitter(3 + j)
        pd = g.opt.get('pdist', 2)
        dm = []
        if j + pd <= 7 and not (pd == 3 and j == 0): dm = p1_dma(g, j + pd)
        if pd == 3 and j == 0: dm = p1_dma(g, 2) + p1_dma(g, 3)
        if j == f1chk: dm = dma_B(g, 0, 8, 'B01')
        if len(dm) == 5: dm = [lambda a=dm[0], c=dm[1]: (a(), c())] + dm[2:]
        if len(dm) == 8: dm = [lambda a=dm[2*k], c=dm[2*k+1]: (a(), c()) for k in range(4)]
        dp = g.opt.get('dmpos', (0, 1, 1, 2))
        def issue(k):
            for q in range(len(dm)):
                if dp[q] == k: dm[q]()
        if j == f1chk - 1:
            g.wave0(lambda: poll_issue(g, 1))
        if j == 0:
            g.wave0(lambda: g(f"v_mov_b32 v{vT+3}, 0\nbuffer_load_dword v{vNON}, v{vT+3}, {sr(rDBG)}, 0 offen sc1"))
        npf = g.opt.get('l2pf', 0)
        if npf and j + npf <= 7: l2pf(g)
        issue(-1)
        reads(p, 0); reads(p, 1)
        issue(0)
        if j > 0: mf(j - 1, 3)
        issue(1)
        reads(p, 2)
        mf(j, 0)
        issue(2)
        reads(p, 3)
        mf(j, 1)
        issue(3)
        if j == 7:
            issue(4); break
        mf(j, 2)
        issue(4)
        cp = g.opt.get('calcpos', {0: (0, 0, 1, 1), 1: (9, 9, 9, 9), 2: (9, 9, 9, 0)}[g.opt.get('cearly', 0)])
        if j == cp[0]: attn_consts(g)
        if j == cp[1]: kv_store_addr(g)
        if j == cp[2]:
            for d, p_, n in ((rOUT, pOUT, 2097152), (rWOA, pWOA, 524288), (rWOB, pWOB, 524288)): g.srd_base(d, p_); g.srd_const(d, n)
        if j == cp[3]: tail_addr(g)
    g.wlg()
    g.wvm('B01')
    g("s_barrier")
    g.stamp('bstart')
    g.ds(f"ds_read_b128 {r(KF[0],4)}, v{vAK}", 'K0')
    g.ds(f"ds_read_b128 {r(KF[1],4)}, v{vAK} offset:1024", 'kv')
    g(f"s_mov_b64 exec, s[{sMASK}:{sMASK+1}]")
    g.ds(f"ds_read_b128 {r(V0[0],4)}, v{vAV}", 'kv')
    g.ds(f"ds_read_b128 {r(V1[0],4)}, v{vAV} offset:512", 'kv')
    g("s_mov_b64 exec, -1")
    mf(7, 2, 'q'); mf(7, 2, 't')
    for k in range(2, g.opt.get('m0t', 4)): g.ds(f"ds_read_b128 {r(KTB+4*(k-2),4)}, v{vAK} offset:{k*1024}", 'kv')
    mf(7, 3, 'q'); mf(7, 3, 't')

def kv_store_addr(g):
    lv, le = g.lab("L_ka"), g.lab("L_kb")
    g(f"""
    s_and_b32 s{sT1}, s{sHP}, 14
    s_add_u32 s{sT1}, s{sT1}, s{sB}
    s_lshl_b32 s{sT1}, s{sT1}, 18
    s_lshr_b32 s{sT2}, s{sTB}, 1
    s_lshl_b32 s{sT2}, s{sT2}, 14
    s_add_u32 s{sT1}, s{sT1}, s{sT2}
    s_and_b32 s{sT2}, s{sTB}, 1
    s_lshl_b32 s{sT2}, s{sT2}, 2
    s_add_u32 s{sT2}, s{sT2}, s{sI}
    s_lshl_b32 s{sT2}, s{sT2}, 10
    s_add_u32 s{sKV}, s{sT1}, s{sT2}
    s_mov_b32 s{sSC}, {f2h(QSCALE)}
    s_mov_b32 s{sSC+1}, {f2h(QSCALE)}
    s_bitcmp1_b32 s{sHP}, 0
    s_cbranch_scc1 {lv}
    v_and_b32 v{vT}, 0x33, v1
    v_bfe_u32 v{vT+1}, v1, 2, 1
    v_lshl_or_b32 v{vT}, v{vT+1}, 3, v{vT}
    v_bfe_u32 v{vT+1}, v1, 3, 1
    v_lshl_or_b32 v{vT}, v{vT+1}, 2, v{vT}
    v_lshlrev_b32 v{vKVST}, 4, v{vT}
    s_add_u32 s{sKV1}, s{sKV}, 131072
    s_branch {le}
    {lv}:
    v_bfe_u32 v{vT}, v1, 4, 1
    v_lshlrev_b32 v{vT}, 17, v{vT}
    v_lshrrev_b32 v{vT+1}, 5, v1
    v_and_b32 v{vT+2}, 15, v1
    v_lshl_add_u32 v{vT+1}, v{vT+1}, 4, v{vT+2}
    v_lshl_add_u32 v{vKVST}, v{vT+1}, 4, v{vT}
    s_add_u32 s{sKV}, s{sKV}, 8192
    s_add_u32 s{sKV1}, s{sKV}, 512
    {le}:
    """)

def max_tree(Ss):
    regs = [S + k for S in Ss for k in range(16)]
    L = [f"v_max3_f32 v{vT}, v{regs[0]}, v{regs[1]}, v{regs[2]}", f"v_max3_f32 v{vT+1}, v{regs[3]}, v{regs[4]}, v{regs[5]}"]
    rest, k = regs[6:], 0
    while len(rest) >= 2:
        L.append(f"v_max3_f32 v{vT+k}, v{vT+k}, v{rest[0]}, v{rest[1]}"); rest = rest[2:]; k ^= 1
    L += [f"v_max_f32 v{vT}, v{vT}, v{vT+1}", f"v_mov_b32 v{vT+1}, v{vT}"]
    return L
def fill_c(Cr, off):
    L = [f"v_max_f32 v{vT}, v{vT}, v{vT+1}", f"v_sub_f32 v{Cr}, {f2h(-off)}, v{vT}", f"v_sub_f32 v{Cr+1}, {f2h(-off)}, v{vT}"]
    L += [f"v_mov_b64 v[{Cr+k}:{Cr+k+1}], v[{Cr}:{Cr+1}]" for k in range(2, 16, 2)]
    return "\n".join(L)
SWAP = f"v_permlane32_swap_b32 v{vT}, v{vT+1}"

def b_prologue(g):
    T1, TQ = ACC, ACC + 16
    g(f"v_mov_b64 v[{vT+4}:{vT+5}], -1\nv_mov_b64 v[{vT+6}:{vT+7}], -1\ns_nop 8")
    for k in range(8, 16, 2): g(f"v_pk_mul_f32 v[{TQ+k}:{TQ+k+1}], v[{TQ+k}:{TQ+k+1}], s[{sSC}:{sSC+1}]")
    for k in range(4): g(f"v_cvt_pk_bf16_f32 v{QB+k}, v{TQ+8+2*k}, v{TQ+9+2*k}")
    g.wlg('K0'); g("s_nop 0")
    nt = g.opt.get('m0t', 4)
    if nt > 1: g.wlg()
    for k in range(nt): g(f"v_mfma_f32_32x32x16_bf16 {r(STB[k],16)}, {r((KF[0], KF[1], KTB, KTB+4)[k],4)}, {r(QB,4)}, 0")
    for k in range(8): g(f"v_cvt_pk_bf16_f32 v{PF+k}, v{T1+2*k}, v{T1+2*k+1}")
    for k in range(0, 8, 2): g(f"v_pk_mul_f32 v[{TQ+k}:{TQ+k+1}], v[{TQ+k}:{TQ+k+1}], s[{sSC}:{sSC+1}]")
    L = max_tree(STB[:nt])
    for k, x in enumerate(L):
        g(x)
    g("s_nop 1")
    g(SWAP)
    g("s_nop 0")
    g(fill_c(C, g.opt.get('moff', MOFF)))
    g("s_nop 1")
    g(f"v_mfma_f32_32x32x16_bf16 {r(S0,16)}, {r(KF[0],4)}, {r(QB,4)}, {r(C,16)}")
    for k in range(4): g(f"v_cvt_pk_bf16_f32 v{QA+k}, v{TQ+2*k}, v{TQ+2*k+1}")
    g("s_nop 7")

def start_ops(g):
    def kv(k): return lambda: g.vmop(f"buffer_store_dwordx4 {r(PF+4*k,4)}, v{vKVST}, {sr(rWS)}, s{(sKV, sKV1)[k]} offen sc1", 'kvst')
    def sent():
        g(f"s_add_u32 s{sT1}, s{sOST}, {WS_O + 0x200000}")
        g.vmop(f"buffer_store_dwordx4 {r(vT+4,4)}, v{vL16}, {sr(rWS)}, s{sT1} offen sc1", 'sent')
    def gate():
        g(f"v_and_b32 v{vT}, 31, v1\nv_lshlrev_b32 v{vT}, 2, v{vT}\ns_lshl_b32 s{sT1}, s{sTB}, 2\ns_add_u32 s{sT1}, s{sT1}, s{sI}\ns_lshl_b32 s{sT1}, s{sT1}, 7\ns_add_u32 s{sT1}, s{sT1}, {WS_GATE}")
        g.vmop(f"buffer_load_dword v{vG}, v{vT}, {sr(rWS)}, s{sT1} offen sc1", 'gate')
    return kv(0), kv(1), sent, gate

def attn_consts(g):
    g(f"""
    v_mov_b32 v{vIDX}, 0xdddddddd
    v_lshrrev_b32 v{vT}, 5, v1
    v_and_b32 v{vT+1}, 15, v1
    v_lshl_add_u32 v{vT}, v{vT}, 4, v{vT+1}
    v_lshlrev_b32 v{vVOFF}, 4, v{vT}
    v_and_b32 v{vT}, 31, v1
    v_cmp_eq_u32 vcc, 16, v{vT}
    v_mov_b32 v{vT+1}, 0x3f803f80
    v_add_u32 v{vAK}, {8*SLOT}, v{vL16}
    v_cndmask_b32 v{vT+1}, 0, v{vT+1}, vcc
    v_add_u32 v{vAV}, {8*SLOT + 8192}, v{vVOFF}
    """)
    for k in range(16): g(f"v_mov_b32 v{V0[0]+k}, v{vT+1}")
    for Or in OACC:
        for k in range(0, 16, 2): g(f"v_mov_b64 v[{Or+k}:{Or+k+1}], 0")
    g(f"""
    s_lshl1_add_u32 s{sT1}, s{sHP}, s{sHI}
    s_lshl_b32 s{sDMA}, s{sT1}, 17
    s_lshl_b32 s{sT2}, s{sKQ}, 12
    s_add_u32 s{sDMA}, s{sDMA}, s{sT2}
    s_lshl1_add_u32 s{sT1}, s{sHP}, s{sB}
    s_lshl_b32 s{sT2}, s{sTB}, 2
    s_add_u32 s{sT2}, s{sT2}, s{sI}
    s_lshl_b32 s{sT2}, s{sT2}, 5
    s_add_u32 s{sT2}, s{sT2}, s{sT1}
    s_lshl_b32 s{sOST}, s{sT2}, 10
    """)

def tile(g, U, ev, pos):
    t = U & 7
    p = U & 1
    cur, nxt = (S0, S1) if p == 0 else (S1, S0)
    p1, pq, p0 = pos
    Qn = QB if U + 1 < 64 else QA
    def run(key):
        for f in ev.get((U, key), []): f()
    for i in range(16):
        if i == p1:
            if U > 0: g(f"v_smfmac_f32_32x32x32_bf16 {r(OACC[(U-1) >> 6],16)}, {r(V1[1-p],4)}, {r(nxt+8,8)}, v{vIDX}")
            run('m1')
            for o_ in g.opt.get('gord', 'mw01rk'):
                if o_ == 'w': g.wlg()
                if o_ == 'm' and U < 127: g(f"s_mov_b64 exec, s[{sMASK}:{sMASK+1}]")
                if o_ == '0' and U < 127: g.ds(f"ds_read_b128 {r(V0[1-p],4)}, v{vAV} offset:{((t + 1) & 7) * 1024}", 'kv')
                if o_ == '1' and U < 127: g.ds(f"ds_read_b128 {r(V1[1-p],4)}, v{vAV} offset:{((t + 1) & 7) * 1024 + 512}", 'kv')
                if o_ == 'r' and U < 127: g("s_mov_b64 exec, -1")
                if o_ == 'k' and U < 126: g.ds(f"ds_read_b128 {r(KF[p],4)}, v{vAK} offset:{((t + 2) & 7) * 1024}", 'kv')
            run('gap')
        if i == pq:
            if U < 127: g(f"v_mfma_f32_32x32x16_bf16 {r(nxt,16)}, {r(KF[1-p],4)}, {r(Qn,4)}, {r(C,16)}")
            run('mq')
        if i == p0:
            g(f"v_smfmac_f32_32x32x32_bf16 {r(OACC[U >> 6],16)}, {r(V0[p],4)}, {r(cur,8)}, v{vIDX}")
            run('m0')
        run(i)
        g(f"v_exp_f32 v{cur+i}, v{cur+i}")
    if U == 127:
        g("s_nop 1")
        g(f"v_smfmac_f32_32x32x32_bf16 {r(OACC[1],16)}, {r(V1[p],4)}, {r(cur+8,8)}, v{vIDX}")

def epilogue_parts(g, task):
    O = OACC[task]
    lo, hi = struct.unpack('<I', struct.pack('<f', 2.0**g.opt.get('lo', -110)))[0], struct.unpack('<I', struct.pack('<f', 2.0**120))[0]
    def p1():
        g(f"v_mov_b32 v{vT}, v{O+8}\nv_add_f32 v{vT+2}, |v{O}|, |v{O+1}|")
        for k in range(2, 8): g(f"v_add_f32 v{vT+2}, v{vT+2}, |v{O+k}|")
        g(f"v_permlane32_swap_b32 v{vT}, v{O+8}")
        g(f"v_subrev_u32 v{vT+2}, {lo}, v{vT+2}\ns_mov_b32 s{sT1}, {hi - lo}")
    def p2():
        g(f"v_subrev_u32 v{vT+3}, {lo}, v{vT}\nv_max_u32 v{vT+2}, v{vT+2}, v{vT+3}\nv_cmp_le_u32 vcc, s{sT1}, v{vT+2}")
        if g.opt.get('force_fb'): g("s_mov_b64 vcc, -1")
        g(f"s_nop 0\ns_cbranch_vccnz L_fallback{task}\nL_fbret{task}:\nv_rcp_f32 v{vT}, v{vT}")
        if task == 0: g(f"v_sub_f32 v{vT+3}, 1.0, v{vG}")
    def p3():
        g(f"v_mul_f32 v{vT}, v{vT}, v{vT+3 if task == 0 else vG}")
        for k in range(0, 8, 2): g(f"v_pk_mul_f32 v[{O+k}:{O+k+1}], v[{O+k}:{O+k+1}], v[{vT}:{vT+1}] op_sel_hi:[1,0]")
        for k in range(4): g(f"v_cvt_pk_bf16_f32 v{vT+4+k}, v{O+2*k}, v{O+2*k+1}")
        if task == 1:
            for k in range(4): g(f"v_min_u32 v{vT+4+k}, -2, v{vT+4+k}")
        g(f"s_add_u32 s{sT1}, s{sOST}, {WS_O + (0 if task == 0 else 0x200000)}")
        g.vmop(f"buffer_store_dwordx4 {r(vT+4,4)}, v{vL16}, {sr(rWS)}, s{sT1} offen sc1", 'ost')
    return p1, p2, p3

def fallback(g, task):
    Q, O = (QB, QA)[task], OACC[task]
    S_, C_, K_, A0, A1 = FB_S, FB_C, FB_K, FB_V0, FB_V1
    g(f"; ---- true-maximum path of task {'BA'[task]} ----\nL_fallback{task}:")
    if g.opt.get('fbcount'):
        g(f"v_mov_b32 v{vT}, 1\nv_mov_b32 v{vT+1}, 0\ns_mov_b64 exec, 1\nbuffer_atomic_add v{vT}, v{vT+1}, {sr(rDBG)}, 0 offen offset:128\ns_mov_b64 exec, -1")
    if task == 0: g(f"s_mov_b32 s{sFBBASE}, {WS_KVB}")
    else: g(f"s_lshl1_add_u32 s{sT1}, s{sHP}, s{sB}\ns_lshl_b32 s{sFBBASE}, s{sT1}, 17")
    g(f"v_and_b32 v{vT}, 31, v1\nv_cmp_eq_u32 vcc, 16, v{vT}\nv_mov_b32 v{vT+1}, 0x3f803f80\ns_nop 1\nv_cndmask_b32 v{vT+1}, 0, v{vT+1}, vcc")
    for k in range(8): g(f"v_mov_b32 v{A0+k}, v{vT+1}")
    g(f"v_mov_b32 v{vT}, 0xff800000\ns_mov_b32 s{sFBT}, 0")
    def addr():
        g(f"s_lshr_b32 s{sT1}, s{sFBT}, 3\ns_lshl_b32 s{sT1}, s{sT1}, 14\ns_and_b32 s{sT2}, s{sFBT}, 7\ns_lshl_b32 s{sT2}, s{sT2}, 10\ns_add_u32 s{sT1}, s{sT1}, s{sT2}\ns_add_u32 s{sT1}, s{sT1}, s{sFBBASE}")
    g(f"L_fb1_{task}:"); addr()
    g(f"buffer_load_dwordx4 {r(K_,4)}, v{vL16}, {sr(rWS)}, s{sT1} offen sc1\ns_waitcnt vmcnt(0)")
    g(f"v_mfma_f32_32x32x16_bf16 {r(S_,16)}, {r(K_,4)}, {r(Q,4)}, 0\ns_nop 15")
    for k in range(0, 16, 2): g(f"v_max3_f32 v{vT}, v{vT}, v{S_+k}, v{S_+k+1}")
    g(f"s_add_u32 s{sFBT}, s{sFBT}, 1\ns_cmp_lt_u32 s{sFBT}, 64\ns_cbranch_scc1 L_fb1_{task}")
    g(f"v_mov_b32 v{vT+1}, v{vT}\ns_nop 1\n{SWAP}\ns_nop 1")
    g(fill_c(C_, 0.0))
    for k in range(0, 16, 2): g(f"v_mov_b64 v[{O+k}:{O+k+1}], 0")
    g(f"s_mov_b32 s{sFBT}, 0")
    g(f"L_fb2_{task}:"); addr()
    g(f"buffer_load_dwordx4 {r(K_,4)}, v{vL16}, {sr(rWS)}, s{sT1} offen sc1\ns_add_u32 s{sT1}, s{sT1}, 8192")
    g(f"s_mov_b64 exec, s[{sMASK}:{sMASK+1}]")
    g(f"buffer_load_dwordx4 {r(A0,4)}, v{vVOFF}, {sr(rWS)}, s{sT1} offen sc1\nbuffer_load_dwordx4 {r(A1,4)}, v{vVOFF}, {sr(rWS)}, s{sT1} offen offset:512 sc1")
    g("s_mov_b64 exec, -1\ns_waitcnt vmcnt(0)")
    g(f"v_mfma_f32_32x32x16_bf16 {r(S_,16)}, {r(K_,4)}, {r(Q,4)}, {r(C_,16)}\ns_nop 15")
    for k in range(16): g(f"v_exp_f32 v{S_+k}, v{S_+k}")
    g("s_nop 2")
    g(f"v_smfmac_f32_32x32x32_bf16 {r(O,16)}, {r(A0,4)}, {r(S_,8)}, v{vIDX}")
    g(f"v_smfmac_f32_32x32x32_bf16 {r(O,16)}, {r(A1,4)}, {r(S_+8,8)}, v{vIDX}")
    g(f"s_nop 15\ns_add_u32 s{sFBT}, s{sFBT}, 1\ns_cmp_lt_u32 s{sFBT}, 64\ns_cbranch_scc1 L_fb2_{task}")
    g(f"v_mov_b32 v{vT}, v{O+8}\nv_mov_b32 v{vT+1}, v{O+8}\ns_nop 1\n{SWAP}\ns_nop 1\ns_branch L_fbret{task}")

def tail_addr(g):
    g(f"""
    v_lshrrev_b32 v{vT}, 3, v1
    v_bfe_u32 v{vT+1}, v1, 2, 1
    v_bfe_u32 v{vT+2}, v1, 4, 1
    v_xor_b32 v{vT+1}, v{vT+1}, v{vT+2}
    v_lshlrev_b32 v{vT+1}, 6, v{vT+1}
    v_lshl_add_u32 v{vT+1}, v{vT}, 10, v{vT+1}
    v_and_b32 v{vT+3}, 3, v1
    v_lshl_add_u32 v{vDWO}, v{vT+3}, 4, v{vT+1}
    v_lshrrev_b32 v{vT}, 5, v1
    v_bfe_u32 v{vT+1}, v1, 2, 2
    v_lshl_add_u32 v{vT}, v{vT}, 2, v{vT+1}
    v_lshlrev_b32 v{vT}, 7, v{vT}
    v_bfe_u32 v{vT+1}, v1, 3, 1
    v_lshl_add_u32 v{vT}, v{vT+1}, 6, v{vT}
    v_lshl_add_u32 v{vT}, v{vT+2}, 5, v{vT}
    v_lshl_add_u32 v{vT}, v{vT+3}, 3, v{vT}
    s_lshl_b32 s{sT1}, s{sKQ}, 13
    s_add_u32 s{sT1}, s{sT1}, {LDS_WOB}
    s_lshr_b32 s{sT2}, s{sHP}, 3
    s_lshl_b32 s{sT2}, s{sT2}, 15
    s_add_u32 s{sT1}, s{sT1}, s{sT2}
    v_add_u32 v{vAT+2}, s{sT1}, v{vT}
    v_xor_b32 v{vAT+3}, 64, v{vAT+2}
    s_lshl_b32 s{sT2}, s{sT2}, 1
    s_sub_u32 s{sT1}, s{sT1}, s{sT2}
    s_add_u32 s{sT1}, s{sT1}, 32768
    v_add_u32 v{vAT}, s{sT1}, v{vT}
    v_xor_b32 v{vAT+1}, 64, v{vAT}
    """)

def out_tile(g):
    if g.opt.get('split', 0): return f"s_lshr_b32 s{sT2}, s{sHP}, 3\ns_lshl1_add_u32 s{sT1}, s{sHI}, s{sT2}\ns_lshl2_add_u32 s{sT1}, s{sTB}, s{sT1}"
    return f"s_lshr_b32 s{sT2}, s{sHP}, 3\ns_lshl1_add_u32 s{sT1}, s{sT2}, s{sHI}\ns_lshl2_add_u32 s{sT1}, s{sTB}, s{sT1}"

def of_loads(g, branch, tag, dst=None):
    dst = OF if dst is None else dst
    def setup():
        g(f"""
        {out_tile(g)}
        s_lshl_b32 s{sT1}, s{sT1}, 15
        s_lshl_b32 s{sT2}, s{sKQ}, 12
        s_add_u32 s{sT1}, s{sT1}, s{sT2}
        s_add_u32 s{sT1}, s{sT1}, {WS_O + branch*0x200000}
        s_lshr_b32 s{sT2}, s{sHP}, 3
        s_lshl_b32 s{sT2}, s{sT2}, 14
        s_add_u32 s{sOF+1}, s{sT1}, s{sT2}
        s_sub_u32 s{sT1}, s{sT1}, s{sT2}
        s_add_u32 s{sOF}, s{sT1}, 16384
        """)
    def op(n): return lambda: g.vmop(f"buffer_load_dwordx4 {r(dst+4*n,4)}, v{vL16}, {sr(rWS)}, s{sOF + (n >> 2)} offen offset:{(n&3)*1024} sc1", f'{tag}{n}')
    return [setup] + [op(n) for n in range(8)]

def wfrag_reads(g, n, base, tag):
    for tc in range(2):
        for e in range(2):
            g.ds(f"ds_read_b64_tr_b16 {r(WF+8*n+4*tc+2*e,2)}, v{vAT+2*(n>>2)+tc} offset:{base+(n&3)*2048+e*1024}", f'{tag}{n}')

def tail(g):
    OA = PF
    p1, p2, p3 = epilogue_parts(g, 1)
    fa = of_loads(g, 1, 'OA', OA)
    oat = list(g.opt.get('oat', (8, 8, 8, 8, 9, 9, 10, 10)))
    for n in range(3): wfrag_reads(g, n, 0, 'w')
    p1(); g("s_nop 0"); p2(); fa[0](); p3()
    split = g.opt.get('split', 0)
    if split: g.half(0, "s_setprio 0")
    g.stamp('A')
    g.jitter(200)
    t1at = g.opt.get('t1at', 5 if split else 0)
    g.wvm('OB7')
    if t1at == 0:
        g.wvm('WoA1'); g("s_barrier")
    g.stamp('T1')
    DA = LDS_WOA - LDS_WOB
    nload = 0
    for n in range(8):
        g.wlg(f'w{n}')
        for tc in range(2):
            c = "0" if n == 0 else r(ACC+16*tc, 16)
            g(f"v_mfma_f32_32x32x16_bf16 {r(ACC+16*tc,16)}, {r(WF+8*n+4*tc,4)}, {r(OF+4*n,4)}, {c}")
        if n == t1at and n > 0:
            if split: g.half(0, f"s_waitcnt vmcnt({g.count('WoA1')})\ns_barrier")
            else: g.wvm('WoA1'); g("s_barrier")
        if n + 3 < 8: wfrag_reads(g, n + 3, 0, 'w')
        else: wfrag_reads(g, n - 5, 0, 'x')
        if n in (1, 5):
            for k in range(2): g(f"v_add_u32 v{vAT + (n >> 2) * 2 + k}, {DA}, v{vAT + (n >> 2) * 2 + k}")
        for k in range(8):
            if oat[k] == n: fa[1 + k]()
    g.stamp('bp')
    for n in range(3, 8):
        g.wlg(f'x{n-3}')
        wfrag_reads(g, n, 0, 'x')
        for k in range(8):
            if oat[k] == n + 5: fa[1 + k]()
    full = g.opt.get('red', 'full') == 'full'
    if full:
        RW = 80
        g(f"""
        v_and_b32 v{vT}, 31, v1
        v_lshrrev_b32 v{vT+1}, 5, v1
        v_and_b32 v{vT+2}, 15, v1
        v_xor_b32 v{vT+1}, v{vT+1}, v{vT+2}
        v_lshlrev_b32 v{vT+1}, 4, v{vT+1}
        v_lshl_add_u32 v{vT}, v{vT}, 8, v{vT+1}
        s_lshl_b32 s{sT1}, s{sW}, 13
        v_add_u32 v{RW}, s{sT1}, v{vT}
        v_lshrrev_b32 v{vT}, 3, v1
        s_lshl_b32 s{sT1}, s{sKQ}, 3
        v_add_u32 v{vT}, s{sT1}, v{vT}
        v_and_b32 v{vT+1}, 7, v1
        v_lshlrev_b32 v{vT+2}, 1, v{vT+1}
        v_and_b32 v{vT+3}, 15, v{vT}
        v_xor_b32 v{vT+2}, v{vT+2}, v{vT+3}
        v_lshlrev_b32 v{vT+2}, 4, v{vT+2}
        v_lshl_add_u32 v{vT+2}, v{vT}, 8, v{vT+2}
        s_lshl_b32 s{sT1}, s{sHI}, 15
        v_add_u32 v{RW+8}, s{sT1}, v{vT+2}
        v_xor_b32 v{RW+9}, 16, v{RW+8}
        {out_tile(g)}
        s_lshl_b32 s{sT1}, s{sT1}, 5
        v_add_u32 v{vT}, s{sT1}, v{vT}
        v_lshlrev_b32 v{vT}, 10, v{vT}
        v_lshl_add_u32 v{vT}, v{vT+1}, 4, v{vT}
        s_and_b32 s{sT2}, s{sHP}, 7
        s_lshl_b32 s{sT2}, s{sT2}, 7
        v_add_u32 v{vOUTA}, s{sT2}, v{vT}
        """)
        for k in range(1, 8): g(f"v_xor_b32 v{RW+k}, {k*32}, v{RW}")
    g.wlg()
    if split: g.half(1, "s_barrier\ns_barrier")
    elif g.opt.get('t2early', 1): g("s_barrier")
    g.stamp('poll')
    def check(q, bad):
        R = OA + 16 * q
        g(f"v_max3_u32 v{vT}, v{R}, v{R+1}, v{R+2}\nv_max3_u32 v{vT+1}, v{R+3}, v{R+4}, v{R+5}")
        for k in range(6, 16, 4):
            g(f"v_max3_u32 v{vT}, v{vT}, v{R+k}, v{R+k+1}")
            if k + 3 < 16: g(f"v_max3_u32 v{vT+1}, v{vT+1}, v{R+k+2}, v{R+k+3}")
        g(f"v_max_u32 v{vT}, v{vT}, v{vT+1}\nv_cmp_eq_u32 vcc, -1, v{vT}\ns_nop 0\ns_cbranch_vccnz {bad}")
        for tc in range(2):
            for n in range(4 * q, 4 * q + 4):
                g(f"v_mfma_f32_32x32x16_bf16 {r(ACC+16*tc,16)}, {r(WF+8*n+4*tc,4)}, {r(OA+4*n,4)}, {r(ACC+16*tc,16)}")
    g(f"s_mov_b32 s{sDS}, 0")
    for q in range(2):
        sk, bad = g.lab("L_oa"), g.lab("L_ob")
        g.wvm(f'OA{4*q+3}')
        check(q, bad)
        g(f"s_branch {sk}\n{bad}:\ns_bitset1_b32 s{sDS}, {q}\n{sk}:")
    g.stamp('pass1')
    g(f"L_oa_loop:\ns_cmp_eq_u32 s{sDS}, 0\ns_cbranch_scc1 L_oa_done")
    spin_check(g)
    for q in range(2):
        sk = g.lab("L_oc")
        g(f"s_bitcmp1_b32 s{sDS}, {q}\ns_cbranch_scc0 {sk}")
        for n in range(4 * q, 4 * q + 4): fa[1 + n]()
        g.vm = []
        g(f"{sk}:")
    g("s_waitcnt vmcnt(0)")
    for q in range(2):
        sk = g.lab("L_od")
        g(f"s_bitcmp1_b32 s{sDS}, {q}\ns_cbranch_scc0 {sk}")
        check(q, sk)
        g(f"s_bitset0_b32 s{sDS}, {q}\n{sk}:")
    g("s_branch L_oa_loop\nL_oa_done:")
    g.stamp('mm')
    g.jitter(201)
    if full:
        if split: g.half(0, "s_barrier")
        elif not g.opt.get('t2early', 1): g("s_barrier")
        g("s_nop 5")
        for tc in range(2):
            if tc == 1: g("s_nop 1")
            for q in range(4): g.ds(f"ds_write_b128 v{RW+4*tc+q}, {r(ACC+16*tc+4*q,4)}", 'rw')
        g.wlg()
        g("s_barrier")
        g.stamp('red')
        for kq in range(4):
            for e in range(2): g.ds(f"ds_read_b128 {r(16+8*kq+4*e,4)}, v{RW+8+e} offset:{kq*8192}", f'rr{kq}')
        g.wlg('rr1')
        for k in range(0, 8, 2): g(f"v_pk_add_f32 v[{16+k}:{17+k}], v[{16+k}:{17+k}], v[{24+k}:{25+k}]")
        g.wlg('rr3')
        for k in range(0, 8, 2): g(f"v_pk_add_f32 v[{32+k}:{33+k}], v[{32+k}:{33+k}], v[{40+k}:{41+k}]")
        for k in range(0, 8, 2): g(f"v_pk_add_f32 v[{16+k}:{17+k}], v[{16+k}:{17+k}], v[{32+k}:{33+k}]")
        for k in range(4): g(f"v_cvt_pk_bf16_f32 v{16+k}, v{16+2*k}, v{17+2*k}")
        g.vmop(f"buffer_store_dwordx4 v[16:19], v{vOUTA}, {sr(rOUT)}, 0 offen {g.opt.get('outsc', 'nt')}", 'out')

def schedule(g):
    o = g.opt
    ev = {}
    def at(T, key, *fs): ev.setdefault((T, key), []).extend(fs)
    dpos = o.get('dpos', ((2, 'm0'), (3, 'm0'), (4, 'm0'), (5, 'm0')))
    pp = o.get('pp', {(2, 'mq'): 3, (5, 'm0'): 2, (0, 'm0'): 1, (1, 'mq'): 0})
    def wave0(*fs): return lambda: g.wave0(*fs)
    def flag(base, hi, lo):
        return lambda: flag_store(g, f"s_lshl_b32 s{sT1}, s{hi}, 7\ns_lshl_b32 s{sT2}, s{lo}, 2\ns_add_u32 s{sT1}, s{sT1}, s{sT2}\ns_add_u32 s{sT1}, s{sT1}, {base}")
    def slot(gi): return slotB(gi) if gi < 8 else slotA(gi - 8)
    def vadd(reg, src, gi):
        d = ((slot(gi + 1) - slot(gi)) * SLOT) & 0xffffffff
        if gi != 7: return lambda: g(f"v_add_u32 v{reg}, {d}, v{src}")
        return lambda: g(f"s_lshl_b32 s{sT1}, s{sB}, 14\ns_add_u32 s{sT1}, s{sT1}, {d}\nv_add_u32 v{reg}, s{sT1}, v{src}")
    nt = o.get('m0t', 4)
    at(59, 0, vadd(vT + 3, vAK, 7))
    for k in range(nt):
        at(59, 'gap', lambda k=k: g.ds(f"ds_read_b128 {r(KTMP+4*k,4)}, v{vT+3} offset:{k*1024}", 'kv'))
        at(60 + k // 2, 7 if k % 2 == 0 else 13, lambda k=k: g(f"v_mfma_f32_32x32x16_bf16 {r(STMP[k],16)}, {r(KTMP+4*k,4)}, {r(QA,4)}, 0"))
    L = max_tree(STMP[:nt])
    if nt > 2:
        at(61, 6, lambda: g("\n".join(L[:8]))); at(62, 1, lambda: g("\n".join(L[8:16]))); at(62, 6, lambda: g("\n".join(L[16:])))
    else:
        at(61, 6, lambda: g("\n".join(L[:8]))); at(62, 6, lambda: g("\n".join(L[8:])))
    at(62, 8, lambda: g(SWAP))
    at(62, 12, lambda: g(fill_c(C, o.get('moff', MOFF))))
    e1, e2, e3 = epilogue_parts(g, 0)
    at(65, 0, e1); at(65, 1, e2); at(65, 6, e3, lambda: g.stamp('B'))
    fs = dma_B(g, 2, 0, 'G1')
    at(0, 6, fs[0], fs[1]); at(0, 13, fs[2]); at(1, 1, fs[3]); at(1, 6, fs[4])
    k0, k1, sent, gate = start_ops(g)
    at(4, 6, k0); at(5, 6, k1); at(6, 6, sent); at(7, 6, gate)
    for U in (3, 17, 30, 63, 70, 90, 111, 125): at(U, 9, lambda U=U: g.jitter(U))
    for gi in range(16):
        T0 = 8 * gi
        ppc = dict(pp)
        if gi == 15 and o.get('split', 0):
            ppc = {k: v for k, v in pp.items() if k[0] < 2}
            at(T0 + 1, 11, lambda: g(f"s_setprio 1"), lambda: g.half(0, "s_setprio 3"))
            tl = o.get('t1late', (5, 'm0'))
            at(T0 + tl[0], tl[1], lambda: g.half(1, f"s_waitcnt vmcnt({g.count('WoA1')})\ns_barrier"))
        elif gi == 15:
            ppc = {k: v for k, v in pp.items() if k[0] < 2}
            ppc.update(o.get('pplast', {(2, 'm1'): 3, (3, 'm0'): 2, (5, 'm0'): 1, (7, 'm1'): 0}))
        for (t, key), pr in ppc.items(): at(T0 + t, key, lambda pr=pr: g(f"s_setprio {pr}"))
        if gi < 15:
            at(T0 + 6, 0, vadd(vAK, vAK, gi))
            at(T0 + 7, 0, vadd(vAV, vAV, gi))
        wait = {1: 'G1', 2: 'kvst', 3: 'G3', 4: None, 7: 'A0', 8: 'A1', 9: 'A2', 10: 'ost', 11: 'A4', 12: 'A5', 13: 'A6', 14: 'WoB0', 15: 'WoB1'}
        if gi == 4: at(T0 + 1, 1, lambda: g.wvm(), wave0(lambda: poll_check(g)))
        if gi == 14: at(T0 + 1, 1, lambda: g.wvm('WoB0'), wave0(lambda: poll_check(g)))
        if gi in wait: at(T0 + 1, 'm0', lambda w=wait[gi]: g.wvm(w))
        if gi not in o.get('nobar', ()): at(T0 + 1, 'm0', lambda: g("s_barrier"))
        at(T0 + 1, 'm0', lambda gi=gi: g.stamp(f'g{gi}'))
        grp = {0: lambda: dma_B(g, 4, 2, 'G2'), 1: lambda: dma_B(g, 6, 4, 'G3'),
               4: lambda: dma_A(g, 0, 6, 'A0'), 5: lambda: dma_A(g, 1, 8, 'A1'), 6: lambda: dma_A(g, 2, 0, 'A2'), 7: lambda: dma_A(g, 3, 2, 'A3'),
               8: lambda: dma_A(g, 4, 4, 'A4'), 9: lambda: dma_A(g, 5, 6, 'A5'), 10: lambda: dma_A(g, 6, 8, 'A6'), 11: lambda: dma_A(g, 7, 0, 'A7'),
               12: lambda: dma_Wo(g, rWOB, 0, LDS_WOB, 'WoB0'), 13: lambda: dma_Wo(g, rWOB, 1, LDS_WOB, 'WoB1'),
               14: lambda: dma_Wo(g, rWOA, 0, LDS_WOA, 'WoA0'), 15: lambda: dma_Wo(g, rWOA, 1, LDS_WOA, 'WoA1')}
        if gi == 13: at(T0 + 2, 0, wave0(lambda: poll_issue(g, 3)))
        if gi in grp:
            fs = grp[gi]()
            dp_ = o.get('dlast', ((1, 11), (1, 12), (1, 13), (1, 14))) if gi == 15 and o.get('split', 0) else dpos
            at(T0 + dp_[0][0], dp_[0][1], fs[0])
            for (t, i), f in zip(dp_, fs[1:]): at(T0 + t, i, f)
        if gi == 2: at(T0 + 2, 6, wave0(flag(WS_F2, sHP, sTB)))
        if gi == 3:
            at(T0 + 4, 6, wave0(lambda: poll_issue(g, 2)))
        if gi == 10: at(T0 + 4, 6, wave0(flag(WS_F3, sTB, sHP)))
        if gi == 13 and o.get('wopf', 1):
            def wopf():
                g(f"s_and_b32 s{sT1}, s{sTB}, 3\ns_lshl_b32 s{sT1}, s{sT1}, 13\ns_add_u32 s{sT1}, s{sT1}, s{sDS}\ns_add_u32 s{sT1}, s{sT1}, 262144")
                g.vmop(f"buffer_load_dwordx4 {r(208,4)}, v{vDWO}, {sr(rWOA)}, s{sT1} offen", 'pf')
            at(T0 + 5, 6, wopf)
        if gi == 12 and o.get('outpf', 0):
            def outpf():
                g(f"s_lshl_b32 s{sT1}, s{sTB}, 1\ns_lshr_b32 s{sT2}, s{sHP}, 3\ns_add_u32 s{sT1}, s{sT1}, s{sT2}\ns_lshl3_add_u32 s{sT1}, s{sT1}, s{sW}\ns_lshl_b32 s{sT1}, s{sT1}, 13" if False else
                  f"s_lshl_b32 s{sT1}, s{sTB}, 1\ns_lshr_b32 s{sT2}, s{sHP}, 3\ns_add_u32 s{sT1}, s{sT1}, s{sT2}\ns_lshl3_add_u32 s{sT1}, s{sT1}, s{sW}\ns_lshl_b32 s{sT1}, s{sT1}, 13\ns_and_b32 s{sT2}, s{sHP}, 7\ns_lshl_b32 s{sT2}, s{sT2}, 7\ns_add_u32 s{sT1}, s{sT1}, s{sT2}")
                g(f"v_lshlrev_b32 v{vT}, 10, v1\ns_mov_b64 exec, {255 if o.get('outpf') == 1 else 1}")
                g.vmop(f"buffer_load_dword v212, v{vT}, {sr(rOUT)}, s{sT1} offen", 'pf')
                g("s_mov_b64 exec, -1")
            at(T0 + 6, 6, outpf)
        if gi == 14:
            fs = of_loads(g, 0, 'OB')
            at(T0 + 4, 6, fs[0])
            for n, f in enumerate(fs[1:]): at(T0 + 4 + n // 2, 6 if n % 2 == 0 else 13, f)
    return ev

def slotB(c): return (8 + c) % 10
def slotA(c): return 2 * ((3 + c) % 5)

def build(**opt):
    g = G(**opt)
    setup(g)
    fork = (list(g.lg), list(g.vm)); nst0 = g.nst
    g(f"s_bitcmp1_b32 s{sHP}, 0\ns_cbranch_scc1 L_p1b")
    g("; ---- projection: 8 chunks of 64 k, K variant (L_p1a) and V variant (L_p1b) ----")
    g("L_p1a:")
    phase1(g, 0)
    end0 = (list(g.lg), list(g.vm))
    g("s_branch L_p1done\nL_rare0:")
    main0 = g.L; g.L = []
    g.lg, g.vm = list(fork[0]), list(fork[1]); g.nst = nst0
    phase1(g, 1)
    var1 = g.L; g.L = main0
    if g.opt.get('rnear', 1): g.L += g.cold; g.cold = []
    g("L_p1b:")
    g.L += var1
    assert end0 == (g.lg, g.vm), (end0, g.lg, g.vm)
    g("L_p1done:")
    g.stamp('p1')
    g("; ---- start of attention B: scale Q, stand-in maximum ----")
    b_prologue(g)
    g.stamp('t0')
    ev = schedule(g)
    for U in range(128): tile(g, U, ev, opt.get('pos', (2, 5, 10)))
    tail(g)
    if opt.get('stamps'):
        g.stamp('end')
        g(f"s_lshl_b32 s{sT1}, s2, 3\ns_add_u32 s{sT1}, s{sT1}, s{sW}\ns_lshl_b32 s{sT1}, s{sT1}, 6\ns_add_u32 s{sT1}, s{sT1}, {WS_DBG}")
        g("s_waitcnt lgkmcnt(0)")
        for k in range(12): g(f"v_mov_b32 v{16+k}, s{STAMP_SLOTS[min(k, g.nst-1)]}")
        g(f"v_mov_b32 v30, 0\ns_mov_b64 exec, 1")
        for k in range(3): g(f"buffer_store_dwordx4 v[{16+4*k}:{19+4*k}], v30, {sr(rWS)}, s{sT1} offen offset:{16*k}")
    if opt.get('dbgst'):
        sk = w0(g)
        g("s_waitcnt vmcnt(0) lgkmcnt(0)")
        last = STAMP_SLOTS[g.nst - 1]
        g(f"v_mov_b32 v16, s{last}\ns_not_b32 s{sT1}, s{STAMP_SLOTS[0]}\nv_mov_b32 v17, s{sT1}\nv_mov_b32 v30, 0\ns_mov_b64 exec, 1")
        g(f"buffer_atomic_umax v16, v30, {sr(rDBG)}, 0 offen offset:4\nbuffer_atomic_umax v17, v30, {sr(rDBG)}, 0 offen offset:8")
        sk2 = g.lab("L_d2")
        g(f"s_cmp_lg_u32 s2, {opt['dbgst'] - 1}\ns_cbranch_scc1 {sk2}")
        for k in range(12): g(f"s_sub_u32 s{sT1}, s{STAMP_SLOTS[min(k, g.nst-1)]}, s{STAMP_SLOTS[0]}\nv_mov_b32 v{16+k}, s{sT1}")
        g(f"v_mov_b32 v16, s{STAMP_SLOTS[0]}")
        for k in range(3): g(f"buffer_store_dwordx4 v[{16+4*k}:{19+4*k}], v30, {sr(rDBG)}, 0 offen offset:{16+16*k}")
        g(f"{sk2}:\ns_mov_b64 exec, -1\n{sk}:")
    if opt.get('spinend'):
        base, idx, mult = opt['spinend']
        sk = w0(g); sk2 = g.lab("L_sp")
        g(f"s_cmp_lg_u32 s2, {opt.get('spinwg', 0)}\ns_cbranch_scc1 {sk}\ns_waitcnt vmcnt(0) lgkmcnt(0)")
        g(f"s_sub_u32 s{sT1}, s{STAMP_SLOTS[idx]}, s{STAMP_SLOTS[0]}\ns_mul_i32 s{sT1}, s{sT1}, {mult}\ns_add_u32 s{sT1}, s{sT1}, {base*100}")
        g(f"{sk2}:\ns_memrealtime s[{sPC}:{sPC+1}]\ns_waitcnt lgkmcnt(0)\ns_sub_u32 s{sT2}, s{sPC}, s{STAMP_SLOTS[0]}\ns_cmp_lt_u32 s{sT2}, s{sT1}\ns_cbranch_scc1 {sk2}")
        g(f"{sk}:")
    if opt.get('spinrel'):
        a_, b_, mult, shift = opt['spinrel']
        sk = w0(g); sk2 = g.lab("L_sq")
        g(f"s_cmp_lg_u32 s2, {opt.get('spinwg', 0)}\ns_cbranch_scc1 {sk}\ns_waitcnt vmcnt(0) lgkmcnt(0)")
        g(f"s_sub_u32 s{sT1}, s{STAMP_SLOTS[b_]}, s{STAMP_SLOTS[a_]}\ns_mul_i32 s{sT1}, s{sT1}, {mult}\ns_lshr_b32 s{sT1}, s{sT1}, {shift}")
        g(f"s_memrealtime s[{sSC}:{sSC+1}]\ns_waitcnt lgkmcnt(0)")
        g(f"{sk2}:\ns_memrealtime s[{sPC}:{sPC+1}]\ns_waitcnt lgkmcnt(0)\ns_sub_u32 s{sT2}, s{sPC}, s{sSC}\ns_cmp_lt_u32 s{sT2}, s{sT1}\ns_cbranch_scc1 {sk2}")
        g(f"{sk}:")
    if opt.get('spinconst'):
        sk = w0(g); sk2 = g.lab("L_sc")
        g(f"s_waitcnt vmcnt(0) lgkmcnt(0)\ns_memrealtime s[{sSC}:{sSC+1}]\ns_waitcnt lgkmcnt(0)")
        g(f"{sk2}:\ns_memrealtime s[{sPC}:{sPC+1}]\ns_waitcnt lgkmcnt(0)\ns_sub_u32 s{sT2}, s{sPC}, s{sSC}\ns_cmp_lt_u32 s{sT2}, {opt['spinconst']}\ns_cbranch_scc1 {sk2}")
        g(f"{sk}:")
    g("L_abort:\ns_endpgm")
    g.L += g.cold
    fallback(g, 0)
    fallback(g, 1)
    g("L_end:\ns_endpgm\nL_codeend:")
    hdr = open('gated_mix__mha_block__grouped_kv_mqa__prompt.s.ref').read().split("; Override launch")[0]
    out = hdr + """; One fused launch, one workgroup per CU (256 workgroups x 8 waves, generated by gen/gen.py):
;   workgroup (tb, hp) owns 128 tokens and head pair hp of both branches.
;   1. 16 tokens of K_B (or V_B) and the gate are computed first and published;
;   2. projection: Q_A, Q_B stay in registers, K_A / V_A of a head quad are published;
;   3. attention B then attention A, one 32-query tile per wave: S^T = K Q^T + C by MFMA, exp2 in place,
;      P V and the row sum by sparse MFMA that reads the high halves of the f32 probabilities;
;      C is minus (maximum over the first 128 keys + 102); the row sum and the accumulators are range-checked and
;      a wave whose check fails redoes its tile with the true row maximum (L_fallback*);
;   4. gated output projection of a 64 x 64 tile from the published attention outputs.
;   Hand-offs between workgroups: write-through stores, then flags carrying a per-launch value that no flag slot held
;   at entry (agreed through d_debug); the last hand-off is recognised by the absence of an all-ones fill written earlier.
"""
    out += "; @launch grid=(256,1,1) block=(512,1,1) lds=163840\n"
    out += f""".amdgcn_target "amdgcn-amd-amdhsa--gfx950"
.text
.globl {NAME}
.p2align 8
.type {NAME},@function
{NAME}:
{g.text()}.section .rodata,"a"
.p2align 6
.amdhsa_kernel {NAME}
  .amdhsa_next_free_vgpr 256
  .amdhsa_next_free_sgpr 102
  .amdhsa_accum_offset 256
  .amdhsa_group_segment_fixed_size 0
  .amdhsa_kernarg_size 96
  .amdhsa_user_sgpr_count 2
  .amdhsa_user_sgpr_kernarg_segment_ptr 1
  .amdhsa_system_sgpr_workgroup_id_x 1
.end_amdhsa_kernel
"""
    return out

if __name__ == "__main__":
    path = sys.argv[1] if len(sys.argv) > 1 else 'gated_mix__mha_block__grouped_kv_mqa__prompt.s'
    opt = {}
    for a in sys.argv[2:]:
        k, _, v = a.partition('=')
        opt[k] = eval(v) if v else True
    open(path, 'w').write(build(**opt))
```
